```python
import torch

def _softmax(x, axis=-1):
    return torch.softmax(x, dim=axis)

def _gelu(x):
    return torch.nn.functional.gelu(x, approximate='tanh')

def _silu(x):
    return torch.nn.functional.silu(x)

def _sigmoid(x):
    return torch.sigmoid(x)

def _layernorm(x, axis=-1, eps=1e-05):
    m = x.mean(dim=axis, keepdim=True)
    v = x.var(dim=axis, keepdim=True, unbiased=False)
    return (x - m) / torch.sqrt(v + eps)

def _scatter_add(tgt, idx, src, axis=0):
    return tgt.clone().index_add_(axis, idx, src)

def _segment_sum(src, seg, n):
    out = torch.zeros((n,) + src.shape[1:], dtype=src.dtype)
    return out.index_add_(0, seg, src)

def _pad(x, pw):
    flat = tuple((v for pair in reversed(pw) for v in pair))
    return torch.nn.functional.pad(x, flat)
kernel_name = 'adaLN_cond__ssm_conv_s4d__geglu_ffn__prompt'

def setup_inputs():

    _w = lambda a: (lambda t: t.to(torch.bfloat16) if t.is_floating_point() else t)(torch.as_tensor(a))

    def _A_setup():
        Bsz, L, D, N = (1, 2048, 640, 192)
        return {'u': _w((lambda *s: torch.randn(*s, dtype=torch.bfloat16) * 0.05)(Bsz, L, D)), 'log_A_real': _w((lambda *s: torch.randn(*s, dtype=torch.bfloat16) * 3.2)(D, N) * 0.5), 'A_imag': _w((lambda *s: torch.randn(*s, dtype=torch.bfloat16) * 0.1)(D, N) * 3.14), 'C_real': _w((lambda *s: torch.randn(*s, dtype=torch.bfloat16) * 0.4)(D, N) / N ** 0.5), 'C_imag': _w((lambda *s: torch.randn(*s, dtype=torch.bfloat16) * 0.4)(D, N) / N ** 0.5), 'log_dt': _w((lambda *s: torch.randn(*s, dtype=torch.bfloat16) * 0.1)(D) * 0.5 - 4.0), 'D_skip': _w((lambda *s: torch.randn(*s, dtype=torch.bfloat16) * 0.1)(D))}
    _A_in = _A_setup()

    def _B_setup():
        B, S, D, F = (1, 2048, 640, 1536)
        return {'x': _w((lambda *s: torch.randn(*s, dtype=torch.bfloat16) * 0.05)(B, S, D)), 'w_gate': _w((lambda *s: torch.randn(*s, dtype=torch.bfloat16) * 0.05)(D, F)), 'w_up': _w((lambda *s: torch.randn(*s, dtype=torch.bfloat16) * 0.05)(D, F)), 'w_down': _w((lambda *s: torch.randn(*s, dtype=torch.bfloat16) * 0.05)(F, D))}
    _B_in = _B_setup()
    return {'A_u': _A_in['u'], 'A_log_A_real': _A_in['log_A_real'], 'A_A_imag': _A_in['A_imag'], 'A_C_real': _A_in['C_real'], 'A_C_imag': _A_in['C_imag'], 'A_log_dt': _A_in['log_dt'], 'A_D_skip': _A_in['D_skip'], 'B_x': _B_in['x'], 'B_w_gate': _B_in['w_gate'], 'B_w_up': _B_in['w_up'], 'B_w_down': _B_in['w_down'], 'c': _w((lambda *s: torch.randn(*s, dtype=torch.bfloat16) * 0.2)(1, 640) * 8.0), 'w_mod': _w((lambda *s: torch.randn(*s, dtype=torch.bfloat16) * 0.2)(640, 6 * 640) * 640 ** (-0.5) * 8.0)}

def reference(A_u, A_log_A_real, A_A_imag, A_C_real, A_C_imag, A_log_dt, A_D_skip, B_x, B_w_gate, B_w_up, B_w_down, c, w_mod):

    def _A_ref(u, log_A_real, A_imag, C_real, C_imag, log_dt, D_skip):
        L = u.shape[1]
        dt = torch.exp(log_dt)
        A = -torch.exp(log_A_real) + 1j * A_imag
        C = (C_real + 1j * C_imag) * dt[:, None]
        pos = (lambda x, dt: x.to(dt))(torch.arange(L), log_dt.dtype)
        P = torch.exp((A * dt[:, None])[:, :, None] * pos[None, None, :])
        K = 2.0 * torch.einsum('dn,dnl->dl', C, P).real
        L2 = 2 * L
        u_t = (lambda x, *d: x.permute(*d))(u, 0, 2, 1)
        Kf = (lambda x, *a, **k: torch.fft.rfft(x.float(), *a, **k))(K, L2)
        Uf = (lambda x, *a, **k: torch.fft.rfft(x.float(), *a, **k))(u_t, L2)
        y = (lambda x, *a, **k: torch.fft.irfft(x, *a, **k).to(torch.bfloat16))(Uf * Kf[None, :, :], L2)[:, :, :L]
        y = (lambda x, *d: x.permute(*d))(y, 0, 2, 1)
        return y + u * D_skip[None, None, :]

    def _B_ref(x, w_gate, w_up, w_down):
        return _gelu(x @ w_gate) * (x @ w_up) @ w_down
    x = A_u
    mod = (_silu(c) @ w_mod).reshape(c.shape[0], 6, 1, -1)
    sa, ca, ga, sb, cb, gb = (mod[:, 0].clone(), mod[:, 1].clone(), mod[:, 2].clone(), mod[:, 3].clone(), mod[:, 4].clone(), mod[:, 5].clone())
    h = _layernorm(x, axis=-1) * (1 + ca) + sa
    x = x + ga * _A_ref(h, A_log_A_real, A_A_imag, A_C_real, A_C_imag, A_log_dt, A_D_skip)
    h = _layernorm(x, axis=-1) * (1 + cb) + sb
    x = x + gb * _B_ref(h, B_w_gate, B_w_up, B_w_down)
    return x
```

```python
import re

class K:
    def __init__(self, name):
        self.name = name
        self.lines = []
        self.uid = 0
    def __call__(self, s):
        for ln in s.split('\n'):
            ln = ln.strip()
            if ln:
                self.lines.append(ln)
        return self
    def label(self, l):
        self.lines.append(l + ':')
    def newlabel(self, p='L'):
        self.uid += 1
        return f'{p}_{self.name}_{self.uid}'

_reg_re = re.compile(r'^(-?)(\|?)([vas])(?:(\d+)|\[(\d+):(\d+)\])(\|?)$')
def parse_reg(tok):
    tok = tok.strip()
    tok = re.sub(r'^(neg|abs)\((.*)\)$', r'\2', tok)
    m = _reg_re.match(tok)
    if m:
        f = m.group(3)
        if m.group(4) is not None:
            lo = hi = int(m.group(4))
        else:
            lo, hi = int(m.group(5)), int(m.group(6))
        return [(f, i) for i in range(lo, hi + 1)]
    if tok == 'vcc': return [('s', 'vcc')]
    if tok in ('vcc_lo', 'vcc_hi'): return [('s', 'vcc')]
    if tok == 'exec': return [('s', 'exec')]
    if tok == 'm0': return [('s', 'm0')]
    return []

TRANS = ('v_exp_f32', 'v_log_f32', 'v_rcp_f32', 'v_rsq_f32', 'v_sqrt_f32', 'v_sin_f32', 'v_cos_f32', 'v_rcp_iflag_f32')
def split_ops(s):
    out, depth, cur = [], 0, ''
    for ch in s:
        if ch == '[': depth += 1
        if ch == ']': depth -= 1
        if ch == ',' and depth == 0:
            out.append(cur.strip()); cur = ''
        else:
            cur += ch
    if cur.strip(): out.append(cur.strip())
    return out

class I:
    def __init__(self, text):
        self.text = text
        t = text.split(';')[0].strip()
        self.is_label = t.endswith(':')
        self.dst = []; self.src = []; self.kind = 'other'
        self.mn = ''
        self.nop = 0
        if self.is_label or not t or t.startswith('.'):
            self.kind = 'label' if self.is_label else 'dir'
            return
        parts = t.split(None, 1)
        mn = parts[0]
        self.mn = mn = re.sub(r'_(e32|e64|dpp|sdwa)$', '', mn)
        rest = parts[1] if len(parts) > 1 else ''
        ops = split_ops(rest)
        mods = ''
        if ops:
            last = ops[-1].split()
            if len(last) > 1:
                ops[-1] = last[0]; mods = ' '.join(last[1:])
        self.mods = mods
        self.dpp = ('row_' in rest or 'wave_' in rest or 'quad_perm' in rest)
        R = [parse_reg(o) for o in ops]
        flat = lambda l: [x for y in l for x in y]
        if mn == 's_nop':
            self.kind = 'nop'; self.nop = int(ops[0], 0) + 1
        elif mn.startswith('v_mfma'):
            self.kind = 'mfma'
            self.dst = R[0]; self.a = R[1]; self.b = R[2]; self.c = R[3] if len(R) > 3 else []
            self.src = self.a + self.b + self.c
            self.passes = 8 if '32x32' in mn else 4
        elif mn.startswith('v_'):
            self.kind = 'valu'
            if mn.startswith('v_cmp'):
                self.dst = R[0]; self.src = flat(R[1:])
                if mn.startswith('v_cmpx'): self.dst = self.dst + [('s', 'exec')]
            elif mn.startswith('v_permlane') and 'swap' in mn:
                self.dst = R[0] + R[1]; self.src = R[0] + R[1]; self.perm = True
            elif mn in ('v_readlane_b32', 'v_readfirstlane_b32'):
                self.dst = R[0]; self.src = flat(R[1:]); self.rdlane = True
            elif mn in ('v_add_co_u32', 'v_sub_co_u32', 'v_addc_co_u32', 'v_subb_co_u32'):
                self.dst = R[0] + R[1]; self.src = flat(R[2:])
            else:
                self.dst = R[0]; self.src = flat(R[1:])
                if mn in ('v_fmac_f32', 'v_dot2c_f32_bf16', 'v_pk_fmac_f16', 'v_writelane_b32') or self.dpp:
                    self.src = self.src + R[0]
                if mn.startswith('v_dot2'): self.ab = flat(R[1:3])
                if mn == 'v_cndmask_b32' and len(ops) == 3:
                    self.src = self.src + [('s', 'vcc')]
        elif mn.startswith('ds_'):
            self.kind = 'ds'
            if mn.startswith('ds_read') or mn.startswith('ds_bpermute') or mn.startswith('ds_permute') or mn.startswith('ds_swizzle'):
                self.dst = R[0]; self.src = flat(R[1:])
                if 'd16' in mn: self.src = self.src + R[0]
            else:
                self.src = flat(R)
            self.store = not self.dst
        elif mn.startswith('buffer_') or mn.startswith('global_'):
            self.kind = 'vmem'
            lds = (' lds' in (' ' + mods)) or ('_lds_' in mn)
            self.lds = lds
            if 'load' in mn and not lds:
                self.dst = R[0]; self.src = flat(R[1:])
            elif 'atomic' in mn and 'sc0' in mods:
                self.dst = R[0]; self.src = flat(R)
            else:
                self.src = flat(R)
            self.wide_store = ('store' in mn and ('x4' in mn or 'x3' in mn))
            if self.wide_store:
                self.sdata = R[0] if mn.startswith('buffer_') else R[1]
        elif mn.startswith('s_'):
            self.kind = 'salu'
            if mn.startswith('s_cmp') or mn.startswith('s_cbranch') or mn in ('s_branch', 's_waitcnt', 's_barrier', 's_endpgm', 's_setprio', 's_sleep', 's_bitcmp1_b32', 's_bitcmp0_b32'):
                self.src = flat(R)
            else:
                self.dst = R[0] if R else []; self.src = flat(R[1:])
                if 'saveexec' in mn: self.dst = self.dst + [('s', 'exec')]
    def isv(self, r): return r[0] in 'va'

def need(p, c):
    n = 0
    pd = set(p.dst); cs = set(c.src); cd = set(c.dst)
    if p.kind == 'valu':
        vd = {r for r in pd if r[0] in 'va'}
        sd = {r for r in pd if r[0] == 's'}
        if c.kind == 'mfma' and vd & cs: n = max(n, 2)
        if c.kind == 'valu':
            if c.dpp and vd & cs: n = max(n, 2)
            if getattr(c, 'perm', False) and vd & cs: n = max(n, 2)
            if getattr(c, 'rdlane', False) and vd & cs: n = max(n, 1)
            if p.mn in TRANS and c.mn not in TRANS and vd & cs: n = max(n, 1)
            if sd & cs: n = max(n, 4 if getattr(c, 'rdlane', False) or c.mn == 'v_writelane_b32' else 2)
            if ('s', 'exec') in sd: n = max(n, 4 if (getattr(c, 'rdlane', False) or getattr(c, 'perm', False)) else (5 if c.dpp else 0))
        if c.kind == 'mfma' and ('s', 'exec') in sd: n = max(n, 4)
        if c.kind == 'vmem' and sd & cs: n = max(n, 5)
        if c.kind == 'salu' and sd & cs: n = max(n, 4)
        if p.mn in TRANS and c.kind in ('vmem', 'ds') and vd & cs: n = max(n, 1)
    if p.kind == 'valu' and p.mn.startswith('v_dot2'):
        vd = {r for r in pd if r[0] in 'va'}
        if c.kind == 'valu' and c.mn == p.mn:
            if vd & set(getattr(c, 'ab', [])): n = max(n, 3)
        elif c.kind in ('valu', 'ds', 'vmem', 'mfma') and vd & (cs | cd): n = max(n, 3)
    if p.kind == 'mfma':
        D = {4: 8, 8: 12}[p.passes]
        if c.kind == 'valu' and pd & (cs | cd): n = max(n, D)
        if c.kind in ('vmem', 'ds') and pd & (cs | cd): n = max(n, D)
        if c.kind == 'mfma':
            if pd & set(c.a + c.b): n = max(n, D)
            if pd & set(c.c):
                if not (p.dst == c.c and p.passes == c.passes): n = max(n, {4: 6, 8: 10}[p.passes])
            if pd & cd and not (p.dst == c.dst): n = max(n, {4: 6, 8: 10}[p.passes])
        if c.kind == 'valu' and set(p.c) & cd: n = max(n, {4: 3, 8: 7}[p.passes])
    if p.kind == 'salu' and ('s', 'm0') in pd:
        if c.kind == 'vmem' and getattr(c, 'lds', False): n = max(n, 1)
    if p.kind == 'vmem' and getattr(p, 'wide_store', False):
        if c.kind == 'valu' and set(p.sdata) & cd: n = max(n, 2)
        elif c.kind in ('ds', 'vmem', 'mfma') and set(p.sdata) & cd: n = max(n, 1)
    if p.kind == 'ds' and p.mn in ('ds_write_b128', 'ds_write_b96'):
        pass
    return n

def fix_hazards(lines, verbose=None, name=''):
    ins = [I(l) for l in lines]
    labels = {i.text.split(';')[0].strip()[:-1]: k for k, i in enumerate(ins) if i.is_label}
    out = []
    inserted = 0
    WIN = 24
    def states(i):
        if i.kind in ('label', 'dir'): return 0
        return i.nop if i.kind == 'nop' else 1
    hist = []
    def required(c, prev):
        r = 0; dist = 0
        for p in reversed(prev):
            if dist > WIN: break
            n = need(p, c)
            if n > dist: r = max(r, n - dist)
            dist += states(p)
        return r
    for k, c in enumerate(ins):
        if c.kind not in ('label', 'dir', 'nop'):
            r = required(c, hist)
            if r > 0:
                nop = I(f's_nop {r-1}')
                out.append(nop); hist.append(nop); inserted += 1
                if verbose is not None: verbose.append(f'{name}: nop {r} before [{c.text}]')
        out.append(c); hist.append(c)
    res = [i for i in out]
    lab = {i.text.split(';')[0].strip()[:-1]: k for k, i in enumerate(res) if i.is_label}
    problems = []
    for k, i in enumerate(res):
        if i.kind == 'salu' and (i.mn.startswith('s_cbranch') or i.mn == 's_branch'):
            tgt = i.text.split(';')[0].split()[-1]
            if tgt in lab:
                t = lab[tgt]
                prev = res[max(0, k - WIN):k + 1]
                seq = list(prev)
                for c in res[t:t + WIN]:
                    if c.kind in ('label', 'dir', 'nop'):
                        seq.append(c); continue
                    r = required(c, seq)
                    if r > 0:
                        problems.append(f'{name}: branch edge hazard ({r}) [{i.text}] -> [{c.text}]')
                    seq.append(c)
                    if c.kind == 'salu' and c.mn in ('s_branch', 's_endpgm'): break
    if problems:
        raise RuntimeError('\n'.join(problems))
    return [i.text for i in res], inserted

def max_regs(lines):
    mv = ma = ms = -1
    for l in lines:
        t = l.split(';')[0]
        for m in re.finditer(r'(?<![\w.])([vas])(?:(\d+)\b|\[(\d+):(\d+)\])', t):
            hi = int(m.group(2)) if m.group(2) is not None else int(m.group(4))
            if m.group(1) == 'v': mv = max(mv, hi)
            elif m.group(1) == 'a': ma = max(ma, hi)
            else: ms = max(ms, hi)
    return mv, ma, ms

def emit_file(path, kernels, launches, data='', log=None):
    txt = ''
    for n, g, b, lds in launches:
        txt += f'; @launch kernel={n} grid=({g},1,1) block=({b},1,1) lds={lds}\n'
    txt += '.amdgcn_target "amdgcn-amd-amdhsa--gfx950"\n.text\n'
    descs = ''
    for k in kernels:
        v = [] if log is None else log
        lines, nins = fix_hazards(k.lines, v, k.name)
        mv, ma, ms = max_regs(lines)
        nv = mv + 1
        if ma >= 0:
            acc = (nv + 3) // 4 * 4
            nfv = acc + ma + 1
        else:
            acc = max(4, (nv + 3) // 4 * 4); nfv = nv
        if getattr(k, 'force_vgpr', None):
            nfv = max(nfv, k.force_vgpr)
        txt += f'\n.globl {k.name}\n.p2align 8\n.type {k.name},@function\n{k.name}:\n'
        for l in lines:
            txt += (l if l.endswith(':') or l.startswith('.') else '    ' + l) + '\n'
        print(f'{k.name}: {len(lines)} lines, vgpr={nv} agpr={ma+1} total={nfv} sgpr={ms+1} nops_inserted={nins}')
        descs += f'''.p2align 6
.amdhsa_kernel {k.name}
  .amdhsa_next_free_vgpr {nfv}
  .amdhsa_next_free_sgpr {max(ms+1, 16)}
  .amdhsa_accum_offset {acc}
  .amdhsa_group_segment_fixed_size 0
  .amdhsa_kernarg_size 128
  .amdhsa_user_sgpr_count 2
  .amdhsa_user_sgpr_kernarg_segment_ptr 1
  .amdhsa_system_sgpr_workgroup_id_x 1
  .amdhsa_float_denorm_mode_32 3
.end_amdhsa_kernel
'''
    txt += data
    txt += '.section .rodata,"a"\n' + descs
    open(path, 'w').write(txt)
```

```python
KA = dict(u=0, lar=8, aim=16, cr=24, ci=32, ldt=40, dsk=48, bx=56, wg=64, wu=72, wd=80, c=88, wmod=96, out=104, dbg=112, ws=120)
SZ = dict(u=2621440, lar=245760, aim=245760, cr=245760, ci=245760, ldt=1280, dsk=1280, wg=1966080, wu=1966080, wd=1966080, c=1280, wmod=4915200, out=2621440)
WS_MODP  = 0x0
WS_STATS = 0x10000
WS_PQ    = 0x14000
WS_XT    = 0x40000
WS_R     = 0x2C0000
WS_X2T   = 0x540000
WS_WP    = 0x7C0000
WS_ACT   = 0xB80000
WS_FLAGS = 0x1180000
WS_END   = 0x1190000
LOG2E = 0x3fb8aa3b
NLOG2E = 0xbfb8aa3b
INV2PI = 0x3e22f983
SRD3 = 0x00020000

def bf16_rne(j):
    import struct
    u = struct.unpack('<I', struct.pack('<f', float(j)))[0]
    u = (u + 0x7fff + ((u >> 16) & 1)) & 0xffff0000
    return int(struct.unpack('<f', struct.pack('<I', u))[0])

def kidx(p):
    if p < 256: return (p & 7, p >> 3)
    if p < 512: return (8 + ((p & 7) >> 1), (p - 256) >> 3)
    if p < 1024:
        q = p - 512
        return (12 + 2 * (q >> 8) + ((q & 7) >> 2), (q & 255) >> 3)
    if p < 2048:
        q = p - 1024
        return (16 + (q >> 8), (q & 255) >> 3)
    return (20, 0)
HI_POS = list(range(8)) + [256, 258, 260, 262, 512, 516, 768, 772, 1024, 1280, 1536, 1792, 2048]
def ktable():
    t = []
    for x in range(2048):
        j = 2047 - x
        p = bf16_rne(j)
        m, u = kidx(p)
        assert HI_POS[m] + 8 * u == p, (j, p, m, u)
        t.append(2 * (m * 32 + u))
    return t

def load_ptr(k, s, name):
    k(f's_load_dwordx2 s[{s}:{s+1}], s[0:1], {KA[name]}')
def srd_fin(k, s, size, off=0):
    if off:
        k(f's_add_u32 s{s}, s{s}, {off}\ns_addc_u32 s{s+1}, s{s+1}, 0')
    k(f's_mov_b32 s{s+2}, {size}\ns_mov_b32 s{s+3}, {SRD3:#x}')

import os
STAMPS = os.environ.get('STAMPS', '0') in ('1', '2')
STAMP_INS = 's_memtime' if os.environ.get('STAMPS') == '2' else 's_memrealtime'
WS_STAMP = 0x1200000
def stamp_begin(k):
    if STAMPS:
        k(f'{STAMP_INS} s[80:81]')
def stamp_mid(k, i):
    if STAMPS:
        k(f'{STAMP_INS} s[{84+2*i}:{85+2*i}]')
def stamp_end(k, kidx, nmid=0):
    if STAMPS:
        lab = k.newlabel('L_st')
        k(f'{STAMP_INS} s[82:83]')
        k('s_load_dwordx2 s[94:95], s[0:1], 120')
        k('s_waitcnt lgkmcnt(0)')
        k('v_cmp_eq_u32 vcc, 0, v0')
        k('s_and_saveexec_b64 s[92:93], vcc')
        k(f's_cbranch_execz {lab}')
        k(f's_lshl_b32 s3, s2, 5\ns_add_u32 s3, s3, {WS_STAMP + kidx*32768}')
        k('v_mov_b32 v1, s3')
        k('v_mov_b32 v2, s80\nv_mov_b32 v3, s82\nv_mov_b32 v4, s84\nv_mov_b32 v5, s86')
        k('v_mov_b32 v6, s88\nv_mov_b32 v7, s90\nv_mov_b32 v8, 0\nv_mov_b32 v9, 0')
        k('global_store_dwordx4 v1, v[2:5], s[94:95]')
        k('global_store_dwordx4 v1, v[6:9], s[94:95] offset:16')
        k.label(lab)
```

```python
from asmlib import K
from common import *

N_LN, N_MOD, N_KG = 64, 120, 640
K1_GRID = N_LN + N_MOD + N_KG
K1_LDS = 40960

def cmul(k, dst, x, y, tmp):
    k(f'v_pk_mul_f32 v[{tmp}:{tmp+1}], v[{x}:{x+1}], v[{y}:{y+1}] op_sel:[0,0] op_sel_hi:[0,1]')
    k(f'v_pk_fma_f32 v[{dst}:{dst+1}], v[{x}:{x+1}], v[{y}:{y+1}], v[{tmp}:{tmp+1}] op_sel:[1,1,0] op_sel_hi:[1,0,1] neg_lo:[1,0,0]')

def build_k1():
    k = K('prep_kernel')
    stamp_begin(k)
    k(f's_cmp_lt_u32 s2, {N_LN}\ns_cbranch_scc1 L_k1_ln')
    k(f's_cmp_lt_u32 s2, {N_LN+N_MOD}\ns_cbranch_scc1 L_k1_mod')
    k(f's_cmp_lt_u32 s2, {K1_GRID}\ns_cbranch_scc1 L_k1_kg')
    k('s_endpgm')

    k.label('L_k1_kg')
    k(f's_sub_u32 s3, s2, {N_LN+N_MOD}      ; d')
    load_ptr(k, 4, 'lar'); load_ptr(k, 8, 'aim'); load_ptr(k, 12, 'cr'); load_ptr(k, 16, 'ci'); load_ptr(k, 20, 'ldt'); load_ptr(k, 24, 'ws')
    k('s_getpc_b64 s[28:29]')
    k.label('L_k1_pc')
    k('s_add_u32 s28, s28, ktable-L_k1_pc\ns_addc_u32 s29, s29, 0')
    k('v_lshrrev_b32 v1, 6, v0')
    k('v_and_b32 v2, 63, v0            ; lane')
    k('v_readfirstlane_b32 s30, v1     ; wave')
    k('v_lshlrev_b32 v3, 4, v0         ; t*16')
    k('global_load_dwordx4 v[60:63], v3, s[28:29]')
    k('s_mul_i32 s31, s3, 384')
    k('v_lshlrev_b32 v4, 1, v0')
    k('v_add_u32 v4, s31, v4           ; d*384 + n*2')
    k('s_lshl_b32 s32, s3, 1')
    k('v_mov_b32 v5, s32')
    k('s_waitcnt lgkmcnt(0)')
    for s, n in ((4, 'lar'), (8, 'aim'), (12, 'cr'), (16, 'ci'), (20, 'ldt')):
        srd_fin(k, s, SZ[n])
    srd_fin(k, 24, 640 * 4096, WS_R)
    k('s_cmp_ge_u32 s30, 3\ns_cbranch_scc1 L_k1_kg_sync1')
    k('buffer_load_ushort v6, v5, s[20:23], 0 offen')
    k('buffer_load_ushort v7, v4, s[4:7], 0 offen')
    k('buffer_load_ushort v8, v4, s[8:11], 0 offen')
    k('buffer_load_ushort v9, v4, s[12:15], 0 offen')
    k('buffer_load_ushort v10, v4, s[16:19], 0 offen')
    k('s_mul_i32 s33, s30, 13568')
    k('v_lshlrev_b32 v11, 2, v2')
    for kk in range(16):
        k(f'v_xor_b32 v{64+kk}, {16*kk}, v11')
    for kk in range(16):
        k(f'v_add_u32 v{64+kk}, s33, v{64+kk}')
    k('v_and_b32 v12, 31, v2           ; m')
    k('v_lshrrev_b32 v13, 5, v2        ; g')
    k('v_and_b32 v14, 15, v12')
    k('v_xor_b32 v14, v14, v13')
    k('v_lshlrev_b32 v14, 4, v14       ; 16*(g ^ (m&15))')
    k('v_lshl_add_u32 v14, v12, 8, v14')
    k('v_add_u32 v14, s33, v14')
    k('s_waitcnt vmcnt(0)')
    stamp_mid(k, 0)
    k('v_lshlrev_b32 v6, 16, v6\nv_lshlrev_b32 v7, 16, v7\nv_lshlrev_b32 v8, 16, v8\nv_lshlrev_b32 v9, 16, v9\nv_lshlrev_b32 v10, 16, v10')
    k(f'v_mul_f32 v6, {LOG2E:#x}, v6\nv_mul_f32 v7, {LOG2E:#x}, v7')
    k('v_exp_f32 v6, v6\nv_exp_f32 v7, v7')
    k('v_cvt_pk_bf16_f32 v6, v6, v7')
    k('v_and_b32 v7, 0xffff0000, v6\nv_lshlrev_b32 v6, 16, v6')
    k('v_mul_f32 v7, v7, v6            ; are*dt')
    k(f'v_mul_f32 v7, {NLOG2E:#x}, v7    ; a2')
    k('v_mul_f32 v8, v8, v6            ; theta')
    k(f'v_mul_f32 v8, {INV2PI:#x}, v8    ; theta_r')
    k('v_add_f32 v6, v6, v6            ; 2dt')
    k('v_mul_f32 v16, v9, v6           ; Cbar.re')
    k('v_mul_f32 v17, v10, v6')
    k('v_sub_f32 v17, 0, v17')
    def direct(dst, p, sign, t0):
        k(f'v_mul_f32 v{t0}, {float(p)}, v7' if p in (1, 2, 4) else f'v_mul_f32 v{t0}, {hexf(p)}, v7')
        k(f'v_mul_f32 v{t0+1}, {hexf(sign*p)}, v8')
        k(f'v_exp_f32 v{t0}, v{t0}')
        k(f'v_fract_f32 v{t0+1}, v{t0+1}')
        k(f'v_cos_f32 v{dst}, v{t0+1}')
        k(f'v_sin_f32 v{dst+1}, v{t0+1}')
        k(f'v_mul_f32 v{dst}, v{dst}, v{t0}')
        k(f'v_mul_f32 v{dst+1}, v{dst+1}, v{t0}')
    direct(18, 1, -1, 24)
    direct(20, 256, -1, 26)
    direct(22, 8, +1, 28)
    ZB1, ZB256, W8 = 18, 20, 22
    ZB2, ZB4 = 30, 32
    A, B, T, L = 34, 36, 38, 40
    TA, TL = 42, 44
    C0 = 46
    rot = [0]
    def put(src, row, lo):
        t = C0 + (rot[0] % 8); rot[0] += 1
        k(f'v_cvt_pk_bf16_f32 v{t}, v{src}, v{src+1}')
        k(f'ds_write_b32 v{64 + (row & 15)}, v{t} offset:{row*256 + (5376 if lo else 0)}')
    hi = []
    hi.append(lambda: put(16, 0, False))
    hi.append(lambda: (cmul(k, A, 16, ZB1, TA), put(A, 1, False)))
    for m in range(2, 8):
        hi.append(lambda m=m: (cmul(k, A, A, ZB1, TA), put(A, m, False)))
    hi.append(lambda: cmul(k, ZB2, ZB1, ZB1, TA))
    hi.append(lambda: (cmul(k, B, 16, ZB256, TA), put(B, 8, False)))
    hi.append(lambda: cmul(k, ZB4, ZB2, ZB2, TA))
    hi.append(lambda: (cmul(k, T, B, ZB2, TA), put(T, 9, False)))
    hi.append(lambda: (cmul(k, T, T, ZB2, TA), put(T, 10, False)))
    hi.append(lambda: (cmul(k, T, T, ZB2, TA), put(T, 11, False)))
    hi.append(lambda: (cmul(k, B, B, ZB256, TA), put(B, 12, False)))
    hi.append(lambda: (cmul(k, T, B, ZB4, TA), put(T, 13, False)))
    hi.append(lambda: (cmul(k, B, B, ZB256, TA), put(B, 14, False)))
    hi.append(lambda: (cmul(k, T, B, ZB4, TA), put(T, 15, False)))
    for m in range(16, 21):
        hi.append(lambda m=m: (cmul(k, B, B, ZB256, TA), put(B, m, False)))
    lo = []
    lo.append(lambda: (k(f'v_mov_b32 v{L}, 1.0\nv_mov_b32 v{L+1}, 0'), put(L, 0, True)))
    lo.append(lambda: put(W8, 1, True))
    lo.append(lambda: (cmul(k, L, W8, W8, TL), put(L, 2, True)))
    for u in range(3, 32):
        lo.append(lambda u=u: (cmul(k, L, L, W8, TL), put(L, u, True)))
    i = j = 0
    while i < len(hi) or j < len(lo):
        if j < len(lo): lo[j](); j += 1
        if i < len(hi) and (i * len(lo) <= j * len(hi) or j >= len(lo)): hi[i](); i += 1
    k('s_waitcnt lgkmcnt(0)')
    stamp_mid(k, 1)
    for ks in range(8):
        k(f'v_xor_b32 v15, {32*ks}, v14')
        k(f'ds_read_b128 v[{24+8*(ks%4)}:{27+8*(ks%4)}], v15')
        k(f'ds_read_b128 v[{28+8*(ks%4)}:{31+8*(ks%4)}], v15 offset:5376')
        if ks >= 1:
            p = ks - 1
            k('s_waitcnt lgkmcnt(2)')
            k(f'v_mfma_f32_32x32x16_bf16 v[96:111], v[{24+8*(p%4)}:{27+8*(p%4)}], v[{28+8*(p%4)}:{31+8*(p%4)}], ' + ('0' if p == 0 else 'v[96:111]'))
    k('s_waitcnt lgkmcnt(0)')
    k('v_mfma_f32_32x32x16_bf16 v[96:111], v[48:51], v[52:55], v[96:111]')
    k('v_and_b32 v12, 31, v2\nv_lshrrev_b32 v13, 5, v2')
    k('v_lshlrev_b32 v12, 2, v12')
    k('v_lshl_add_u32 v12, v13, 9, v12')
    k('v_add_u32 v12, s33, v12')
    for j in range(3):
        for i in range(4):
            k(f'ds_write_b32 v12, v{96+4*j+i} offset:{(8*j+i)*128}')
    k.label('L_k1_kg_sync1')
    k('s_waitcnt lgkmcnt(0)\ns_barrier')
    stamp_mid(k, 2)
    k('v_cmp_gt_u32 vcc, 168, v0')
    k('s_and_saveexec_b64 s[34:35], vcc')
    k('s_cbranch_execz L_k1_kg_skip')
    k('ds_read_b128 v[24:27], v3\nds_read_b128 v[28:31], v3 offset:13568\nds_read_b128 v[32:35], v3 offset:27136')
    k('s_waitcnt lgkmcnt(0)')
    k('v_pk_add_f32 v[24:25], v[24:25], v[28:29]\nv_pk_add_f32 v[26:27], v[26:27], v[30:31]')
    k('v_pk_add_f32 v[24:25], v[24:25], v[32:33]\nv_pk_add_f32 v[26:27], v[26:27], v[34:35]')
    k('v_cvt_pk_bf16_f32 v24, v24, v25\nv_cvt_pk_bf16_f32 v25, v26, v27')
    k('v_lshlrev_b32 v12, 3, v0')
    k('ds_write_b64 v12, v[24:25] offset:4096')
    k.label('L_k1_kg_skip')
    k('s_mov_b64 exec, s[34:35]')
    k('s_waitcnt vmcnt(0) lgkmcnt(0)\ns_barrier')
    for q in range(4):
        k(f'v_and_b32 v{24+2*q}, 0xffff, v{60+q}\nv_lshrrev_b32 v{25+2*q}, 16, v{60+q}')
    for q in range(4):
        k(f'ds_read_u16 v{36+q}, v{24+2*q} offset:4096')
        k(f'ds_read_u16 v{40+q}, v{25+2*q} offset:4096')
    k('s_lshl_b32 s33, s3, 12')
    k('s_waitcnt lgkmcnt(0)')
    for q in range(4):
        k(f'v_lshl_or_b32 v{36+q}, v{40+q}, 16, v{36+q}')
    k('buffer_store_dwordx4 v[36:39], v3, s[24:27], s33 offen')
    if STAMPS: k('s_waitcnt vmcnt(0)')
    stamp_end(k, 0)
    k('s_endpgm')

    k.label('L_k1_ln')
    load_ptr(k, 4, 'u'); load_ptr(k, 8, 'ws'); load_ptr(k, 12, 'ws')
    k('v_lshrrev_b32 v1, 4, v0       ; rg')
    k('v_and_b32 v2, 15, v0          ; c')
    k('s_lshl_b32 s3, s2, 5          ; l0')
    k('v_add_u32 v3, s3, v1')
    k('v_mul_u32_u24 v4, 1280, v3')
    k('v_lshl_add_u32 v4, v2, 4, v4')
    k('s_mov_b32 s16, 20480')
    k('s_mov_b32 s17, 0x3f803f80')
    k('s_waitcnt lgkmcnt(0)')
    srd_fin(k, 4, SZ['u']); srd_fin(k, 8, 8192, WS_STATS); srd_fin(k, 12, 2621440, WS_XT)
    for p in range(2):
        for q in range(5):
            r = 16 + 4 * (5 * p + q)
            k(f'buffer_load_dwordx4 v[{r}:{r+3}], v4, s[4:7], {"s16" if p else "0"} offen offset:{256*q}')
    k('v_and_b32 v5, 3, v1\nv_lshrrev_b32 v6, 3, v1\nv_lshl_or_b32 v5, v6, 2, v5     ; f0')
    k('v_xor_b32 v5, v5, v2          ; c ^ f0')
    k('v_mul_u32_u24 v6, 1280, v1')
    k('v_xor_b32 v7, 8, v5')
    k('v_lshl_add_u32 v5, v5, 4, v6          ; p=0 addr')
    k('v_lshl_add_u32 v6, v7, 4, v6          ; p=1 addr - 20480')
    for p in range(2):
        k(f's_waitcnt vmcnt({5 if p == 0 else 0})')
        for q in range(5):
            r = 16 + 4 * (5 * p + q)
            k(f'ds_write_b128 v{5+p}, v[{r}:{r+3}] offset:{256*q + 20480*p}')
        for q in range(5):
            r = 16 + 4 * (5 * p + q)
            for i in range(4):
                first = (q == 0 and i == 0)
                k(f'v_dot2_f32_bf16 v{8+2*p}, v{r+i}, s17, ' + ('0' if first else f'v{8+2*p}'))
                k(f'v_dot2_f32_bf16 v{9+2*p}, v{r+i}, v{r+i}, ' + ('0' if first else f'v{9+2*p}'))
    for sh in (8, 4, 2, 1):
        for v in (8, 9, 10, 11):
            k(f'v_add_f32_dpp v{v}, v{v}, v{v} row_ror:{sh} row_mask:0xf bank_mask:0xf')
    for p in range(2):
        a, b = 8 + 2 * p, 9 + 2 * p
        k(f'v_mul_f32 v{a}, 0x3acccccd, v{a}          ; mean')
        k(f'v_mul_f32 v{b}, 0x3acccccd, v{b}')
        k(f'v_fma_f32 v{b}, -v{a}, v{a}, v{b}         ; var')
        k(f'v_max_f32 v{b}, 0, v{b}')
        k(f'v_cvt_pk_bf16_f32 v{b}, v{b}, v{b}\nv_lshlrev_b32 v{b}, 16, v{b}')
        k(f'v_add_f32 v{b}, 0x3727c5ac, v{b}')
        k(f'v_cvt_pk_bf16_f32 v{b}, v{b}, v{b}\nv_lshlrev_b32 v{b}, 16, v{b}')
        k(f'v_sqrt_f32 v{b}, v{b}')
        k(f'v_cvt_pk_bf16_f32 v{a}, v{a}, v{b}')
    k('v_lshlrev_b32 v7, 2, v3')
    k('v_cmp_eq_u32 vcc, 0, v2')
    k('s_and_saveexec_b64 s[18:19], vcc')
    k('s_cbranch_execz L_k1_ln_nost')
    k('buffer_store_dword v8, v7, s[8:11], 0 offen')
    k('buffer_store_dword v10, v7, s[8:11], 0 offen offset:64')
    k.label('L_k1_ln_nost')
    k('s_mov_b64 exec, s[18:19]')
    k('v_and_b32 v1, 63, v0          ; lane')
    k('v_lshrrev_b32 v2, 6, v0       ; w')
    k('v_lshrrev_b32 v3, 4, v1       ; grp')
    k('v_and_b32 v4, 15, v1          ; idx')
    k('v_lshrrev_b32 v5, 2, v4')
    k('v_and_b32 v6, 3, v4')
    k('v_lshl_add_u32 v7, v6, 3, v5  ; row = 8c + r')
    k('v_lshl_or_b32 v8, v6, 2, v5   ; f = r | c<<2')
    k('v_mul_u32_u24 v7, 1280, v7')
    k('v_and_b32 v9, 1, v3')
    k('v_lshl_add_u32 v7, v9, 3, v7')
    k('v_lshrrev_b32 v9, 1, v3')
    k('v_mul_u32_u24 v10, 20, v2')
    k('v_add_u32 v9, v9, v10         ; ch0')
    k('v_mul_u32_u24 v10, 40, v2\nv_add_u32 v10, v10, v3\nv_lshlrev_b32 v10, 14, v10')
    k('v_lshl_add_u32 v10, v5, 6, v10\nv_lshl_add_u32 v10, v6, 4, v10')
    k('s_lshl_b32 s16, s3, 3\nv_add_u32 v10, s16, v10')
    k('s_waitcnt lgkmcnt(0)\ns_barrier')
    for it in range(10):
        k(f'v_add_u32 v11, {2*it}, v9\nv_xor_b32 v11, v11, v8\nv_lshl_add_u32 v11, v11, 4, v7')
        r = 16 + 4 * it
        k(f'ds_read_b64_tr_b16 v[{r}:{r+1}], v11\nds_read_b64_tr_b16 v[{r+2}:{r+3}], v11 offset:5120')
    for it in range(10):
        r = 16 + 4 * it
        k(f's_mov_b32 s16, {it*65536}')
        k(f's_waitcnt lgkmcnt({min(15, 2*(9-it))})')
        k(f'buffer_store_dwordx4 v[{r}:{r+3}], v10, s[12:15], s16 offen')
    if STAMPS: k('s_waitcnt vmcnt(0)')
    stamp_end(k, 0)
    k('s_endpgm')

    k.label('L_k1_mod')
    load_ptr(k, 4, 'wmod'); load_ptr(k, 8, 'c'); load_ptr(k, 12, 'ws')
    k(f's_sub_u32 s3, s2, {N_LN}')
    k('s_lshr_b32 s16, s3, 2          ; cb\ns_and_b32 s17, s3, 3     ; kq')
    k('v_lshrrev_b32 v1, 4, v0       ; rg\nv_and_b32 v2, 15, v0    ; c')
    k('v_mul_u32_u24 v4, 7680, v1\nv_lshl_add_u32 v4, v2, 4, v4')
    k(f's_mul_i32 s18, s17, {160*7680}\ns_lshl_b32 s19, s16, 8\ns_add_u32 s18, s18, s19')
    k('s_mul_i32 s19, s17, 320\nv_lshlrev_b32 v5, 1, v1\nv_add_u32 v5, s19, v5')
    k('s_waitcnt lgkmcnt(0)')
    srd_fin(k, 4, SZ['wmod']); srd_fin(k, 8, SZ['c']); srd_fin(k, 12, 4 * 3840 * 4, WS_MODP)
    for p in range(10):
        k(f'buffer_load_ushort v{56+p}, v5, s[8:11], 0 offen offset:{32*p}')
    for p in range(10):
        k(f'buffer_load_dwordx4 v[{16+4*p}:{19+4*p}], v4, s[4:7], s18 offen')
        if p < 9: k('s_add_u32 s18, s18, 122880')
    k('s_waitcnt vmcnt(10)')
    for p in range(10):
        k(f'v_lshlrev_b32 v{56+p}, 16, v{56+p}')
    for p in range(10):
        k(f'v_mul_f32 v{66+p}, {NLOG2E:#x}, v{56+p}')
    for p in range(10):
        k(f'v_exp_f32 v{66+p}, v{66+p}')
    for p in range(10):
        k(f'v_add_f32 v{66+p}, 1.0, v{66+p}')
    for p in range(10):
        k(f'v_rcp_f32 v{66+p}, v{66+p}')
    for p in range(10):
        k(f'v_mul_f32 v{56+p}, v{56+p}, v{66+p}')
    for p in range(10):
        k(f'v_cvt_pk_bf16_f32 v{56+p}, v{56+p}, 0        ; (s,0)')
    for p in range(10):
        k(f'v_lshlrev_b32 v{66+p}, 16, v{56+p}           ; (0,s)')
    for p in range(10):
        k(f's_waitcnt vmcnt({9-p})')
        for i in range(4):
            k(f'v_dot2_f32_bf16 v{76+2*i}, v{16+4*p+i}, v{56+p}, ' + ('0' if p == 0 else f'v{76+2*i}'))
            k(f'v_dot2_f32_bf16 v{77+2*i}, v{16+4*p+i}, v{66+p}, ' + ('0' if p == 0 else f'v{77+2*i}'))
    k('v_lshlrev_b32 v6, 5, v0')
    k('ds_write_b128 v6, v[76:79]\nds_write_b128 v6, v[80:83] offset:16')
    k('s_waitcnt lgkmcnt(0)\ns_barrier')
    k('v_cmp_gt_u32 vcc, 128, v0')
    k('s_and_saveexec_b64 s[20:21], vcc')
    k('s_cbranch_execz L_k1_mod_end')
    k('v_lshlrev_b32 v6, 2, v0')
    for rg in range(16):
        k(f'ds_read_b32 v{16+rg}, v6 offset:{rg*512}')
    k('s_waitcnt lgkmcnt(0)')
    for st in (8, 4, 2, 1):
        for i in range(st):
            k(f'v_add_f32 v{16+i}, v{16+i}, v{16+i+st}')
    k('s_mul_i32 s19, s17, 15360\ns_lshl_b32 s22, s16, 9\ns_add_u32 s19, s19, s22')
    k('buffer_store_dword v16, v6, s[12:15], s19 offen')
    k.label('L_k1_mod_end')
    k('s_mov_b64 exec, s[20:21]')
    if STAMPS: k('s_waitcnt vmcnt(0)')
    stamp_end(k, 0)
    k('s_endpgm')
    return k

def hexf(x):
    import struct
    return hex(struct.unpack('<I', struct.pack('<f', float(x)))[0])

def ktable_data():
    t = ktable()
    s = '.p2align 8\n.type ktable,@object\nktable:\n'
    for i in range(0, 2048, 16):
        s += '.short ' + ', '.join(str(x) for x in t[i:i + 16]) + '\n'
    s += '.size ktable, 4096\n'
    return s
```

```python
from asmlib import K
from common import *
import os

import os
N_WP, N_CV = 120, int(os.environ.get('EXP_NCV', 640))
K2_GRID = N_WP + N_CV
K2_LDS = 40960

def build_k2():
    k = K('conv_kernel')
    stamp_begin(k)
    k(f's_cmp_lt_u32 s2, {N_WP}\ns_cbranch_scc1 L_k2_wp')
    k(f's_cmp_lt_u32 s2, {K2_GRID}\ns_cbranch_scc1 L_k2_cv')
    k('s_endpgm')

    k.label('L_k2_cv')
    load_ptr(k, 4, 'ws'); load_ptr(k, 20, 'dsk')
    k(f's_sub_u32 s3, s2, {N_WP}')
    k('s_and_b32 s24, s3, 0xffffffe0\ns_and_b32 s25, s3, 7\ns_lshl_b32 s25, s25, 2\ns_or_b32 s24, s24, s25')
    k('s_lshr_b32 s25, s3, 3\ns_and_b32 s25, s25, 3\ns_or_b32 s3, s24, s25          ; d')
    k('v_lshlrev_b32 v1, 6, v0            ; t*64')
    k('s_and_b32 s24, s3, 3\ns_lshl_b32 s24, s24, 4')
    k('v_add_u32 v1, s24, v1')
    if os.environ.get('EXP_XT'): k('v_lshlrev_b32 v1, 4, v0')
    k('v_lshlrev_b32 v2, 5, v0')
    k('v_lshlrev_b32 v3, 4, v0            ; t*16')
    k('s_lshr_b32 s25, s3, 2\ns_lshl_b32 s25, s25, 14')
    if os.environ.get('EXP_XT'): k('s_lshl_b32 s25, s3, 12')
    k('s_lshl_b32 s26, s3, 12             ; d*4096')
    k('s_lshl_b32 s27, s3, 2              ; d*4')
    k('s_lshr_b32 s28, s3, 1\ns_lshl_b32 s28, s28, 2')
    k('s_waitcnt lgkmcnt(0)')
    stamp_mid(k, 3)
    k('s_add_u32 s30, s4, s27\ns_addc_u32 s31, s5, 0')
    for kq in range(4):
        for i in range(3):
            k(f's_load_dword s{40+4*i+kq}, s[30:31], {WS_MODP + kq*15360 + i*2560}')
    k('s_add_u32 s20, s20, s28\ns_addc_u32 s21, s21, 0')
    k('s_load_dword s52, s[20:21], 0')
    k(f's_add_u32 s8, s4, {WS_XT}\ns_addc_u32 s9, s5, 0\ns_mov_b32 s10, 2621440\ns_mov_b32 s11, {SRD3:#x}')
    k(f's_add_u32 s12, s4, {WS_STATS}\ns_addc_u32 s13, s5, 0\ns_mov_b32 s14, 8192\ns_mov_b32 s15, {SRD3:#x}')
    k(f's_add_u32 s16, s4, {WS_R}\ns_addc_u32 s17, s5, 0\ns_add_u32 s16, s16, s26\ns_addc_u32 s17, s17, 0\ns_mov_b32 s18, 4096\ns_mov_b32 s19, {SRD3:#x}')
    k('buffer_load_dwordx4 v[8:11], v3, s[16:19], 0 offen')
    k('buffer_load_dwordx4 v[12:15], v3, s[16:19], 0 offen offset:4')
    k('buffer_load_dwordx4 v[16:19], v3, s[16:19], 0 offen offset:8')
    k('buffer_load_dwordx4 v[20:23], v1, s[8:11], s25 offen        ; x')
    k('buffer_load_dwordx4 v[24:27], v2, s[12:15], 0 offen')
    k('buffer_load_dwordx4 v[28:31], v2, s[12:15], 0 offen offset:16')
    k(f's_add_u32 s32, s4, {WS_X2T}\ns_addc_u32 s33, s5, 0\ns_mov_b32 s34, 2621440\ns_mov_b32 s35, {SRD3:#x}')
    HB = 16640
    k('v_mov_b32 v32, 0\nv_mov_b32 v33, 0\nv_mov_b32 v34, 0\nv_mov_b32 v35, 0')
    k('v_lshrrev_b32 v4, 2, v0\nv_and_b32 v5, 3, v0')
    k('v_mul_u32_u24 v6, 80, v4\nv_lshl_add_u32 v6, v5, 4, v6        ; (t>>2)*80 + (t&3)*16')
    k('v_mul_u32_u24 v7, 4160, v4\nv_lshl_add_u32 v7, v5, 4, v7')
    k('v_cmp_gt_u32 vcc, 128, v0')
    k('s_and_saveexec_b64 s[36:37], vcc')
    k(f'ds_write_b128 v6, v[32:35] offset:{HB}')
    k('v_cmp_gt_u32 vcc, 16, v0')
    k('s_and_b64 exec, exec, vcc')
    k('ds_write_b128 v7, v[32:35] offset:4096')
    k('s_mov_b64 exec, s[36:37]')
    k('v_and_b32 v36, 63, v0            ; lane')
    k('v_lshrrev_b32 v37, 6, v0         ; w')
    k('v_and_b32 v38, 31, v36           ; b / n')
    k('v_lshrrev_b32 v39, 5, v36        ; g')
    k('v_sub_u32 v40, 3, v38\nv_and_b32 v40, 3, v40       ; s_b')
    k('v_mul_u32_u24 v41, 4160, v40')
    k('v_sub_u32 v42, 2047, v38\nv_lshl_add_u32 v42, v39, 3, v42\nv_sub_u32 v42, v42, v40')
    k('v_lshl_add_u32 v41, v42, 1, v41')
    k('v_lshlrev_b32 v42, 9, v37        ; w*512 = 64*8w')
    k(f'v_sub_u32 v41, v41, v42\nv_subrev_u32 v41, {64*39}, v41      ; baseA')
    k('v_lshlrev_b32 v42, 3, v37\nv_sub_u32 v42, v38, v42\nv_add_u32 v42, 25, v42      ; 32 + n - 8w - 7')
    k('v_mul_u32_u24 v42, 80, v42\nv_lshl_add_u32 v42, v39, 4, v42')
    k(f'v_add_u32 v42, {HB}, v42           ; baseB')
    k('v_mul_u32_u24 v43, 9216, v37\nv_mul_u32_u24 v44, 144, v38\nv_add_u32 v43, v43, v44\nv_lshl_add_u32 v43, v39, 4, v43')
    k('v_mul_u32_u24 v44, 144, v4\nv_lshl_add_u32 v44, v5, 5, v44')
    k('s_waitcnt lgkmcnt(0)')
    for i, dst in enumerate((45, 46, 47)):
        k(f'v_mov_b32 v{dst}, s{40+4*i}')
        for kq in range(1, 4):
            k(f'v_add_f32 v{dst}, s{40+4*i+kq}, v{dst}')
    k('v_cvt_pk_bf16_f32 v45, v45, v46')
    k('v_cvt_pk_bf16_f32 v47, v47, v47')
    k('v_and_b32 v46, 0xffff0000, v45\nv_lshlrev_b32 v45, 16, v45\nv_lshlrev_b32 v47, 16, v47')
    k('v_add_f32 v46, 1.0, v46\nv_cvt_pk_bf16_f32 v46, v46, v46\nv_lshlrev_b32 v46, 16, v46')
    k('s_and_b32 s53, s3, 1\ns_lshl_b32 s53, s53, 4\ns_lshr_b32 s52, s52, s53\ns_lshl_b32 s52, s52, 16')
    k('s_waitcnt vmcnt(3)')
    k('ds_write_b128 v3, v[8:11]')
    k('ds_write_b128 v3, v[12:15] offset:8320')
    for i in range(4):
        k(f'v_alignbit_b32 v{48+i}, v{12+i}, v{8+i}, 16')
    for i in range(4):
        k(f'v_alignbit_b32 v{52+i}, v{16+i}, v{12+i}, 16')
    k('ds_write_b128 v3, v[48:51] offset:4160')
    k('ds_write_b128 v3, v[52:55] offset:12480')
    stamp_mid(k, 0)
    k('s_waitcnt vmcnt(0)')
    for i in range(8):
        st = 24 + i
        k(f'v_and_b32 v{56+i}, 0xffff0000, v{st}      ; sd')
    for i in range(8):
        k(f'v_rcp_f32 v{56+i}, v{56+i}')
    for i in range(8):
        k(f'v_lshlrev_b32 v{24+i}, 16, v{24+i}        ; mean')
    for i in range(4):
        k(f'v_lshlrev_b32 v{64+2*i}, 16, v{20+i}\nv_and_b32 v{65+2*i}, 0xffff0000, v{20+i}')
    for i in range(4):
        k(f'v_pk_add_f32 v[{64+2*i}:{65+2*i}], v[{64+2*i}:{65+2*i}], v[{24+2*i}:{25+2*i}] neg_lo:[0,1] neg_hi:[0,1]')
    for i in range(4):
        k(f'v_pk_mul_f32 v[{64+2*i}:{65+2*i}], v[{64+2*i}:{65+2*i}], v[{56+2*i}:{57+2*i}]')
    for i in range(8):
        k(f'v_fma_f32 v{64+i}, v{64+i}, v46, v45')
    for i in range(4):
        k(f'v_cvt_pk_bf16_f32 v{8+i}, v{64+2*i}, v{65+2*i}       ; h packed v8..11')
    k(f'ds_write_b128 v6, v[8:11] offset:{HB + 32*80}')
    k('s_waitcnt lgkmcnt(0)\ns_barrier')
    stamp_mid(k, 1)
    steps = [(e, ks) for e in range(8) for ks in range(2)]
    def loads(si):
        e, ks = steps[si]
        r = 64 + 16 * (si & 1)
        oa = 64 * e + 32 * ks
        ob = 80 * e + 32 * ks
        k(f'ds_read_b64 v[{r}:{r+1}], v41 offset:{oa+2048}')
        k(f'ds_read_b64 v[{r+2}:{r+3}], v41 offset:{oa+2048+8}')
        k(f'ds_read_b128 v[{r+12}:{r+15}], v42 offset:{ob+2560}')
        k(f'ds_read_b128 v[{r+8}:{r+11}], v42 offset:{ob}')
        k(f'ds_read_b64 v[{r+4}:{r+5}], v41 offset:{oa}')
        k(f'ds_read_b64 v[{r+6}:{r+7}], v41 offset:{oa+8}')
    loads(0)
    for si in range(16):
        r = 64 + 16 * (si & 1)
        if si + 1 < 16:
            loads(si + 1)
            k('s_waitcnt lgkmcnt(6)')
        else:
            k('s_waitcnt lgkmcnt(0)')
        c1 = '0' if si == 0 else 'v[112:127]'
        c0 = '0' if si == 0 else 'v[96:111]'
        k(f'v_mfma_f32_32x32x16_bf16 v[112:127], v[{r}:{r+3}], v[{r+12}:{r+15}], {c1}')
        k(f'v_mfma_f32_32x32x16_bf16 v[96:111], v[{r}:{r+3}], v[{r+8}:{r+11}], {c0}')
        k(f'v_mfma_f32_32x32x16_bf16 v[112:127], v[{r+4}:{r+7}], v[{r+8}:{r+11}], v[112:127]')
    stamp_mid(k, 2)
    k('s_barrier')
    for j in range(4):
        k(f'ds_write_b128 v43, v[{96+4*j}:{99+4*j}] offset:{32*j}')
    for j in range(4):
        k(f'ds_write_b128 v43, v[{112+4*j}:{115+4*j}] offset:{32*j+4608}')
    k('s_waitcnt lgkmcnt(0)\ns_barrier')
    for w in range(4):
        k(f'ds_read_b128 v[{64+8*w}:{67+8*w}], v44 offset:{9216*w}')
        k(f'ds_read_b128 v[{68+8*w}:{71+8*w}], v44 offset:{9216*w+16}')
    for i in range(4):
        k(f'v_lshlrev_b32 v{24+2*i}, 16, v{8+i}\nv_and_b32 v{25+2*i}, 0xffff0000, v{8+i}')
    for i in range(4):
        k(f'v_lshlrev_b32 v{48+2*i}, 16, v{20+i}\nv_and_b32 v{49+2*i}, 0xffff0000, v{20+i}')
    k('s_waitcnt lgkmcnt(0)')
    for i in range(4):
        k(f'v_pk_add_f32 v[{64+2*i}:{65+2*i}], v[{64+2*i}:{65+2*i}], v[{72+2*i}:{73+2*i}]')
        k(f'v_pk_add_f32 v[{80+2*i}:{81+2*i}], v[{80+2*i}:{81+2*i}], v[{88+2*i}:{89+2*i}]')
    for i in range(4):
        k(f'v_pk_add_f32 v[{64+2*i}:{65+2*i}], v[{64+2*i}:{65+2*i}], v[{80+2*i}:{81+2*i}]')
    for i in range(8):
        k(f'v_fma_f32 v{64+i}, v{24+i}, s52, v{64+i}        ; y + h*D')
    for i in range(8):
        k(f'v_fma_f32 v{64+i}, v{64+i}, v47, v{48+i}        ; x + ga*(.)')
    for i in range(4):
        k(f'v_cvt_pk_bf16_f32 v{64+i}, v{64+2*i}, v{65+2*i}')
    k(f'buffer_store_dwordx4 v[64:67], v3, s[32:35], s26 offen{WT}')
    if STAMPS: k('s_waitcnt vmcnt(0)')
    stamp_end(k, 1)
    k('s_endpgm')

    k.label('L_k2_wp')
    if os.environ.get('EXP_NOWP'): k('s_endpgm')
    load_ptr(k, 4, 'wg'); load_ptr(k, 8, 'wu'); load_ptr(k, 12, 'ws')
    k('s_mul_hi_u32 s16, s2, 0x33333334')
    k('s_mul_i32 s17, s16, 5\ns_sub_u32 s17, s2, s17       ; dq')
    k('v_and_b32 v1, 63, v0            ; lane')
    k('v_lshrrev_b32 v2, 6, v0\nv_readfirstlane_b32 s18, v2     ; w')
    k('v_lshrrev_b32 v3, 3, v1\nv_and_b32 v4, 7, v1')
    k('v_lshrrev_b32 v5, 4, v1\nv_and_b32 v5, 1, v5\nv_lshlrev_b32 v5, 1, v5\nv_xor_b32 v4, v4, v5')
    k('v_xor_b32 v5, 4, v4')
    k('v_mul_u32_u24 v3, 3072, v3')
    k('v_lshl_add_u32 v4, v4, 4, v3')
    k('v_lshl_add_u32 v5, v5, 4, v3')
    k('s_mul_i32 s19, s17, 128*3072\ns_lshl_b32 s20, s16, 7\ns_add_u32 s19, s19, s20')
    k('s_mul_i32 s20, s18, 4*24576\ns_add_u32 s19, s19, s20')
    k('s_lshl_b32 s21, s18, 12')
    k('s_lshl_b32 s22, s17, 9\nv_lshlrev_b32 v6, 2, v0\nv_add_u32 v6, s22, v6     ; d*4')
    k('s_waitcnt lgkmcnt(0)')
    srd_fin(k, 4, SZ['wg']); srd_fin(k, 8, SZ['wu'])
    k(f's_add_u32 s24, s12, {WS_MODP}\ns_addc_u32 s25, s13, 0\ns_mov_b32 s26, 61440\ns_mov_b32 s27, {SRD3:#x}')
    for kq in range(4):
        k(f's_mov_b32 s23, {kq*15360 + 3*2560}')
        k(f'buffer_load_dword v{8+kq}, v6, s[24:27], s23 offen')
        k(f'buffer_load_dword v{12+kq}, v6, s[24:27], s23 offen offset:2560')
    for q in range(4):
        k(f's_add_u32 m0, s21, {q*1024}')
        k(f's_add_u32 s23, s19, {q*24576}')
        k('buffer_load_dwordx4 v4, s[4:7], s23 offen lds')
        k(f's_add_u32 m0, s21, {q*1024 + 16384}')
        k('s_nop 0')
        k('buffer_load_dwordx4 v5, s[8:11], s23 offen lds')
    k(f's_add_u32 s28, s12, {WS_WP}\ns_addc_u32 s29, s13, 0\ns_mov_b32 s30, 3932160\ns_mov_b32 s31, {SRD3:#x}')
    k(f's_add_u32 s32, s12, {WS_PQ}\ns_addc_u32 s33, s13, 0\ns_mov_b32 s34, 122880\ns_mov_b32 s35, {SRD3:#x}')
    k('s_waitcnt vmcnt(8)')
    k('v_add_f32 v8, v8, v9\nv_add_f32 v10, v10, v11\nv_add_f32 v12, v12, v13\nv_add_f32 v14, v14, v15')
    k('v_add_f32 v8, v8, v10\nv_add_f32 v12, v12, v14')
    k('v_cvt_pk_bf16_f32 v8, v8, v12')
    k('v_and_b32 v12, 0xffff0000, v8\nv_add_f32 v12, 1.0, v12\nv_cvt_pk_bf16_f32 v12, v12, v12\nv_lshlrev_b32 v12, 16, v12')
    k('v_lshlrev_b32 v9, 2, v0\nv_lshlrev_b32 v10, 1, v0')
    k('v_cmp_gt_u32 vcc, 128, v0')
    k('s_and_saveexec_b64 s[36:37], vcc')
    k('ds_write_b32 v9, v12 offset:32768')
    k('ds_write_b16 v10, v8 offset:33280')
    k('s_mov_b64 exec, s[36:37]')
    k('v_lshrrev_b32 v3, 4, v1          ; grp')
    k('v_and_b32 v7, 15, v1\nv_lshrrev_b32 v8, 2, v7      ; r\nv_and_b32 v7, 3, v7       ; c')
    k('v_lshrrev_b32 v9, 1, v3          ; g')
    k('v_and_b32 v10, 1, v3             ; grp&1')
    k('v_lshrrev_b32 v11, 1, v7         ; mat')
    k('v_lshrrev_b32 v12, 1, v8\nv_lshlrev_b32 v12, 1, v12      ; 2*((r>>1)&1)')
    k('v_xor_b32 v10, v10, v12\nv_lshlrev_b32 v12, 2, v11\nv_xor_b32 v10, v10, v12     ; X')
    k('v_lshlrev_b32 v10, 4, v10')
    k('v_lshl_add_u32 v10, v11, 14, v10         ; + mat*16384')
    k('v_lshl_add_u32 v12, v9, 3, v8            ; 8g + r')
    k('v_lshl_add_u32 v10, v12, 7, v10          ; + row*128')
    k('v_and_b32 v12, 1, v7\nv_lshl_add_u32 v10, v12, 3, v10')
    k('s_lshl_b32 s23, s18, 5\nv_xor_b32 v10, s23, v10      ; ^ 32*tl')
    k('v_lshlrev_b32 v11, 5, v9\nv_lshlrev_b32 v12, 4, v9')
    k('s_lshl_b32 s23, s16, 2\ns_add_u32 s23, s23, s18        ; T')
    k('s_mul_i32 s38, s17, 8*96\ns_add_u32 s38, s38, s23\ns_lshl_b32 s38, s38, 10')
    k('v_lshlrev_b32 v13, 4, v1')
    k('s_mov_b32 s39, 0x3f803f80')
    k('v_mov_b32 v14, 0\nv_mov_b32 v15, 0')
    k('s_waitcnt vmcnt(0) lgkmcnt(0)\ns_barrier')
    for ksl in range(8):
        b = 16 + 32 * (ksl & 1)
        k(f'ds_read_b64_tr_b16 v[{b}:{b+1}], v10 offset:{ksl*2048}')
        k(f'ds_read_b64_tr_b16 v[{b+2}:{b+3}], v10 offset:{ksl*2048+512}')
        k(f'ds_read_b128 v[{b+4}:{b+7}], v11 offset:{32768 + ksl*64}')
        k(f'ds_read_b128 v[{b+8}:{b+11}], v11 offset:{32768 + ksl*64 + 16}')
        k(f'ds_read_b128 v[{b+12}:{b+15}], v12 offset:{33280 + ksl*32}')
        k('s_waitcnt lgkmcnt(0)')
        for j in range(4):
            k(f'v_lshlrev_b32 v{b+16+2*j}, 16, v{b+j}\nv_and_b32 v{b+17+2*j}, 0xffff0000, v{b+j}')
        for j in range(4):
            k(f'v_pk_mul_f32 v[{b+16+2*j}:{b+17+2*j}], v[{b+16+2*j}:{b+17+2*j}], v[{b+4+2*j}:{b+5+2*j}]')
        for j in range(4):
            k(f'v_dot2_f32_bf16 v15, v{b+j}, v{b+12+j}, v15')
        for j in range(4):
            k(f'v_cvt_pk_bf16_f32 v{b+24+j}, v{b+16+2*j}, v{b+17+2*j}')
        for j in range(4):
            k(f'v_dot2_f32_bf16 v14, v{b+24+j}, s39, v14')
        k(f'buffer_store_dwordx4 v[{b+24}:{b+27}], v13, s[28:31], s38 offen{WT}')
        k(f's_add_u32 s38, s38, {96*1024}')
    k('v_mov_b32 v16, v14\nv_mov_b32 v17, v15')
    k('v_permlane32_swap_b32 v14, v16\nv_permlane32_swap_b32 v15, v17')
    k('v_add_f32 v14, v14, v16\nv_add_f32 v15, v15, v17')
    k('s_mul_i32 s38, s17, 96\ns_add_u32 s38, s38, s23\ns_lshl_b32 s38, s38, 8       ; (dq*96+T)*256')
    k('v_lshlrev_b32 v13, 3, v1')
    k('v_cmp_gt_u32 vcc, 32, v1')
    k('s_and_saveexec_b64 s[36:37], vcc')
    k(f'buffer_store_dwordx2 v[14:15], v13, s[32:35], s38 offen{WT}')
    k('s_mov_b64 exec, s[36:37]')
    if STAMPS: k('s_waitcnt vmcnt(0)')
    stamp_end(k, 1)
    k('s_endpgm')
    return k
```

```python
from asmlib import K
from common import *
import os, struct

K3_GRID = 256
NS = 6
STG = 20480
K3_TBL = NS * STG
K3_LDS = K3_TBL + 1536 + 1024
def f2h(x): return hex(struct.unpack('<I', struct.pack('<f', x))[0])
GK1 = -2.302208198144325
GK2 = GK1 * 0.044715

def build_k3():
    k = K('gemm1_kernel')
    stamp_begin(k)
    k(f's_cmp_ge_u32 s2, {K3_GRID}\ns_cbranch_scc1 L_k3_exit')
    load_ptr(k, 4, 'ws')
    k('s_and_b32 s20, s2, 7\ns_lshr_b32 s21, s2, 3')
    k('s_and_b32 s22, s20, 1\ns_lshl_b32 s22, s22, 3\ns_and_b32 s23, s21, 7\ns_add_u32 s22, s22, s23      ; rb')
    k('s_lshr_b32 s23, s20, 1\ns_lshl_b32 s23, s23, 2\ns_lshr_b32 s24, s21, 3\ns_add_u32 s23, s23, s24    ; fb')
    k('v_and_b32 v1, 63, v0            ; lane')
    k('v_lshrrev_b32 v2, 6, v0')
    k('v_lshrrev_b32 v3, 4, v1         ; lane>>4')
    k('v_readfirstlane_b32 s24, v2     ; w')
    k('v_and_b32 v4, 15, v1')
    k('v_lshlrev_b32 v5, 2, v3\nv_xor_b32 v5, v5, v4\nv_lshlrev_b32 v5, 4, v5\nv_lshl_add_u32 v5, v3, 12, v5')
    k('s_lshl_b32 s25, s22, 8          ; l0*2 = rb*128*2')
    k('v_add_u32 v5, s25, v5')
    k('v_lshlrev_b32 v6, 4, v1         ; lane*16')
    k('s_lshl_b32 s26, s24, 15         ; x2 soff = 8w*4096')
    k('s_lshr_b32 s27, s24, 1\ns_mul_i32 s27, s27, 96\ns_mul_i32 s28, s23, 6\ns_add_u32 s27, s27, s28')
    k('s_and_b32 s28, s24, 1\ns_mul_i32 s28, s28, 3\ns_add_u32 s27, s27, s28\ns_lshl_b32 s27, s27, 10     ; W soff')
    k('s_lshl_b32 s28, s24, 11')
    k('s_mul_i32 s29, s24, 3072\ns_add_u32 s29, s29, 8192')
    k('s_mul_i32 s30, s23, 6*256\nv_lshlrev_b32 v7, 3, v0\nv_add_u32 v7, s30, v7')
    k('v_mov_b32 v17, 0x80000000\nv_cmp_gt_u32 vcc, 192, v0\nv_cndmask_b32 v7, v17, v7, vcc')
    k('s_waitcnt lgkmcnt(0)')
    k(f's_add_u32 s8, s4, {WS_X2T}\ns_addc_u32 s9, s5, 0\ns_mov_b32 s10, 2621440\ns_mov_b32 s11, {SRD3:#x}')
    k(f's_add_u32 s12, s4, {WS_WP}\ns_addc_u32 s13, s5, 0\ns_mov_b32 s14, 3932160\ns_mov_b32 s15, {SRD3:#x}')
    k(f's_add_u32 s16, s4, {WS_PQ}\ns_addc_u32 s17, s5, 0\ns_mov_b32 s18, 122880\ns_mov_b32 s19, {SRD3:#x}')
    for dq in range(5):
        k(f's_mov_b32 s30, {dq*96*256}')
        k(f'buffer_load_dwordx2 v[{8+2*dq}:{9+2*dq}], v7, s[16:19], s30 offen')
    def dma_ops(ring):
        ops = []
        ops.append(f's_add_u32 m0, {ring}, s28\ns_add_u32 s30, s26, 16384\nbuffer_load_dwordx4 v5, s[8:11], s26 offen lds')
        ops.append(f's_add_u32 m0, m0, 1024\ns_add_u32 s26, s26, {32*4096}\nbuffer_load_dwordx4 v5, s[8:11], s30 offen lds')
        ops.append(f's_add_u32 m0, {ring}, s29\ns_nop 0\nbuffer_load_dwordx4 v6, s[12:15], s27 offen lds')
        ops.append('buffer_load_dwordx4 v6, s[12:15], s27 offen offset:1024 lds')
        ops.append(f'buffer_load_dwordx4 v6, s[12:15], s27 offen offset:2048 lds\ns_add_u32 s27, s27, {2*96*1024}')
        return ops
    for st in range(NS - 2):
        k(f's_mov_b32 s31, {st*STG}')
        for o in dma_ops('s31'): k(o)
    k(f's_add_u32 s16, s4, {WS_ACT}\ns_addc_u32 s17, s5, 0\ns_mov_b32 s18, 6291456\ns_mov_b32 s19, {SRD3:#x}')
    k('s_lshr_b32 s32, s24, 1          ; wi\ns_and_b32 s33, s24, 1      ; wj')
    k('v_lshrrev_b32 v18, 2, v4        ; r\nv_and_b32 v19, 3, v4     ; c')
    k('v_lshrrev_b32 v20, 1, v3        ; g\nv_and_b32 v21, 1, v3     ; grp&1')
    k('v_lshl_add_u32 v22, v20, 3, v18          ; 8g + r')
    k('v_lshlrev_b32 v22, 8, v22                ; row*256')
    k('v_lshrrev_b32 v23, 1, v19\nv_lshl_add_u32 v23, v21, 1, v23      ; 2(grp&1) + (c>>1)')
    k('v_lshl_add_u32 v22, v23, 4, v22')
    k('v_and_b32 v23, 1, v19\nv_lshl_add_u32 v22, v23, 3, v22')
    k('s_lshl_b32 s34, s32, 1\ns_add_u32 s34, s34, s33')
    k('s_xor_b32 s35, s34, 1                                    ; lt(1)')
    k('v_xor_b32 v23, s34, v18\nv_lshl_add_u32 v24, v23, 6, v22          ; XB0')
    k('v_xor_b32 v23, s35, v18\nv_lshl_add_u32 v25, v23, 6, v22          ; XB1')
    k('s_mul_i32 s36, s33, 3072\ns_add_u32 s36, s36, 8192\nv_add_u32 v26, s36, v6       ; WB')
    k(f'v_mov_b32 v72, {f2h(GK1)}\nv_mov_b32 v73, {f2h(GK1)}\nv_mov_b32 v74, {f2h(GK2)}\nv_mov_b32 v75, {f2h(GK2)}')
    k('s_mov_b32 s37, 0x3f803f80')
    k(f's_waitcnt vmcnt({5*(NS-3)})')
    for dq in range(1, 5):
        k(f'v_pk_add_f32 v[8:9], v[8:9], v[{8+2*dq}:{9+2*dq}]')
    k(f'v_lshlrev_b32 v7, 2, v0\nv_add_u32 v7, {K3_TBL}, v7')
    k('v_cmp_gt_u32 vcc, 192, v0')
    k('s_and_saveexec_b64 s[38:39], vcc')
    k('ds_write_b32 v7, v8\nds_write_b32 v7, v9 offset:768')
    k('s_mov_b64 exec, s[38:39]')
    k('s_mov_b32 s40, 0                ; ring(j)')
    k(f's_mov_b32 s41, {(NS-2)*STG}     ; ring(j-2)')
    k('s_waitcnt lgkmcnt(0)\ns_barrier')
    stamp_mid(k, 0)
    S0, S1 = 32, 52
    ACC = 96
    def acc(lt2, t): return ACC + 48 * lt2 + 16 * t
    def reads(s, ksl):
        xo = ksl * 4096; wo = ksl * 6144
        return [f'ds_read_b64_tr_b16 v[{s}:{s+1}], v27 offset:{xo}',
                f'ds_read_b64_tr_b16 v[{s+2}:{s+3}], v27 offset:{xo+1024}',
                f'ds_read_b128 v[{s+8}:{s+11}], v29 offset:{wo}',
                f'ds_read_b64_tr_b16 v[{s+4}:{s+5}], v28 offset:{xo}',
                f'ds_read_b64_tr_b16 v[{s+6}:{s+7}], v28 offset:{xo+1024}',
                f'ds_read_b128 v[{s+12}:{s+15}], v29 offset:{wo+1024}',
                f'ds_read_b128 v[{s+16}:{s+19}], v29 offset:{wo+2048}']
    def mfmas(s, first=False):
        out = []
        for t in range(3):
            for lt2 in range(2):
                a = acc(lt2, t)
                c = '0' if first else f'v[{a}:{a+15}]'
                out.append(f'v_mfma_f32_32x32x16_bf16 v[{a}:{a+15}], v[{s+8+4*t}:{s+11+4*t}], v[{s+4*lt2}:{s+3+4*lt2}], {c}')
        return out
    def stats(s, first=False):
        out = []
        if os.environ.get('EXP_NOSTAT'): return ['s_nop 0' if not first else 'v_mov_b32 v30, 0\nv_mov_b32 v31, 0'] + [''] * 7
        for i in range(4):
            out.append(f'v_dot2_f32_bf16 v{84+i}, v{s+i}, s37, ' + ('0' if first else f'v{84+i}'))
            out.append(f'v_dot2_f32_bf16 v{88+i}, v{s+i}, v{s+i}, ' + ('0' if first else f'v{88+i}'))
        return out
    def interleave(m, fill):
        for i, x in enumerate(m):
            k(x)
            for f in fill[i]: k(f)
    SCHED = os.environ.get('SCHED', 'B')
    def body(first):
        k('v_add_u32 v27, s40, v24\nv_add_u32 v28, s40, v25\nv_add_u32 v29, s40, v26')
        r0 = reads(S0, 0); r1 = reads(S1, 1); d = dma_ops('s41')
        if os.environ.get('EXP_NODMA'): d = ['s_nop 0'] * 5
        m1 = mfmas(S1); m0 = mfmas(S0, first)
        st1 = stats(S1); st0 = stats(S0, first)
        if os.environ.get('EXP_NOSTAT'): st1 = [''] * 8; st0 = ([st0[0]] if first else ['']) + [''] * 7
        if first:
            for x in r0: k(x)
            for x in d[:2]: k(x)
            k('s_waitcnt lgkmcnt(0)')
            W = [None] * 6
        else:
            k(m1[0]); k(r0[0]); k(r0[1]); k(st1[0])
            k('s_waitcnt lgkmcnt(4)')
            k(m1[1]); k(r0[2]); k(st1[1]); k(d[0])
            k('s_waitcnt lgkmcnt(4)')
            k(m1[2]); k(r0[3]); k(r0[4]); k(st1[2])
            k(m1[3]); k(r0[5]); k(st1[3]); k(d[1])
            k('s_waitcnt lgkmcnt(6)')
            k(m1[4]); k(r0[6]); k(st1[4]); k(st1[5])
            k(m1[5]); k(st1[6]); k(st1[7])
            k('s_waitcnt lgkmcnt(4)')
        k(m0[0]); k(r1[0]); k(r1[1]); k(st0[0])
        if not first: k('s_waitcnt lgkmcnt(4)')
        k(m0[1]); k(r1[2]); k(st0[1]); k(d[2])
        if not first: k('s_waitcnt lgkmcnt(4)')
        k(m0[2]); k(r1[3]); k(r1[4]); k(st0[2])
        k(m0[3]); k(r1[5]); k(st0[3]); k(d[3])
        if not first: k('s_waitcnt lgkmcnt(6)')
        k(m0[4]); k(r1[6]); k(st0[4]); k(st0[5])
        k(m0[5]); k(d[4]); k(st0[6]); k(st0[7])
        k(f's_add_u32 s41, s41, {STG}\ns_cmp_eq_u32 s41, {NS*STG}\ns_cselect_b32 s41, 0, s41')
        k(f's_add_u32 s40, s40, {STG}\ns_cmp_eq_u32 s40, {NS*STG}\ns_cselect_b32 s40, 0, s40')
        k(f's_waitcnt vmcnt({5*(NS-3)}) lgkmcnt(4)')
        if not os.environ.get('EXP_NOBAR'): k('s_barrier')
    body(True)
    k('s_mov_b32 s42, 19')
    k.label('L_k3_loop')
    body(False)
    k('s_sub_u32 s42, s42, 1\ns_cmp_lg_u32 s42, 0\ns_cbranch_scc1 L_k3_loop')
    k('s_waitcnt lgkmcnt(0)')
    m = mfmas(S1); st = stats(S1)
    if os.environ.get('EXP_NOSTAT'): st = [''] * 8
    interleave(m, [st[0:2], st[2:4], st[4:6], st[6:8], [], []])
    stamp_mid(k, 1)
    if not os.environ.get('EXP_NOSTAT'):
        k('v_add_f32 v84, v84, v85\nv_add_f32 v86, v86, v87\nv_add_f32 v88, v88, v89\nv_add_f32 v90, v90, v91')
        k('v_add_f32 v30, v84, v86\nv_add_f32 v31, v88, v90')
    k('v_mov_b32 v32, v30\nv_mov_b32 v33, v31')
    k('v_permlane32_swap_b32 v30, v32\nv_permlane32_swap_b32 v31, v33')
    k('v_add_f32 v30, v30, v32\nv_add_f32 v31, v31, v33')
    k('v_mul_f32 v30, 0x3acccccd, v30\nv_mul_f32 v31, 0x3acccccd, v31')
    k('v_fma_f32 v31, -v30, v30, v31\nv_max_f32 v31, 0, v31')
    k('v_cvt_pk_bf16_f32 v30, v30, v31\nv_and_b32 v31, 0xffff0000, v30\nv_lshlrev_b32 v30, 16, v30')
    k('v_add_f32 v31, 0x3727c5ac, v31\nv_cvt_pk_bf16_f32 v31, v31, v31\nv_lshlrev_b32 v31, 16, v31')
    k('v_sqrt_f32 v31, v31\ns_nop 0\nv_cvt_pk_bf16_f32 v31, v31, v31\nv_lshlrev_b32 v31, 16, v31')
    k('v_rcp_f32 v32, v31\ns_nop 0\nv_mul_f32 v33, v30, v32\nv_sub_f32 v33, 0, v33')
    k('v_and_b32 v34, 31, v1')
    k(f's_lshl_b32 s43, s34, 8\ns_add_u32 s43, s43, {K3_TBL+1536}')
    k('v_lshl_add_u32 v35, v34, 3, s43')
    k('ds_write_b64 v35, v[32:33]')
    k(f's_lshl_b32 s43, s35, 8\ns_add_u32 s43, s43, {K3_TBL+1536}')
    k('v_lshl_add_u32 v35, v34, 3, s43')
    k('s_waitcnt lgkmcnt(0)\ns_barrier')
    k('ds_read_b64 v[34:35], v35')
    k('v_lshrrev_b32 v36, 5, v1\nv_lshlrev_b32 v36, 4, v36')
    k(f's_mul_i32 s43, s33, 384\ns_add_u32 s43, s43, {K3_TBL}\nv_add_u32 v36, s43, v36')
    k('s_lshl_b32 s44, s22, 2\ns_add_u32 s45, s44, s35\ns_add_u32 s44, s44, s34')
    k('s_mul_i32 s46, s23, 6\ns_mul_i32 s47, s33, 3\ns_add_u32 s46, s46, s47         ; T0')
    k('s_mul_i32 s44, s44, 96\ns_add_u32 s44, s44, s46\ns_lshl_b32 s44, s44, 10')
    k('s_mul_i32 s45, s45, 96\ns_add_u32 s45, s45, s46\ns_lshl_b32 s45, s45, 10')
    for t in range(3):
        PB = 40
        for j in range(4):
            k(f'ds_read_b128 v[{PB+4*j}:{PB+4*j+3}], v36 offset:{128*t + 32*j}')
            k(f'ds_read_b128 v[{PB+16+4*j}:{PB+16+4*j+3}], v36 offset:{768 + 128*t + 32*j}')
        k('s_waitcnt lgkmcnt(0)')
        for lt2 in range(2):
            R = 32 if lt2 == 0 else 34
            a = acc(lt2, t)
            O = 76 + 4 * lt2
            T = 192
            for half in range(2):
                ag, au = a + 8 * half, a + 8 * half + 4
                pg, pu = PB + 8 * half, PB + 8 * half + 4
                qg, qu = pg + 16, pu + 16
                for p in range(2):
                    g = T + 16 * p; u = g + 2; t1 = g + 4; t2 = g + 6; e = g + 8
                    k(f'v_pk_fma_f32 v[{g}:{g+1}], v[{pg+2*p}:{pg+2*p+1}], v[{R}:{R+1}], v[{qg+2*p}:{qg+2*p+1}] op_sel:[0,1,0] op_sel_hi:[1,1,1]')
                    k(f'v_pk_fma_f32 v[{u}:{u+1}], v[{pu+2*p}:{pu+2*p+1}], v[{R}:{R+1}], v[{qu+2*p}:{qu+2*p+1}] op_sel:[0,1,0] op_sel_hi:[1,1,1]')
                    k(f'v_pk_fma_f32 v[{g}:{g+1}], v[{ag+2*p}:{ag+2*p+1}], v[{R}:{R+1}], v[{g}:{g+1}] op_sel:[0,0,0] op_sel_hi:[1,0,1]')
                    k(f'v_pk_fma_f32 v[{u}:{u+1}], v[{au+2*p}:{au+2*p+1}], v[{R}:{R+1}], v[{u}:{u+1}] op_sel:[0,0,0] op_sel_hi:[1,0,1]')
                for p in range(2):
                    g = T + 16 * p; t1 = g + 4
                    k(f'v_pk_mul_f32 v[{t1}:{t1+1}], v[{g}:{g+1}], v[{g}:{g+1}]')
                for p in range(2):
                    g = T + 16 * p; t1 = g + 4
                    k(f'v_pk_fma_f32 v[{t1}:{t1+1}], v[{t1}:{t1+1}], v[74:75], v[72:73]')
                for p in range(2):
                    g = T + 16 * p; t1 = g + 4
                    k(f'v_pk_mul_f32 v[{t1}:{t1+1}], v[{t1}:{t1+1}], v[{g}:{g+1}]')
                for p in range(2):
                    g = T + 16 * p; t1 = g + 4
                    k(f'v_exp_f32 v{t1}, v{t1}\nv_exp_f32 v{t1+1}, v{t1+1}')
                for p in range(2):
                    g = T + 16 * p; u = g + 2
                    k(f'v_pk_mul_f32 v[{u}:{u+1}], v[{u}:{u+1}], v[{g}:{g+1}]        ; g*u')
                for p in range(2):
                    g = T + 16 * p; t1 = g + 4
                    k(f'v_pk_add_f32 v[{t1}:{t1+1}], v[{t1}:{t1+1}], 1.0 op_sel_hi:[1,0]')
                for p in range(2):
                    g = T + 16 * p; t1 = g + 4
                    k(f'v_rcp_f32 v{t1}, v{t1}\nv_rcp_f32 v{t1+1}, v{t1+1}')
                for p in range(2):
                    g = T + 16 * p; u = g + 2; t1 = g + 4
                    k(f'v_pk_mul_f32 v[{u}:{u+1}], v[{u}:{u+1}], v[{t1}:{t1+1}]')
                for p in range(2):
                    g = T + 16 * p; u = g + 2
                    k(f'v_cvt_pk_bf16_f32 v{O + 2*half + p}, v{u}, v{u+1}')
            so = 's44' if lt2 == 0 else 's45'
            k(f'buffer_store_dwordx4 v[{O}:{O+3}], v6, s[16:19], {so} offen offset:{1024*t}')
    if STAMPS: k('s_waitcnt vmcnt(0)')
    stamp_end(k, 2)
    k.label('L_k3_exit')
    k('s_endpgm')
    return k
```

```python
from asmlib import K
from common import *
import os

K4_GRID = 256
D = 3
SLOT = 5120
RING = D * SLOT
X2OFF = 4 * RING
GBOFF = X2OFF + 10240
K4_LDS = max(GBOFF + 320, 4 * 20480 + 10240 + 320)
X2OFF = 81920; GBOFF = X2OFF + 10240; K4_LDS = GBOFF + 320

def build_k4():
    k = K('gemm2_kernel')
    stamp_begin(k)
    k(f's_cmp_ge_u32 s2, {K4_GRID}\ns_cbranch_scc1 L_k4_exit')
    load_ptr(k, 4, 'ws'); load_ptr(k, 8, 'wd'); load_ptr(k, 16, 'out')
    k('s_and_b32 s20, s2, 7\ns_lshr_b32 s21, s2, 3')
    k('s_and_b32 s22, s20, 1\ns_lshl_b32 s22, s22, 3\ns_and_b32 s23, s21, 7\ns_add_u32 s22, s22, s23      ; rb')
    k('s_lshr_b32 s23, s20, 1\ns_and_b32 s23, s23, 1       ; lh')
    k('s_lshl_b32 s22, s22, 1\ns_add_u32 s22, s22, s23')
    k('s_lshr_b32 s23, s20, 2\ns_lshl_b32 s23, s23, 2\ns_lshr_b32 s24, s21, 3\ns_add_u32 s23, s23, s24    ; db')
    k('v_and_b32 v1, 63, v0            ; lane')
    k('v_lshrrev_b32 v2, 6, v0')
    k('v_lshrrev_b32 v3, 4, v1         ; g = lane>>4')
    k('v_readfirstlane_b32 s24, v2     ; w')
    k('v_and_b32 v4, 15, v1            ; l\'')
    k('s_mul_i32 s25, s23, 160')
    for q in range(5):
        k(f'v_add_u32 v10, {64*q}, v1')
        k('v_mul_u32_u24 v11, 6554, v10\nv_lshrrev_b32 v11, 16, v11      ; /10')
        k('v_mul_u32_u24 v12, 10, v11\nv_sub_u32 v12, v10, v12')
        k('v_mul_u32_u24 v11, 1280, v11\nv_lshl_add_u32 v11, v12, 4, v11')
        k(f'v_add_u32 v{5+q}, s25, v11')
    k('v_lshrrev_b32 v10, 1, v3\nv_lshlrev_b32 v10, 10, v10')
    k('v_and_b32 v11, 1, v3\nv_lshlrev_b32 v11, 5, v11\nv_add_u32 v11, v11, v4\nv_lshl_add_u32 v10, v11, 4, v10     ; u=0')
    k(f'v_add_u32 v11, {96*1024}, v10                ; u=2')
    k('s_mul_i32 s26, s22, 2*96\ns_lshl_b32 s27, s24, 1\ns_add_u32 s26, s26, s27\ns_lshl_b32 s26, s26, 10')
    k('s_mul_i32 s27, s24, 40960')
    k(f's_mul_i32 s28, s24, {RING}')
    k('s_waitcnt lgkmcnt(0)')
    k(f's_add_u32 s12, s4, {WS_ACT}\ns_addc_u32 s13, s5, 0\ns_mov_b32 s14, 6291456\ns_mov_b32 s15, {SRD3:#x}')
    srd_fin(k, 8, SZ['wd']); srd_fin(k, 16, SZ['out'])
    ACT = 16
    def issue(slot, aset):
        k(f's_add_u32 m0, s28, {slot*SLOT}')
        k('s_nop 0')
        for q in range(5):
            k(f'buffer_load_dwordx4 v{5+q}, s[8:11], s27 offen lds')
            if q < 4: k('s_add_u32 m0, m0, 1024\ns_nop 0')
        r = ACT + 16 * aset
        k(f'buffer_load_dwordx4 v[{r}:{r+3}], v10, s[12:15], s26 offen')
        k(f'buffer_load_dwordx4 v[{r+4}:{r+7}], v10, s[12:15], s26 offen offset:256')
        k(f'buffer_load_dwordx4 v[{r+8}:{r+11}], v11, s[12:15], s26 offen')
        k(f'buffer_load_dwordx4 v[{r+12}:{r+15}], v11, s[12:15], s26 offen offset:256')
        k(f's_add_u32 s27, s27, {4*40960}\ns_add_u32 s26, s26, {8*1024}')
    for i in range(D):
        issue(i, i)
    k(f's_add_u32 s32, s4, {WS_X2T}\ns_addc_u32 s33, s5, 0\ns_mov_b32 s34, 2621440\ns_mov_b32 s35, {SRD3:#x}')
    k('v_lshrrev_b32 v12, 3, v1\nv_and_b32 v13, 7, v1')
    k('v_lshlrev_b32 v12, 12, v12\nv_lshl_add_u32 v12, v13, 4, v12')
    k('s_mul_i32 s29, s23, 80*4096\ns_lshl_b32 s30, s22, 7\ns_add_u32 s29, s29, s30')
    k('s_lshl_b32 s30, s24, 15\ns_add_u32 s29, s29, s30        ; + w*8 rows')
    k(f's_lshl_b32 s31, s24, 10\ns_add_u32 s31, s31, {X2OFF}')
    for q in range(3):
        if q == 2:
            k('s_cmp_ge_u32 s24, 2\ns_cbranch_scc1 L_k4_nox2')
        k('s_mov_b32 m0, s31\ns_nop 0')
        k('buffer_load_dwordx4 v12, s[32:35], s29 offen lds')
        k(f's_add_u32 s29, s29, {32*4096}\ns_add_u32 s31, s31, 4096')
    k.label('L_k4_nox2')
    k(f's_add_u32 s36, s4, {WS_MODP}\ns_addc_u32 s37, s5, 0\ns_mov_b32 s38, 61440\ns_mov_b32 s39, {SRD3:#x}')
    k('s_mul_i32 s30, s23, 320\nv_lshlrev_b32 v13, 2, v0\nv_add_u32 v14, s30, v13')
    k('v_mov_b32 v15, 0x80000000\nv_cmp_gt_u32 vcc, 80, v0\nv_cndmask_b32 v14, v15, v14, vcc')
    for kq in range(4):
        k(f's_mov_b32 s30, {kq*15360 + 5*2560}')
        k(f'buffer_load_dword v{64+kq}, v14, s[36:39], s30 offen')
    k('v_lshrrev_b32 v14, 2, v4\nv_and_b32 v15, 3, v4')
    k('v_lshrrev_b32 v68, 1, v3\nv_lshlrev_b32 v68, 4, v68\nv_and_b32 v69, 1, v3\nv_lshl_add_u32 v68, v69, 2, v68\nv_add_u32 v68, v68, v14')
    k('v_mul_u32_u24 v68, 160, v68\nv_lshl_add_u32 v68, v15, 3, v68\nv_add_u32 v68, s28, v68       ; TRB')
    stamp_mid(k, 0)
    ACC = 128
    WF = 72
    NEXTRA = None
    for i in range(12):
        slot = i % D
        if i == 0:
            k('s_waitcnt vmcnt(0)')
        else:
            k(f's_waitcnt vmcnt({9*(D-1) if i + D - 1 < 12 + 0 and i <= 12 - D else 9*(11 - i)})')
        r = ACT + 16 * slot
        o = slot * SLOT
        k(f'ds_read_b64_tr_b16 v[{WF}:{WF+1}], v68 offset:{o}\nds_read_b64_tr_b16 v[{WF+2}:{WF+3}], v68 offset:{o+1280}')
        for dt in range(5):
            cur = WF + 4 * (dt & 1); nxt = WF + 4 * ((dt + 1) & 1)
            if dt < 4:
                k(f'ds_read_b64_tr_b16 v[{nxt}:{nxt+1}], v68 offset:{o + 32*(dt+1)}\nds_read_b64_tr_b16 v[{nxt+2}:{nxt+3}], v68 offset:{o + 32*(dt+1) + 1280}')
                k('s_waitcnt lgkmcnt(2)')
            else:
                k('s_waitcnt lgkmcnt(0)')
            for u in range(4):
                a = ACC + 4 * (4 * dt + u)
                c = '0' if i == 0 else f'v[{a}:{a+3}]'
                k(f'v_mfma_f32_16x16x32_bf16 v[{a}:{a+3}], v[{cur}:{cur+3}], v[{r+4*u}:{r+4*u+3}], {c}')
        if i + D < 12:
            issue(slot, slot)
        if i == 0:
            k('v_add_f32 v64, v64, v65\nv_add_f32 v66, v66, v67\nv_add_f32 v64, v64, v66')
            k('v_cvt_pk_bf16_f32 v64, v64, v64\nv_lshlrev_b32 v64, 16, v64')
            k(f'v_add_u32 v13, {GBOFF}, v13')
            k('v_cmp_gt_u32 vcc, 80, v0')
            k('s_and_saveexec_b64 s[40:41], vcc')
            k('ds_write_b32 v13, v64')
            k('s_mov_b64 exec, s[40:41]')
    stamp_mid(k, 1)
    k('s_barrier')
    k('s_mul_i32 s30, s24, 20480\nv_lshlrev_b32 v13, 4, v1\nv_add_u32 v14, s30, v13')
    for t in range(20):
        k(f'ds_write_b128 v14, v[{ACC+4*t}:{ACC+4*t+3}] offset:{1024*t}')
    k('s_waitcnt lgkmcnt(0)\ns_barrier')
    k('s_lshl_b32 s30, s24, 10\nv_add_u32 v14, s30, v13')
    k(f'v_add_u32 v15, {40960}, v14')
    for dt in range(5):
        for wp in range(4):
            base = 'v14' if wp < 2 else 'v15'
            k(f'ds_read_b128 v[{16+16*dt+4*wp}:{19+16*dt+4*wp}], {base} offset:{(wp&1)*20480 + 4096*dt}')
    k('v_lshrrev_b32 v100, 2, v4\nv_and_b32 v101, 3, v4')
    k('v_lshl_add_u32 v100, v3, 2, v100\nv_lshlrev_b32 v100, 7, v100\nv_lshl_add_u32 v100, v101, 3, v100')
    k(f's_lshl_b32 s30, s24, 5\ns_add_u32 s30, s30, {X2OFF}\nv_add_u32 v100, s30, v100')
    for dt in range(5):
        k(f'ds_read_b64_tr_b16 v[{104+2*dt}:{105+2*dt}], v100 offset:{2048*dt}')
    k(f'v_lshlrev_b32 v101, 4, v3\nv_add_u32 v101, {GBOFF}, v101')
    for dt in range(5):
        k(f'ds_read_b128 v[{128+4*dt}:{131+4*dt}], v101 offset:{64*dt}')
    k('s_lshl_b32 s30, s22, 6\ns_lshl_b32 s31, s24, 4\ns_add_u32 s30, s30, s31\nv_add_u32 v102, s30, v4\nv_mul_u32_u24 v102, 1280, v102')
    k('s_mul_i32 s30, s23, 160\nv_lshl_add_u32 v102, v3, 3, v102\nv_add_u32 v102, s30, v102')
    k('s_waitcnt lgkmcnt(0)')
    for dt in range(5):
        b = 16 + 16 * dt
        k(f'v_pk_add_f32 v[{b}:{b+1}], v[{b}:{b+1}], v[{b+4}:{b+5}]\nv_pk_add_f32 v[{b+2}:{b+3}], v[{b+2}:{b+3}], v[{b+6}:{b+7}]')
        k(f'v_pk_add_f32 v[{b+8}:{b+9}], v[{b+8}:{b+9}], v[{b+12}:{b+13}]\nv_pk_add_f32 v[{b+10}:{b+11}], v[{b+10}:{b+11}], v[{b+14}:{b+15}]')
        k(f'v_pk_add_f32 v[{b}:{b+1}], v[{b}:{b+1}], v[{b+8}:{b+9}]\nv_pk_add_f32 v[{b+2}:{b+3}], v[{b+2}:{b+3}], v[{b+10}:{b+11}]')
        x = 104 + 2 * dt
        k(f'v_lshlrev_b32 v{b+4}, 16, v{x}\nv_and_b32 v{b+5}, 0xffff0000, v{x}\nv_lshlrev_b32 v{b+6}, 16, v{x+1}\nv_and_b32 v{b+7}, 0xffff0000, v{x+1}')
        g = 128 + 4 * dt
        k(f'v_pk_fma_f32 v[{b}:{b+1}], v[{b}:{b+1}], v[{g}:{g+1}], v[{b+4}:{b+5}]')
        k(f'v_pk_fma_f32 v[{b+2}:{b+3}], v[{b+2}:{b+3}], v[{g+2}:{g+3}], v[{b+6}:{b+7}]')
        k(f'v_cvt_pk_bf16_f32 v{b}, v{b}, v{b+1}\nv_cvt_pk_bf16_f32 v{b+1}, v{b+2}, v{b+3}')
        k(f'buffer_store_dwordx2 v[{b}:{b+1}], v102, s[16:19], 0 offen offset:{32*dt}')
    if STAMPS: k('s_waitcnt vmcnt(0)')
    stamp_end(k, 3)
    k.label('L_k4_exit')
    k('s_endpgm')
    return k
```

```python
import sys
from asmlib import emit_file
import k1, k2, k3, k4
log = []
kernels = [k1.build_k1(), k2.build_k2(), k3.build_k3(), k4.build_k4()]
launches = [('prep_kernel', k1.K1_GRID, 256, k1.K1_LDS), ('conv_kernel', k2.K2_GRID, 256, k2.K2_LDS), ('gemm1_kernel', k3.K3_GRID, 256, k3.K3_LDS), ('gemm2_kernel', k4.K4_GRID, 256, k4.K4_LDS)]
emit_file(sys.argv[1] if len(sys.argv) > 1 else 'out.s', kernels, launches, data=k1.ktable_data(), log=log)
print('\n'.join(log[:60]))
```

```python
import re

class K:
    def __init__(self, name):
        self.name = name
        self.lines = []
        self.uid = 0
    def __call__(self, s):
        for ln in s.split('\n'):
            ln = ln.strip()
            if ln:
                self.lines.append(ln)
        return self
    def label(self, l):
        self.lines.append(l + ':')
    def newlabel(self, p='L'):
        self.uid += 1
        return f'{p}_{self.name}_{self.uid}'

_reg_re = re.compile(r'^(-?)(\|?)([vas])(?:(\d+)|\[(\d+):(\d+)\])(\|?)$')
def parse_reg(tok):
    tok = tok.strip()
    tok = re.sub(r'^(neg|abs)\((.*)\)$', r'\2', tok)
    m = _reg_re.match(tok)
    if m:
        f = m.group(3)
        if m.group(4) is not None:
            lo = hi = int(m.group(4))
        else:
            lo, hi = int(m.group(5)), int(m.group(6))
        return [(f, i) for i in range(lo, hi + 1)]
    if tok == 'vcc': return [('s', 'vcc')]
    if tok in ('vcc_lo', 'vcc_hi'): return [('s', 'vcc')]
    if tok == 'exec': return [('s', 'exec')]
    if tok == 'm0': return [('s', 'm0')]
    return []

TRANS = ('v_exp_f32', 'v_log_f32', 'v_rcp_f32', 'v_rsq_f32', 'v_sqrt_f32', 'v_sin_f32', 'v_cos_f32', 'v_rcp_iflag_f32')
def split_ops(s):
    out, depth, cur = [], 0, ''
    for ch in s:
        if ch == '[': depth += 1
        if ch == ']': depth -= 1
        if ch == ',' and depth == 0:
            out.append(cur.strip()); cur = ''
        else:
            cur += ch
    if cur.strip(): out.append(cur.strip())
    return out

class I:
    def __init__(self, text):
        self.text = text
        t = text.split(';')[0].strip()
        self.is_label = t.endswith(':')
        self.dst = []; self.src = []; self.kind = 'other'
        self.mn = ''
        self.nop = 0
        if self.is_label or not t or t.startswith('.'):
            self.kind = 'label' if self.is_label else 'dir'
            return
        parts = t.split(None, 1)
        mn = parts[0]
        self.mn = mn = re.sub(r'_(e32|e64|dpp|sdwa)$', '', mn)
        rest = parts[1] if len(parts) > 1 else ''
        ops = split_ops(rest)
        mods = ''
        if ops:
            last = ops[-1].split()
            if len(last) > 1:
                ops[-1] = last[0]; mods = ' '.join(last[1:])
        self.mods = mods
        self.dpp = ('row_' in rest or 'wave_' in rest or 'quad_perm' in rest)
        R = [parse_reg(o) for o in ops]
        flat = lambda l: [x for y in l for x in y]
        if mn == 's_nop':
            self.kind = 'nop'; self.nop = int(ops[0], 0) + 1
        elif mn.startswith('v_mfma'):
            self.kind = 'mfma'
            self.dst = R[0]; self.a = R[1]; self.b = R[2]; self.c = R[3] if len(R) > 3 else []
            self.src = self.a + self.b + self.c
            self.passes = 8 if '32x32' in mn else 4
        elif mn.startswith('v_'):
            self.kind = 'valu'
            if mn.startswith('v_cmp'):
                self.dst = R[0]; self.src = flat(R[1:])
                if mn.startswith('v_cmpx'): self.dst = self.dst + [('s', 'exec')]
            elif mn.startswith('v_permlane') and 'swap' in mn:
                self.dst = R[0] + R[1]; self.src = R[0] + R[1]; self.perm = True
            elif mn in ('v_readlane_b32', 'v_readfirstlane_b32'):
                self.dst = R[0]; self.src = flat(R[1:]); self.rdlane = True
            elif mn in ('v_add_co_u32', 'v_sub_co_u32', 'v_addc_co_u32', 'v_subb_co_u32'):
                self.dst = R[0] + R[1]; self.src = flat(R[2:])
            else:
                self.dst = R[0]; self.src = flat(R[1:])
                if mn in ('v_fmac_f32', 'v_dot2c_f32_bf16', 'v_pk_fmac_f16', 'v_writelane_b32') or self.dpp:
                    self.src = self.src + R[0]
                if mn.startswith('v_dot2'): self.ab = flat(R[1:3])
                if mn == 'v_cndmask_b32' and len(ops) == 3:
                    self.src = self.src + [('s', 'vcc')]
        elif mn.startswith('ds_'):
            self.kind = 'ds'
            if mn.startswith('ds_read') or mn.startswith('ds_bpermute') or mn.startswith('ds_permute') or mn.startswith('ds_swizzle'):
                self.dst = R[0]; self.src = flat(R[1:])
                if 'd16' in mn: self.src = self.src + R[0]
            else:
                self.src = flat(R)
            self.store = not self.dst
        elif mn.startswith('buffer_') or mn.startswith('global_'):
            self.kind = 'vmem'
            lds = (' lds' in (' ' + mods)) or ('_lds_' in mn)
            self.lds = lds
            if 'load' in mn and not lds:
                self.dst = R[0]; self.src = flat(R[1:])
            elif 'atomic' in mn and 'sc0' in mods:
                self.dst = R[0]; self.src = flat(R)
            else:
                self.src = flat(R)
            self.wide_store = ('store' in mn and ('x4' in mn or 'x3' in mn))
            if self.wide_store:
                self.sdata = R[0] if mn.startswith('buffer_') else R[1]
        elif mn.startswith('s_'):
            self.kind = 'salu'
            if mn.startswith('s_cmp') or mn.startswith('s_cbranch') or mn in ('s_branch', 's_waitcnt', 's_barrier', 's_endpgm', 's_setprio', 's_sleep', 's_bitcmp1_b32', 's_bitcmp0_b32'):
                self.src = flat(R)
            else:
                self.dst = R[0] if R else []; self.src = flat(R[1:])
                if 'saveexec' in mn: self.dst = self.dst + [('s', 'exec')]
    def isv(self, r): return r[0] in 'va'

def need(p, c):
    n = 0
    pd = set(p.dst); cs = set(c.src); cd = set(c.dst)
    if p.kind == 'valu':
        vd = {r for r in pd if r[0] in 'va'}
        sd = {r for r in pd if r[0] == 's'}
        if c.kind == 'mfma' and vd & cs: n = max(n, 2)
        if c.kind == 'valu':
            if c.dpp and vd & cs: n = max(n, 2)
            if getattr(c, 'perm', False) and vd & cs: n = max(n, 2)
            if getattr(c, 'rdlane', False) and vd & cs: n = max(n, 1)
            if p.mn in TRANS and c.mn not in TRANS and vd & cs: n = max(n, 1)
            if sd & cs: n = max(n, 4 if getattr(c, 'rdlane', False) or c.mn == 'v_writelane_b32' else 2)
            if ('s', 'exec') in sd: n = max(n, 4 if (getattr(c, 'rdlane', False) or getattr(c, 'perm', False)) else (5 if c.dpp else 0))
        if c.kind == 'mfma' and ('s', 'exec') in sd: n = max(n, 4)
        if c.kind == 'vmem' and sd & cs: n = max(n, 5)
        if c.kind == 'salu' and sd & cs: n = max(n, 4)
        if p.mn in TRANS and c.kind in ('vmem', 'ds') and vd & cs: n = max(n, 1)
    if p.kind == 'valu' and p.mn.startswith('v_dot2'):
        vd = {r for r in pd if r[0] in 'va'}
        if c.kind == 'valu' and c.mn == p.mn:
            if vd & set(getattr(c, 'ab', [])): n = max(n, 3)
        elif c.kind in ('valu', 'ds', 'vmem', 'mfma') and vd & (cs | cd): n = max(n, 3)
    if p.kind == 'mfma':
        D = {4: 8, 8: 12}[p.passes]
        if c.kind == 'valu' and pd & (cs | cd): n = max(n, D)
        if c.kind in ('vmem', 'ds') and pd & (cs | cd): n = max(n, D)
        if c.kind == 'mfma':
            if pd & set(c.a + c.b): n = max(n, D)
            if pd & set(c.c):
                if not (p.dst == c.c and p.passes == c.passes): n = max(n, {4: 6, 8: 10}[p.passes])
            if pd & cd and not (p.dst == c.dst): n = max(n, {4: 6, 8: 10}[p.passes])
        if c.kind == 'valu' and set(p.c) & cd: n = max(n, {4: 3, 8: 7}[p.passes])
    if p.kind == 'salu' and ('s', 'm0') in pd:
        if c.kind == 'vmem' and getattr(c, 'lds', False): n = max(n, 1)
    if p.kind == 'vmem' and getattr(p, 'wide_store', False):
        if c.kind == 'valu' and set(p.sdata) & cd: n = max(n, 2)
        elif c.kind in ('ds', 'vmem', 'mfma') and set(p.sdata) & cd: n = max(n, 1)
    if p.kind == 'ds' and p.mn in ('ds_write_b128', 'ds_write_b96'):
        pass
    return n

def fix_hazards(lines, verbose=None, name=''):
    ins = [I(l) for l in lines]
    labels = {i.text.split(';')[0].strip()[:-1]: k for k, i in enumerate(ins) if i.is_label}
    out = []
    inserted = 0
    WIN = 24
    def states(i):
        if i.kind in ('label', 'dir'): return 0
        return i.nop if i.kind == 'nop' else 1
    hist = []
    def required(c, prev):
        r = 0; dist = 0
        for p in reversed(prev):
            if dist > WIN: break
            n = need(p, c)
            if n > dist: r = max(r, n - dist)
            dist += states(p)
        return r
    for k, c in enumerate(ins):
        if c.kind not in ('label', 'dir', 'nop'):
            r = required(c, hist)
            if r > 0:
                nop = I(f's_nop {r-1}')
                out.append(nop); hist.append(nop); inserted += 1
                if verbose is not None: verbose.append(f'{name}: nop {r} before [{c.text}]')
        out.append(c); hist.append(c)
    res = [i for i in out]
    lab = {i.text.split(';')[0].strip()[:-1]: k for k, i in enumerate(res) if i.is_label}
    problems = []
    for k, i in enumerate(res):
        if i.kind == 'salu' and (i.mn.startswith('s_cbranch') or i.mn == 's_branch'):
            tgt = i.text.split(';')[0].split()[-1]
            if tgt in lab:
                t = lab[tgt]
                prev = res[max(0, k - WIN):k + 1]
                seq = list(prev)
                for c in res[t:t + WIN]:
                    if c.kind in ('label', 'dir', 'nop'):
                        seq.append(c); continue
                    r = required(c, seq)
                    if r > 0:
                        problems.append(f'{name}: branch edge hazard ({r}) [{i.text}] -> [{c.text}]')
                    seq.append(c)
                    if c.kind == 'salu' and c.mn in ('s_branch', 's_endpgm'): break
    if problems:
        raise RuntimeError('\n'.join(problems))
    return [i.text for i in res], inserted

def max_regs(lines):
    mv = ma = ms = -1
    for l in lines:
        t = l.split(';')[0]
        for m in re.finditer(r'(?<![\w.])([vas])(?:(\d+)\b|\[(\d+):(\d+)\])', t):
            hi = int(m.group(2)) if m.group(2) is not None else int(m.group(4))
            if m.group(1) == 'v': mv = max(mv, hi)
            elif m.group(1) == 'a': ma = max(ma, hi)
            else: ms = max(ms, hi)
    return mv, ma, ms

def emit_file(path, kernels, launches, data='', log=None):
    txt = ''
    for n, g, b, lds in launches:
        txt += f'; @launch kernel={n} grid=({g},1,1) block=({b},1,1) lds={lds}\n'
    txt += '.amdgcn_target "amdgcn-amd-amdhsa--gfx950"\n.text\n'
    descs = ''
    for k in kernels:
        v = [] if log is None else log
        lines, nins = fix_hazards(k.lines, v, k.name)
        mv, ma, ms = max_regs(lines)
        nv = mv + 1
        if ma >= 0:
            acc = (nv + 3) // 4 * 4
            nfv = acc + ma + 1
        else:
            acc = max(4, (nv + 3) // 4 * 4); nfv = nv
        if getattr(k, 'force_vgpr', None):
            nfv = max(nfv, k.force_vgpr)
        txt += f'\n.globl {k.name}\n.p2align 8\n.type {k.name},@function\n{k.name}:\n'
        for l in lines:
            txt += (l if l.endswith(':') or l.startswith('.') else '    ' + l) + '\n'
        print(f'{k.name}: {len(lines)} lines, vgpr={nv} agpr={ma+1} total={nfv} sgpr={ms+1} nops_inserted={nins}')
        descs += f'''.p2align 6
.amdhsa_kernel {k.name}
  .amdhsa_next_free_vgpr {nfv}
  .amdhsa_next_free_sgpr {max(ms+1, 16)}
  .amdhsa_accum_offset {acc}
  .amdhsa_group_segment_fixed_size 0
  .amdhsa_kernarg_size 128
  .amdhsa_user_sgpr_count 2
  .amdhsa_user_sgpr_kernarg_segment_ptr 1
  .amdhsa_system_sgpr_workgroup_id_x 1
  .amdhsa_float_denorm_mode_32 3
.end_amdhsa_kernel
'''
    txt += data
    txt += '.section .rodata,"a"\n' + descs
    open(path, 'w').write(txt)

class Q:
    def __init__(self, k, name, maxv):
        self.k, self.name, self.maxv = k, name, maxv
        self.ops = []
        self.done = 0
    def issue(self, text, tag=None):
        self.k(text); self.ops.append(tag)
    def note(self, tag=None, n=1):
        self.ops += [tag] * n
    def need(self, tag):
        idx = max((i for i, t in enumerate(self.ops) if t == tag or (isinstance(t, tuple) and tag in t)), default=-1)
        assert idx >= 0, f'no op with tag {tag}'
        if idx < self.done: return None
        return len(self.ops) - 1 - idx
    def wait(self, tag, extra=''):
        n = self.need(tag)
        if n is None:
            if extra: self.k(f's_waitcnt {extra}')
            return
        m = min(n, self.maxv)
        self.k(f's_waitcnt {self.name}({m}) {extra}'.strip())
        self.done = max(self.done, len(self.ops) - m)
    def drain(self):
        self.k(f's_waitcnt {self.name}(0)'); self.done = len(self.ops)
```

```python
KA = dict(u=0, lar=8, aim=16, cr=24, ci=32, ldt=40, dsk=48, bx=56, wg=64, wu=72, wd=80, c=88, wmod=96, out=104, dbg=112, ws=120)
SZ = dict(u=2621440, lar=245760, aim=245760, cr=245760, ci=245760, ldt=1280, dsk=1280, wg=1966080, wu=1966080, wd=1966080, c=1280, wmod=4915200, out=2621440)
WS_MODP  = 0x0
WS_STATS = 0x10000
WS_PQ    = 0x14000
WS_XT    = 0x40000
WS_R     = 0x2C0000
WS_X2T   = 0x540000
WS_WP    = 0x7C0000
WS_ACT   = 0xB80000
WS_FLAGS = 0x1180000
WS_SP    = 0x1400000 - 0x60000
WS_WD    = 0x11B0000
WS_END   = 0x13F0000
LOG2E = 0x3fb8aa3b
NLOG2E = 0xbfb8aa3b
INV2PI = 0x3e22f983
SRD3 = 0x00020000

def bf16_rne(j):
    import struct
    u = struct.unpack('<I', struct.pack('<f', float(j)))[0]
    u = (u + 0x7fff + ((u >> 16) & 1)) & 0xffff0000
    return int(struct.unpack('<f', struct.pack('<I', u))[0])

def kidx(p):
    if p < 256: return (p & 7, p >> 3)
    if p < 512: return (8 + ((p & 7) >> 1), (p - 256) >> 3)
    if p < 1024:
        q = p - 512
        return (12 + 2 * (q >> 8) + ((q & 7) >> 2), (q & 255) >> 3)
    if p < 2048:
        q = p - 1024
        return (16 + (q >> 8), (q & 255) >> 3)
    return (20, 0)
HI_POS = list(range(8)) + [256, 258, 260, 262, 512, 516, 768, 772, 1024, 1280, 1536, 1792, 2048]
def ktable():
    t = []
    for x in range(2048):
        j = 2047 - x
        p = bf16_rne(j)
        m, u = kidx(p)
        assert HI_POS[m] + 8 * u == p, (j, p, m, u)
        t.append(2 * (m * 32 + u))
    return t

def load_ptr(k, s, name):
    k(f's_load_dwordx2 s[{s}:{s+1}], s[0:1], {KA[name]}')
def srd_fin(k, s, size, off=0):
    if off:
        k(f's_add_u32 s{s}, s{s}, {off}\ns_addc_u32 s{s+1}, s{s+1}, 0')
    k(f's_mov_b32 s{s+2}, {size}\ns_mov_b32 s{s+3}, {SRD3:#x}')

import os
STAMPS = os.environ.get('STAMPS', '0') in ('1', '2')
STAMP_INS = 's_memtime' if os.environ.get('STAMPS') == '2' else 's_memrealtime'
WS_STAMP = 0x1400000
def stamp_begin(k):
    if STAMPS:
        k(f'{STAMP_INS} s[86:87]')
def stamp_mid(k, i):
    if STAMPS:
        k(f'{STAMP_INS} s[{90+2*i}:{91+2*i}]')
def stamp_end(k, kidx, nmid=0):
    if STAMPS:
        lab = k.newlabel('L_st')
        k(f'{STAMP_INS} s[88:89]')
        k('s_load_dwordx2 s[98:99], s[0:1], 120')
        k('s_waitcnt lgkmcnt(0)')
        k('v_cmp_eq_u32 vcc, 0, v0')
        k('s_and_saveexec_b64 s[100:101], vcc')
        k(f's_cbranch_execz {lab}')
        k(f's_lshl_b32 s3, s2, 5\ns_add_u32 s3, s3, {WS_STAMP + kidx*32768}')
        k('v_mov_b32 v1, s3')
        k('v_mov_b32 v2, s86\nv_mov_b32 v3, s88\nv_mov_b32 v4, s90\nv_mov_b32 v5, s92')
        k('v_mov_b32 v6, s94\nv_mov_b32 v7, s96\nv_mov_b32 v8, 0\nv_mov_b32 v9, 0')
        k('global_store_dwordx4 v1, v[2:5], s[98:99]')
        k('global_store_dwordx4 v1, v[6:9], s[98:99] offset:16')
        k.label(lab)

WT = ' sc0 sc1' if os.environ.get('WT', '1') == '1' else ''
NT = ' nt' if os.environ.get('NT', '1') == '1' else ''
OUTWT = {'0': '', '1': ' sc0 sc1', 'nt': ' nt', 'sc1': ' sc1', 'ntsc': ' sc0 sc1 nt'}[os.environ.get('OUTWT', '0')]
```

```python
from asmlib import K
from common import *

N_LN, N_MOD, N_KG, N_WD = 64, 120, 640, 48
K1_GRID = N_LN + N_MOD + N_KG + N_WD
K1_LDS = 40960

def cmul(k, dst, x, y, tmp):
    k(f'v_pk_mul_f32 v[{tmp}:{tmp+1}], v[{x}:{x+1}], v[{y}:{y+1}] op_sel:[0,0] op_sel_hi:[0,1]')
    k(f'v_pk_fma_f32 v[{dst}:{dst+1}], v[{x}:{x+1}], v[{y}:{y+1}], v[{tmp}:{tmp+1}] op_sel:[1,1,0] op_sel_hi:[1,0,1] neg_lo:[1,0,0]')

def build_k1():
    k = K('prep_kernel')
    stamp_begin(k)
    k(f's_cmp_lt_u32 s2, {N_LN}\ns_cbranch_scc1 L_k1_ln')
    k(f's_cmp_lt_u32 s2, {N_LN+N_MOD}\ns_cbranch_scc1 L_k1_mod')
    k(f's_cmp_lt_u32 s2, {N_LN+N_MOD+N_KG}\ns_cbranch_scc1 L_k1_kg')
    k(f's_cmp_lt_u32 s2, {K1_GRID}\ns_cbranch_scc1 L_k1_wd')
    k('s_endpgm')

    k.label('L_k1_kg')
    k(f's_sub_u32 s3, s2, {N_LN+N_MOD}      ; d')
    load_ptr(k, 4, 'lar'); load_ptr(k, 8, 'aim'); load_ptr(k, 12, 'cr'); load_ptr(k, 16, 'ci'); load_ptr(k, 20, 'ldt'); load_ptr(k, 24, 'ws')
    k('s_getpc_b64 s[28:29]')
    k.label('L_k1_pc')
    k('s_add_u32 s28, s28, ktable-L_k1_pc\ns_addc_u32 s29, s29, 0')
    k('v_lshrrev_b32 v1, 6, v0')
    k('v_and_b32 v2, 63, v0            ; lane')
    k('v_readfirstlane_b32 s30, v1     ; wave')
    k('v_lshlrev_b32 v3, 4, v0         ; t*16')
    k('global_load_dwordx4 v[60:63], v3, s[28:29]')
    k('s_mul_i32 s31, s3, 384')
    k('v_lshlrev_b32 v4, 1, v0')
    k('v_add_u32 v4, s31, v4           ; d*384 + n*2')
    k('s_lshl_b32 s32, s3, 1')
    k('v_mov_b32 v5, s32')
    k('s_waitcnt lgkmcnt(0)')
    for s, n in ((4, 'lar'), (8, 'aim'), (12, 'cr'), (16, 'ci'), (20, 'ldt')):
        srd_fin(k, s, SZ[n])
    srd_fin(k, 24, 640 * 4096, WS_R)
    k('s_cmp_ge_u32 s30, 3\ns_cbranch_scc1 L_k1_kg_sync1')
    k('buffer_load_ushort v6, v5, s[20:23], 0 offen')
    k('buffer_load_ushort v7, v4, s[4:7], 0 offen')
    k('buffer_load_ushort v8, v4, s[8:11], 0 offen')
    k('buffer_load_ushort v9, v4, s[12:15], 0 offen')
    k('buffer_load_ushort v10, v4, s[16:19], 0 offen')
    k('s_mul_i32 s33, s30, 13568')
    k('v_lshlrev_b32 v11, 2, v2')
    for kk in range(16):
        k(f'v_xor_b32 v{64+kk}, {16*kk}, v11')
    for kk in range(16):
        k(f'v_add_u32 v{64+kk}, s33, v{64+kk}')
    k('v_and_b32 v12, 31, v2           ; m')
    k('v_lshrrev_b32 v13, 5, v2        ; g')
    k('v_and_b32 v14, 15, v12')
    k('v_xor_b32 v14, v14, v13')
    k('v_lshlrev_b32 v14, 4, v14       ; 16*(g ^ (m&15))')
    k('v_lshl_add_u32 v14, v12, 8, v14')
    k('v_add_u32 v14, s33, v14')
    k('s_waitcnt vmcnt(0)')
    stamp_mid(k, 0)
    k('v_lshlrev_b32 v6, 16, v6\nv_lshlrev_b32 v7, 16, v7\nv_lshlrev_b32 v8, 16, v8\nv_lshlrev_b32 v9, 16, v9\nv_lshlrev_b32 v10, 16, v10')
    k(f'v_mul_f32 v6, {LOG2E:#x}, v6\nv_mul_f32 v7, {LOG2E:#x}, v7')
    k('v_exp_f32 v6, v6\nv_exp_f32 v7, v7')
    k('v_cvt_pk_bf16_f32 v6, v6, v7')
    k('v_and_b32 v7, 0xffff0000, v6\nv_lshlrev_b32 v6, 16, v6')
    k('v_mul_f32 v7, v7, v6            ; are*dt')
    k(f'v_mul_f32 v7, {NLOG2E:#x}, v7    ; a2')
    k('v_mul_f32 v8, v8, v6            ; theta')
    k(f'v_mul_f32 v8, {INV2PI:#x}, v8    ; theta_r')
    k('v_add_f32 v6, v6, v6            ; 2dt')
    k('v_mul_f32 v16, v9, v6           ; Cbar.re')
    k('v_mul_f32 v17, v10, v6')
    k('v_sub_f32 v17, 0, v17')
    def direct(dst, p, sign, t0):
        k(f'v_mul_f32 v{t0}, {float(p)}, v7' if p in (1, 2, 4) else f'v_mul_f32 v{t0}, {hexf(p)}, v7')
        k(f'v_mul_f32 v{t0+1}, {hexf(sign*p)}, v8')
        k(f'v_exp_f32 v{t0}, v{t0}')
        k(f'v_fract_f32 v{t0+1}, v{t0+1}')
        k(f'v_cos_f32 v{dst}, v{t0+1}')
        k(f'v_sin_f32 v{dst+1}, v{t0+1}')
        k(f'v_mul_f32 v{dst}, v{dst}, v{t0}')
        k(f'v_mul_f32 v{dst+1}, v{dst+1}, v{t0}')
    direct(18, 1, -1, 24)
    direct(20, 256, -1, 26)
    direct(22, 8, +1, 28)
    ZB1, ZB256, W8 = 18, 20, 22
    ZB2, ZB4 = 30, 32
    A, B, T, L = 34, 36, 38, 40
    TA, TL = 42, 44
    C0 = 46
    rot = [0]
    def put(src, row, lo):
        t = C0 + (rot[0] % 8); rot[0] += 1
        k(f'v_cvt_pk_bf16_f32 v{t}, v{src}, v{src+1}')
        k(f'ds_write_b32 v{64 + (row & 15)}, v{t} offset:{row*256 + (5376 if lo else 0)}')
    hi = []
    hi.append(lambda: put(16, 0, False))
    hi.append(lambda: (cmul(k, A, 16, ZB1, TA), put(A, 1, False)))
    for m in range(2, 8):
        hi.append(lambda m=m: (cmul(k, A, A, ZB1, TA), put(A, m, False)))
    hi.append(lambda: cmul(k, ZB2, ZB1, ZB1, TA))
    hi.append(lambda: (cmul(k, B, 16, ZB256, TA), put(B, 8, False)))
    hi.append(lambda: cmul(k, ZB4, ZB2, ZB2, TA))
    hi.append(lambda: (cmul(k, T, B, ZB2, TA), put(T, 9, False)))
    hi.append(lambda: (cmul(k, T, T, ZB2, TA), put(T, 10, False)))
    hi.append(lambda: (cmul(k, T, T, ZB2, TA), put(T, 11, False)))
    hi.append(lambda: (cmul(k, B, B, ZB256, TA), put(B, 12, False)))
    hi.append(lambda: (cmul(k, T, B, ZB4, TA), put(T, 13, False)))
    hi.append(lambda: (cmul(k, B, B, ZB256, TA), put(B, 14, False)))
    hi.append(lambda: (cmul(k, T, B, ZB4, TA), put(T, 15, False)))
    for m in range(16, 21):
        hi.append(lambda m=m: (cmul(k, B, B, ZB256, TA), put(B, m, False)))
    lo = []
    lo.append(lambda: (k(f'v_mov_b32 v{L}, 1.0\nv_mov_b32 v{L+1}, 0'), put(L, 0, True)))
    lo.append(lambda: put(W8, 1, True))
    lo.append(lambda: (cmul(k, L, W8, W8, TL), put(L, 2, True)))
    for u in range(3, 32):
        lo.append(lambda u=u: (cmul(k, L, L, W8, TL), put(L, u, True)))
    i = j = 0
    while i < len(hi) or j < len(lo):
        if j < len(lo): lo[j](); j += 1
        if i < len(hi) and (i * len(lo) <= j * len(hi) or j >= len(lo)): hi[i](); i += 1
    k('s_waitcnt lgkmcnt(0)')
    stamp_mid(k, 1)
    for ks in range(8):
        k(f'v_xor_b32 v15, {32*ks}, v14')
        k(f'ds_read_b128 v[{24+8*(ks%4)}:{27+8*(ks%4)}], v15')
        k(f'ds_read_b128 v[{28+8*(ks%4)}:{31+8*(ks%4)}], v15 offset:5376')
        if ks >= 1:
            p = ks - 1
            k('s_waitcnt lgkmcnt(2)')
            k(f'v_mfma_f32_32x32x16_bf16 v[96:111], v[{24+8*(p%4)}:{27+8*(p%4)}], v[{28+8*(p%4)}:{31+8*(p%4)}], ' + ('0' if p == 0 else 'v[96:111]'))
    k('s_waitcnt lgkmcnt(0)')
    k('v_mfma_f32_32x32x16_bf16 v[96:111], v[48:51], v[52:55], v[96:111]')
    k('v_and_b32 v12, 31, v2\nv_lshrrev_b32 v13, 5, v2')
    k('v_lshlrev_b32 v12, 2, v12')
    k('v_lshl_add_u32 v12, v13, 9, v12')
    k('v_add_u32 v12, s33, v12')
    for j in range(3):
        for i in range(4):
            k(f'ds_write_b32 v12, v{96+4*j+i} offset:{(8*j+i)*128}')
    k.label('L_k1_kg_sync1')
    k('s_waitcnt lgkmcnt(0)\ns_barrier')
    stamp_mid(k, 2)
    k('v_cmp_gt_u32 vcc, 168, v0')
    k('s_and_saveexec_b64 s[34:35], vcc')
    k('s_cbranch_execz L_k1_kg_skip')
    k('ds_read_b128 v[24:27], v3\nds_read_b128 v[28:31], v3 offset:13568\nds_read_b128 v[32:35], v3 offset:27136')
    k('s_waitcnt lgkmcnt(0)')
    k('v_pk_add_f32 v[24:25], v[24:25], v[28:29]\nv_pk_add_f32 v[26:27], v[26:27], v[30:31]')
    k('v_pk_add_f32 v[24:25], v[24:25], v[32:33]\nv_pk_add_f32 v[26:27], v[26:27], v[34:35]')
    k('v_cvt_pk_bf16_f32 v24, v24, v25\nv_cvt_pk_bf16_f32 v25, v26, v27')
    k('v_lshlrev_b32 v12, 3, v0')
    k('ds_write_b64 v12, v[24:25] offset:4096')
    k.label('L_k1_kg_skip')
    k('s_mov_b64 exec, s[34:35]')
    k('s_waitcnt vmcnt(0) lgkmcnt(0)\ns_barrier')
    for q in range(4):
        k(f'v_and_b32 v{24+2*q}, 0xffff, v{60+q}\nv_lshrrev_b32 v{25+2*q}, 16, v{60+q}')
    for q in range(4):
        k(f'ds_read_u16 v{36+q}, v{24+2*q} offset:4096')
        k(f'ds_read_u16 v{40+q}, v{25+2*q} offset:4096')
    k('s_lshl_b32 s33, s3, 12')
    k('s_waitcnt lgkmcnt(0)')
    for q in range(4):
        k(f'v_lshl_or_b32 v{36+q}, v{40+q}, 16, v{36+q}')
    k('buffer_store_dwordx4 v[36:39], v3, s[24:27], s33 offen')
    if STAMPS: k('s_waitcnt vmcnt(0)')
    stamp_end(k, 0)
    k('s_endpgm')

    k.label('L_k1_ln')
    load_ptr(k, 4, 'u'); load_ptr(k, 8, 'ws'); load_ptr(k, 12, 'ws')
    k('v_lshrrev_b32 v1, 4, v0       ; rg')
    k('v_and_b32 v2, 15, v0          ; c')
    k('s_lshl_b32 s3, s2, 5          ; l0')
    k('v_add_u32 v3, s3, v1')
    k('v_mul_u32_u24 v4, 1280, v3')
    k('v_lshl_add_u32 v4, v2, 4, v4')
    k('s_mov_b32 s16, 20480')
    k('s_mov_b32 s17, 0x3f803f80')
    k('s_waitcnt lgkmcnt(0)')
    srd_fin(k, 4, SZ['u']); srd_fin(k, 8, 8192, WS_STATS); srd_fin(k, 12, 2621440, WS_XT)
    for p in range(2):
        for q in range(5):
            r = 16 + 4 * (5 * p + q)
            k(f'buffer_load_dwordx4 v[{r}:{r+3}], v4, s[4:7], {"s16" if p else "0"} offen offset:{256*q}')
    k('v_and_b32 v5, 3, v1\nv_lshrrev_b32 v6, 3, v1\nv_lshl_or_b32 v5, v6, 2, v5     ; f0')
    k('v_xor_b32 v5, v5, v2          ; c ^ f0')
    k('v_mul_u32_u24 v6, 1280, v1')
    k('v_xor_b32 v7, 8, v5')
    k('v_lshl_add_u32 v5, v5, 4, v6          ; p=0 addr')
    k('v_lshl_add_u32 v6, v7, 4, v6          ; p=1 addr - 20480')
    for p in range(2):
        k(f's_waitcnt vmcnt({5 if p == 0 else 0})')
        for q in range(5):
            r = 16 + 4 * (5 * p + q)
            k(f'ds_write_b128 v{5+p}, v[{r}:{r+3}] offset:{256*q + 20480*p}')
        for q in range(5):
            r = 16 + 4 * (5 * p + q)
            for i in range(4):
                first = (q == 0 and i == 0)
                k(f'v_dot2_f32_bf16 v{8+2*p}, v{r+i}, s17, ' + ('0' if first else f'v{8+2*p}'))
                k(f'v_dot2_f32_bf16 v{9+2*p}, v{r+i}, v{r+i}, ' + ('0' if first else f'v{9+2*p}'))
    for sh in (8, 4, 2, 1):
        for v in (8, 9, 10, 11):
            k(f'v_add_f32_dpp v{v}, v{v}, v{v} row_ror:{sh} row_mask:0xf bank_mask:0xf')
    for p in range(2):
        a, b = 8 + 2 * p, 9 + 2 * p
        k(f'v_mul_f32 v{a}, 0x3acccccd, v{a}          ; mean')
        k(f'v_mul_f32 v{b}, 0x3acccccd, v{b}')
        k(f'v_fma_f32 v{b}, -v{a}, v{a}, v{b}         ; var')
        k(f'v_max_f32 v{b}, 0, v{b}')
        k(f'v_cvt_pk_bf16_f32 v{b}, v{b}, v{b}\nv_lshlrev_b32 v{b}, 16, v{b}')
        k(f'v_add_f32 v{b}, 0x3727c5ac, v{b}')
        k(f'v_cvt_pk_bf16_f32 v{b}, v{b}, v{b}\nv_lshlrev_b32 v{b}, 16, v{b}')
        k(f'v_sqrt_f32 v{b}, v{b}')
        k(f'v_cvt_pk_bf16_f32 v{a}, v{a}, v{b}')
    k('v_lshlrev_b32 v7, 2, v3')
    k('v_cmp_eq_u32 vcc, 0, v2')
    k('s_and_saveexec_b64 s[18:19], vcc')
    k('s_cbranch_execz L_k1_ln_nost')
    k('buffer_store_dword v8, v7, s[8:11], 0 offen')
    k('buffer_store_dword v10, v7, s[8:11], 0 offen offset:64')
    k.label('L_k1_ln_nost')
    k('s_mov_b64 exec, s[18:19]')
    k('v_and_b32 v1, 63, v0          ; lane')
    k('v_lshrrev_b32 v2, 6, v0       ; w')
    k('v_lshrrev_b32 v3, 4, v1       ; grp')
    k('v_and_b32 v4, 15, v1          ; idx')
    k('v_lshrrev_b32 v5, 2, v4')
    k('v_and_b32 v6, 3, v4')
    k('v_lshl_add_u32 v7, v6, 3, v5  ; row = 8c + r')
    k('v_lshl_or_b32 v8, v6, 2, v5   ; f = r | c<<2')
    k('v_mul_u32_u24 v7, 1280, v7')
    k('v_and_b32 v9, 1, v3')
    k('v_lshl_add_u32 v7, v9, 3, v7')
    k('v_lshrrev_b32 v9, 1, v3')
    k('v_mul_u32_u24 v10, 20, v2')
    k('v_add_u32 v9, v9, v10         ; ch0')
    k('v_mul_u32_u24 v10, 40, v2\nv_add_u32 v10, v10, v3\nv_lshlrev_b32 v10, 14, v10')
    k('v_lshl_add_u32 v10, v5, 6, v10\nv_lshl_add_u32 v10, v6, 4, v10')
    k('s_lshl_b32 s16, s3, 3\nv_add_u32 v10, s16, v10')
    k('s_waitcnt lgkmcnt(0)\ns_barrier')
    for it in range(10):
        k(f'v_add_u32 v11, {2*it}, v9\nv_xor_b32 v11, v11, v8\nv_lshl_add_u32 v11, v11, 4, v7')
        r = 16 + 4 * it
        k(f'ds_read_b64_tr_b16 v[{r}:{r+1}], v11\nds_read_b64_tr_b16 v[{r+2}:{r+3}], v11 offset:5120')
    for it in range(10):
        r = 16 + 4 * it
        k(f's_mov_b32 s16, {it*65536}')
        k(f's_waitcnt lgkmcnt({min(15, 2*(9-it))})')
        k(f'buffer_store_dwordx4 v[{r}:{r+3}], v10, s[12:15], s16 offen')
    if STAMPS: k('s_waitcnt vmcnt(0)')
    stamp_end(k, 0)
    k('s_endpgm')

    k.label('L_k1_mod')
    load_ptr(k, 4, 'wmod'); load_ptr(k, 8, 'c'); load_ptr(k, 12, 'ws')
    k(f's_sub_u32 s3, s2, {N_LN}')
    k('s_lshr_b32 s16, s3, 2          ; cb\ns_and_b32 s17, s3, 3     ; kq')
    k('v_lshrrev_b32 v1, 4, v0       ; rg\nv_and_b32 v2, 15, v0    ; c')
    k('v_mul_u32_u24 v4, 7680, v1\nv_lshl_add_u32 v4, v2, 4, v4')
    k(f's_mul_i32 s18, s17, {160*7680}\ns_lshl_b32 s19, s16, 8\ns_add_u32 s18, s18, s19')
    k('s_mul_i32 s19, s17, 320\nv_lshlrev_b32 v5, 1, v1\nv_add_u32 v5, s19, v5')
    k('s_waitcnt lgkmcnt(0)')
    srd_fin(k, 4, SZ['wmod']); srd_fin(k, 8, SZ['c']); srd_fin(k, 12, 4 * 3840 * 4, WS_MODP)
    for p in range(10):
        k(f'buffer_load_ushort v{56+p}, v5, s[8:11], 0 offen offset:{32*p}')
    for p in range(10):
        k(f'buffer_load_dwordx4 v[{16+4*p}:{19+4*p}], v4, s[4:7], s18 offen')
        if p < 9: k('s_add_u32 s18, s18, 122880')
    k('s_waitcnt vmcnt(10)')
    for p in range(10):
        k(f'v_lshlrev_b32 v{56+p}, 16, v{56+p}')
    for p in range(10):
        k(f'v_mul_f32 v{66+p}, {NLOG2E:#x}, v{56+p}')
    for p in range(10):
        k(f'v_exp_f32 v{66+p}, v{66+p}')
    for p in range(10):
        k(f'v_add_f32 v{66+p}, 1.0, v{66+p}')
    for p in range(10):
        k(f'v_rcp_f32 v{66+p}, v{66+p}')
    for p in range(10):
        k(f'v_mul_f32 v{56+p}, v{56+p}, v{66+p}')
    for p in range(10):
        k(f'v_cvt_pk_bf16_f32 v{56+p}, v{56+p}, 0        ; (s,0)')
    for p in range(10):
        k(f'v_lshlrev_b32 v{66+p}, 16, v{56+p}           ; (0,s)')
    for p in range(10):
        k(f's_waitcnt vmcnt({9-p})')
        for i in range(4):
            k(f'v_dot2_f32_bf16 v{76+2*i}, v{16+4*p+i}, v{56+p}, ' + ('0' if p == 0 else f'v{76+2*i}'))
            k(f'v_dot2_f32_bf16 v{77+2*i}, v{16+4*p+i}, v{66+p}, ' + ('0' if p == 0 else f'v{77+2*i}'))
    k('v_lshlrev_b32 v6, 5, v0')
    k('ds_write_b128 v6, v[76:79]\nds_write_b128 v6, v[80:83] offset:16')
    k('s_waitcnt lgkmcnt(0)\ns_barrier')
    k('v_cmp_gt_u32 vcc, 128, v0')
    k('s_and_saveexec_b64 s[20:21], vcc')
    k('s_cbranch_execz L_k1_mod_end')
    k('v_lshlrev_b32 v6, 2, v0')
    for rg in range(16):
        k(f'ds_read_b32 v{16+rg}, v6 offset:{rg*512}')
    k('s_waitcnt lgkmcnt(0)')
    for st in (8, 4, 2, 1):
        for i in range(st):
            k(f'v_add_f32 v{16+i}, v{16+i}, v{16+i+st}')
    k('s_mul_i32 s19, s17, 15360\ns_lshl_b32 s22, s16, 9\ns_add_u32 s19, s19, s22')
    k('buffer_store_dword v16, v6, s[12:15], s19 offen')
    k.label('L_k1_mod_end')
    k('s_mov_b64 exec, s[20:21]')
    if STAMPS: k('s_waitcnt vmcnt(0)')
    stamp_end(k, 0)
    k('s_endpgm')
    k.label('L_k1_wd')
    load_ptr(k, 4, 'wd'); load_ptr(k, 8, 'ws')
    k(f's_sub_u32 s3, s2, {N_LN+N_MOD+N_KG}      ; kappa')
    k('v_and_b32 v1, 63, v0\nv_lshrrev_b32 v2, 6, v0\nv_lshlrev_b32 v3, 4, v1\nv_readfirstlane_b32 s16, v2')
    k('s_mul_i32 s17, s3, 40960')
    k('s_mul_i32 s18, s16, 10240\ns_add_u32 s17, s17, s18')
    k('s_waitcnt lgkmcnt(0)')
    srd_fin(k, 4, SZ['wd'])
    k(f's_add_u32 s12, s8, {WS_WD}\ns_addc_u32 s13, s9, 0\ns_mov_b32 s14, 1966080\ns_mov_b32 s15, {SRD3:#x}')
    for q in range(10):
        k(f's_add_u32 m0, s18, {q*1024}')
        k(f's_add_u32 s19, s17, {q*1024}')
        k('buffer_load_dwordx4 v3, s[4:7], s19 offen lds')
    k(f's_add_u32 s20, s8, {WS_FLAGS}\ns_addc_u32 s21, s9, 0\ns_mov_b32 s22, 4096\ns_mov_b32 s23, {SRD3:#x}')
    k('v_mov_b32 v8, 0\nv_mov_b32 v9, 0\nv_mov_b32 v10, 0\nv_mov_b32 v11, 0\nv_lshlrev_b32 v4, 4, v0')
    k('s_cmp_lg_u32 s3, 0\ns_cbranch_scc1 L_k1_wd_nz')
    k('buffer_store_dwordx4 v[8:11], v4, s[20:23], 0 offen')
    k.label('L_k1_wd_nz')
    k('v_lshrrev_b32 v5, 4, v1\nv_and_b32 v6, 15, v1\nv_lshrrev_b32 v7, 2, v6\nv_and_b32 v6, 3, v6')
    k('v_lshrrev_b32 v12, 1, v5\nv_lshlrev_b32 v12, 4, v12\nv_and_b32 v13, 1, v5\nv_lshl_add_u32 v12, v13, 2, v12\nv_add_u32 v12, v12, v7')
    k('v_mul_u32_u24 v12, 1280, v12\nv_lshl_add_u32 v12, v6, 3, v12')
    k('s_mul_i32 s24, s16, 320\nv_add_u32 v12, s24, v12')
    k('s_mul_i32 s24, s16, 96\ns_add_u32 s24, s24, s3\ns_mul_i32 s24, s24, 5120')
    k('s_waitcnt vmcnt(0)\ns_barrier')
    for b in range(2):
        for dt in range(5):
            r = 16 + 4 * (5 * b + dt)
            o = 160 * b + 32 * dt
            k(f'ds_read_b64_tr_b16 v[{r}:{r+1}], v12 offset:{o}\nds_read_b64_tr_b16 v[{r+2}:{r+3}], v12 offset:{o + 8*1280}')
    for b in range(2):
        for dt in range(5):
            r = 16 + 4 * (5 * b + dt)
            k(f's_waitcnt lgkmcnt({min(15, 2*(9 - 5*b - dt))})')
            k(f's_add_u32 s25, s24, {b*48*5120 + dt*1024}')
            k(f'buffer_store_dwordx4 v[{r}:{r+3}], v3, s[12:15], s25 offen')
    if STAMPS: k('s_waitcnt vmcnt(0)')
    stamp_end(k, 0)
    k('s_endpgm')
    return k

def hexf(x):
    import struct
    return hex(struct.unpack('<I', struct.pack('<f', float(x)))[0])

def ktable_data():
    t = ktable()
    s = '.p2align 8\n.type ktable,@object\nktable:\n'
    for i in range(0, 2048, 16):
        s += '.short ' + ', '.join(str(x) for x in t[i:i + 16]) + '\n'
    s += '.size ktable, 4096\n'
    return s
```

```python
from asmlib import K, Q
from common import *
import os, struct

K5_GRID = 256
NS = 7
STG = 20480
TBL = NS * STG
X2OFF = TBL + 1536
GBOFF = X2OFF + 10240
DUMMY = GBOFF + 320
K5_LDS = DUMMY + 1024 + 16
def f2h(x): return hex(struct.unpack('<I', struct.pack('<f', x))[0])
GK1 = -2.302208198144325
GK2 = GK1 * 0.044715
NSP = 10
SPIN_MAX = 400000

SS = int(os.environ.get('STAMPSET', '1'))
def build_k5():
    k = K('ffn_kernel')
    def stamp(setno, i):
        if SS == setno: stamp_mid(k, i)
    vm = Q(k, 'vmcnt', 63); lg = Q(k, 'lgkmcnt', 15)
    stamp_begin(k)
    k(f's_cmp_ge_u32 s2, {K5_GRID}\ns_cbranch_scc1 L_k5_exit')
    k('s_load_dwordx2 s[4:5], s[0:1], 120')
    k('s_load_dwordx2 s[82:83], s[0:1], 104       ; out')
    k('s_and_b32 s80, s2, 7\ns_lshr_b32 s81, s2, 3')
    k('s_and_b32 s20, s80, 1\ns_lshl_b32 s20, s20, 3\ns_and_b32 s21, s81, 7\ns_add_u32 s20, s20, s21      ; rb')
    k('s_lshr_b32 s21, s80, 1\ns_lshl_b32 s21, s21, 2\ns_lshr_b32 s27, s81, 3\ns_add_u32 s21, s21, s27    ; fb')
    k('s_lshr_b32 s3, s80, 1\ns_and_b32 s3, s3, 1\ns_lshl_b32 s6, s20, 1\ns_add_u32 s3, s3, s6')
    k('s_lshr_b32 s6, s80, 2\ns_lshl_b32 s6, s6, 2\ns_add_u32 s27, s27, s6                               ; db')
    k('v_and_b32 v1, 63, v0\nv_lshrrev_b32 v2, 6, v0\nv_lshrrev_b32 v3, 4, v1\nv_readfirstlane_b32 s22, v2     ; w')
    k('v_and_b32 v4, 15, v1\nv_mov_b32 v29, 0x80000000')
    k('v_lshlrev_b32 v5, 2, v3\nv_xor_b32 v5, v5, v4\nv_lshlrev_b32 v5, 4, v5\nv_lshl_add_u32 v5, v3, 12, v5')
    k('s_lshl_b32 s6, s20, 8\nv_add_u32 v5, s6, v5\nv_add_u32 v6, 16384, v5\nv_lshlrev_b32 v7, 4, v1')
    k('s_lshr_b32 s23, s22, 1          ; wi\ns_and_b32 s24, s22, 1      ; wj')
    k(f's_lshl_b32 s80, s21, 1\ns_cmp_lt_u32 s21, {NSP}\ns_cselect_b32 s81, 0, 1\ns_add_u32 s80, s80, s81')
    k('s_cmp_ge_u32 s80, 20\ns_cselect_b32 s81, 20, 0\ns_sub_u32 s80, s80, s81          ; st = s0')
    k('s_lshl_b32 s84, s22, 15         ; x2 const = w*32768')
    k('s_mul_i32 s85, s23, 96\ns_mul_i32 s81, s21, 6\ns_add_u32 s85, s85, s81\ns_mul_i32 s81, s24, 3\ns_add_u32 s85, s85, s81\ns_lshl_b32 s85, s85, 10    ; W const')
    def soff(j):
        k(f's_mul_i32 s{36+j}, s80, 131072\ns_mul_i32 s{56+j}, s80, 196608')
        k(f's_add_u32 s{36+j}, s{36+j}, s84\ns_add_u32 s{56+j}, s{56+j}, s85')
        k('s_add_u32 s80, s80, 1\ns_cmp_eq_u32 s80, 20\ns_cselect_b32 s80, 0, s80')
    PRE = NS - 2
    for j in range(PRE): soff(j)
    k('s_lshl_b32 s6, s22, 11\ns_mul_i32 s7, s22, 3072\ns_add_u32 s7, s7, 8192')
    k('s_waitcnt lgkmcnt(0)')
    k(f's_add_u32 s8, s4, {WS_X2T}\ns_addc_u32 s9, s5, 0\ns_mov_b32 s10, 2621440\ns_mov_b32 s11, {SRD3:#x}')
    k(f's_add_u32 s12, s4, {WS_WP}\ns_addc_u32 s13, s5, 0\ns_mov_b32 s14, 3932160\ns_mov_b32 s15, {SRD3:#x}')
    def dma_ops(j):
        sl = (j % NS) * STG
        return [f's_add_u32 m0, s6, {sl}\ns_nop 0\nbuffer_load_dwordx4 v5, s[8:11], s{36+j} offen lds',
                f's_add_u32 m0, s6, {sl+1024}\ns_nop 0\nbuffer_load_dwordx4 v6, s[8:11], s{36+j} offen lds',
                f's_add_u32 m0, s7, {sl}\ns_nop 0\nbuffer_load_dwordx4 v7, s[12:15], s{56+j} offen lds',
                f'buffer_load_dwordx4 v7, s[12:15], s{56+j} offen offset:1024 lds',
                f'buffer_load_dwordx4 v7, s[12:15], s{56+j} offen offset:2048 lds']
    for j in range(PRE):
        for o in dma_ops(j): vm.issue(o, ('st', j))
    stamp(1, 3)
    for j in range(PRE, 20): soff(j)
    k(f's_add_u32 s16, s4, {WS_ACT}\ns_addc_u32 s17, s5, 0\ns_mov_b32 s18, 6291456\ns_mov_b32 s19, {SRD3:#x}')
    k(f's_add_u32 s28, s4, {WS_FLAGS}\ns_addc_u32 s29, s5, 0\ns_mov_b32 s30, {WS_SP - WS_FLAGS + 163840}\ns_mov_b32 s31, {SRD3:#x}')
    k(f's_add_u32 s32, s4, {WS_WD}\ns_addc_u32 s33, s5, 0\ns_mov_b32 s34, 1966080\ns_mov_b32 s35, {SRD3:#x}')
    k(f's_add_u32 s76, s4, {WS_PQ}\ns_addc_u32 s77, s5, 0\ns_mov_b32 s78, 122880\ns_mov_b32 s79, {SRD3:#x}')
    k('s_mul_i32 s80, s21, 6*256\nv_lshlrev_b32 v17, 3, v0\nv_add_u32 v17, s80, v17')
    k('v_cmp_gt_u32 vcc, 192, v0\nv_cndmask_b32 v17, v29, v17, vcc')
    for dq in range(5):
        k(f's_mov_b32 s80, {dq*96*256}')
        vm.issue(f'buffer_load_dwordx2 v[{224+2*dq}:{225+2*dq}], v17, s[76:79], s80 offen', 'pq')
    k(f's_add_u32 s76, s4, {WS_MODP}\ns_addc_u32 s77, s5, 0\ns_mov_b32 s78, 61440')
    k('s_mul_i32 s80, s27, 320\nv_lshlrev_b32 v18, 2, v0\nv_add_u32 v17, s80, v18')
    k('v_cmp_gt_u32 vcc, 80, v0\nv_cndmask_b32 v17, v29, v17, vcc')
    for kq in range(4):
        k(f's_mov_b32 s80, {kq*15360 + 5*2560}')
        vm.issue(f'buffer_load_dword v{234+kq}, v17, s[76:79], s80 offen', 'pq')
    k('v_lshrrev_b32 v17, 3, v1\nv_and_b32 v18, 7, v1\nv_lshlrev_b32 v17, 12, v17\nv_lshl_add_u32 v17, v18, 4, v17')
    k('s_mul_i32 s80, s27, 80*4096\ns_lshl_b32 s81, s3, 7\ns_add_u32 s80, s80, s81\ns_lshl_b32 s81, s22, 15\ns_add_u32 s80, s80, s81')
    k(f's_lshl_b32 s81, s22, 10\ns_add_u32 s81, s81, {X2OFF}')
    for q in range(3):
        if q == 2:
            k(f's_and_b32 s84, s22, 1\ns_add_u32 s84, s84, 8\ns_lshl_b32 s81, s84, 10\ns_add_u32 s81, s81, {X2OFF}')
            k('s_mul_i32 s80, s27, 80*4096\ns_lshl_b32 s85, s84, 15\ns_add_u32 s80, s80, s85\ns_lshl_b32 s85, s3, 7\ns_add_u32 s80, s80, s85')
        k('s_mov_b32 m0, s81\ns_nop 0')
        vm.issue('buffer_load_dwordx4 v17, s[8:11], s80 offen lds', 'x2r')
        if q == 0: k(f's_add_u32 s80, s80, {32*4096}\ns_add_u32 s81, s81, 4096')
    k('v_lshrrev_b32 v18, 2, v4        ; r\nv_and_b32 v19, 3, v4     ; c')
    k('v_lshrrev_b32 v20, 1, v3        ; g\nv_and_b32 v21, 1, v3     ; grp&1')
    k('v_lshl_add_u32 v22, v20, 3, v18\nv_lshlrev_b32 v22, 8, v22')
    k('v_lshrrev_b32 v23, 1, v19\nv_lshl_add_u32 v23, v21, 1, v23\nv_lshl_add_u32 v22, v23, 4, v22')
    k('v_and_b32 v23, 1, v19\nv_lshl_add_u32 v22, v23, 3, v22')
    k('s_lshl_b32 s25, s23, 1\ns_add_u32 s25, s25, s24          ; lt(0)\ns_xor_b32 s26, s25, 1     ; lt(1)')
    k('v_xor_b32 v23, s25, v18\nv_lshl_add_u32 v8, v23, 6, v22          ; XB0')
    k('v_xor_b32 v23, s26, v18\nv_lshl_add_u32 v9, v23, 6, v22          ; XB1')
    k('s_mul_i32 s80, s24, 3072\ns_add_u32 s80, s80, 8192\nv_add_u32 v10, s80, v7       ; WB')
    for st_ in (1, 2):
        for i in range(3):
            k(f'v_add_u32 v{8+3*st_+i}, {61440*st_}, v{8+i}')
    k(f'v_mov_b32 v72, {f2h(GK1)}\nv_mov_b32 v73, {f2h(GK1)}\nv_mov_b32 v74, {f2h(GK2)}\nv_mov_b32 v75, {f2h(GK2)}')
    n = len(vm.ops) - 1 - max(i for i, t in enumerate(vm.ops) if t == ('st', 0))
    k(f's_waitcnt vmcnt({n})'); vm.done = max(vm.done, len(vm.ops) - n)
    k('s_barrier')
    stamp(1, 0)
    def vmwait_stage(j, extra=''):
        idx = max(i for i, t in enumerate(vm.ops) if t == ('st', j))
        if idx < vm.done:
            return
        n = min(63, len(vm.ops) - 1 - idx)
        k(f's_waitcnt vmcnt({n})'); vm.done = max(vm.done, len(vm.ops) - n)
    S0, S1 = 32, 52
    ACC = 96
    def acc(lt2, t): return ACC + 48 * lt2 + 16 * t
    def reads(s, j, ksl):
        sl = j % NS; base = 8 + 3 * (sl // 3); o = (sl % 3) * STG
        xo = o + ksl * 4096; wo = o + ksl * 6144
        tg = lambda n: (n, j, ksl)
        return [(f'ds_read_b64_tr_b16 v[{s}:{s+1}], v{base} offset:{xo}', tg('X0')),
                (f'ds_read_b64_tr_b16 v[{s+2}:{s+3}], v{base} offset:{xo+1024}', tg('X0')),
                (f'ds_read_b128 v[{s+8}:{s+11}], v{base+2} offset:{wo}', tg('W0')),
                (f'ds_read_b64_tr_b16 v[{s+4}:{s+5}], v{base+1} offset:{xo}', tg('X1')),
                (f'ds_read_b64_tr_b16 v[{s+6}:{s+7}], v{base+1} offset:{xo+1024}', tg('X1')),
                (f'ds_read_b128 v[{s+12}:{s+15}], v{base+2} offset:{wo+1024}', tg('W1')),
                (f'ds_read_b128 v[{s+16}:{s+19}], v{base+2} offset:{wo+2048}', tg('W2'))]
    def lgwait(tag):
        idx = max(i for i, t in enumerate(lg.ops) if t == tag)
        if idx < lg.done: return
        n = min(15, len(lg.ops) - 1 - idx)
        k(f's_waitcnt lgkmcnt({n})'); lg.done = max(lg.done, len(lg.ops) - n)
    def phase(s, j, ksl, first, nxt_reads, fill):
        order = [(0, 0), (0, 1), (1, 0), (1, 1), (2, 0), (2, 1)]
        rd_after = [[0, 1], [2], [3, 4], [5], [6], []]
        for i, (t, lt2) in enumerate(order):
            lgwait((f'W{t}', j, ksl)); lgwait((f'X{lt2}', j, ksl))
            a = acc(lt2, t)
            c = '0' if first else f'v[{a}:{a+15}]'
            k(f'v_mfma_f32_32x32x16_bf16 v[{a}:{a+15}], v[{s+8+4*t}:{s+11+4*t}], v[{s+4*lt2}:{s+3+4*lt2}], {c}')
            if nxt_reads:
                for ri in rd_after[i]:
                    lg.issue(*nxt_reads[ri])
            for item in fill[i]:
                if isinstance(item, tuple): vm.issue(item[0], item[1])
                else: k(item)
    def stat_ops(s, first):
        ops = []
        for i in range(4):
            a, b = 88 + 2 * (i & 1), 89 + 2 * (i & 1)
            ops.append(f'v_lshlrev_b32 v{a}, 16, v{s+i}')
            ops.append(f'v_and_b32 v{b}, 0xffff0000, v{s+i}')
            if first and i == 0:
                ops += [f'v_mov_b32 v84, v{a}', f'v_mov_b32 v85, v{b}', f'v_mul_f32 v86, v{a}, v{a}', f'v_mul_f32 v87, v{b}, v{b}']
            else:
                ops += [f'v_add_f32 v84, v84, v{a}', f'v_add_f32 v85, v85, v{b}', f'v_fma_f32 v86, v{a}, v{a}, v86', f'v_fma_f32 v87, v{b}, v{b}, v87']
        return ops
    def split(lst, n=6):
        out = [[] for _ in range(n)]
        for i, x in enumerate(lst): out[i * n // len(lst)].append(x)
        return out
    wd_list = []
    for i in range(12):
        for dt in range(5):
            wd_list.append((i, dt))
    k_wd = {'n': 0}
    def wd_load():
        i, dt = wd_list[k_wd['n']]; k_wd['n'] += 1
        pre = ''
        if dt == 0:
            pre = f's_add_u32 s85, s84, {i*4*5120}\n'
        if dt < 4:
            return (pre + f'buffer_load_dwordx4 a[{20*i+4*dt}:{20*i+4*dt+3}], v7, s[32:35], s85 offen offset:{1024*dt}', 'wd')
        return (f's_add_u32 s85, s85, 4096\nbuffer_load_dwordx4 a[{20*i+4*dt}:{20*i+4*dt+3}], v7, s[32:35], s85 offen', 'wd')
    k('s_mul_i32 s84, s27, 48\ns_add_u32 s84, s84, s22\ns_mul_i32 s84, s84, 5120')
    for r in reads(S0, 0, 0): lg.issue(*r)
    for j in range(20):
        d = [(o, ('st', j + PRE)) for o in dma_ops(j + PRE)] if j + PRE < 20 else [wd_load() for _ in range(5)]
        if os.environ.get('EXP_NODMA') and j + PRE < 20: d = [('s_nop 0', ('st', j + PRE)) for _ in range(5)]
        if j > 0:
            fill = [[], [d[0]], [], [d[1]], [], []]
            if j - 1 < 2:
                so = split(stat_ops(S1, False))
                fill = [fill[i] + so[i] for i in range(6)]
            if j == 2:
                pass
            phase(S1, j - 1, 1, False, reads(S0, j, 0), fill)
        else:
            vm.issue(*d[0]); vm.issue(*d[1])
        if j == 2:
            k('v_add_f32 v84, v84, v85\nv_add_f32 v86, v86, v87')
            k('v_mov_b32 v88, v84\nv_mov_b32 v89, v86')
            k('v_permlane32_swap_b32 v84, v88\nv_permlane32_swap_b32 v86, v89')
            k('v_add_f32 v84, v84, v88\nv_add_f32 v85, v86, v89')
            k(f's_mul_i32 s80, s20, {NSP}\ns_add_u32 s80, s80, s21\ns_lshl_b32 s80, s80, 10\ns_lshl_b32 s81, s25, 8\ns_add_u32 s80, s80, s81\ns_add_u32 s80, s80, {WS_SP - WS_FLAGS}')
            k(f's_cmp_lt_u32 s21, {NSP}\ns_cselect_b32 s81, 32, 0')
            k('v_lshlrev_b32 v88, 3, v1\nv_cmp_gt_u32 vcc, s81, v1\nv_cndmask_b32 v88, v29, v88, vcc')
            vm.issue('buffer_store_dwordx2 v[84:85], v88, s[28:31], s80 offen sc0 sc1', 'spst')
        if j == 6:
            vm.wait('pq')
            for dq in range(1, 5):
                k(f'v_pk_add_f32 v[224:225], v[224:225], v[{224+2*dq}:{225+2*dq}]')
            k('v_add_f32 v234, v234, v235\nv_add_f32 v236, v236, v237\nv_add_f32 v234, v234, v236')
            k('v_cvt_pk_bf16_f32 v234, v234, v234\nv_lshlrev_b32 v234, 16, v234')
            k(f'v_lshlrev_b32 v17, 2, v0\nv_add_u32 v18, {GBOFF}, v17\nv_add_u32 v17, {TBL}, v17')
            k(f'v_mov_b32 v19, {DUMMY}')
            k('v_cmp_gt_u32 vcc, 192, v0\nv_cndmask_b32 v17, v19, v17, vcc')
            k('v_cmp_gt_u32 vcc, 80, v0\nv_cndmask_b32 v18, v19, v18, vcc')
            lg.issue('ds_write_b32 v17, v224', 'tbl'); lg.issue('ds_write_b32 v17, v225 offset:768', 'tbl')
            lg.issue('ds_write_b32 v18, v234', 'tbl')
        if j == 8:
            k(f's_cmp_lt_u32 s21, {NSP}\ns_cselect_b32 s81, 1, 0\ns_lshl_b32 s80, s20, 7')
            k('v_mov_b32 v88, 0\nv_mov_b32 v89, 1\nv_cmp_gt_u32 vcc, s81, v0\nv_cndmask_b32 v88, v29, v88, vcc')
            vm.issue('buffer_atomic_add v89, v88, s[28:31], s80 offen sc1', 'atom1')
        if j == 13:
            k('s_lshl_b32 s80, s20, 7\nv_mov_b32 v88, 0')
            vm.issue('buffer_load_dword v90, v88, s[28:31], s80 offen sc0 sc1', 'poll1')
        if j == 17:
            vm.wait('poll1')
            k('v_readfirstlane_b32 s81, v90')
            k(f's_cmp_eq_u32 s81, {NSP}\ns_cbranch_scc1 L_k5_st_ok')
            k('s_mov_b32 s84, 0'.replace('s84', 's76'))
            k.label('L_k5_st_spin')
            k('s_lshl_b32 s80, s20, 7\nv_mov_b32 v88, 0')
            k('buffer_load_dword v90, v88, s[28:31], s80 offen sc0 sc1\ns_waitcnt vmcnt(0)')
            k('v_readfirstlane_b32 s81, v90\ns_add_u32 s76, s76, 1')
            k(f's_cmp_eq_u32 s81, {NSP}\ns_cbranch_scc1 L_k5_st_ok')
            k(f's_cmp_lt_u32 s76, {SPIN_MAX}\ns_cbranch_scc1 L_k5_st_spin')
            k.label('L_k5_st_ok')
            k('v_and_b32 v88, 31, v1\nv_lshlrev_b32 v88, 3, v88')
            k('s_lshl_b32 s80, s25, 8\ns_lshl_b32 s81, s26, 8\nv_mov_b32 v89, s80\nv_mov_b32 v91, s81')
            k('v_cmp_gt_u32 vcc, 32, v1\nv_cndmask_b32 v89, v91, v89, vcc\nv_add_u32 v88, v88, v89')
            k(f's_mul_i32 s80, s20, {NSP*1024}\ns_add_u32 s80, s80, {WS_SP - WS_FLAGS}')
            for p in range(NSP):
                vm.issue(f'buffer_load_dwordx2 v[{224+2*p}:{225+2*p}], v88, s[28:31], s80 offen offset:{(p%4)*1024} sc0 sc1', 'spld')
                if p % 4 == 3: k('s_add_u32 s80, s80, 4096')
        fill = [[], [d[2]], [], [d[3]], [], [d[4]]]
        if j < 2:
            so = split(stat_ops(S0, j == 0))
            fill = [fill[i] + so[i] for i in range(6)]
        phase(S0, j, 0, j == 0, reads(S1, j, 1), fill)
        if j < 19:
            vmwait_stage(j + 1)
            if j == 7: vm.wait('spst')
            if not os.environ.get('EXP_NOBAR'): k('s_barrier')
            for_next = reads(S0, j + 1, 0)
    fill = [[wd_load()], [], [wd_load()], [], [wd_load()], []]
    phase(S1, 19, 1, False, None, fill)
    stamp(1, 1)
    vm.wait('spld')
    for p in range(1, NSP):
        k(f'v_pk_add_f32 v[224:225], v[224:225], v[{224+2*p}:{225+2*p}]')
    k('v_mul_f32 v30, 0x3acccccd, v224\nv_mul_f32 v31, 0x3acccccd, v225')
    k('v_fma_f32 v31, -v30, v30, v31\nv_max_f32 v31, 0, v31')
    k('v_cvt_pk_bf16_f32 v30, v30, v31\nv_and_b32 v31, 0xffff0000, v30\nv_lshlrev_b32 v30, 16, v30')
    k('v_add_f32 v31, 0x3727c5ac, v31\nv_cvt_pk_bf16_f32 v31, v31, v31\nv_lshlrev_b32 v31, 16, v31')
    k('v_sqrt_f32 v31, v31\ns_nop 0\nv_cvt_pk_bf16_f32 v31, v31, v31\nv_lshlrev_b32 v31, 16, v31')
    k('v_rcp_f32 v32, v31\ns_nop 0\nv_mul_f32 v33, v30, v32\nv_sub_f32 v33, 0, v33')
    k('v_mov_b32 v34, v32\nv_mov_b32 v35, v33')
    k('v_permlane32_swap_b32 v32, v34\nv_permlane32_swap_b32 v33, v35')
    k('v_lshrrev_b32 v36, 5, v1\nv_lshlrev_b32 v36, 4, v36')
    k(f's_mul_i32 s80, s24, 384\ns_add_u32 s80, s80, {TBL}\nv_add_u32 v36, s80, v36')
    k('s_lshl_b32 s80, s20, 2\ns_add_u32 s81, s80, s26\ns_add_u32 s80, s80, s25')
    k('s_mul_i32 s76, s21, 6\ns_mul_i32 s77, s24, 3\ns_add_u32 s76, s76, s77         ; T0')
    k('s_mul_i32 s80, s80, 96\ns_add_u32 s80, s80, s76\ns_lshl_b32 s80, s80, 10')
    k('s_mul_i32 s81, s81, 96\ns_add_u32 s81, s81, s76\ns_lshl_b32 s81, s81, 10')
    for t in range(3):
        PB = 40
        for j in range(4):
            k(f'ds_read_b128 v[{PB+4*j}:{PB+4*j+3}], v36 offset:{128*t + 32*j}')
            k(f'ds_read_b128 v[{PB+16+4*j}:{PB+16+4*j+3}], v36 offset:{768 + 128*t + 32*j}')
        k('s_waitcnt lgkmcnt(0)')
        for lt2 in range(2):
            R = 32 if lt2 == 0 else 34
            a = acc(lt2, t)
            O = 76 + 4 * lt2
            T = 192
            for half in range(2):
                ag, au = a + 8 * half, a + 8 * half + 4
                pg, pu = PB + 8 * half, PB + 8 * half + 4
                qg, qu = pg + 16, pu + 16
                for p in range(2):
                    g = T + 16 * p; u = g + 2
                    k(f'v_pk_fma_f32 v[{g}:{g+1}], v[{pg+2*p}:{pg+2*p+1}], v[{R}:{R+1}], v[{qg+2*p}:{qg+2*p+1}] op_sel:[0,1,0] op_sel_hi:[1,1,1]')
                    k(f'v_pk_fma_f32 v[{u}:{u+1}], v[{pu+2*p}:{pu+2*p+1}], v[{R}:{R+1}], v[{qu+2*p}:{qu+2*p+1}] op_sel:[0,1,0] op_sel_hi:[1,1,1]')
                for p in range(2):
                    g = T + 16 * p; u = g + 2
                    k(f'v_pk_fma_f32 v[{g}:{g+1}], v[{ag+2*p}:{ag+2*p+1}], v[{R}:{R+1}], v[{g}:{g+1}] op_sel:[0,0,0] op_sel_hi:[1,0,1]')
                    k(f'v_pk_fma_f32 v[{u}:{u+1}], v[{au+2*p}:{au+2*p+1}], v[{R}:{R+1}], v[{u}:{u+1}] op_sel:[0,0,0] op_sel_hi:[1,0,1]')
                for p in range(2):
                    g = T + 16 * p; t1 = g + 4
                    k(f'v_pk_mul_f32 v[{t1}:{t1+1}], v[{g}:{g+1}], v[{g}:{g+1}]')
                for p in range(2):
                    g = T + 16 * p; t1 = g + 4
                    k(f'v_pk_fma_f32 v[{t1}:{t1+1}], v[{t1}:{t1+1}], v[74:75], v[72:73]')
                for p in range(2):
                    g = T + 16 * p; t1 = g + 4
                    k(f'v_pk_mul_f32 v[{t1}:{t1+1}], v[{t1}:{t1+1}], v[{g}:{g+1}]')
                for p in range(2):
                    g = T + 16 * p; t1 = g + 4
                    k(f'v_exp_f32 v{t1}, v{t1}\nv_exp_f32 v{t1+1}, v{t1+1}')
                for p in range(2):
                    g = T + 16 * p; u = g + 2
                    k(f'v_pk_mul_f32 v[{u}:{u+1}], v[{u}:{u+1}], v[{g}:{g+1}]')
                for p in range(2):
                    g = T + 16 * p; t1 = g + 4
                    k(f'v_pk_add_f32 v[{t1}:{t1+1}], v[{t1}:{t1+1}], 1.0 op_sel_hi:[1,0]')
                for p in range(2):
                    g = T + 16 * p; t1 = g + 4
                    k(f'v_rcp_f32 v{t1}, v{t1}\nv_rcp_f32 v{t1+1}, v{t1+1}')
                if k_wd['n'] < 60:
                    for _ in range(3):
                        if k_wd['n'] < 60: vm.issue(*wd_load())
                for p in range(2):
                    g = T + 16 * p; u = g + 2; t1 = g + 4
                    k(f'v_pk_mul_f32 v[{u}:{u+1}], v[{u}:{u+1}], v[{t1}:{t1+1}]')
                for p in range(2):
                    g = T + 16 * p; u = g + 2
                    k(f'v_cvt_pk_bf16_f32 v{O + 2*half + p}, v{u}, v{u+1}')
            so = 's80' if lt2 == 0 else 's81'
            vm.issue(f'buffer_store_dwordx4 v[{O}:{O+3}], v7, s[16:19], {so} offen offset:{1024*t} sc0 sc1', 'actst')
    while k_wd['n'] < 60: vm.issue(*wd_load())
    stamp(1, 2); stamp(2, 0)
    vm.drain()
    k('s_barrier')
    stamp(2, 1)
    k('s_lshl_b32 s80, s20, 7\ns_add_u32 s80, s80, 2048')
    k('v_mov_b32 v88, 0\nv_mov_b32 v89, 1\nv_cmp_gt_u32 vcc, 1, v0\nv_cndmask_b32 v88, v29, v88, vcc')
    k('buffer_atomic_add v89, v88, s[28:31], s80 offen sc1')
    k('v_lshrrev_b32 v10, 1, v3\nv_lshlrev_b32 v10, 10, v10')
    k('v_and_b32 v11, 1, v3\nv_lshlrev_b32 v11, 5, v11\nv_add_u32 v11, v11, v4\nv_lshl_add_u32 v10, v11, 4, v10     ; u=0')
    k(f'v_add_u32 v11, {96*1024}, v10                ; u=2')
    k('s_mul_i32 s84, s3, 2*96\ns_lshl_b32 s85, s22, 1\ns_add_u32 s84, s84, s85\ns_lshl_b32 s84, s84, 10')
    k('s_mov_b32 s76, 0\nv_mov_b32 v88, 0')
    k.label('L_k5_a_spin')
    k('buffer_load_dword v90, v88, s[28:31], s80 offen sc0 sc1\ns_waitcnt vmcnt(0)')
    k('v_readfirstlane_b32 s81, v90\ns_add_u32 s76, s76, 1')
    k('s_cmp_eq_u32 s81, 16\ns_cbranch_scc1 L_k5_a_ok')
    k(f's_cmp_lt_u32 s76, {SPIN_MAX}\ns_cbranch_scc1 L_k5_a_spin')
    k.label('L_k5_a_ok')
    stamp(2, 2)
    vm.ops = []; vm.done = 0
    D = 6
    ACT = 16; ACC2 = 128
    def act_issue(i):
        r = ACT + 16 * (i % D)
        ops = [f'buffer_load_dwordx4 v[{r}:{r+3}], v10, s[16:19], s84 offen sc0 sc1',
               f'buffer_load_dwordx4 v[{r+4}:{r+7}], v10, s[16:19], s84 offen offset:256 sc0 sc1',
               f'buffer_load_dwordx4 v[{r+8}:{r+11}], v11, s[16:19], s84 offen sc0 sc1',
               f'buffer_load_dwordx4 v[{r+12}:{r+15}], v11, s[16:19], s84 offen offset:256 sc0 sc1\ns_add_u32 s84, s84, {8*1024}']
        return [(o, ('a', i)) for o in ops]
    for i in range(D):
        for o in act_issue(i): vm.issue(*o)
    for i in range(12):
        idx = max(q for q, t in enumerate(vm.ops) if t == ('a', i))
        n = len(vm.ops) - 1 - idx
        k(f's_waitcnt vmcnt({n})')
        r = ACT + 16 * (i % D)
        nxt = act_issue(i + D) if i + D < 12 else []
        cnt = 0
        for u in range(4):
            for dt in range(5):
                a = ACC2 + 4 * (4 * dt + u)
                c = '0' if i == 0 else f'v[{a}:{a+3}]'
                k(f'v_mfma_f32_16x16x32_bf16 v[{a}:{a+3}], a[{20*i+4*dt}:{20*i+4*dt+3}], v[{r+4*u}:{r+4*u+3}], {c}')
            if nxt: vm.issue(*nxt[u])
    stamp(2, 3)
    k('s_barrier')
    k('s_mul_i32 s80, s22, 20480\nv_add_u32 v14, s80, v7')
    for t in range(20):
        k(f'ds_write_b128 v14, v[{ACC2+4*t}:{ACC2+4*t+3}] offset:{1024*t}')
    k(f's_mov_b32 s76, s82\ns_mov_b32 s77, s83\ns_mov_b32 s78, {SZ["out"]}\ns_mov_b32 s79, {SRD3:#x}')
    k('s_lshl_b32 s80, s22, 10\nv_add_u32 v14, s80, v7\nv_add_u32 v15, 40960, v14')
    k('v_lshrrev_b32 v100, 2, v4\nv_and_b32 v101, 3, v4')
    k('v_lshl_add_u32 v100, v3, 2, v100\nv_lshlrev_b32 v100, 7, v100\nv_lshl_add_u32 v100, v101, 3, v100')
    k(f's_lshl_b32 s80, s22, 5\ns_add_u32 s80, s80, {X2OFF}\nv_add_u32 v100, s80, v100')
    k(f'v_lshlrev_b32 v101, 4, v3\nv_add_u32 v101, {GBOFF}, v101')
    k('s_lshl_b32 s80, s3, 6\ns_lshl_b32 s81, s22, 4\ns_add_u32 s80, s80, s81\nv_add_u32 v102, s80, v4\nv_mul_u32_u24 v102, 1280, v102')
    k('s_mul_i32 s80, s27, 160\nv_lshl_add_u32 v102, v3, 3, v102\nv_add_u32 v102, s80, v102')
    k('s_waitcnt lgkmcnt(0)\ns_barrier')
    for dt in range(5):
        for wp in range(4):
            base = 'v14' if wp < 2 else 'v15'
            k(f'ds_read_b128 v[{16+16*dt+4*wp}:{19+16*dt+4*wp}], {base} offset:{(wp&1)*20480 + 4096*dt}')
    for dt in range(5):
        k(f'ds_read_b64_tr_b16 v[{104+2*dt}:{105+2*dt}], v100 offset:{2048*dt}')
    for dt in range(5):
        k(f'ds_read_b128 v[{128+4*dt}:{131+4*dt}], v101 offset:{64*dt}')
    k('s_waitcnt lgkmcnt(0)')
    for dt in range(5):
        b = 16 + 16 * dt
        k(f'v_pk_add_f32 v[{b}:{b+1}], v[{b}:{b+1}], v[{b+4}:{b+5}]\nv_pk_add_f32 v[{b+2}:{b+3}], v[{b+2}:{b+3}], v[{b+6}:{b+7}]')
        k(f'v_pk_add_f32 v[{b+8}:{b+9}], v[{b+8}:{b+9}], v[{b+12}:{b+13}]\nv_pk_add_f32 v[{b+10}:{b+11}], v[{b+10}:{b+11}], v[{b+14}:{b+15}]')
        k(f'v_pk_add_f32 v[{b}:{b+1}], v[{b}:{b+1}], v[{b+8}:{b+9}]\nv_pk_add_f32 v[{b+2}:{b+3}], v[{b+2}:{b+3}], v[{b+10}:{b+11}]')
        x = 104 + 2 * dt
        k(f'v_lshlrev_b32 v{b+4}, 16, v{x}\nv_and_b32 v{b+5}, 0xffff0000, v{x}\nv_lshlrev_b32 v{b+6}, 16, v{x+1}\nv_and_b32 v{b+7}, 0xffff0000, v{x+1}')
        g = 128 + 4 * dt
        k(f'v_pk_fma_f32 v[{b}:{b+1}], v[{b}:{b+1}], v[{g}:{g+1}], v[{b+4}:{b+5}]')
        k(f'v_pk_fma_f32 v[{b+2}:{b+3}], v[{b+2}:{b+3}], v[{g+2}:{g+3}], v[{b+6}:{b+7}]')
        k(f'v_cvt_pk_bf16_f32 v{b}, v{b}, v{b+1}\nv_cvt_pk_bf16_f32 v{b+1}, v{b+2}, v{b+3}')
        k(f'buffer_store_dwordx2 v[{b}:{b+1}], v102, s[76:79], 0 offen offset:{32*dt}')
    if STAMPS: k('s_waitcnt vmcnt(0)')
    stamp_end(k, 2)
    k.label('L_k5_exit')
    k('s_endpgm')
    return k
```

```python
import sys, os
from asmlib import emit_file
import k1, k2, k3, k4, k5
log = []
if os.environ.get('UNFUSED'):
    kernels = [k1.build_k1(), k2.build_k2(), k3.build_k3(), k4.build_k4()]
    launches = [('prep_kernel', k1.K1_GRID, 256, k1.K1_LDS), ('conv_kernel', k2.K2_GRID, 256, k2.K2_LDS), ('gemm1_kernel', k3.K3_GRID, 256, k3.K3_LDS), ('gemm2_kernel', k4.K4_GRID, 256, k4.K4_LDS)]
else:
    kernels = [k1.build_k1(), k2.build_k2(), k5.build_k5()]
    launches = [('prep_kernel', k1.K1_GRID, 256, k1.K1_LDS), ('conv_kernel', k2.K2_GRID, 256, k2.K2_LDS), ('ffn_kernel', k5.K5_GRID, 256, k5.K5_LDS)]
emit_file(sys.argv[1] if len(sys.argv) > 1 else 'out.s', kernels, launches, data=k1.ktable_data(), log=log)
print('\n'.join(log[:80]))
```

```python
from asmlib import K
from common import *

N_LN, N_MOD, N_KG, N_WD = 64, 120, 640, 48
K1_GRID = N_LN + N_MOD + N_KG + N_WD
K1_LDS = 40960

def cmul(k, dst, x, y, tmp):
    k(f'v_pk_mul_f32 v[{tmp}:{tmp+1}], v[{x}:{x+1}], v[{y}:{y+1}] op_sel:[0,0] op_sel_hi:[0,1]')
    k(f'v_pk_fma_f32 v[{dst}:{dst+1}], v[{x}:{x+1}], v[{y}:{y+1}], v[{tmp}:{tmp+1}] op_sel:[1,1,0] op_sel_hi:[1,0,1] neg_lo:[1,0,0]')

def build_k1():
    k = K('prep_kernel')
    stamp_begin(k)
    k(f's_cmp_lt_u32 s2, {N_LN}\ns_cbranch_scc1 L_k1_ln')
    k(f's_cmp_lt_u32 s2, {N_LN+N_MOD}\ns_cbranch_scc1 L_k1_mod')
    k(f's_cmp_lt_u32 s2, {N_LN+N_MOD+N_KG}\ns_cbranch_scc1 L_k1_kg')
    k(f's_cmp_lt_u32 s2, {K1_GRID}\ns_cbranch_scc1 L_k1_wd')
    k('s_endpgm')

    k.label('L_k1_kg')
    k(f's_sub_u32 s3, s2, {N_LN+N_MOD}      ; d')
    load_ptr(k, 4, 'lar'); load_ptr(k, 8, 'aim'); load_ptr(k, 12, 'cr'); load_ptr(k, 16, 'ci'); load_ptr(k, 20, 'ldt'); load_ptr(k, 24, 'ws')
    k('s_getpc_b64 s[28:29]')
    k.label('L_k1_pc')
    k('s_add_u32 s28, s28, ktable-L_k1_pc\ns_addc_u32 s29, s29, 0')
    k('v_lshrrev_b32 v1, 6, v0')
    k('v_and_b32 v2, 63, v0            ; lane')
    k('v_readfirstlane_b32 s30, v1     ; wave')
    k('v_lshlrev_b32 v3, 4, v0         ; t*16')
    k('global_load_dwordx4 v[60:63], v3, s[28:29]')
    k('s_mul_i32 s31, s3, 384')
    k('v_lshlrev_b32 v4, 1, v0')
    k('v_add_u32 v4, s31, v4           ; d*384 + n*2')
    k('s_lshl_b32 s32, s3, 1')
    k('v_mov_b32 v5, s32')
    k('s_waitcnt lgkmcnt(0)')
    for s, n in ((4, 'lar'), (8, 'aim'), (12, 'cr'), (16, 'ci'), (20, 'ldt')):
        srd_fin(k, s, SZ[n])
    srd_fin(k, 24, 640 * 4096, WS_R)
    k('s_cmp_ge_u32 s30, 3\ns_cbranch_scc1 L_k1_kg_sync1')
    k('buffer_load_ushort v6, v5, s[20:23], 0 offen')
    k('buffer_load_ushort v7, v4, s[4:7], 0 offen')
    k('buffer_load_ushort v8, v4, s[8:11], 0 offen')
    k('buffer_load_ushort v9, v4, s[12:15], 0 offen')
    k('buffer_load_ushort v10, v4, s[16:19], 0 offen')
    k('s_mul_i32 s33, s30, 13568')
    k('v_lshlrev_b32 v11, 2, v2')
    for kk in range(16):
        k(f'v_xor_b32 v{64+kk}, {16*kk}, v11')
    for kk in range(16):
        k(f'v_add_u32 v{64+kk}, s33, v{64+kk}')
    k('v_and_b32 v12, 31, v2           ; m')
    k('v_lshrrev_b32 v13, 5, v2        ; g')
    k('v_and_b32 v14, 15, v12')
    k('v_xor_b32 v14, v14, v13')
    k('v_lshlrev_b32 v14, 4, v14       ; 16*(g ^ (m&15))')
    k('v_lshl_add_u32 v14, v12, 8, v14')
    k('v_add_u32 v14, s33, v14')
    k('s_waitcnt vmcnt(0)')
    stamp_mid(k, 0)
    k('v_lshlrev_b32 v6, 16, v6\nv_lshlrev_b32 v7, 16, v7\nv_lshlrev_b32 v8, 16, v8\nv_lshlrev_b32 v9, 16, v9\nv_lshlrev_b32 v10, 16, v10')
    k(f'v_mul_f32 v6, {LOG2E:#x}, v6\nv_mul_f32 v7, {LOG2E:#x}, v7')
    k('v_exp_f32 v6, v6\nv_exp_f32 v7, v7')
    k('v_cvt_pk_bf16_f32 v6, v6, v7')
    k('v_and_b32 v7, 0xffff0000, v6\nv_lshlrev_b32 v6, 16, v6')
    k('v_mul_f32 v7, v7, v6            ; are*dt')
    k(f'v_mul_f32 v7, {NLOG2E:#x}, v7    ; a2')
    k('v_mul_f32 v8, v8, v6            ; theta')
    k(f'v_mul_f32 v8, {INV2PI:#x}, v8    ; theta_r')
    k('v_add_f32 v6, v6, v6            ; 2dt')
    k('v_mul_f32 v16, v9, v6           ; Cbar.re')
    k('v_mul_f32 v17, v10, v6')
    k('v_sub_f32 v17, 0, v17')
    def direct(dst, p, sign, t0):
        k(f'v_mul_f32 v{t0}, {float(p)}, v7' if p in (1, 2, 4) else f'v_mul_f32 v{t0}, {hexf(p)}, v7')
        k(f'v_mul_f32 v{t0+1}, {hexf(sign*p)}, v8')
        k(f'v_exp_f32 v{t0}, v{t0}')
        k(f'v_fract_f32 v{t0+1}, v{t0+1}')
        k(f'v_cos_f32 v{dst}, v{t0+1}')
        k(f'v_sin_f32 v{dst+1}, v{t0+1}')
        k(f'v_mul_f32 v{dst}, v{dst}, v{t0}')
        k(f'v_mul_f32 v{dst+1}, v{dst+1}, v{t0}')
    direct(18, 1, -1, 24)
    direct(20, 256, -1, 26)
    direct(22, 8, +1, 28)
    ZB1, ZB256, W8 = 18, 20, 22
    ZB2, ZB4 = 30, 32
    A, B, T, L = 34, 36, 38, 40
    TA, TL = 42, 44
    C0 = 46
    rot = [0]
    def put(src, row, lo):
        t = C0 + (rot[0] % 8); rot[0] += 1
        k(f'v_cvt_pk_bf16_f32 v{t}, v{src}, v{src+1}')
        k(f'ds_write_b32 v{64 + (row & 15)}, v{t} offset:{row*256 + (5376 if lo else 0)}')
    hi = []
    hi.append(lambda: put(16, 0, False))
    hi.append(lambda: (cmul(k, A, 16, ZB1, TA), put(A, 1, False)))
    for m in range(2, 8):
        hi.append(lambda m=m: (cmul(k, A, A, ZB1, TA), put(A, m, False)))
    hi.append(lambda: cmul(k, ZB2, ZB1, ZB1, TA))
    hi.append(lambda: (cmul(k, B, 16, ZB256, TA), put(B, 8, False)))
    hi.append(lambda: cmul(k, ZB4, ZB2, ZB2, TA))
    hi.append(lambda: (cmul(k, T, B, ZB2, TA), put(T, 9, False)))
    hi.append(lambda: (cmul(k, T, T, ZB2, TA), put(T, 10, False)))
    hi.append(lambda: (cmul(k, T, T, ZB2, TA), put(T, 11, False)))
    hi.append(lambda: (cmul(k, B, B, ZB256, TA), put(B, 12, False)))
    hi.append(lambda: (cmul(k, T, B, ZB4, TA), put(T, 13, False)))
    hi.append(lambda: (cmul(k, B, B, ZB256, TA), put(B, 14, False)))
    hi.append(lambda: (cmul(k, T, B, ZB4, TA), put(T, 15, False)))
    for m in range(16, 21):
        hi.append(lambda m=m: (cmul(k, B, B, ZB256, TA), put(B, m, False)))
    lo = []
    lo.append(lambda: (k(f'v_mov_b32 v{L}, 1.0\nv_mov_b32 v{L+1}, 0'), put(L, 0, True)))
    lo.append(lambda: put(W8, 1, True))
    lo.append(lambda: (cmul(k, L, W8, W8, TL), put(L, 2, True)))
    for u in range(3, 32):
        lo.append(lambda u=u: (cmul(k, L, L, W8, TL), put(L, u, True)))
    i = j = 0
    while i < len(hi) or j < len(lo):
        if j < len(lo): lo[j](); j += 1
        if i < len(hi) and (i * len(lo) <= j * len(hi) or j >= len(lo)): hi[i](); i += 1
    k('s_waitcnt lgkmcnt(0)')
    stamp_mid(k, 1)
    for ks in range(8):
        k(f'v_xor_b32 v15, {32*ks}, v14')
        k(f'ds_read_b128 v[{24+8*(ks%4)}:{27+8*(ks%4)}], v15')
        k(f'ds_read_b128 v[{28+8*(ks%4)}:{31+8*(ks%4)}], v15 offset:5376')
        if ks >= 1:
            p = ks - 1
            k('s_waitcnt lgkmcnt(2)')
            k(f'v_mfma_f32_32x32x16_bf16 v[96:111], v[{24+8*(p%4)}:{27+8*(p%4)}], v[{28+8*(p%4)}:{31+8*(p%4)}], ' + ('0' if p == 0 else 'v[96:111]'))
    k('s_waitcnt lgkmcnt(0)')
    k('v_mfma_f32_32x32x16_bf16 v[96:111], v[48:51], v[52:55], v[96:111]')
    k('v_and_b32 v12, 31, v2\nv_lshrrev_b32 v13, 5, v2')
    k('v_lshlrev_b32 v12, 2, v12')
    k('v_lshl_add_u32 v12, v13, 9, v12')
    k('v_add_u32 v12, s33, v12')
    for j in range(3):
        for i in range(4):
            k(f'ds_write_b32 v12, v{96+4*j+i} offset:{(8*j+i)*128}')
    k.label('L_k1_kg_sync1')
    k('s_waitcnt lgkmcnt(0)\ns_barrier')
    stamp_mid(k, 2)
    k('v_cmp_gt_u32 vcc, 168, v0')
    k('s_and_saveexec_b64 s[34:35], vcc')
    k('s_cbranch_execz L_k1_kg_skip')
    k('ds_read_b128 v[24:27], v3\nds_read_b128 v[28:31], v3 offset:13568\nds_read_b128 v[32:35], v3 offset:27136')
    k('s_waitcnt lgkmcnt(0)')
    k('v_pk_add_f32 v[24:25], v[24:25], v[28:29]\nv_pk_add_f32 v[26:27], v[26:27], v[30:31]')
    k('v_pk_add_f32 v[24:25], v[24:25], v[32:33]\nv_pk_add_f32 v[26:27], v[26:27], v[34:35]')
    k('v_cvt_pk_bf16_f32 v24, v24, v25\nv_cvt_pk_bf16_f32 v25, v26, v27')
    k('v_lshlrev_b32 v12, 3, v0')
    k('ds_write_b64 v12, v[24:25] offset:4096')
    k.label('L_k1_kg_skip')
    k('s_mov_b64 exec, s[34:35]')
    k('s_waitcnt vmcnt(0) lgkmcnt(0)\ns_barrier')
    for q in range(4):
        k(f'v_and_b32 v{24+2*q}, 0xffff, v{60+q}\nv_lshrrev_b32 v{25+2*q}, 16, v{60+q}')
    for q in range(4):
        k(f'ds_read_u16 v{36+q}, v{24+2*q} offset:4096')
        k(f'ds_read_u16 v{40+q}, v{25+2*q} offset:4096')
    k('s_lshl_b32 s33, s3, 12')
    k('s_waitcnt lgkmcnt(0)')
    for q in range(4):
        k(f'v_lshl_or_b32 v{36+q}, v{40+q}, 16, v{36+q}')
    k(f'buffer_store_dwordx4 v[36:39], v3, s[24:27], s33 offen{WT}')
    if STAMPS: k('s_waitcnt vmcnt(0)')
    stamp_end(k, 0)
    k('s_endpgm')

    k.label('L_k1_ln')
    load_ptr(k, 4, 'u'); load_ptr(k, 8, 'ws'); load_ptr(k, 12, 'ws')
    k('v_lshrrev_b32 v1, 4, v0       ; rg')
    k('v_and_b32 v2, 15, v0          ; c')
    k('s_lshl_b32 s3, s2, 5          ; l0')
    k('v_add_u32 v3, s3, v1')
    k('v_mul_u32_u24 v4, 1280, v3')
    k('v_lshl_add_u32 v4, v2, 4, v4')
    k('s_mov_b32 s16, 20480')
    k('s_mov_b32 s17, 0x3f803f80')
    k('s_waitcnt lgkmcnt(0)')
    srd_fin(k, 4, SZ['u']); srd_fin(k, 8, 8192, WS_STATS); srd_fin(k, 12, 2621440, WS_XT)
    for p in range(2):
        for q in range(5):
            r = 16 + 4 * (5 * p + q)
            k(f'buffer_load_dwordx4 v[{r}:{r+3}], v4, s[4:7], {"s16" if p else "0"} offen offset:{256*q}')
    k('v_and_b32 v5, 3, v1\nv_lshrrev_b32 v6, 3, v1\nv_lshl_or_b32 v5, v6, 2, v5     ; f0')
    k('v_xor_b32 v5, v5, v2          ; c ^ f0')
    k('v_mul_u32_u24 v6, 1280, v1')
    k('v_xor_b32 v7, 8, v5')
    k('v_lshl_add_u32 v5, v5, 4, v6          ; p=0 addr')
    k('v_lshl_add_u32 v6, v7, 4, v6          ; p=1 addr - 20480')
    for p in range(2):
        k(f's_waitcnt vmcnt({5 if p == 0 else 0})')
        for q in range(5):
            r = 16 + 4 * (5 * p + q)
            k(f'ds_write_b128 v{5+p}, v[{r}:{r+3}] offset:{256*q + 20480*p}')
        for q in range(5):
            r = 16 + 4 * (5 * p + q)
            for i in range(4):
                first = (q == 0 and i == 0)
                k(f'v_dot2_f32_bf16 v{8+2*p}, v{r+i}, s17, ' + ('0' if first else f'v{8+2*p}'))
                k(f'v_dot2_f32_bf16 v{9+2*p}, v{r+i}, v{r+i}, ' + ('0' if first else f'v{9+2*p}'))
    for sh in (8, 4, 2, 1):
        for v in (8, 9, 10, 11):
            k(f'v_add_f32_dpp v{v}, v{v}, v{v} row_ror:{sh} row_mask:0xf bank_mask:0xf')
    for p in range(2):
        a, b = 8 + 2 * p, 9 + 2 * p
        k(f'v_mul_f32 v{a}, 0x3acccccd, v{a}          ; mean')
        k(f'v_mul_f32 v{b}, 0x3acccccd, v{b}')
        k(f'v_fma_f32 v{b}, -v{a}, v{a}, v{b}         ; var')
        k(f'v_max_f32 v{b}, 0, v{b}')
        k(f'v_cvt_pk_bf16_f32 v{b}, v{b}, v{b}\nv_lshlrev_b32 v{b}, 16, v{b}')
        k(f'v_add_f32 v{b}, 0x3727c5ac, v{b}')
        k(f'v_cvt_pk_bf16_f32 v{b}, v{b}, v{b}\nv_lshlrev_b32 v{b}, 16, v{b}')
        k(f'v_sqrt_f32 v{b}, v{b}')
        k(f'v_cvt_pk_bf16_f32 v{a}, v{a}, v{b}')
    k('v_lshlrev_b32 v7, 2, v3')
    k('v_cmp_eq_u32 vcc, 0, v2')
    k('s_and_saveexec_b64 s[18:19], vcc')
    k('s_cbranch_execz L_k1_ln_nost')
    k(f'buffer_store_dword v8, v7, s[8:11], 0 offen{WT}')
    k(f'buffer_store_dword v10, v7, s[8:11], 0 offen offset:64{WT}')
    k.label('L_k1_ln_nost')
    k('s_mov_b64 exec, s[18:19]')
    k('v_and_b32 v1, 63, v0          ; lane')
    k('v_lshrrev_b32 v2, 6, v0       ; w')
    k('v_lshrrev_b32 v3, 4, v1       ; grp')
    k('v_and_b32 v4, 15, v1          ; idx')
    k('v_lshrrev_b32 v5, 2, v4')
    k('v_and_b32 v6, 3, v4')
    k('v_lshl_add_u32 v7, v6, 3, v5  ; row = 8c + r')
    k('v_lshl_or_b32 v8, v6, 2, v5   ; f = r | c<<2')
    k('v_mul_u32_u24 v7, 1280, v7')
    k('v_and_b32 v9, 1, v3')
    k('v_lshl_add_u32 v7, v9, 3, v7')
    k('v_lshrrev_b32 v9, 1, v3')
    k('v_mul_u32_u24 v10, 20, v2')
    k('v_add_u32 v9, v9, v10         ; ch0')
    k('v_mul_u32_u24 v10, 40, v2\nv_add_u32 v10, v10, v3\nv_lshlrev_b32 v10, 14, v10')
    k('v_lshl_add_u32 v10, v5, 6, v10\nv_lshl_add_u32 v10, v6, 4, v10')
    k('s_lshl_b32 s16, s3, 3\nv_add_u32 v10, s16, v10')
    k('s_waitcnt lgkmcnt(0)\ns_barrier')
    for it in range(10):
        k(f'v_add_u32 v11, {2*it}, v9\nv_xor_b32 v11, v11, v8\nv_lshl_add_u32 v11, v11, 4, v7')
        r = 16 + 4 * it
        k(f'ds_read_b64_tr_b16 v[{r}:{r+1}], v11\nds_read_b64_tr_b16 v[{r+2}:{r+3}], v11 offset:5120')
    for it in range(10):
        r = 16 + 4 * it
        k(f's_mov_b32 s16, {it*65536}')
        k(f's_waitcnt lgkmcnt({min(15, 2*(9-it))})')
        k(f'buffer_store_dwordx4 v[{r}:{r+3}], v10, s[12:15], s16 offen{WT}')
    if STAMPS: k('s_waitcnt vmcnt(0)')
    stamp_end(k, 0)
    k('s_endpgm')

    k.label('L_k1_mod')
    load_ptr(k, 4, 'wmod'); load_ptr(k, 8, 'c'); load_ptr(k, 12, 'ws')
    k(f's_sub_u32 s3, s2, {N_LN}')
    k('s_lshr_b32 s16, s3, 2          ; cb\ns_and_b32 s17, s3, 3     ; kq')
    k('v_lshrrev_b32 v1, 4, v0       ; rg\nv_and_b32 v2, 15, v0    ; c')
    k('v_mul_u32_u24 v4, 7680, v1\nv_lshl_add_u32 v4, v2, 4, v4')
    k(f's_mul_i32 s18, s17, {160*7680}\ns_lshl_b32 s19, s16, 8\ns_add_u32 s18, s18, s19')
    k('s_mul_i32 s19, s17, 320\nv_lshlrev_b32 v5, 1, v1\nv_add_u32 v5, s19, v5')
    k('s_waitcnt lgkmcnt(0)')
    srd_fin(k, 4, SZ['wmod']); srd_fin(k, 8, SZ['c']); srd_fin(k, 12, 4 * 3840 * 4, WS_MODP)
    for p in range(10):
        k(f'buffer_load_ushort v{56+p}, v5, s[8:11], 0 offen offset:{32*p}')
    for p in range(10):
        k(f'buffer_load_dwordx4 v[{16+4*p}:{19+4*p}], v4, s[4:7], s18 offen')
        if p < 9: k('s_add_u32 s18, s18, 122880')
    k('s_waitcnt vmcnt(10)')
    for p in range(10):
        k(f'v_lshlrev_b32 v{56+p}, 16, v{56+p}')
    for p in range(10):
        k(f'v_mul_f32 v{66+p}, {NLOG2E:#x}, v{56+p}')
    for p in range(10):
        k(f'v_exp_f32 v{66+p}, v{66+p}')
    for p in range(10):
        k(f'v_add_f32 v{66+p}, 1.0, v{66+p}')
    for p in range(10):
        k(f'v_rcp_f32 v{66+p}, v{66+p}')
    for p in range(10):
        k(f'v_mul_f32 v{56+p}, v{56+p}, v{66+p}')
    for p in range(10):
        k(f'v_cvt_pk_bf16_f32 v{56+p}, v{56+p}, 0        ; (s,0)')
    for p in range(10):
        k(f'v_lshlrev_b32 v{66+p}, 16, v{56+p}           ; (0,s)')
    for p in range(10):
        k(f's_waitcnt vmcnt({9-p})')
        for i in range(4):
            k(f'v_dot2_f32_bf16 v{76+2*i}, v{16+4*p+i}, v{56+p}, ' + ('0' if p == 0 else f'v{76+2*i}'))
            k(f'v_dot2_f32_bf16 v{77+2*i}, v{16+4*p+i}, v{66+p}, ' + ('0' if p == 0 else f'v{77+2*i}'))
    k('v_lshlrev_b32 v6, 5, v0')
    k('ds_write_b128 v6, v[76:79]\nds_write_b128 v6, v[80:83] offset:16')
    k('s_waitcnt lgkmcnt(0)\ns_barrier')
    k('v_cmp_gt_u32 vcc, 128, v0')
    k('s_and_saveexec_b64 s[20:21], vcc')
    k('s_cbranch_execz L_k1_mod_end')
    k('v_lshlrev_b32 v6, 2, v0')
    for rg in range(16):
        k(f'ds_read_b32 v{16+rg}, v6 offset:{rg*512}')
    k('s_waitcnt lgkmcnt(0)')
    for st in (8, 4, 2, 1):
        for i in range(st):
            k(f'v_add_f32 v{16+i}, v{16+i}, v{16+i+st}')
    k('s_mul_i32 s19, s17, 15360\ns_lshl_b32 s22, s16, 9\ns_add_u32 s19, s19, s22')
    k(f'buffer_store_dword v16, v6, s[12:15], s19 offen{WT}')
    k.label('L_k1_mod_end')
    k('s_mov_b64 exec, s[20:21]')
    if STAMPS: k('s_waitcnt vmcnt(0)')
    stamp_end(k, 0)
    k('s_endpgm')
    k.label('L_k1_wd')
    load_ptr(k, 4, 'wd'); load_ptr(k, 8, 'ws')
    k(f's_sub_u32 s3, s2, {N_LN+N_MOD+N_KG}      ; kappa')
    k('v_and_b32 v1, 63, v0\nv_lshrrev_b32 v2, 6, v0\nv_lshlrev_b32 v3, 4, v1\nv_readfirstlane_b32 s16, v2')
    k('s_mul_i32 s17, s3, 40960')
    k('s_mul_i32 s18, s16, 10240\ns_add_u32 s17, s17, s18')
    k('s_waitcnt lgkmcnt(0)')
    srd_fin(k, 4, SZ['wd'])
    k(f's_add_u32 s12, s8, {WS_WD}\ns_addc_u32 s13, s9, 0\ns_mov_b32 s14, 1966080\ns_mov_b32 s15, {SRD3:#x}')
    for q in range(10):
        k(f's_add_u32 m0, s18, {q*1024}')
        k(f's_add_u32 s19, s17, {q*1024}')
        k('buffer_load_dwordx4 v3, s[4:7], s19 offen lds')
    k(f's_add_u32 s20, s8, {WS_FLAGS}\ns_addc_u32 s21, s9, 0\ns_mov_b32 s22, 4096\ns_mov_b32 s23, {SRD3:#x}')
    k('v_mov_b32 v8, 0\nv_mov_b32 v9, 0\nv_mov_b32 v10, 0\nv_mov_b32 v11, 0\nv_lshlrev_b32 v4, 4, v0')
    k('s_cmp_lg_u32 s3, 0\ns_cbranch_scc1 L_k1_wd_nz')
    k(f'buffer_store_dwordx4 v[8:11], v4, s[20:23], 0 offen{WT}')
    k.label('L_k1_wd_nz')
    k('v_lshrrev_b32 v5, 4, v1\nv_and_b32 v6, 15, v1\nv_lshrrev_b32 v7, 2, v6\nv_and_b32 v6, 3, v6')
    k('v_lshrrev_b32 v12, 1, v5\nv_lshlrev_b32 v12, 4, v12\nv_and_b32 v13, 1, v5\nv_lshl_add_u32 v12, v13, 2, v12\nv_add_u32 v12, v12, v7')
    k('v_mul_u32_u24 v12, 1280, v12\nv_lshl_add_u32 v12, v6, 3, v12')
    k('s_mul_i32 s24, s16, 320\nv_add_u32 v12, s24, v12')
    k('s_mul_i32 s24, s16, 96\ns_add_u32 s24, s24, s3\ns_mul_i32 s24, s24, 5120')
    k('s_waitcnt vmcnt(0)\ns_barrier')
    for b in range(2):
        for dt in range(5):
            r = 16 + 4 * (5 * b + dt)
            o = 160 * b + 32 * dt
            k(f'ds_read_b64_tr_b16 v[{r}:{r+1}], v12 offset:{o}\nds_read_b64_tr_b16 v[{r+2}:{r+3}], v12 offset:{o + 8*1280}')
    for b in range(2):
        for dt in range(5):
            r = 16 + 4 * (5 * b + dt)
            k(f's_waitcnt lgkmcnt({min(15, 2*(9 - 5*b - dt))})')
            k(f's_add_u32 s25, s24, {b*48*5120 + dt*1024}')
            k(f'buffer_store_dwordx4 v[{r}:{r+3}], v3, s[12:15], s25 offen{WT}')
    if STAMPS: k('s_waitcnt vmcnt(0)')
    stamp_end(k, 0)
    k('s_endpgm')
    return k

def hexf(x):
    import struct
    return hex(struct.unpack('<I', struct.pack('<f', float(x)))[0])

def ktable_data():
    t = ktable()
    s = '.p2align 8\n.type ktable,@object\nktable:\n'
    for i in range(0, 2048, 16):
        s += '.short ' + ', '.join(str(x) for x in t[i:i + 16]) + '\n'
    s += '.size ktable, 4096\n'
    return s
```

```python
from asmlib import K, Q
from common import *
import os, struct
from collections import deque

K5_GRID = 256
NS = 7
STG = 20480
TBL = NS * STG
X2OFF = TBL + 1536
GBOFF = X2OFF + 10240
DUMMY = GBOFF + 320
K5_LDS = DUMMY + 1024 + 16
def f2h(x): return hex(struct.unpack('<I', struct.pack('<f', x))[0])
GK1 = -2.302208198144325
GK2 = GK1 * 0.044715
NSP = 10
SPIN_MAX = 400000
SS = int(os.environ.get('STAMPSET', '1'))
BUDGET = int(os.environ.get('BUDGET', '5'))
WDEPI = os.environ.get('WDEPI', '0') == '1'

def lines(s): return [l.strip() for l in s.split('\n') if l.strip()]

def build_k5():
    k = K('ffn_kernel')
    def stamp(setno, i):
        if SS == setno: stamp_mid(k, i)
    vm = Q(k, 'vmcnt', 63); lg = Q(k, 'lgkmcnt', 15)
    side = deque()
    def job(text):
        for l in lines(text): side.append(('i', l))
    def jobvm(text, tag):
        ls = lines(text)
        for l in ls[:-1]: side.append(('i', l))
        side.append(('vm', ls[-1], tag))
    def joblg(text, tag): side.append(('lg', text, tag))
    def pull(n):
        while n > 0 and side:
            it = side.popleft()
            if it[0] == 'i':
                k(it[1]); n -= 1
                while side and side[0][0] == 'i' and side[0][1].split()[0] in ('s_addc_u32', 's_subb_u32', 's_cselect_b32', 's_cselect_b64'):
                    k(side.popleft()[1]); n -= 1
            elif it[0] == 'vm': vm.issue(it[1], it[2]); n -= 2
            elif it[0] == 'lg': lg.issue(it[1], it[2]); n -= 1
            elif it[0] == 'wvm': vm.wait(it[1])
            elif it[0] == 'call': it[1]()
    def flush(): pull(1 << 30)

    stamp_begin(k)
    k(f's_cmp_ge_u32 s2, {K5_GRID}\ns_cbranch_scc1 L_k5_exit')
    k('s_load_dwordx2 s[4:5], s[0:1], 120')
    k('s_load_dwordx2 s[82:83], s[0:1], 104       ; out')
    k('v_lshrrev_b32 v2, 6, v0\nv_and_b32 v1, 63, v0\nv_readfirstlane_b32 s22, v2     ; w')
    k('s_and_b32 s80, s2, 7\ns_lshr_b32 s81, s2, 3')
    k('s_and_b32 s20, s80, 1\ns_lshl_b32 s20, s20, 3\ns_and_b32 s21, s81, 7\ns_add_u32 s20, s20, s21      ; rb')
    k('s_lshr_b32 s21, s80, 1\ns_lshl_b32 s21, s21, 2\ns_lshr_b32 s27, s81, 3\ns_add_u32 s21, s21, s27    ; fb')
    k('s_lshr_b32 s3, s80, 1\ns_and_b32 s3, s3, 1\ns_lshl_b32 s6, s20, 1\ns_add_u32 s3, s3, s6')
    k('s_lshr_b32 s6, s80, 2\ns_lshl_b32 s6, s6, 2\ns_add_u32 s27, s27, s6                               ; db')
    k('v_lshrrev_b32 v3, 4, v1\nv_and_b32 v4, 15, v1')
    k('v_lshlrev_b32 v5, 2, v3\nv_xor_b32 v5, v5, v4\nv_lshlrev_b32 v5, 4, v5\nv_lshl_add_u32 v5, v3, 12, v5')
    k('s_lshl_b32 s6, s20, 8\nv_add_u32 v5, s6, v5\nv_add_u32 v6, 16384, v5\nv_lshlrev_b32 v7, 4, v1')
    k('s_lshr_b32 s23, s22, 1          ; wi\ns_and_b32 s24, s22, 1      ; wj')
    k(f's_lshl_b32 s80, s21, 1\ns_cmp_lt_u32 s21, {NSP}\ns_cselect_b32 s81, 0, 1\ns_add_u32 s80, s80, s81')
    k('s_cmp_ge_u32 s80, 20\ns_cselect_b32 s81, 20, 0\ns_sub_u32 s80, s80, s81          ; st = s0')
    k('s_lshl_b32 s84, s22, 15         ; x2 const = w*32768')
    k('s_mul_i32 s85, s23, 96\ns_mul_i32 s81, s21, 6\ns_add_u32 s85, s85, s81\ns_mul_i32 s81, s24, 3\ns_add_u32 s85, s85, s81\ns_lshl_b32 s85, s85, 10    ; W const')
    def soff(j):
        return (f's_mul_i32 s{36+j}, s80, 131072\ns_mul_i32 s{56+j}, s80, 196608\n'
                f's_add_u32 s{36+j}, s{36+j}, s84\ns_add_u32 s{56+j}, s{56+j}, s85\n'
                's_add_u32 s80, s80, 1\ns_cmp_eq_u32 s80, 20\ns_cselect_b32 s80, 0, s80')
    PRE = NS - 2
    k(soff(0))
    k('s_lshl_b32 s6, s22, 11\ns_mul_i32 s7, s22, 3072\ns_add_u32 s7, s7, 8192')
    k(soff(1))
    k('s_waitcnt lgkmcnt(0)')
    k(f's_add_u32 s8, s4, {WS_X2T}\ns_addc_u32 s9, s5, 0\ns_mov_b32 s10, 2621440\ns_mov_b32 s11, {SRD3:#x}')
    k(f's_add_u32 s12, s4, {WS_WP}\ns_addc_u32 s13, s5, 0\ns_mov_b32 s14, 3932160\ns_mov_b32 s15, {SRD3:#x}')
    def dma_ops(j):
        sl = (j % NS) * STG
        if os.environ.get('EXP_HOT'):
            return [f's_add_u32 m0, s6, {sl}\ns_nop 0\nbuffer_load_dwordx4 v5, s[8:11], s36 offen lds',
                f's_add_u32 m0, s6, {sl+1024}\ns_nop 0\nbuffer_load_dwordx4 v6, s[8:11], s36 offen lds',
                f's_add_u32 m0, s7, {sl}\ns_nop 0\nbuffer_load_dwordx4 v7, s[12:15], s56 offen lds',
                f'buffer_load_dwordx4 v7, s[12:15], s56 offen offset:1024 lds',
                f'buffer_load_dwordx4 v7, s[12:15], s56 offen offset:2048 lds']
        return [f's_add_u32 m0, s6, {sl}\ns_nop 0\nbuffer_load_dwordx4 v5, s[8:11], s{36+j} offen lds',
                f's_add_u32 m0, s6, {sl+1024}\ns_nop 0\nbuffer_load_dwordx4 v6, s[8:11], s{36+j} offen lds',
                f's_add_u32 m0, s7, {sl}\ns_nop 0\nbuffer_load_dwordx4 v7, s[12:15], s{56+j} offen lds',
                f'buffer_load_dwordx4 v7, s[12:15], s{56+j} offen offset:1024 lds',
                f'buffer_load_dwordx4 v7, s[12:15], s{56+j} offen offset:2048 lds']
    for j in range(2, 20): job(soff(j))
    job('v_mov_b32 v29, 0x80000000')
    job('v_lshrrev_b32 v18, 2, v4\nv_and_b32 v19, 3, v4\nv_lshrrev_b32 v20, 1, v3\nv_and_b32 v21, 1, v3')
    job('v_lshl_add_u32 v22, v20, 3, v18\nv_lshlrev_b32 v22, 8, v22')
    job('v_lshrrev_b32 v23, 1, v19\nv_lshl_add_u32 v23, v21, 1, v23\nv_lshl_add_u32 v22, v23, 4, v22')
    job('v_and_b32 v23, 1, v19\nv_lshl_add_u32 v22, v23, 3, v22')
    job('s_lshl_b32 s25, s23, 1\ns_add_u32 s25, s25, s24\ns_xor_b32 s26, s25, 1')
    job('v_xor_b32 v23, s25, v18\nv_lshl_add_u32 v8, v23, 6, v22')
    job('v_xor_b32 v23, s26, v18\nv_lshl_add_u32 v9, v23, 6, v22')
    job('s_mul_i32 s81, s24, 3072\ns_add_u32 s81, s81, 8192\nv_add_u32 v10, s81, v7')
    for st_ in (1, 2):
        for i in range(3): job(f'v_add_u32 v{8+3*st_+i}, {61440*st_}, v{8+i}')
    job(f's_add_u32 s16, s4, {WS_ACT}\ns_addc_u32 s17, s5, 0\ns_mov_b32 s18, 6291456\ns_mov_b32 s19, {SRD3:#x}')
    job(f's_add_u32 s28, s4, {WS_FLAGS}\ns_addc_u32 s29, s5, 0\ns_mov_b32 s30, {WS_SP - WS_FLAGS + 163840}\ns_mov_b32 s31, {SRD3:#x}')
    job(f's_add_u32 s32, s4, {WS_WD}\ns_addc_u32 s33, s5, 0\ns_mov_b32 s34, 1966080\ns_mov_b32 s35, {SRD3:#x}')
    nd = 0
    for j in range(PRE):
        for o in dma_ops(j):
            vm.issue(o, ('st', j)); nd += 1
            pull(7 if j == 0 or nd < 20 else 7)
    flush()
    k('s_mul_i32 s84, s27, 48\ns_add_u32 s84, s84, s22\ns_mul_i32 s84, s84, 5120')
    stamp(1, 3)
    n = len(vm.ops) - 1 - max(i for i, t in enumerate(vm.ops) if t == ('st', 0))
    k(f's_waitcnt vmcnt({n})'); vm.done = max(vm.done, len(vm.ops) - n)
    k('s_barrier')
    stamp(1, 0)
    def vmwait_stage(j):
        idx = max(i for i, t in enumerate(vm.ops) if t == ('st', j))
        if idx < vm.done: return
        n = min(63, len(vm.ops) - 1 - idx)
        k(f's_waitcnt vmcnt({n})'); vm.done = max(vm.done, len(vm.ops) - n)
    S0, S1 = 32, 52
    ACC = 96
    def acc(lt2, t): return ACC + 48 * lt2 + 16 * t
    def reads(s, j, ksl):
        sl = j % NS; base = 8 + 3 * (sl // 3); o = (sl % 3) * STG
        xo = o + ksl * 4096; wo = o + ksl * 6144
        tg = lambda n: (n, j, ksl)
        return [(f'ds_read_b64_tr_b16 v[{s}:{s+1}], v{base} offset:{xo}', tg('X0')),
                (f'ds_read_b64_tr_b16 v[{s+2}:{s+3}], v{base} offset:{xo+1024}', tg('X0')),
                (f'ds_read_b128 v[{s+8}:{s+11}], v{base+2} offset:{wo}', tg('W0')),
                (f'ds_read_b64_tr_b16 v[{s+4}:{s+5}], v{base+1} offset:{xo}', tg('X1')),
                (f'ds_read_b64_tr_b16 v[{s+6}:{s+7}], v{base+1} offset:{xo+1024}', tg('X1')),
                (f'ds_read_b128 v[{s+12}:{s+15}], v{base+2} offset:{wo+1024}', tg('W1')),
                (f'ds_read_b128 v[{s+16}:{s+19}], v{base+2} offset:{wo+2048}', tg('W2'))]
    def lgwait(tag):
        idx = max(i for i, t in enumerate(lg.ops) if t == tag)
        if idx < lg.done: return 0
        n = min(15, len(lg.ops) - 1 - idx)
        k(f's_waitcnt lgkmcnt({n})'); lg.done = max(lg.done, len(lg.ops) - n)
        return 1
    RD = os.environ.get('RD', 'C')
    def phase(s, j, ksl, first, nxt_reads, dm):
        order = [(0, 0), (0, 1), (1, 0), (1, 1), (2, 0), (2, 1)]
        rd_after = {'A': [[0, 1], [2, 3], [4, 5, 6], [], [], []], 'B': [[0, 1, 2], [3, 4], [5, 6], [], [], []], 'C': [[0, 1], [2], [3, 4], [5], [6], []]}[RD]
        pre = {}
        for g, (txt, tag) in dm.items():
            ls = [l for l in lines(txt) if l != 's_nop 0']
            pre[g] = (ls[:-1] if not ls[-1].startswith('s_') else None, ls)
        for i, (t, lt2) in enumerate(order):
            lgwait((f'W{t}', j, ksl)); lgwait((f'X{lt2}', j, ksl))
            a = acc(lt2, t)
            c = '0' if first else f'v[{a}:{a+15}]'
            k(f'v_mfma_f32_32x32x16_bf16 v[{a}:{a+15}], v[{s+8+4*t}:{s+11+4*t}], v[{s+4*lt2}:{s+3+4*lt2}], {c}')
            used = 0
            if i in dm:
                ls = [l for l in lines(dm[i][0]) if l != 's_nop 0']
                vi = max(q for q, l in enumerate(ls) if l.startswith('buffer_'))
                if i == 0 or not os.environ.get('PREM0', '1') == '1':
                    for l in ls[:vi]: k(l)
                    if vi: k('s_nop 0')
                vm.issue(ls[vi], dm[i][1])
                for l in ls[vi+1:]: k(l)
                used += 4
            if nxt_reads:
                for ri in rd_after[i]:
                    lg.issue(*nxt_reads[ri]); used += 1
            if (i + 1) in dm and os.environ.get('PREM0', '1') == '1':
                ls = [l for l in lines(dm[i + 1][0]) if l != 's_nop 0']
                vi = max(q for q, l in enumerate(ls) if l.startswith('buffer_'))
                pull(max(0, BUDGET - used - vi))
                for l in ls[:vi]: k(l); used += 1
            else:
                pull(max(0, BUDGET - used))
    def stat_ops(s, first):
        ops = []
        for i in range(4):
            a, b = 88 + 2 * (i & 1), 89 + 2 * (i & 1)
            ops.append(f'v_lshlrev_b32 v{a}, 16, v{s+i}')
            ops.append(f'v_and_b32 v{b}, 0xffff0000, v{s+i}')
            if first and i == 0:
                ops += [f'v_mov_b32 v84, v{a}', f'v_mov_b32 v85, v{b}', f'v_mul_f32 v86, v{a}, v{a}', f'v_mul_f32 v87, v{b}, v{b}']
            else:
                ops += [f'v_add_f32 v84, v84, v{a}', f'v_add_f32 v85, v85, v{b}', f'v_fma_f32 v86, v{a}, v{a}, v86', f'v_fma_f32 v87, v{b}, v{b}, v87']
        return ops
    wd_list = [(i, dt) for i in range(12) for dt in range(5)]
    k_wd = {'n': 0}
    def wd_load():
        i, dt = wd_list[k_wd['n']]; k_wd['n'] += 1
        pre = f's_add_u32 s85, s84, {i*4*5120}\n' if dt == 0 else ''
        if dt < 4:
            return (pre + f'buffer_load_dwordx4 a[{20*i+4*dt}:{20*i+4*dt+3}], v7, s[32:35], s85 offen offset:{1024*dt}', 'wd')
        return (f's_add_u32 s85, s85, 4096\nbuffer_load_dwordx4 a[{20*i+4*dt}:{20*i+4*dt+3}], v7, s[32:35], s85 offen', 'wd')
    def with_side(ops):
        for o in ops: side.append(('i', o))
    NVAR = int(os.environ.get('NVAR', '1'))
    GAPS = {0: [0, 2, 4, 7, 9], 1: [0, 3, 5, 7, 10], 2: [1, 3, 6, 8, 10], 3: [1, 4, 6, 9, 11]}
    import copy
    def mainloop(wv):
        for r in reads(S0, 0, 0): lg.issue(*r)
        for j in range(20):
            d = [(o, ('st', j + PRE)) for o in dma_ops(j + PRE)] if j + PRE < 20 else [wd_load() for _ in range(5)]
            if os.environ.get('EXP_NODMA') and j + PRE < 20: d = [('s_nop 0', ('st', j + PRE)) for _ in range(5)]
            gaps = GAPS[wv] if NVAR == 4 else [1, 3, 7, 9, 11]
            dmC = {g: d[q] for q, g in enumerate(gaps) if g < 6}
            dmE = {g - 6: d[q] for q, g in enumerate(gaps) if g >= 6}
            if j == 3:
                job(f's_add_u32 s76, s4, {WS_PQ}\ns_addc_u32 s77, s5, 0\ns_mov_b32 s78, 122880\ns_mov_b32 s79, {SRD3:#x}')
                job('s_mul_i32 s80, s21, 6*256\nv_lshlrev_b32 v17, 3, v0\nv_add_u32 v17, s80, v17')
                job('v_cmp_gt_u32 vcc, 192, v0\nv_cndmask_b32 v17, v29, v17, vcc')
                for dq in range(5):
                    jobvm(f's_mov_b32 s80, {dq*96*256}\nbuffer_load_dwordx2 v[{224+2*dq}:{225+2*dq}], v17, s[76:79], s80 offen', 'pq')
                job(f's_add_u32 s76, s4, {WS_MODP}\ns_addc_u32 s77, s5, 0\ns_mov_b32 s78, 61440')
                job('s_mul_i32 s80, s27, 320\nv_lshlrev_b32 v18, 2, v0\nv_add_u32 v17, s80, v18')
                job('v_cmp_gt_u32 vcc, 80, v0\nv_cndmask_b32 v17, v29, v17, vcc')
                for kq in range(4):
                    jobvm(f's_mov_b32 s80, {kq*15360 + 5*2560}\nbuffer_load_dword v{234+kq}, v17, s[76:79], s80 offen', 'pq')
            if j == 5:
                job('v_lshrrev_b32 v17, 3, v1\nv_and_b32 v18, 7, v1\nv_lshlrev_b32 v17, 12, v17\nv_lshl_add_u32 v17, v18, 4, v17')
                job('s_mul_i32 s76, s27, 80*4096\ns_lshl_b32 s81, s3, 7\ns_add_u32 s76, s76, s81')
                job('s_lshl_b32 s77, s22, 15\ns_add_u32 s77, s77, s76')
                job(f's_lshl_b32 s78, s22, 10\ns_add_u32 s78, s78, {X2OFF}')
                side.append(('call', lambda: (k('s_mov_b32 m0, s78\ns_nop 0'), vm.issue('buffer_load_dwordx4 v17, s[8:11], s77 offen lds', 'x2r'))))
                job(f's_add_u32 s77, s77, {32*4096}\ns_add_u32 s78, s78, 4096')
                side.append(('call', lambda: (k('s_mov_b32 m0, s78\ns_nop 0'), vm.issue('buffer_load_dwordx4 v17, s[8:11], s77 offen lds', 'x2r'))))
                job(f's_and_b32 s81, s22, 1\ns_add_u32 s81, s81, 8\ns_lshl_b32 s78, s81, 10\ns_add_u32 s78, s78, {X2OFF}\ns_lshl_b32 s81, s81, 15\ns_add_u32 s77, s76, s81')
                side.append(('call', lambda: (k('s_mov_b32 m0, s78\ns_nop 0'), vm.issue('buffer_load_dwordx4 v17, s[8:11], s77 offen lds', 'x2r'))))
            if j == 10:
                side.append(('wvm', 'pq'))
                for dq in range(1, 5): job(f'v_pk_add_f32 v[224:225], v[224:225], v[{224+2*dq}:{225+2*dq}]')
                job('v_add_f32 v234, v234, v235\nv_add_f32 v236, v236, v237\nv_add_f32 v234, v234, v236')
                job('v_cvt_pk_bf16_f32 v234, v234, v234\nv_lshlrev_b32 v234, 16, v234')
                job(f'v_lshlrev_b32 v17, 2, v0\nv_add_u32 v18, {GBOFF}, v17\nv_add_u32 v17, {TBL}, v17\nv_mov_b32 v19, {DUMMY}')
                job('v_cmp_gt_u32 vcc, 192, v0\nv_cndmask_b32 v17, v19, v17, vcc\nv_cmp_gt_u32 vcc, 80, v0\nv_cndmask_b32 v18, v19, v18, vcc')
                joblg('ds_write_b32 v17, v224', 'tbl'); joblg('ds_write_b32 v17, v225 offset:768', 'tbl'); joblg('ds_write_b32 v18, v234', 'tbl')
            if j == 8:
                job(f's_cmp_lt_u32 s21, {NSP}\ns_cselect_b32 s81, 1, 0\ns_lshl_b32 s80, s20, 7')
                job('v_mov_b32 v88, 0\nv_mov_b32 v89, 1\nv_cmp_gt_u32 vcc, s81, v0\nv_cndmask_b32 v88, v29, v88, vcc')
                jobvm('buffer_atomic_add v89, v88, s[28:31], s80 offen sc1', 'atom1')
            if j == 13:
                job('s_lshl_b32 s80, s20, 7\nv_mov_b32 v88, 0')
                jobvm('buffer_load_dword v90, v88, s[28:31], s80 offen sc0 sc1', 'poll1')
            if j > 0:
                if j - 1 < 2: with_side(stat_ops(S1, False))
                phase(S1, j - 1, 1, False, reads(S0, j, 0), dmC)
                if j - 1 < 2 or j == 5: flush()
            else:
                [vm.issue(*dmC[g]) for g in sorted(dmC)]
            if j == 2:
                job('v_add_f32 v84, v84, v85\nv_add_f32 v86, v86, v87\nv_mov_b32 v88, v84\nv_mov_b32 v89, v86')
                job(f's_mul_i32 s80, s20, {NSP}\ns_add_u32 s80, s80, s21\ns_lshl_b32 s80, s80, 10')
                job('v_permlane32_swap_b32 v84, v88\nv_permlane32_swap_b32 v86, v89')
                job(f's_lshl_b32 s81, s25, 8\ns_add_u32 s80, s80, s81\ns_add_u32 s80, s80, {WS_SP - WS_FLAGS}')
                job('v_add_f32 v84, v84, v88\nv_add_f32 v85, v86, v89')
                job(f's_cmp_lt_u32 s21, {NSP}\ns_cselect_b32 s81, 32, 0')
                job('v_lshlrev_b32 v88, 3, v1\nv_cmp_gt_u32 vcc, s81, v1\nv_cndmask_b32 v88, v29, v88, vcc')
                jobvm('buffer_store_dwordx2 v[84:85], v88, s[28:31], s80 offen sc0 sc1', 'spst')
            if j == 17:
                vm.wait('poll1')
                k('v_readfirstlane_b32 s81, v90')
                k(f's_cmp_eq_u32 s81, {NSP}\ns_cbranch_scc1 L_k5_st_ok{wv}')
                k('s_mov_b32 s76, 0')
                k.label(f'L_k5_st_spin{wv}')
                k('s_lshl_b32 s80, s20, 7\nv_mov_b32 v88, 0')
                k('buffer_load_dword v90, v88, s[28:31], s80 offen sc0 sc1\ns_waitcnt vmcnt(0)')
                k('v_readfirstlane_b32 s81, v90\ns_add_u32 s76, s76, 1')
                k(f's_cmp_eq_u32 s81, {NSP}\ns_cbranch_scc1 L_k5_st_ok{wv}')
                k(f's_cmp_lt_u32 s76, {SPIN_MAX}\ns_cbranch_scc1 L_k5_st_spin{wv}')
                k.label(f'L_k5_st_ok{wv}')
                job('v_and_b32 v88, 31, v1\nv_lshlrev_b32 v88, 3, v88')
                job('s_lshl_b32 s80, s25, 8\ns_lshl_b32 s81, s26, 8\nv_mov_b32 v89, s80\nv_mov_b32 v91, s81')
                job('v_cmp_gt_u32 vcc, 32, v1\nv_cndmask_b32 v89, v91, v89, vcc\nv_add_u32 v88, v88, v89')
                job(f's_mul_i32 s80, s20, {NSP*1024}\ns_add_u32 s80, s80, {WS_SP - WS_FLAGS}')
                for p in range(NSP):
                    jobvm(f'buffer_load_dwordx2 v[{224+2*p}:{225+2*p}], v88, s[28:31], s80 offen offset:{(p%4)*1024} sc0 sc1', 'spld')
                    if p % 4 == 3: job('s_add_u32 s80, s80, 4096')
            if j < 2: with_side(stat_ops(S0, j == 0))
            phase(S0, j, 0, j == 0, reads(S1, j, 1), dmE)
            if j < 2: flush()
            if j < 19:
                vmwait_stage(j + 1)
                if j == 7:
                    assert 'spst' in vm.ops
                    vm.wait('spst')
                if not os.environ.get('EXP_NOBAR'): k('s_barrier')
                if j in (2, 7, 12, 17): stamp(3, (2, 7, 12, 17).index(j))
        flush()
        extra = [wd_load() for _ in range(3)]
        phase(S1, 19, 1, False, None, {0: extra[0], 2: extra[1], 4: extra[2]})

    state0 = (list(vm.ops), vm.done, list(lg.ops), lg.done, k_wd['n'])
    ends = []
    if NVAR == 4:
        k('s_cmp_eq_u32 s22, 1\ns_cbranch_scc1 L_k5_var1\ns_cmp_eq_u32 s22, 2\ns_cbranch_scc1 L_k5_var2\ns_cmp_eq_u32 s22, 3\ns_cbranch_scc1 L_k5_var3')
    for wv in range(NVAR):
        vm.ops, vm.done, lg.ops, lg.done, k_wd['n'] = list(state0[0]), state0[1], list(state0[2]), state0[3], state0[4]
        if wv: k.label(f'L_k5_var{wv}')
        mainloop(wv)
        ends.append((list(vm.ops), vm.done, list(lg.ops), lg.done, k_wd['n']))
        if wv < NVAR - 1: k('s_branch L_k5_join')
    if NVAR > 1: k.label('L_k5_join')
    assert all(e[4] == ends[0][4] for e in ends)
    after = min(len(e[0]) - 1 - max(i for i, t in enumerate(e[0]) if t == 'spld') for e in ends)
    vm.ops = ['spld'] + ['x'] * after; vm.done = 0
    lg.ops = []; lg.done = 0
    stamp(1, 1)
    k('v_lshrrev_b32 v36, 5, v1\nv_lshlrev_b32 v36, 4, v36')
    k(f's_mul_i32 s80, s24, 384\ns_add_u32 s80, s80, {TBL}\nv_add_u32 v36, s80, v36')
    PBs = [40, 192 + 32]
    def pq_reads(t, PB):
        for j in range(4):
            k(f'ds_read_b128 v[{PB+4*j}:{PB+4*j+3}], v36 offset:{128*t + 32*j}')
            k(f'ds_read_b128 v[{PB+16+4*j}:{PB+16+4*j+3}], v36 offset:{768 + 128*t + 32*j}')
    pq_reads(0, 40)
    vm.wait('spld')
    for p in range(1, NSP):
        k(f'v_pk_add_f32 v[224:225], v[224:225], v[{224+2*p}:{225+2*p}]')
    k('v_mul_f32 v30, 0x3acccccd, v224\nv_mul_f32 v31, 0x3acccccd, v225')
    k('s_lshl_b32 s80, s20, 2\ns_add_u32 s81, s80, s26\ns_add_u32 s80, s80, s25')
    k('v_fma_f32 v31, -v30, v30, v31\nv_max_f32 v31, 0, v31')
    k('s_mul_i32 s76, s21, 6\ns_mul_i32 s77, s24, 3\ns_add_u32 s76, s76, s77         ; T0')
    k('v_cvt_pk_bf16_f32 v30, v30, v31\nv_and_b32 v31, 0xffff0000, v30\nv_lshlrev_b32 v30, 16, v30')
    k('s_mul_i32 s80, s80, 96\ns_add_u32 s80, s80, s76\ns_lshl_b32 s80, s80, 10')
    k('v_add_f32 v31, 0x3727c5ac, v31\nv_cvt_pk_bf16_f32 v31, v31, v31\nv_lshlrev_b32 v31, 16, v31')
    k('v_sqrt_f32 v31, v31')
    k('s_mul_i32 s81, s81, 96\ns_add_u32 s81, s81, s76\ns_lshl_b32 s81, s81, 10')
    k('v_cvt_pk_bf16_f32 v31, v31, v31\nv_lshlrev_b32 v31, 16, v31')
    k('v_rcp_f32 v32, v31')
    k(f'v_mov_b32 v72, {f2h(GK1)}\nv_mov_b32 v73, {f2h(GK1)}\nv_mov_b32 v74, {f2h(GK2)}\nv_mov_b32 v75, {f2h(GK2)}')
    k('v_mul_f32 v33, v30, v32\nv_sub_f32 v33, 0, v33')
    k('v_mov_b32 v34, v32\nv_mov_b32 v35, v33')
    k('s_nop 0\nv_permlane32_swap_b32 v32, v34\nv_permlane32_swap_b32 v33, v35')
    grp = 0
    for t in range(3):
        PB = 40 if t != 1 else 224 - 12
        if t == 0: pass
        k('s_waitcnt lgkmcnt(0)')
        if t < 2:
            pq_reads(t + 1, 212 if t == 0 else 40)
        for lt2 in range(2):
            R = 32 if lt2 == 0 else 34
            a = acc(lt2, t)
            O = 76 + 4 * lt2
            for half in range(2):
                T = 84 if False else (192 if PB == 40 else 84)
                T = 192
                ag, au = a + 8 * half, a + 8 * half + 4
                pg, pu = PB + 8 * half, PB + 8 * half + 4
                qg, qu = pg + 16, pu + 16
                G = [T, T + 8]; U = [T + 2, T + 10]; T1 = [T + 4, T + 12]
                for p in range(2):
                    k(f'v_pk_fma_f32 v[{G[p]}:{G[p]+1}], v[{pg+2*p}:{pg+2*p+1}], v[{R}:{R+1}], v[{qg+2*p}:{qg+2*p+1}] op_sel:[0,1,0] op_sel_hi:[1,1,1]')
                    k(f'v_pk_fma_f32 v[{U[p]}:{U[p]+1}], v[{pu+2*p}:{pu+2*p+1}], v[{R}:{R+1}], v[{qu+2*p}:{qu+2*p+1}] op_sel:[0,1,0] op_sel_hi:[1,1,1]')
                for p in range(2):
                    k(f'v_pk_fma_f32 v[{G[p]}:{G[p]+1}], v[{ag+2*p}:{ag+2*p+1}], v[{R}:{R+1}], v[{G[p]}:{G[p]+1}] op_sel:[0,0,0] op_sel_hi:[1,0,1]')
                    k(f'v_pk_fma_f32 v[{U[p]}:{U[p]+1}], v[{au+2*p}:{au+2*p+1}], v[{R}:{R+1}], v[{U[p]}:{U[p]+1}] op_sel:[0,0,0] op_sel_hi:[1,0,1]')
                if WDEPI and k_wd['n'] < 60: vm.issue(*wd_load())
                for p in range(2): k(f'v_pk_mul_f32 v[{T1[p]}:{T1[p]+1}], v[{G[p]}:{G[p]+1}], v[{G[p]}:{G[p]+1}]')
                for p in range(2): k(f'v_pk_fma_f32 v[{T1[p]}:{T1[p]+1}], v[{T1[p]}:{T1[p]+1}], v[74:75], v[72:73]')
                for p in range(2): k(f'v_pk_mul_f32 v[{T1[p]}:{T1[p]+1}], v[{T1[p]}:{T1[p]+1}], v[{G[p]}:{G[p]+1}]')
                for p in range(2): k(f'v_exp_f32 v{T1[p]}, v{T1[p]}\nv_exp_f32 v{T1[p]+1}, v{T1[p]+1}')
                if WDEPI and k_wd['n'] < 60: vm.issue(*wd_load())
                for p in range(2): k(f'v_pk_mul_f32 v[{U[p]}:{U[p]+1}], v[{U[p]}:{U[p]+1}], v[{G[p]}:{G[p]+1}]')
                for p in range(2): k(f'v_pk_add_f32 v[{T1[p]}:{T1[p]+1}], v[{T1[p]}:{T1[p]+1}], 1.0 op_sel_hi:[1,0]')
                for p in range(2): k(f'v_rcp_f32 v{T1[p]}, v{T1[p]}\nv_rcp_f32 v{T1[p]+1}, v{T1[p]+1}')
                if WDEPI and k_wd['n'] < 60: vm.issue(*wd_load())
                for p in range(2): k(f'v_pk_mul_f32 v[{U[p]}:{U[p]+1}], v[{U[p]}:{U[p]+1}], v[{T1[p]}:{T1[p]+1}]')
                for p in range(2): k(f'v_cvt_pk_bf16_f32 v{O + 2*half + p}, v{U[p]}, v{U[p]+1}')
            so = 's80' if lt2 == 0 else 's81'
            vm.issue(f'buffer_store_dwordx4 v[{O}:{O+3}], v7, s[16:19], {so} offen offset:{1024*t} sc0 sc1', 'actst')
    if WDEPI:
        while k_wd['n'] < 60: vm.issue(*wd_load())
    stamp(1, 2); stamp(2, 0)
    k('v_lshrrev_b32 v10, 1, v3\nv_lshlrev_b32 v10, 10, v10')
    k('v_and_b32 v11, 1, v3\nv_lshlrev_b32 v11, 5, v11\nv_add_u32 v11, v11, v4\nv_lshl_add_u32 v10, v11, 4, v10     ; u=0')
    k(f'v_add_u32 v11, {96*1024}, v10                ; u=2')
    k('s_lshl_b32 s80, s20, 7\ns_add_u32 s80, s80, 2048')
    k('v_mov_b32 v88, 0\nv_mov_b32 v89, 1\nv_cmp_gt_u32 vcc, 1, v0\nv_cndmask_b32 v88, v29, v88, vcc')
    vm.drain()
    k('s_barrier')
    stamp(2, 1)
    k('s_cmp_lg_u32 s22, 0\ns_cbranch_scc1 L_k5_noatom')
    k('buffer_atomic_add v89, v88, s[28:31], s80 offen sc1')
    k.label('L_k5_noatom')
    k('s_mul_i32 s84, s27, 48\ns_add_u32 s84, s84, s22\ns_mul_i32 s84, s84, 5120')
    if k_wd['n'] % 5:
        i_, dt_ = wd_list[k_wd['n']]
        k(f's_add_u32 s85, s84, {i_*4*5120}')
    while k_wd['n'] < 60: k(wd_load()[0])
    k('s_mul_i32 s84, s3, 2*96\ns_lshl_b32 s85, s22, 1\ns_add_u32 s84, s84, s85\ns_lshl_b32 s84, s84, 10')
    k('s_cmp_lg_u32 s22, 0\ns_cbranch_scc1 L_k5_a_ok')
    k('s_mov_b32 s76, 0\nv_mov_b32 v88, 0')
    k.label('L_k5_a_spin')
    k('buffer_load_dword v90, v88, s[28:31], s80 offen sc0 sc1\ns_waitcnt vmcnt(0)')
    k('v_readfirstlane_b32 s81, v90\ns_add_u32 s76, s76, 1')
    k('s_cmp_eq_u32 s81, 16\ns_cbranch_scc1 L_k5_a_ok')
    k(f's_cmp_lt_u32 s76, {SPIN_MAX}\ns_cbranch_scc1 L_k5_a_spin')
    k.label('L_k5_a_ok')
    k('s_barrier')
    stamp(2, 2)
    vm.ops = []; vm.done = 0
    D = 6
    ACT = 16; ACC2 = 128
    def act_issue(i):
        r = ACT + 16 * (i % D)
        ops = [f'buffer_load_dwordx4 v[{r}:{r+3}], v10, s[16:19], s84 offen sc0 sc1',
               f'buffer_load_dwordx4 v[{r+4}:{r+7}], v10, s[16:19], s84 offen offset:256 sc0 sc1',
               f'buffer_load_dwordx4 v[{r+8}:{r+11}], v11, s[16:19], s84 offen sc0 sc1',
               f'buffer_load_dwordx4 v[{r+12}:{r+15}], v11, s[16:19], s84 offen offset:256 sc0 sc1\ns_add_u32 s84, s84, {8*1024}']
        return [(o, ('a', i, u)) for u, o in enumerate(ops)]
    for i in range(D):
        for o in act_issue(i): vm.issue(*o)
    k('s_mul_i32 s80, s22, 20480\nv_add_u32 v124, s80, v7')
    k(f's_mov_b32 s76, s82\ns_mov_b32 s77, s83\ns_mov_b32 s78, {SZ["out"]}\ns_mov_b32 s79, {SRD3:#x}')
    k('s_lshl_b32 s80, s22, 10\nv_add_u32 v125, s80, v7\nv_add_u32 v126, 40960, v125')
    k('v_lshrrev_b32 v120, 2, v4\nv_and_b32 v121, 3, v4')
    k('v_lshl_add_u32 v120, v3, 2, v120\nv_lshlrev_b32 v120, 7, v120\nv_lshl_add_u32 v120, v121, 3, v120')
    k(f's_lshl_b32 s80, s22, 5\ns_add_u32 s80, s80, {X2OFF}\nv_add_u32 v120, s80, v120')
    k(f'v_lshlrev_b32 v121, 4, v3\nv_add_u32 v121, {GBOFF}, v121')
    k('s_lshl_b32 s80, s3, 6\ns_lshl_b32 s81, s22, 4\ns_add_u32 s80, s80, s81\nv_add_u32 v122, s80, v4\nv_mul_u32_u24 v122, 1280, v122')
    k('s_mul_i32 s80, s27, 160\nv_lshl_add_u32 v122, v3, 3, v122\nv_add_u32 v122, s80, v122')
    for i in range(12):
        r = ACT + 16 * (i % D)
        nxt = act_issue(i + D) if i + D < 12 else []
        for u in range(4):
            idx = max(q for q, t in enumerate(vm.ops) if t == ('a', i, u))
            if idx >= vm.done:
                n = len(vm.ops) - 1 - idx
                k(f's_waitcnt vmcnt({n})'); vm.done = len(vm.ops) - n
            for dt in range(5):
                a = ACC2 + 4 * (4 * dt + u)
                c = '0' if i == 0 else f'v[{a}:{a+3}]'
                k(f'v_mfma_f32_16x16x32_bf16 v[{a}:{a+3}], a[{20*i+4*dt}:{20*i+4*dt+3}], v[{r+4*u}:{r+4*u+3}], {c}')
            if nxt: vm.issue(*nxt[u])
    stamp(2, 3)
    for dt in range(5):
        k(f'ds_read_b64_tr_b16 v[{228+2*dt}:{229+2*dt}], v120 offset:{2048*dt}')
    for dt in range(5):
        k(f'ds_read_b128 v[{208+4*dt}:{211+4*dt}], v121 offset:{64*dt}')
    k('s_mul_i32 s80, s22, 5120\nv_add_u32 v124, s80, v7')
    k('v_add_u32 v123, 40960, v124')
    for u in range(4):
        k(f's_cmp_eq_u32 s22, {u}\ns_cbranch_scc1 L_k5_skipw{u}')
        for dt in range(5):
            a = ACC2 + 4 * (4 * dt + u)
            base = 'v124' if u < 2 else 'v123'
            k(f'ds_write_b128 {base}, v[{a}:{a+3}] offset:{(u&1)*20480 + dt*1024}')
        k.label(f'L_k5_skipw{u}')
    for u in range(4):
        k(f's_cmp_lg_u32 s22, {u}\ns_cbranch_scc1 L_k5_skipm{u}')
        for dt in range(5):
            a = ACC2 + 4 * (4 * dt + u)
            k(f'v_mov_b32 v{16+16*dt}, v{a}\nv_mov_b32 v{17+16*dt}, v{a+1}\nv_mov_b32 v{18+16*dt}, v{a+2}\nv_mov_b32 v{19+16*dt}, v{a+3}')
        k.label(f'L_k5_skipm{u}')
    k('s_mul_i32 s80, s22, 20480\nv_add_u32 v125, s80, v7')
    for q in range(1, 4):
        k(f's_add_u32 s81, s22, {q}\ns_and_b32 s81, s81, 3\ns_mul_i32 s81, s81, 5120\nv_add_u32 v{124+q} , s81, v125'.replace(' ,', ',') if False else f's_add_u32 s81, s22, {q}\ns_and_b32 s81, s81, 3\ns_mul_i32 s81, s81, 5120\nv_add_u32 v{116+q}, s81, v125')
    k('s_waitcnt lgkmcnt(0)\ns_barrier')
    for dt in range(5):
        for q in range(1, 4):
            k(f'ds_read_b128 v[{16+16*dt+4*q}:{19+16*dt+4*q}], v{116+q} offset:{1024*dt}')
    for dt in range(5):
        x = 228 + 2 * dt
        k(f'v_lshlrev_b32 v{128+4*dt}, 16, v{x}\nv_and_b32 v{129+4*dt}, 0xffff0000, v{x}\nv_lshlrev_b32 v{130+4*dt}, 16, v{x+1}\nv_and_b32 v{131+4*dt}, 0xffff0000, v{x+1}')
    for dt in range(5):
        b = 16 + 16 * dt
        k(f's_waitcnt lgkmcnt({3*(4-dt)})')
        k(f'v_pk_add_f32 v[{b}:{b+1}], v[{b}:{b+1}], v[{b+4}:{b+5}]\nv_pk_add_f32 v[{b+2}:{b+3}], v[{b+2}:{b+3}], v[{b+6}:{b+7}]')
        k(f'v_pk_add_f32 v[{b+8}:{b+9}], v[{b+8}:{b+9}], v[{b+12}:{b+13}]\nv_pk_add_f32 v[{b+10}:{b+11}], v[{b+10}:{b+11}], v[{b+14}:{b+15}]')
        k(f'v_pk_add_f32 v[{b}:{b+1}], v[{b}:{b+1}], v[{b+8}:{b+9}]\nv_pk_add_f32 v[{b+2}:{b+3}], v[{b+2}:{b+3}], v[{b+10}:{b+11}]')
        g = 208 + 4 * dt; xr = 128 + 4 * dt
        k(f'v_pk_fma_f32 v[{b}:{b+1}], v[{b}:{b+1}], v[{g}:{g+1}], v[{xr}:{xr+1}]')
        k(f'v_pk_fma_f32 v[{b+2}:{b+3}], v[{b+2}:{b+3}], v[{g+2}:{g+3}], v[{xr+2}:{xr+3}]')
        k(f'v_cvt_pk_bf16_f32 v{b}, v{b}, v{b+1}\nv_cvt_pk_bf16_f32 v{b+1}, v{b+2}, v{b+3}')
        k(f'buffer_store_dwordx2 v[{b}:{b+1}], v122, s[76:79], 0 offen offset:{32*dt}')
    if STAMPS: k('s_waitcnt vmcnt(0)')
    stamp_end(k, 2)
    k.label('L_k5_exit')
    k('s_endpgm')
    return k
```

```python
from asmlib import K, Q
from common import *
import os, struct
from collections import deque

K6_GRID = 256
NS = 7
STG = 20480
TBL = NS * STG
X2OFF = TBL + 1536
GBOFF = X2OFF + 10240
DUMMY = GBOFF + 320
K6_LDS = DUMMY + 1024 + 16
def f2h(x): return hex(struct.unpack('<I', struct.pack('<f', x))[0])
GK1 = -2.302208198144325
GK2 = GK1 * 0.044715
NSP = 10
SPIN_MAX = 400000
SS = int(os.environ.get('STAMPSET', '1'))
BUDGET = int(os.environ.get('BUDGET', '6'))
def lines(s): return [l.strip() for l in s.split('\n') if l.strip()]

def build_k6():
    k = K('ffn_kernel')
    def stamp(setno, i):
        if SS == setno: stamp_mid(k, i)
    vm = Q(k, 'vmcnt', 63); lg = Q(k, 'lgkmcnt', 15)
    side = deque()
    def job(text):
        for l in lines(text): side.append(('i', l))
    def jobvm(text, tag):
        ls = lines(text)
        for l in ls[:-1]: side.append(('i', l))
        side.append(('vm', ls[-1], tag))
    def joblg(text, tag): side.append(('lg', text, tag))
    def pull(n):
        while n > 0 and side:
            it = side.popleft()
            if it[0] == 'i':
                k(it[1]); n -= 1
                while side and side[0][0] == 'i' and side[0][1].split()[0] in ('s_addc_u32', 's_subb_u32', 's_cselect_b32', 's_cselect_b64'):
                    k(side.popleft()[1]); n -= 1
            elif it[0] == 'vm': vm.issue(it[1], it[2]); n -= 2
            elif it[0] == 'lg': lg.issue(it[1], it[2]); n -= 1
            elif it[0] == 'wvm': vm.wait(it[1])
            elif it[0] == 'call': it[1](); n -= 3
    def flush(): pull(1 << 30)

    S0, S1 = 24, 40
    ACC = 56
    stamp_begin(k)
    k(f's_cmp_ge_u32 s2, {K6_GRID}\ns_cbranch_scc1 L_k6_exit')
    k('s_load_dwordx2 s[4:5], s[0:1], 120')
    k('s_load_dwordx2 s[82:83], s[0:1], 104       ; out')
    k('v_lshrrev_b32 v2, 6, v0\nv_and_b32 v1, 63, v0\nv_readfirstlane_b32 s22, v2     ; w')
    k('s_and_b32 s80, s2, 7\ns_lshr_b32 s81, s2, 3')
    k('s_and_b32 s20, s80, 1\ns_lshl_b32 s20, s20, 3\ns_and_b32 s21, s81, 7\ns_add_u32 s20, s20, s21      ; rb')
    k('s_lshr_b32 s21, s80, 1\ns_lshl_b32 s21, s21, 2\ns_lshr_b32 s27, s81, 3\ns_add_u32 s21, s21, s27    ; fb')
    k('s_lshr_b32 s3, s80, 1\ns_and_b32 s3, s3, 1\ns_lshl_b32 s6, s20, 1\ns_add_u32 s3, s3, s6')
    k('s_lshr_b32 s6, s80, 2\ns_lshl_b32 s6, s6, 2\ns_add_u32 s27, s27, s6                               ; db')
    k('v_lshrrev_b32 v3, 4, v1\nv_and_b32 v4, 15, v1')
    k('v_lshlrev_b32 v5, 2, v3\nv_xor_b32 v5, v5, v4\nv_lshlrev_b32 v5, 4, v5\nv_lshl_add_u32 v5, v3, 12, v5')
    k('s_lshl_b32 s6, s20, 8\nv_add_u32 v5, s6, v5\nv_lshlrev_b32 v7, 4, v1')
    k('s_lshr_b32 s25, s22, 1          ; lt\ns_and_b32 s24, s22, 1      ; wj')
    k(f's_lshl_b32 s80, s21, 1\ns_cmp_lt_u32 s21, {NSP}\ns_cselect_b32 s81, 0, 1\ns_add_u32 s80, s80, s81')
    k('s_cmp_ge_u32 s80, 20\ns_cselect_b32 s81, 20, 0\ns_sub_u32 s80, s80, s81          ; st = s0')
    k('s_lshl_b32 s84, s22, 14')
    k('s_cmp_ge_u32 s22, 6\ns_cselect_b32 s81, 90, 0\ns_add_u32 s85, s22, s81\ns_mul_i32 s81, s21, 6\ns_add_u32 s85, s85, s81\ns_lshl_b32 s85, s85, 10')
    k('v_add_u32 v6, 98*1024, v7')
    def soff(j):
        return (f's_mul_i32 s{36+j}, s80, 131072\ns_mul_i32 s{56+j}, s80, 196608\n'
                f's_add_u32 s{36+j}, s{36+j}, s84\ns_add_u32 s{56+j}, s{56+j}, s85\n'
                's_add_u32 s80, s80, 1\ns_cmp_eq_u32 s80, 20\ns_cselect_b32 s80, 0, s80')
    PRE = NS - 2
    k(soff(0))
    k('s_lshl_b32 s6, s22, 10\ns_add_u32 s7, s6, 8192')
    k(soff(1))
    k('s_waitcnt lgkmcnt(0)')
    k(f's_add_u32 s8, s4, {WS_X2T}\ns_addc_u32 s9, s5, 0\ns_mov_b32 s10, 2621440\ns_mov_b32 s11, {SRD3:#x}')
    k(f's_add_u32 s12, s4, {WS_WP}\ns_addc_u32 s13, s5, 0\ns_mov_b32 s14, 3932160\ns_mov_b32 s15, {SRD3:#x}')
    def dma_ops(j, grp):
        sl = (j % NS) * STG
        o = [f's_add_u32 m0, s6, {sl}\ns_nop 0\nbuffer_load_dwordx4 v5, s[8:11], s{36+j} offen lds',
             f's_add_u32 m0, s7, {sl}\ns_nop 0\nbuffer_load_dwordx4 v7, s[12:15], s{56+j} offen lds']
        if grp == 0:
            o.append(f's_add_u32 m0, s7, {sl+8192}\ns_nop 0\nbuffer_load_dwordx4 v6, s[12:15], s{56+j} offen lds')
        return o
    def setup_jobs():
        for j in range(2, 20): job(soff(j))
        job('v_mov_b32 v14, 0x80000000')
        job('v_lshrrev_b32 v18, 2, v4\nv_and_b32 v19, 3, v4\nv_lshrrev_b32 v20, 1, v3\nv_and_b32 v21, 1, v3')
        job('v_lshl_add_u32 v22, v20, 3, v18\nv_lshlrev_b32 v22, 8, v22')
        job('v_lshrrev_b32 v23, 1, v19\nv_lshl_add_u32 v23, v21, 1, v23\nv_lshl_add_u32 v22, v23, 4, v22')
        job('v_and_b32 v23, 1, v19\nv_lshl_add_u32 v22, v23, 3, v22')
        job('v_xor_b32 v23, s25, v18\nv_lshl_add_u32 v8, v23, 6, v22')
        job('s_mul_i32 s81, s24, 3072\ns_add_u32 s81, s81, 8192\nv_add_u32 v11, s81, v7')
        for st_ in (1, 2):
            job(f'v_add_u32 v{8+st_}, {61440*st_}, v8\nv_add_u32 v{11+st_}, {61440*st_}, v11')
        job(f's_add_u32 s16, s4, {WS_ACT}\ns_addc_u32 s17, s5, 0\ns_mov_b32 s18, 6291456\ns_mov_b32 s19, {SRD3:#x}')
        job(f's_add_u32 s28, s4, {WS_FLAGS}\ns_addc_u32 s29, s5, 0\ns_mov_b32 s30, {WS_SP - WS_FLAGS + 163840}\ns_mov_b32 s31, {SRD3:#x}')
        job(f's_add_u32 s32, s4, {WS_WD}\ns_addc_u32 s33, s5, 0\ns_mov_b32 s34, 1966080\ns_mov_b32 s35, {SRD3:#x}')
    def acc(t): return ACC + 16 * t
    def reads(s, j, ksl):
        sl = j % NS; b = sl // 3; o = (sl % 3) * STG
        xo = o + ksl * 4096; wo = o + ksl * 6144
        tg = lambda n: (n, j, ksl)
        return [(f'ds_read_b64_tr_b16 v[{s}:{s+1}], v{8+b} offset:{xo}', tg('X')),
                (f'ds_read_b64_tr_b16 v[{s+2}:{s+3}], v{8+b} offset:{xo+1024}', tg('X')),
                (f'ds_read_b128 v[{s+4}:{s+7}], v{11+b} offset:{wo}', tg('W0')),
                (f'ds_read_b128 v[{s+8}:{s+11}], v{11+b} offset:{wo+1024}', tg('W1')),
                (f'ds_read_b128 v[{s+12}:{s+15}], v{11+b} offset:{wo+2048}', tg('W2'))]
    def lgwait(tag):
        idx = max(i for i, t in enumerate(lg.ops) if t == tag)
        if idx < lg.done: return 0
        n = min(15, len(lg.ops) - 1 - idx)
        k(f's_waitcnt lgkmcnt({n})'); lg.done = max(lg.done, len(lg.ops) - n)
        return 1
    def vmwait_tag(tag):
        idx = max(i for i, t in enumerate(vm.ops) if t == tag)
        if idx < vm.done: return
        n = min(63, len(vm.ops) - 1 - idx)
        k(f's_waitcnt vmcnt({n})'); vm.done = max(vm.done, len(vm.ops) - n)
    def phase(s, j, ksl, first, nxt_reads, dm):
        rd_after = [[0, 1, 2], [3], [4]]
        for t in range(3):
            lgwait(('X', j, ksl)); lgwait((f'W{t}', j, ksl))
            a = acc(t)
            c = '0' if first else f'v[{a}:{a+15}]'
            k(f'v_mfma_f32_32x32x16_bf16 v[{a}:{a+15}], v[{s+4+4*t}:{s+7+4*t}], v[{s}:{s+3}], {c}')
            used = 0
            if nxt_reads:
                for ri in rd_after[t]:
                    lg.issue(*nxt_reads[ri]); used += 1
            if t in dm:
                txt, tag = dm[t]
                ls = lines(txt)
                vi = max(q for q, l in enumerate(ls) if l.startswith('buffer_'))
                for l in ls[:vi]: k(l)
                vm.issue(ls[vi], tag)
                for l in ls[vi+1:]: k(l)
                used += len(ls) + 1
            pull(max(0, BUDGET - used))
    def stat_ops(s, first):
        ops = []
        for i in range(4):
            a, b = 20 + 2 * (i & 1), 21 + 2 * (i & 1)
            ops.append(f'v_lshlrev_b32 v{a}, 16, v{s+i}')
            ops.append(f'v_and_b32 v{b}, 0xffff0000, v{s+i}')
            if first and i == 0:
                ops += [f'v_mov_b32 v16, v{a}', f'v_mov_b32 v17, v{b}', f'v_mul_f32 v18, v{a}, v{a}', f'v_mul_f32 v19, v{b}, v{b}']
            else:
                ops += [f'v_add_f32 v16, v16, v{a}', f'v_add_f32 v17, v17, v{b}', f'v_fma_f32 v18, v{a}, v{a}, v18', f'v_fma_f32 v19, v{b}, v{b}, v19']
        return ops
    wd_list = [(i, dt) for i in range(6) for dt in range(5)]
    k_wd = {'n': 0}
    def wd_load():
        i, dt = wd_list[k_wd['n']]; k_wd['n'] += 1
        pre = f's_add_u32 s85, s84, {i*8*5120}\n' if dt == 0 else ''
        if dt < 4:
            return (pre + f'buffer_load_dwordx4 a[{20*i+4*dt}:{20*i+4*dt+3}], v7, s[32:35], s85 offen offset:{1024*dt}', 'wd')
        return (f's_add_u32 s85, s85, 4096\nbuffer_load_dwordx4 a[{20*i+4*dt}:{20*i+4*dt+3}], v7, s[32:35], s85 offen', 'wd')
    PQR = 104
    def mainloop(grp):
        nd = 3 if grp == 0 else 2
        setup_jobs()
        for j in range(PRE):
            for o in dma_ops(j, grp):
                vm.issue(o, ('st', j)); pull(12)
        flush()
        k('s_mul_i32 s84, s27, 48\ns_add_u32 s84, s84, s22\ns_mul_i32 s84, s84, 5120')
        stamp(1, 3)
        vmwait_tag(('st', 0))
        k('s_barrier')
        stamp(1, 0)
        for r in reads(S0, 0, 0): lg.issue(*r)
        for j in range(20):
            if j + PRE < 20: d = [(o, ('st', j + PRE)) for o in dma_ops(j + PRE, grp)]
            else: d = [wd_load() for _ in range(3)]
            if os.environ.get('EXP_NODMA') and j + PRE < 20: d = [('buffer_nop', None)] and []
            DM = os.environ.get('DM', 'A')
            if DM == 'A':
                if grp == 0: dmC = {i: x for i, x in enumerate(d)}; dmE = {}
                else: dmC = {}; dmE = {i: x for i, x in enumerate(d)}
            elif DM == 'B':
                if grp == 0: pos = [('C', 0), ('C', 2), ('E', 1)]
                else: pos = [('C', 1), ('E', 0), ('E', 2)]
                dmC = {g: x for (p, g), x in zip(pos, d) if p == 'C'}; dmE = {g: x for (p, g), x in zip(pos, d) if p == 'E'}
            else:
                dmC = {1: d[0]} if len(d) > 0 else {}
                dmE = {}
                if len(d) > 1: dmE[0 if grp == 0 else 1] = d[1]
                if len(d) > 2: dmE[2] = d[2]
            if os.environ.get('EXP_NODMA') and j + PRE < 20: vm.note(('st', j + PRE), 0)
            if j == 3:
                job(f's_add_u32 s76, s4, {WS_PQ}\ns_addc_u32 s77, s5, 0\ns_mov_b32 s78, 122880\ns_mov_b32 s79, {SRD3:#x}')
                job('s_mul_i32 s80, s21, 6*256\nv_lshlrev_b32 v15, 3, v0\nv_add_u32 v15, s80, v15')
                job('v_cmp_gt_u32 vcc, 192, v0\nv_cndmask_b32 v15, v14, v15, vcc')
                for dq in range(5):
                    jobvm(f's_mov_b32 s80, {dq*96*256}\nbuffer_load_dwordx2 v[{PQR+2*dq}:{PQR+1+2*dq}], v15, s[76:79], s80 offen', 'pq')
                job(f's_add_u32 s76, s4, {WS_MODP}\ns_addc_u32 s77, s5, 0\ns_mov_b32 s78, 61440')
                job('s_mul_i32 s80, s27, 320\nv_lshlrev_b32 v23, 2, v0\nv_add_u32 v15, s80, v23')
                job('v_cmp_gt_u32 vcc, 80, v0\nv_cndmask_b32 v15, v14, v15, vcc')
                for kq in range(4):
                    jobvm(f's_mov_b32 s80, {kq*15360 + 5*2560}\nbuffer_load_dword v{PQR+10+kq}, v15, s[76:79], s80 offen', 'pq')
            if j == 5:
                job('v_lshrrev_b32 v15, 3, v1\nv_and_b32 v23, 7, v1\nv_lshlrev_b32 v15, 12, v15\nv_lshl_add_u32 v15, v23, 4, v15')
                job('s_mul_i32 s76, s27, 80*4096\ns_lshl_b32 s81, s3, 7\ns_add_u32 s76, s76, s81')
                job('s_lshl_b32 s77, s22, 15\ns_add_u32 s77, s77, s76')
                job(f's_lshl_b32 s78, s22, 10\ns_add_u32 s78, s78, {X2OFF}')
                side.append(('call', lambda: (k('s_mov_b32 m0, s78\ns_nop 0'), vm.issue('buffer_load_dwordx4 v15, s[8:11], s77 offen lds', 'x2r'))))
                job('s_add_u32 s81, s22, 8\ns_cmp_lt_u32 s22, 2\ns_cselect_b32 s81, s81, s22')
                job(f's_lshl_b32 s78, s81, 10\ns_add_u32 s78, s78, {X2OFF}\ns_lshl_b32 s81, s81, 15\ns_add_u32 s77, s76, s81')
                side.append(('call', lambda: (k('s_mov_b32 m0, s78\ns_nop 0'), vm.issue('buffer_load_dwordx4 v15, s[8:11], s77 offen lds', 'x2r'))))
            if j == 10:
                side.append(('wvm', 'pq'))
                for dq in range(1, 5): job(f'v_pk_add_f32 v[{PQR}:{PQR+1}], v[{PQR}:{PQR+1}], v[{PQR+2*dq}:{PQR+1+2*dq}]')
                g = PQR + 10
                job(f'v_add_f32 v{g}, v{g}, v{g+1}\nv_add_f32 v{g+2}, v{g+2}, v{g+3}\nv_add_f32 v{g}, v{g}, v{g+2}')
                job(f'v_cvt_pk_bf16_f32 v{g}, v{g}, v{g}\nv_lshlrev_b32 v{g}, 16, v{g}')
                job(f'v_lshlrev_b32 v15, 2, v0\nv_add_u32 v23, {GBOFF}, v15\nv_add_u32 v15, {TBL}, v15\nv_mov_b32 v22, {DUMMY}')
                job('v_cmp_gt_u32 vcc, 192, v0\nv_cndmask_b32 v15, v22, v15, vcc\nv_cmp_gt_u32 vcc, 80, v0\nv_cndmask_b32 v23, v22, v23, vcc')
                joblg(f'ds_write_b32 v15, v{PQR}', 'tbl'); joblg(f'ds_write_b32 v15, v{PQR+1} offset:768', 'tbl'); joblg(f'ds_write_b32 v23, v{g}', 'tbl')
            if j == 8:
                job(f's_cmp_lt_u32 s21, {NSP}\ns_cselect_b32 s81, 1, 0\ns_lshl_b32 s80, s20, 7')
                job('v_mov_b32 v20, 0\nv_mov_b32 v21, 1\nv_cmp_gt_u32 vcc, s81, v0\nv_cndmask_b32 v20, v14, v20, vcc')
                jobvm('buffer_atomic_add v21, v20, s[28:31], s80 offen sc1', 'atom1')
            if j == 13:
                job('s_lshl_b32 s80, s20, 7\nv_mov_b32 v20, 0')
                jobvm('buffer_load_dword v22, v20, s[28:31], s80 offen sc0 sc1', 'poll1')
            if j > 0:
                if j - 1 < 2:
                    for o in stat_ops(S1, False): side.append(('i', o))
                phase(S1, j - 1, 1, False, reads(S0, j, 0), dmC)
                if j - 1 < 2 or j == 5: flush()
            else:
                for g_ in sorted(dmC): vm.issue(*dmC[g_])
            if j == 2:
                job('v_add_f32 v16, v16, v17\nv_add_f32 v18, v18, v19\nv_mov_b32 v20, v16\nv_mov_b32 v21, v18')
                job(f's_mul_i32 s80, s20, {NSP}\ns_add_u32 s80, s80, s21\ns_lshl_b32 s80, s80, 10')
                job('v_permlane32_swap_b32 v16, v20\nv_permlane32_swap_b32 v18, v21')
                job(f's_lshl_b32 s81, s25, 8\ns_add_u32 s80, s80, s81\ns_add_u32 s80, s80, {WS_SP - WS_FLAGS}')
                job('v_add_f32 v16, v16, v20\nv_add_f32 v17, v18, v21')
                job(f's_cmp_lt_u32 s21, {NSP}\ns_cselect_b32 s81, 32, 0\ns_cmp_eq_u32 s24, 0\ns_cselect_b32 s81, s81, 0')
                job('v_lshlrev_b32 v20, 3, v1\nv_cmp_gt_u32 vcc, s81, v1\nv_cndmask_b32 v20, v14, v20, vcc')
                jobvm('buffer_store_dwordx2 v[16:17], v20, s[28:31], s80 offen sc0 sc1', 'spst')
            if j == 17:
                vm.wait('poll1')
                k('v_readfirstlane_b32 s81, v22')
                k(f's_cmp_eq_u32 s81, {NSP}\ns_cbranch_scc1 L_k6_st_ok{grp}')
                k('s_mov_b32 s76, 0')
                k.label(f'L_k6_st_spin{grp}')
                k('s_lshl_b32 s80, s20, 7\nv_mov_b32 v20, 0')
                k('buffer_load_dword v22, v20, s[28:31], s80 offen sc0 sc1\ns_waitcnt vmcnt(0)')
                k('v_readfirstlane_b32 s81, v22\ns_add_u32 s76, s76, 1')
                k(f's_cmp_eq_u32 s81, {NSP}\ns_cbranch_scc1 L_k6_st_ok{grp}')
                k(f's_cmp_lt_u32 s76, {SPIN_MAX}\ns_cbranch_scc1 L_k6_st_spin{grp}')
                k.label(f'L_k6_st_ok{grp}')
                job('v_and_b32 v20, 31, v1\nv_lshlrev_b32 v20, 3, v20\ns_lshl_b32 s80, s25, 8\nv_add_u32 v20, s80, v20')
                job(f's_mul_i32 s80, s20, {NSP*1024}\ns_add_u32 s80, s80, {WS_SP - WS_FLAGS}')
                for p in range(NSP):
                    jobvm(f'buffer_load_dwordx2 v[{PQR+2*p}:{PQR+1+2*p}], v20, s[28:31], s80 offen offset:{(p%4)*1024} sc0 sc1', 'spld')
                    if p % 4 == 3: job('s_add_u32 s80, s80, 4096')
            if j < 2:
                for o in stat_ops(S0, j == 0): side.append(('i', o))
            phase(S0, j, 0, j == 0, reads(S1, j, 1), dmE)
            if j < 2: flush()
            if j < 19:
                if not os.environ.get('EXP_NODMA'): vmwait_tag(('st', j + 1))
                if j == 7:
                    assert 'spst' in vm.ops
                    vm.wait('spst')
                k('s_barrier')
                if j in (2, 7, 12, 17): stamp(3, (2, 7, 12, 17).index(j))
        flush()
        extra = [wd_load() for _ in range(2)]
        phase(S1, 19, 1, False, None, {0: extra[0], 2: extra[1]})
    state0 = (list(vm.ops), vm.done, list(lg.ops), lg.done, k_wd['n'])
    ends = []
    k('s_cmp_ge_u32 s22, 4\ns_cbranch_scc1 L_k6_var1')
    for grp in range(2):
        vm.ops, vm.done, lg.ops, lg.done, k_wd['n'] = list(state0[0]), state0[1], list(state0[2]), state0[3], state0[4]
        if grp: k.label('L_k6_var1')
        mainloop(grp)
        ends.append((list(vm.ops), vm.done, list(lg.ops), lg.done, k_wd['n']))
        if grp == 0: k('s_branch L_k6_join')
    k.label('L_k6_join')
    assert all(e[4] == ends[0][4] for e in ends)
    after = min(len(e[0]) - 1 - max(i for i, t in enumerate(e[0]) if t == 'spld') for e in ends)
    vm.ops = ['spld'] + ['x'] * after; vm.done = 0
    lg.ops = []; lg.done = 0
    stamp(1, 1)
    k('v_lshrrev_b32 v15, 5, v1\nv_lshlrev_b32 v15, 4, v15')
    k(f's_mul_i32 s80, s24, 384\ns_add_u32 s80, s80, {TBL}\nv_add_u32 v15, s80, v15')
    def pq_reads(t, PB):
        for j in range(4):
            k(f'ds_read_b128 v[{PB+4*j}:{PB+4*j+3}], v15 offset:{128*t + 32*j}')
            k(f'ds_read_b128 v[{PB+16+4*j}:{PB+16+4*j+3}], v15 offset:{768 + 128*t + 32*j}')
    pq_reads(0, 24)
    vm.wait('spld')
    for p in range(1, NSP):
        k(f'v_pk_add_f32 v[{PQR}:{PQR+1}], v[{PQR}:{PQR+1}], v[{PQR+2*p}:{PQR+1+2*p}]')
    k(f'v_mul_f32 v16, 0x3acccccd, v{PQR}\nv_mul_f32 v17, 0x3acccccd, v{PQR+1}')
    k('s_lshl_b32 s80, s20, 2\ns_add_u32 s80, s80, s25')
    k('v_fma_f32 v17, -v16, v16, v17\nv_max_f32 v17, 0, v17')
    k('s_mul_i32 s76, s21, 6\ns_mul_i32 s77, s24, 3\ns_add_u32 s76, s76, s77         ; T0')
    k('v_cvt_pk_bf16_f32 v16, v16, v17\nv_and_b32 v17, 0xffff0000, v16\nv_lshlrev_b32 v16, 16, v16')
    k('s_mul_i32 s80, s80, 96\ns_add_u32 s80, s80, s76\ns_lshl_b32 s80, s80, 10')
    k('v_add_f32 v17, 0x3727c5ac, v17\nv_cvt_pk_bf16_f32 v17, v17, v17\nv_lshlrev_b32 v17, 16, v17')
    k('v_sqrt_f32 v17, v17')
    k(f's_mov_b32 s76, {f2h(GK1)}\ns_mov_b32 s77, {f2h(GK1)}\ns_mov_b32 s78, {f2h(GK2)}\ns_mov_b32 s79, {f2h(GK2)}')
    k('v_cvt_pk_bf16_f32 v17, v17, v17\nv_lshlrev_b32 v17, 16, v17')
    k('v_rcp_f32 v18, v17')
    k(f'v_mov_b32 v12, {f2h(GK1)}\nv_mov_b32 v13, {f2h(GK1)}')
    k('v_mul_f32 v19, v16, v18\nv_sub_f32 v19, 0, v19')
    R = 18
    T = 8
    for t in range(3):
        PB = 24 if t != 1 else 104
        k('s_waitcnt lgkmcnt(0)')
        if t < 2: pq_reads(t + 1, 104 if t == 0 else 24)
        a = acc(t)
        for half in range(2):
            ag, au = a + 8 * half, a + 8 * half + 4
            pg, pu = PB + 8 * half, PB + 8 * half + 4
            qg, qu = pg + 16, pu + 16
            for p in range(2):
                k(f'v_pk_fma_f32 v[{qg+2*p}:{qg+2*p+1}], v[{pg+2*p}:{pg+2*p+1}], v[{R}:{R+1}], v[{qg+2*p}:{qg+2*p+1}] op_sel:[0,1,0] op_sel_hi:[1,1,1]')
                k(f'v_pk_fma_f32 v[{qu+2*p}:{qu+2*p+1}], v[{pu+2*p}:{pu+2*p+1}], v[{R}:{R+1}], v[{qu+2*p}:{qu+2*p+1}] op_sel:[0,1,0] op_sel_hi:[1,1,1]')
            for p in range(2):
                k(f'v_pk_fma_f32 v[{qg+2*p}:{qg+2*p+1}], v[{ag+2*p}:{ag+2*p+1}], v[{R}:{R+1}], v[{qg+2*p}:{qg+2*p+1}] op_sel:[0,0,0] op_sel_hi:[1,0,1]')
                k(f'v_pk_fma_f32 v[{qu+2*p}:{qu+2*p+1}], v[{au+2*p}:{au+2*p+1}], v[{R}:{R+1}], v[{qu+2*p}:{qu+2*p+1}] op_sel:[0,0,0] op_sel_hi:[1,0,1]')
            if k_wd['n'] < 30: vm.issue(*wd_load())
            G = [qg, qg + 2]; U = [qu, qu + 2]; T1 = [pg, pg + 2]
            for p in range(2): k(f'v_pk_mul_f32 v[{T1[p]}:{T1[p]+1}], v[{G[p]}:{G[p]+1}], v[{G[p]}:{G[p]+1}]')
            for p in range(2): k(f'v_pk_fma_f32 v[{T1[p]}:{T1[p]+1}], v[{T1[p]}:{T1[p]+1}], s[78:79], v[12:13]')
            for p in range(2): k(f'v_pk_mul_f32 v[{T1[p]}:{T1[p]+1}], v[{T1[p]}:{T1[p]+1}], v[{G[p]}:{G[p]+1}]')
            for p in range(2): k(f'v_exp_f32 v{T1[p]}, v{T1[p]}\nv_exp_f32 v{T1[p]+1}, v{T1[p]+1}')
            if k_wd['n'] < 30: vm.issue(*wd_load())
            for p in range(2): k(f'v_pk_mul_f32 v[{U[p]}:{U[p]+1}], v[{U[p]}:{U[p]+1}], v[{G[p]}:{G[p]+1}]')
            for p in range(2): k(f'v_pk_add_f32 v[{T1[p]}:{T1[p]+1}], v[{T1[p]}:{T1[p]+1}], 1.0 op_sel_hi:[1,0]')
            for p in range(2): k(f'v_rcp_f32 v{T1[p]}, v{T1[p]}\nv_rcp_f32 v{T1[p]+1}, v{T1[p]+1}')
            if k_wd['n'] < 30: vm.issue(*wd_load())
            for p in range(2): k(f'v_pk_mul_f32 v[{U[p]}:{U[p]+1}], v[{U[p]}:{U[p]+1}], v[{T1[p]}:{T1[p]+1}]')
            for p in range(2): k(f'v_cvt_pk_bf16_f32 v{a + 2*half + p}, v{U[p]}, v{U[p]+1}')
        vm.issue(f'buffer_store_dwordx4 v[{a}:{a+3}], v7, s[16:19], s80 offen offset:{1024*t} sc0 sc1', 'actst')
    while k_wd['n'] < 30: vm.issue(*wd_load())
    stamp(1, 2); stamp(2, 0)
    k('v_lshrrev_b32 v10, 1, v3\nv_lshlrev_b32 v10, 10, v10')
    k('v_and_b32 v11, 1, v3\nv_lshlrev_b32 v11, 5, v11\nv_add_u32 v11, v11, v4\nv_lshl_add_u32 v10, v11, 4, v10     ; u=0')
    k(f'v_add_u32 v11, {96*1024}, v10                ; u=2')
    k('s_mul_i32 s84, s3, 2*96\ns_lshl_b32 s85, s22, 1\ns_add_u32 s84, s84, s85\ns_lshl_b32 s84, s84, 10')
    k('s_lshl_b32 s80, s20, 7\ns_add_u32 s80, s80, 2048')
    k('v_mov_b32 v20, 0\nv_mov_b32 v21, 1\nv_cmp_gt_u32 vcc, 1, v0\nv_cndmask_b32 v20, v14, v20, vcc')
    vm.drain()
    k('s_barrier')
    stamp(2, 1)
    k('s_cmp_lg_u32 s22, 0\ns_cbranch_scc1 L_k6_a_ok')
    k('buffer_atomic_add v21, v20, s[28:31], s80 offen sc1')
    k('s_mov_b32 s76, 0\nv_mov_b32 v20, 0')
    k.label('L_k6_a_spin')
    k('buffer_load_dword v22, v20, s[28:31], s80 offen sc0 sc1\ns_waitcnt vmcnt(0)')
    k('v_readfirstlane_b32 s81, v22\ns_add_u32 s76, s76, 1')
    k('s_cmp_eq_u32 s81, 16\ns_cbranch_scc1 L_k6_a_ok')
    k(f's_cmp_lt_u32 s76, {SPIN_MAX}\ns_cbranch_scc1 L_k6_a_spin')
    k.label('L_k6_a_ok')
    k('s_barrier')
    stamp(2, 2)
    vm.ops = []; vm.done = 0
    ACC2 = 56
    D = 2
    ACT = 16
    def act_issue(i):
        r = ACT + 16 * (i % D)
        ops = [f'buffer_load_dwordx4 v[{r}:{r+3}], v10, s[16:19], s84 offen sc0 sc1',
               f'buffer_load_dwordx4 v[{r+4}:{r+7}], v10, s[16:19], s84 offen offset:256 sc0 sc1',
               f'buffer_load_dwordx4 v[{r+8}:{r+11}], v11, s[16:19], s84 offen sc0 sc1',
               f'buffer_load_dwordx4 v[{r+12}:{r+15}], v11, s[16:19], s84 offen offset:256 sc0 sc1\ns_add_u32 s84, s84, {16*1024}']
        return [(o, ('a', i, u)) for u, o in enumerate(ops)]
    for i in range(D):
        for o in act_issue(i): vm.issue(*o)
    k(f's_mov_b32 s76, s82\ns_mov_b32 s77, s83\ns_mov_b32 s78, {SZ["out"]}\ns_mov_b32 s79, {SRD3:#x}')
    for i in range(6):
        r = ACT + 16 * (i % D)
        nxt = act_issue(i + D) if i + D < 6 else []
        for u in range(4):
            idx = max(q for q, t in enumerate(vm.ops) if t == ('a', i, u))
            if idx >= vm.done:
                n = len(vm.ops) - 1 - idx
                k(f's_waitcnt vmcnt({n})'); vm.done = len(vm.ops) - n
            for dt in range(5):
                a = ACC2 + 4 * (4 * dt + u)
                c = '0' if i == 0 else f'v[{a}:{a+3}]'
                k(f'v_mfma_f32_16x16x32_bf16 v[{a}:{a+3}], a[{20*i+4*dt}:{20*i+4*dt+3}], v[{r+4*u}:{r+4*u+3}], {c}')
            if nxt: vm.issue(*nxt[u])
    stamp(2, 3)
    k('s_mul_i32 s80, s22, 10240\nv_add_u32 v12, s80, v7')
    k('s_xor_b32 s81, s22, 4\ns_mul_i32 s81, s81, 10240\nv_add_u32 v13, s81, v7')
    k('s_cmp_ge_u32 s22, 4\ns_cbranch_scc1 L_k6_r1b')
    for grp in range(2):
        if grp: k.label('L_k6_r1b')
        su = 2 if grp == 0 else 0; ku = 2 - su
        for dt in range(5):
            for e in range(2):
                a = ACC2 + 4 * (4 * dt + su + e)
                k(f'ds_write_b128 v12, v[{a}:{a+3}] offset:{(2*dt+e)*1024}')
        k('s_waitcnt lgkmcnt(0)\ns_barrier')
        for dt in range(5):
            for e in range(2):
                k(f'ds_read_b128 v[{16+4*(2*dt+e)}:{19+4*(2*dt+e)}], v13 offset:{(2*dt+e)*1024}')
        for dt in range(5):
            for e in range(2):
                a = ACC2 + 4 * (4 * dt + ku + e); b = 16 + 4 * (2 * dt + e)
                k(f's_waitcnt lgkmcnt({min(15, 9 - (2*dt+e))})')
                k(f'v_pk_add_f32 v[{a}:{a+1}], v[{a}:{a+1}], v[{b}:{b+1}]\nv_pk_add_f32 v[{a+2}:{a+3}], v[{a+2}:{a+3}], v[{b+2}:{b+3}]')
        k('s_barrier')
        for q in range(10):
            dt, e = q // 2, q % 2
            a = ACC2 + 4 * (4 * dt + ku + e)
            k(f'ds_write_b128 v12, v[{a}:{a+3}] offset:{q*1024}')
        k('s_waitcnt lgkmcnt(0)\ns_barrier')
        if grp == 0: k('s_branch L_k6_r2')
    k.label('L_k6_r2')
    k('s_and_b32 s80, s22, 3\ns_and_b32 s81, s22, 4')
    k('s_mul_i32 s84, s81, 10240\ns_lshl_b32 s85, s80, 10\ns_add_u32 s84, s84, s85\nv_add_u32 v12, s84, v7')
    for m_ in range(3):
        for wp in range(4):
            k(f'ds_read_b128 v[{16+16*m_+4*wp}:{19+16*m_+4*wp}], v12 offset:{wp*10240 + m_*4096}')
    k('s_lshr_b32 s84, s80, 1          ; dt0\ns_and_b32 s85, s80, 1\ns_lshr_b32 s81, s81, 1\ns_add_u32 s85, s85, s81       ; u')
    k('v_lshrrev_b32 v64, 2, v4\nv_and_b32 v65, 3, v4')
    k('v_lshl_add_u32 v64, v3, 2, v64\nv_lshlrev_b32 v64, 7, v64\nv_lshl_add_u32 v64, v65, 3, v64')
    k(f's_lshl_b32 s80, s85, 5\ns_lshl_b32 s81, s84, 11\ns_add_u32 s80, s80, s81\ns_add_u32 s80, s80, {X2OFF}\nv_add_u32 v64, s80, v64')
    k(f's_lshl_b32 s80, s84, 6\ns_add_u32 s80, s80, {GBOFF}\nv_lshlrev_b32 v65, 4, v3\nv_add_u32 v65, s80, v65')
    for m_ in range(3):
        k(f'ds_read_b64_tr_b16 v[{68+2*m_}:{69+2*m_}], v64 offset:{4096*m_}')
        k(f'ds_read_b128 v[{76+4*m_}:{79+4*m_}], v65 offset:{128*m_}')
    k('s_lshl_b32 s80, s3, 6\ns_lshl_b32 s81, s85, 4\ns_add_u32 s80, s80, s81\nv_add_u32 v66, s80, v4\nv_mul_u32_u24 v66, 1280, v66')
    k('s_mul_i32 s80, s27, 160\ns_lshl_b32 s81, s84, 5\ns_add_u32 s80, s80, s81\nv_lshl_add_u32 v66, v3, 3, v66\nv_add_u32 v66, s80, v66')
    k('s_and_b32 s80, s22, 3\ns_cmp_lt_u32 s80, 2\ns_cselect_b32 s80, 0, 0x80000000\nv_or_b32 v67, s80, v66')
    k('s_waitcnt lgkmcnt(0)')
    for m_ in range(3):
        b = 16 + 16 * m_; x = 68 + 2 * m_; g = 76 + 4 * m_; xr = 88 + 4 * m_
        k(f'v_pk_add_f32 v[{b}:{b+1}], v[{b}:{b+1}], v[{b+4}:{b+5}]\nv_pk_add_f32 v[{b+2}:{b+3}], v[{b+2}:{b+3}], v[{b+6}:{b+7}]')
        k(f'v_pk_add_f32 v[{b+8}:{b+9}], v[{b+8}:{b+9}], v[{b+12}:{b+13}]\nv_pk_add_f32 v[{b+10}:{b+11}], v[{b+10}:{b+11}], v[{b+14}:{b+15}]')
        k(f'v_lshlrev_b32 v{xr}, 16, v{x}\nv_and_b32 v{xr+1}, 0xffff0000, v{x}\nv_lshlrev_b32 v{xr+2}, 16, v{x+1}\nv_and_b32 v{xr+3}, 0xffff0000, v{x+1}')
        k(f'v_pk_add_f32 v[{b}:{b+1}], v[{b}:{b+1}], v[{b+8}:{b+9}]\nv_pk_add_f32 v[{b+2}:{b+3}], v[{b+2}:{b+3}], v[{b+10}:{b+11}]')
        k(f'v_pk_fma_f32 v[{b}:{b+1}], v[{b}:{b+1}], v[{g}:{g+1}], v[{xr}:{xr+1}]')
        k(f'v_pk_fma_f32 v[{b+2}:{b+3}], v[{b+2}:{b+3}], v[{g+2}:{g+3}], v[{xr+2}:{xr+3}]')
        k(f'v_cvt_pk_bf16_f32 v{b}, v{b}, v{b+1}\nv_cvt_pk_bf16_f32 v{b+1}, v{b+2}, v{b+3}')
        k(f'buffer_store_dwordx2 v[{b}:{b+1}], v{66 if m_ < 2 else 67}, s[76:79], 0 offen offset:{64*m_}')
    if STAMPS: k('s_waitcnt vmcnt(0)')
    stamp_end(k, 2)
    k.label('L_k6_exit')
    k('s_endpgm')
    return k
```

```python
import sys, os
from asmlib import emit_file
import k1, k2, k3, k4, k5, k6
log = []
if os.environ.get('UNFUSED'):
    kernels = [k1.build_k1(), k2.build_k2(), k3.build_k3(), k4.build_k4()]
    launches = [('prep_kernel', k1.K1_GRID, 256, k1.K1_LDS), ('conv_kernel', k2.K2_GRID, 256, k2.K2_LDS), ('gemm1_kernel', k3.K3_GRID, 256, k3.K3_LDS), ('gemm2_kernel', k4.K4_GRID, 256, k4.K4_LDS)]
elif os.environ.get('K6', '1') == '1':
    kernels = [k1.build_k1(), k2.build_k2(), k6.build_k6()]
    launches = [('prep_kernel', k1.K1_GRID, 256, k1.K1_LDS), ('conv_kernel', k2.K2_GRID, 256, k2.K2_LDS), ('ffn_kernel', k6.K6_GRID, 512, k6.K6_LDS)]
else:
    kernels = [k1.build_k1(), k2.build_k2(), k5.build_k5()]
    launches = [('prep_kernel', k1.K1_GRID, 256, k1.K1_LDS), ('conv_kernel', k2.K2_GRID, 256, k2.K2_LDS), ('ffn_kernel', k5.K5_GRID, 256, k5.K5_LDS)]
emit_file(sys.argv[1] if len(sys.argv) > 1 else 'out.s', kernels, launches, data=k1.ktable_data(), log=log)
print('\n'.join(log[:80]))
```

```python
from asmlib import K
from common import *

N_LN, N_MOD, N_KG, N_WD = 64, 120, 640, 48
K1_GRID = N_LN + N_MOD + N_KG + N_WD
K1_LDS = 40960

def cmul(k, dst, x, y, tmp):
    k(f'v_pk_mul_f32 v[{tmp}:{tmp+1}], v[{x}:{x+1}], v[{y}:{y+1}] op_sel:[0,0] op_sel_hi:[0,1]')
    k(f'v_pk_fma_f32 v[{dst}:{dst+1}], v[{x}:{x+1}], v[{y}:{y+1}], v[{tmp}:{tmp+1}] op_sel:[1,1,0] op_sel_hi:[1,0,1] neg_lo:[1,0,0]')

def build_k1():
    k = K('prep_kernel')
    stamp_begin(k)
    k(f's_cmp_lt_u32 s2, {N_LN}\ns_cbranch_scc1 L_k1_ln')
    k(f's_cmp_lt_u32 s2, {N_LN+N_MOD}\ns_cbranch_scc1 L_k1_mod')
    k(f's_cmp_lt_u32 s2, {N_LN+N_MOD+N_KG}\ns_cbranch_scc1 L_k1_kg')
    k(f's_cmp_lt_u32 s2, {K1_GRID}\ns_cbranch_scc1 L_k1_wd')
    k('s_endpgm')

    k.label('L_k1_kg')
    k(f's_sub_u32 s3, s2, {N_LN+N_MOD}      ; d')
    load_ptr(k, 4, 'lar'); load_ptr(k, 8, 'aim'); load_ptr(k, 12, 'cr'); load_ptr(k, 16, 'ci'); load_ptr(k, 20, 'ldt'); load_ptr(k, 24, 'ws')
    k('s_getpc_b64 s[28:29]')
    k.label('L_k1_pc')
    k('s_add_u32 s28, s28, ktable-L_k1_pc\ns_addc_u32 s29, s29, 0')
    k('v_lshrrev_b32 v1, 6, v0')
    k('v_and_b32 v2, 63, v0            ; lane')
    k('v_readfirstlane_b32 s30, v1     ; wave')
    k('v_lshlrev_b32 v3, 4, v0         ; t*16')
    k('global_load_dwordx4 v[60:63], v3, s[28:29]')
    k('s_mul_i32 s31, s3, 384')
    k('v_lshlrev_b32 v4, 1, v0')
    k('v_add_u32 v4, s31, v4           ; d*384 + n*2')
    k('s_lshl_b32 s32, s3, 1')
    k('v_mov_b32 v5, s32')
    k('s_waitcnt lgkmcnt(0)')
    for s, n in ((4, 'lar'), (8, 'aim'), (12, 'cr'), (16, 'ci'), (20, 'ldt')):
        srd_fin(k, s, SZ[n])
    srd_fin(k, 24, 640 * 4096, WS_R)
    k('s_cmp_ge_u32 s30, 3\ns_cbranch_scc1 L_k1_kg_sync1')
    k('buffer_load_ushort v6, v5, s[20:23], 0 offen')
    k('buffer_load_ushort v7, v4, s[4:7], 0 offen')
    k('buffer_load_ushort v8, v4, s[8:11], 0 offen')
    k('buffer_load_ushort v9, v4, s[12:15], 0 offen')
    k('buffer_load_ushort v10, v4, s[16:19], 0 offen')
    k('s_mul_i32 s33, s30, 13568')
    k('v_lshlrev_b32 v11, 2, v2')
    for kk in range(16):
        k(f'v_xor_b32 v{64+kk}, {16*kk}, v11')
    for kk in range(16):
        k(f'v_add_u32 v{64+kk}, s33, v{64+kk}')
    k('v_and_b32 v12, 31, v2           ; m')
    k('v_lshrrev_b32 v13, 5, v2        ; g')
    k('v_and_b32 v14, 15, v12')
    k('v_xor_b32 v14, v14, v13')
    k('v_lshlrev_b32 v14, 4, v14       ; 16*(g ^ (m&15))')
    k('v_lshl_add_u32 v14, v12, 8, v14')
    k('v_add_u32 v14, s33, v14')
    k('s_waitcnt vmcnt(0)')
    stamp_mid(k, 0)
    k('v_lshlrev_b32 v6, 16, v6\nv_lshlrev_b32 v7, 16, v7\nv_lshlrev_b32 v8, 16, v8\nv_lshlrev_b32 v9, 16, v9\nv_lshlrev_b32 v10, 16, v10')
    k(f'v_mul_f32 v6, {LOG2E:#x}, v6\nv_mul_f32 v7, {LOG2E:#x}, v7')
    k('v_exp_f32 v6, v6\nv_exp_f32 v7, v7')
    k('v_cvt_pk_bf16_f32 v6, v6, v7')
    k('v_and_b32 v7, 0xffff0000, v6\nv_lshlrev_b32 v6, 16, v6')
    k('v_mul_f32 v7, v7, v6            ; are*dt')
    k(f'v_mul_f32 v7, {NLOG2E:#x}, v7    ; a2')
    k('v_mul_f32 v8, v8, v6            ; theta')
    k(f'v_mul_f32 v8, {INV2PI:#x}, v8    ; theta_r')
    k('v_add_f32 v6, v6, v6            ; 2dt')
    k('v_mul_f32 v16, v9, v6           ; Cbar.re')
    k('v_mul_f32 v17, v10, v6')
    k('v_sub_f32 v17, 0, v17')
    def direct(dst, p, sign, t0):
        k(f'v_mul_f32 v{t0}, {float(p)}, v7' if p in (1, 2, 4) else f'v_mul_f32 v{t0}, {hexf(p)}, v7')
        k(f'v_mul_f32 v{t0+1}, {hexf(sign*p)}, v8')
        k(f'v_exp_f32 v{t0}, v{t0}')
        k(f'v_fract_f32 v{t0+1}, v{t0+1}')
        k(f'v_cos_f32 v{dst}, v{t0+1}')
        k(f'v_sin_f32 v{dst+1}, v{t0+1}')
        k(f'v_mul_f32 v{dst}, v{dst}, v{t0}')
        k(f'v_mul_f32 v{dst+1}, v{dst+1}, v{t0}')
    direct(18, 1, -1, 24)
    direct(20, 256, -1, 26)
    direct(22, 8, +1, 28)
    ZB1, ZB256, W8 = 18, 20, 22
    ZB2, ZB4 = 30, 32
    A, B, T, L = 34, 36, 38, 40
    TA, TL = 42, 44
    C0 = 46
    rot = [0]
    def put(src, row, lo):
        t = C0 + (rot[0] % 8); rot[0] += 1
        k(f'v_cvt_pk_bf16_f32 v{t}, v{src}, v{src+1}')
        k(f'ds_write_b32 v{64 + (row & 15)}, v{t} offset:{row*256 + (5376 if lo else 0)}')
    hi = []
    hi.append(lambda: put(16, 0, False))
    hi.append(lambda: (cmul(k, A, 16, ZB1, TA), put(A, 1, False)))
    for m in range(2, 8):
        hi.append(lambda m=m: (cmul(k, A, A, ZB1, TA), put(A, m, False)))
    hi.append(lambda: cmul(k, ZB2, ZB1, ZB1, TA))
    hi.append(lambda: (cmul(k, B, 16, ZB256, TA), put(B, 8, False)))
    hi.append(lambda: cmul(k, ZB4, ZB2, ZB2, TA))
    hi.append(lambda: (cmul(k, T, B, ZB2, TA), put(T, 9, False)))
    hi.append(lambda: (cmul(k, T, T, ZB2, TA), put(T, 10, False)))
    hi.append(lambda: (cmul(k, T, T, ZB2, TA), put(T, 11, False)))
    hi.append(lambda: (cmul(k, B, B, ZB256, TA), put(B, 12, False)))
    hi.append(lambda: (cmul(k, T, B, ZB4, TA), put(T, 13, False)))
    hi.append(lambda: (cmul(k, B, B, ZB256, TA), put(B, 14, False)))
    hi.append(lambda: (cmul(k, T, B, ZB4, TA), put(T, 15, False)))
    for m in range(16, 21):
        hi.append(lambda m=m: (cmul(k, B, B, ZB256, TA), put(B, m, False)))
    lo = []
    lo.append(lambda: (k(f'v_mov_b32 v{L}, 1.0\nv_mov_b32 v{L+1}, 0'), put(L, 0, True)))
    lo.append(lambda: put(W8, 1, True))
    lo.append(lambda: (cmul(k, L, W8, W8, TL), put(L, 2, True)))
    for u in range(3, 32):
        lo.append(lambda u=u: (cmul(k, L, L, W8, TL), put(L, u, True)))
    i = j = 0
    while i < len(hi) or j < len(lo):
        if j < len(lo): lo[j](); j += 1
        if i < len(hi) and (i * len(lo) <= j * len(hi) or j >= len(lo)): hi[i](); i += 1
    k('s_waitcnt lgkmcnt(0)')
    stamp_mid(k, 1)
    for ks in range(8):
        k(f'v_xor_b32 v15, {32*ks}, v14')
        k(f'ds_read_b128 v[{24+8*(ks%4)}:{27+8*(ks%4)}], v15')
        k(f'ds_read_b128 v[{28+8*(ks%4)}:{31+8*(ks%4)}], v15 offset:5376')
        if ks >= 1:
            p = ks - 1
            k('s_waitcnt lgkmcnt(2)')
            k(f'v_mfma_f32_32x32x16_bf16 v[96:111], v[{24+8*(p%4)}:{27+8*(p%4)}], v[{28+8*(p%4)}:{31+8*(p%4)}], ' + ('0' if p == 0 else 'v[96:111]'))
    k('s_waitcnt lgkmcnt(0)')
    k('v_mfma_f32_32x32x16_bf16 v[96:111], v[48:51], v[52:55], v[96:111]')
    k('v_and_b32 v12, 31, v2\nv_lshrrev_b32 v13, 5, v2')
    k('v_lshlrev_b32 v12, 2, v12')
    k('v_lshl_add_u32 v12, v13, 9, v12')
    k('v_add_u32 v12, s33, v12')
    for j in range(3):
        for i in range(4):
            k(f'ds_write_b32 v12, v{96+4*j+i} offset:{(8*j+i)*128}')
    k.label('L_k1_kg_sync1')
    k('s_waitcnt lgkmcnt(0)\ns_barrier')
    stamp_mid(k, 2)
    k('v_cmp_gt_u32 vcc, 168, v0')
    k('s_and_saveexec_b64 s[34:35], vcc')
    k('s_cbranch_execz L_k1_kg_skip')
    k('ds_read_b128 v[24:27], v3\nds_read_b128 v[28:31], v3 offset:13568\nds_read_b128 v[32:35], v3 offset:27136')
    k('s_waitcnt lgkmcnt(0)')
    k('v_pk_add_f32 v[24:25], v[24:25], v[28:29]\nv_pk_add_f32 v[26:27], v[26:27], v[30:31]')
    k('v_pk_add_f32 v[24:25], v[24:25], v[32:33]\nv_pk_add_f32 v[26:27], v[26:27], v[34:35]')
    k('v_cvt_pk_bf16_f32 v24, v24, v25\nv_cvt_pk_bf16_f32 v25, v26, v27')
    k('v_lshlrev_b32 v12, 3, v0')
    k('ds_write_b64 v12, v[24:25] offset:4096')
    k.label('L_k1_kg_skip')
    k('s_mov_b64 exec, s[34:35]')
    k('s_waitcnt vmcnt(0) lgkmcnt(0)\ns_barrier')
    for q in range(4):
        k(f'v_and_b32 v{24+2*q}, 0xffff, v{60+q}\nv_lshrrev_b32 v{25+2*q}, 16, v{60+q}')
    for q in range(4):
        k(f'ds_read_u16 v{36+q}, v{24+2*q} offset:4096')
        k(f'ds_read_u16 v{40+q}, v{25+2*q} offset:4096')
    k('s_lshl_b32 s33, s3, 12')
    k('s_waitcnt lgkmcnt(0)')
    for q in range(4):
        k(f'v_lshl_or_b32 v{36+q}, v{40+q}, 16, v{36+q}')
    k(f'buffer_store_dwordx4 v[36:39], v3, s[24:27], s33 offen{WT}')
    if STAMPS: k('s_waitcnt vmcnt(0)')
    stamp_end(k, 0)
    k('s_endpgm')

    k.label('L_k1_ln')
    load_ptr(k, 4, 'u'); load_ptr(k, 8, 'ws'); load_ptr(k, 12, 'ws')
    k('v_lshrrev_b32 v1, 4, v0       ; rg')
    k('v_and_b32 v2, 15, v0          ; c')
    k('s_lshl_b32 s3, s2, 5          ; l0')
    k('v_add_u32 v3, s3, v1')
    k('v_mul_u32_u24 v4, 1280, v3')
    k('v_lshl_add_u32 v4, v2, 4, v4')
    k('s_mov_b32 s16, 20480')
    k('s_mov_b32 s17, 0x3f803f80')
    k('s_waitcnt lgkmcnt(0)')
    srd_fin(k, 4, SZ['u']); srd_fin(k, 8, 8192, WS_STATS); srd_fin(k, 12, 2621440, WS_XT)
    for p in range(2):
        for q in range(5):
            r = 16 + 4 * (5 * p + q)
            k(f'buffer_load_dwordx4 v[{r}:{r+3}], v4, s[4:7], {"s16" if p else "0"} offen offset:{256*q}')
    k('v_and_b32 v5, 3, v1\nv_lshrrev_b32 v6, 3, v1\nv_lshl_or_b32 v5, v6, 2, v5     ; f0')
    k('v_xor_b32 v5, v5, v2          ; c ^ f0')
    k('v_mul_u32_u24 v6, 1280, v1')
    k('v_xor_b32 v7, 8, v5')
    k('v_lshl_add_u32 v5, v5, 4, v6          ; p=0 addr')
    k('v_lshl_add_u32 v6, v7, 4, v6          ; p=1 addr - 20480')
    for p in range(2):
        k(f's_waitcnt vmcnt({5 if p == 0 else 0})')
        for q in range(5):
            r = 16 + 4 * (5 * p + q)
            k(f'ds_write_b128 v{5+p}, v[{r}:{r+3}] offset:{256*q + 20480*p}')
        for q in range(5):
            r = 16 + 4 * (5 * p + q)
            for i in range(4):
                first = (q == 0 and i == 0)
                k(f'v_dot2_f32_bf16 v{8+2*p}, v{r+i}, s17, ' + ('0' if first else f'v{8+2*p}'))
                k(f'v_dot2_f32_bf16 v{9+2*p}, v{r+i}, v{r+i}, ' + ('0' if first else f'v{9+2*p}'))
    for sh in (8, 4, 2, 1):
        for v in (8, 9, 10, 11):
            k(f'v_add_f32_dpp v{v}, v{v}, v{v} row_ror:{sh} row_mask:0xf bank_mask:0xf')
    for p in range(2):
        a, b = 8 + 2 * p, 9 + 2 * p
        k(f'v_mul_f32 v{a}, 0x3acccccd, v{a}          ; mean')
        k(f'v_mul_f32 v{b}, 0x3acccccd, v{b}')
        k(f'v_fma_f32 v{b}, -v{a}, v{a}, v{b}         ; var')
        k(f'v_max_f32 v{b}, 0, v{b}')
        k(f'v_cvt_pk_bf16_f32 v{b}, v{b}, v{b}\nv_lshlrev_b32 v{b}, 16, v{b}')
        k(f'v_add_f32 v{b}, 0x3727c5ac, v{b}')
        k(f'v_cvt_pk_bf16_f32 v{b}, v{b}, v{b}\nv_lshlrev_b32 v{b}, 16, v{b}')
        k(f'v_sqrt_f32 v{b}, v{b}')
        k(f'v_cvt_pk_bf16_f32 v{a}, v{a}, v{b}')
    k('v_lshlrev_b32 v7, 2, v3')
    k('v_cmp_eq_u32 vcc, 0, v2')
    k('s_and_saveexec_b64 s[18:19], vcc')
    k('s_cbranch_execz L_k1_ln_nost')
    k(f'buffer_store_dword v8, v7, s[8:11], 0 offen{WT}')
    k(f'buffer_store_dword v10, v7, s[8:11], 0 offen offset:64{WT}')
    k.label('L_k1_ln_nost')
    k('s_mov_b64 exec, s[18:19]')
    k('v_and_b32 v1, 63, v0          ; lane')
    k('v_lshrrev_b32 v2, 6, v0       ; w')
    k('v_lshrrev_b32 v3, 4, v1       ; grp')
    k('v_and_b32 v4, 15, v1          ; idx')
    k('v_lshrrev_b32 v5, 2, v4')
    k('v_and_b32 v6, 3, v4')
    k('v_lshl_add_u32 v7, v6, 3, v5  ; row = 8c + r')
    k('v_lshl_or_b32 v8, v6, 2, v5   ; f = r | c<<2')
    k('v_mul_u32_u24 v7, 1280, v7')
    k('v_and_b32 v9, 1, v3')
    k('v_lshl_add_u32 v7, v9, 3, v7')
    k('v_lshrrev_b32 v9, 1, v3')
    k('v_mul_u32_u24 v10, 20, v2')
    k('v_add_u32 v9, v9, v10         ; ch0')
    k('v_mul_u32_u24 v10, 40, v2\nv_add_u32 v10, v10, v3\nv_lshlrev_b32 v10, 14, v10')
    k('v_lshl_add_u32 v10, v5, 6, v10\nv_lshl_add_u32 v10, v6, 4, v10')
    k('s_lshl_b32 s16, s3, 3\nv_add_u32 v10, s16, v10')
    k('s_waitcnt lgkmcnt(0)\ns_barrier')
    for it in range(10):
        k(f'v_add_u32 v11, {2*it}, v9\nv_xor_b32 v11, v11, v8\nv_lshl_add_u32 v11, v11, 4, v7')
        r = 16 + 4 * it
        k(f'ds_read_b64_tr_b16 v[{r}:{r+1}], v11\nds_read_b64_tr_b16 v[{r+2}:{r+3}], v11 offset:5120')
    for it in range(10):
        r = 16 + 4 * it
        k(f's_mov_b32 s16, {it*65536}')
        k(f's_waitcnt lgkmcnt({min(15, 2*(9-it))})')
        k(f'buffer_store_dwordx4 v[{r}:{r+3}], v10, s[12:15], s16 offen{WT}')
    if STAMPS: k('s_waitcnt vmcnt(0)')
    stamp_end(k, 0)
    k('s_endpgm')

    k.label('L_k1_mod')
    load_ptr(k, 4, 'wmod'); load_ptr(k, 8, 'c'); load_ptr(k, 12, 'ws')
    k(f's_sub_u32 s3, s2, {N_LN}')
    k('s_lshr_b32 s16, s3, 2          ; cb\ns_and_b32 s17, s3, 3     ; kq')
    k('v_lshrrev_b32 v1, 4, v0       ; rg\nv_and_b32 v2, 15, v0    ; c')
    k('v_mul_u32_u24 v4, 7680, v1\nv_lshl_add_u32 v4, v2, 4, v4')
    k(f's_mul_i32 s18, s17, {160*7680}\ns_lshl_b32 s19, s16, 8\ns_add_u32 s18, s18, s19')
    k('s_mul_i32 s19, s17, 320\nv_lshlrev_b32 v5, 1, v1\nv_add_u32 v5, s19, v5')
    k('s_waitcnt lgkmcnt(0)')
    srd_fin(k, 4, SZ['wmod']); srd_fin(k, 8, SZ['c']); srd_fin(k, 12, 4 * 3840 * 4, WS_MODP)
    for p in range(10):
        k(f'buffer_load_ushort v{56+p}, v5, s[8:11], 0 offen offset:{32*p}')
    for p in range(10):
        k(f'buffer_load_dwordx4 v[{16+4*p}:{19+4*p}], v4, s[4:7], s18 offen')
        if p < 9: k('s_add_u32 s18, s18, 122880')
    k('s_waitcnt vmcnt(10)')
    for p in range(10):
        k(f'v_lshlrev_b32 v{56+p}, 16, v{56+p}')
    for p in range(10):
        k(f'v_mul_f32 v{66+p}, {NLOG2E:#x}, v{56+p}')
    for p in range(10):
        k(f'v_exp_f32 v{66+p}, v{66+p}')
    for p in range(10):
        k(f'v_add_f32 v{66+p}, 1.0, v{66+p}')
    for p in range(10):
        k(f'v_rcp_f32 v{66+p}, v{66+p}')
    for p in range(10):
        k(f'v_mul_f32 v{56+p}, v{56+p}, v{66+p}')
    for p in range(10):
        k(f'v_cvt_pk_bf16_f32 v{56+p}, v{56+p}, 0        ; (s,0)')
    for p in range(10):
        k(f'v_lshlrev_b32 v{66+p}, 16, v{56+p}           ; (0,s)')
    for p in range(10):
        k(f's_waitcnt vmcnt({9-p})')
        for i in range(4):
            k(f'v_dot2_f32_bf16 v{76+2*i}, v{16+4*p+i}, v{56+p}, ' + ('0' if p == 0 else f'v{76+2*i}'))
            k(f'v_dot2_f32_bf16 v{77+2*i}, v{16+4*p+i}, v{66+p}, ' + ('0' if p == 0 else f'v{77+2*i}'))
    k('v_lshlrev_b32 v6, 5, v0')
    k('ds_write_b128 v6, v[76:79]\nds_write_b128 v6, v[80:83] offset:16')
    k('s_waitcnt lgkmcnt(0)\ns_barrier')
    k('v_cmp_gt_u32 vcc, 128, v0')
    k('s_and_saveexec_b64 s[20:21], vcc')
    k('s_cbranch_execz L_k1_mod_end')
    k('v_lshlrev_b32 v6, 2, v0')
    for rg in range(16):
        k(f'ds_read_b32 v{16+rg}, v6 offset:{rg*512}')
    k('s_waitcnt lgkmcnt(0)')
    for st in (8, 4, 2, 1):
        for i in range(st):
            k(f'v_add_f32 v{16+i}, v{16+i}, v{16+i+st}')
    k('s_mul_i32 s19, s17, 15360\ns_lshl_b32 s22, s16, 9\ns_add_u32 s19, s19, s22')
    k(f'buffer_store_dword v16, v6, s[12:15], s19 offen{WT}')
    k.label('L_k1_mod_end')
    k('s_mov_b64 exec, s[20:21]')
    if STAMPS: k('s_waitcnt vmcnt(0)')
    stamp_end(k, 0)
    k('s_endpgm')
    k.label('L_k1_wd')
    load_ptr(k, 4, 'wd'); load_ptr(k, 8, 'ws')
    k(f's_sub_u32 s3, s2, {N_LN+N_MOD+N_KG}      ; kappa')
    k('v_and_b32 v1, 63, v0\nv_lshrrev_b32 v2, 6, v0\nv_lshlrev_b32 v3, 4, v1\nv_readfirstlane_b32 s16, v2')
    k('s_mul_i32 s17, s3, 40960')
    k('s_mul_i32 s18, s16, 10240\ns_add_u32 s17, s17, s18')
    k('s_waitcnt lgkmcnt(0)')
    srd_fin(k, 4, SZ['wd'])
    k(f's_add_u32 s12, s8, {WS_WD}\ns_addc_u32 s13, s9, 0\ns_mov_b32 s14, 1966080\ns_mov_b32 s15, {SRD3:#x}')
    for q in range(10):
        k(f's_add_u32 m0, s18, {q*1024}')
        k(f's_add_u32 s19, s17, {q*1024}')
        k('buffer_load_dwordx4 v3, s[4:7], s19 offen lds')
    k(f's_add_u32 s20, s8, {WS_FLAGS}\ns_addc_u32 s21, s9, 0\ns_mov_b32 s22, {WS_SP - WS_FLAGS + 327680}\ns_mov_b32 s23, {SRD3:#x}')
    k('v_mov_b32 v8, 0\nv_mov_b32 v9, 0\nv_mov_b32 v10, 0\nv_mov_b32 v11, 0\nv_lshlrev_b32 v4, 4, v0')
    k('s_cmp_lg_u32 s3, 0\ns_cbranch_scc1 L_k1_wd_nz')
    k(f'buffer_store_dwordx4 v[8:11], v4, s[20:23], 0 offen{WT}')
    k.label('L_k1_wd_nz')
    k('s_cmp_ge_u32 s3, 40\ns_cbranch_scc1 L_k1_wd_nz2')
    k(f's_lshl_b32 s26, s3, 13\ns_add_u32 s26, s26, {WS_SP - WS_FLAGS}')
    k(f'buffer_store_dwordx4 v[8:11], v4, s[20:23], s26 offen{WT}')
    k('s_add_u32 s26, s26, 4096')
    k(f'buffer_store_dwordx4 v[8:11], v4, s[20:23], s26 offen{WT}')
    k.label('L_k1_wd_nz2')
    k('v_lshrrev_b32 v5, 4, v1\nv_and_b32 v6, 15, v1\nv_lshrrev_b32 v7, 2, v6\nv_and_b32 v6, 3, v6')
    k('v_lshrrev_b32 v12, 1, v5\nv_lshlrev_b32 v12, 4, v12\nv_and_b32 v13, 1, v5\nv_lshl_add_u32 v12, v13, 2, v12\nv_add_u32 v12, v12, v7')
    k('v_mul_u32_u24 v12, 1280, v12\nv_lshl_add_u32 v12, v6, 3, v12')
    k('s_mul_i32 s24, s16, 320\nv_add_u32 v12, s24, v12')
    k('s_mul_i32 s24, s16, 96\ns_add_u32 s24, s24, s3\ns_mul_i32 s24, s24, 5120')
    k('s_waitcnt vmcnt(0)\ns_barrier')
    for b in range(2):
        for dt in range(5):
            r = 16 + 4 * (5 * b + dt)
            o = 160 * b + 32 * dt
            k(f'ds_read_b64_tr_b16 v[{r}:{r+1}], v12 offset:{o}\nds_read_b64_tr_b16 v[{r+2}:{r+3}], v12 offset:{o + 8*1280}')
    for b in range(2):
        for dt in range(5):
            r = 16 + 4 * (5 * b + dt)
            k(f's_waitcnt lgkmcnt({min(15, 2*(9 - 5*b - dt))})')
            k(f's_add_u32 s25, s24, {b*48*5120 + dt*1024}')
            k(f'buffer_store_dwordx4 v[{r}:{r+3}], v3, s[12:15], s25 offen{WT}')
    if STAMPS: k('s_waitcnt vmcnt(0)')
    stamp_end(k, 0)
    k('s_endpgm')
    return k

def hexf(x):
    import struct
    return hex(struct.unpack('<I', struct.pack('<f', float(x)))[0])

def ktable_data():
    t = ktable()
    s = '.p2align 8\n.type ktable,@object\nktable:\n'
    for i in range(0, 2048, 16):
        s += '.short ' + ', '.join(str(x) for x in t[i:i + 16]) + '\n'
    s += '.size ktable, 4096\n'
    return s
```

```python
from asmlib import K, Q
from common import *
import os, struct
from collections import deque

K5_GRID = 256
NS = 7
STG = 20480
TBL = NS * STG
X2OFF = TBL + 1536
GBOFF = X2OFF + 10240
DUMMY = GBOFF + 320
K5_LDS = DUMMY + 1024 + 16
def f2h(x): return hex(struct.unpack('<I', struct.pack('<f', x))[0])
GK1 = -2.302208198144325
GK2 = GK1 * 0.044715
NSP = 10
SPIN_MAX = 400000
SS = int(os.environ.get('STAMPSET', '1'))
BUDGET = int(os.environ.get('BUDGET', '5'))
WDEPI = os.environ.get('WDEPI', '0') == '1'

def lines(s): return [l.strip() for l in s.split('\n') if l.strip()]

def build_k5():
    k = K('ffn_kernel')
    def stamp(setno, i):
        if SS == setno: stamp_mid(k, i)
    vm = Q(k, 'vmcnt', 63); lg = Q(k, 'lgkmcnt', 15)
    side = deque()
    def job(text):
        for l in lines(text): side.append(('i', l))
    def jobvm(text, tag):
        ls = lines(text)
        for l in ls[:-1]: side.append(('i', l))
        side.append(('vm', ls[-1], tag))
    def joblg(text, tag): side.append(('lg', text, tag))
    def pull(n):
        while n > 0 and side:
            it = side.popleft()
            if it[0] == 'i':
                k(it[1]); n -= 1
                while side and side[0][0] == 'i' and side[0][1].split()[0] in ('s_addc_u32', 's_subb_u32', 's_cselect_b32', 's_cselect_b64'):
                    k(side.popleft()[1]); n -= 1
            elif it[0] == 'vm': vm.issue(it[1], it[2]); n -= 2
            elif it[0] == 'lg': lg.issue(it[1], it[2]); n -= 1
            elif it[0] == 'wvm': vmwait_tag(it[1])
            elif it[0] == 'call': it[1]()
    def flush(): pull(1 << 30)

    stamp_begin(k)
    k(f's_cmp_ge_u32 s2, {K5_GRID}\ns_cbranch_scc1 L_k5_exit')
    k('s_load_dwordx2 s[4:5], s[0:1], 120')
    k('s_load_dwordx2 s[82:83], s[0:1], 104       ; out')
    k('v_lshrrev_b32 v2, 6, v0\nv_and_b32 v1, 63, v0\nv_readfirstlane_b32 s22, v2     ; w')
    k('s_and_b32 s80, s2, 7\ns_lshr_b32 s81, s2, 3')
    k('s_and_b32 s20, s80, 1\ns_lshl_b32 s20, s20, 3\ns_and_b32 s21, s81, 7\ns_add_u32 s20, s20, s21      ; rb')
    k('s_lshr_b32 s21, s80, 1\ns_lshl_b32 s21, s21, 2\ns_lshr_b32 s27, s81, 3\ns_add_u32 s21, s21, s27    ; fb')
    k('s_lshr_b32 s3, s80, 1\ns_and_b32 s3, s3, 1\ns_lshl_b32 s6, s20, 1\ns_add_u32 s3, s3, s6')
    k('s_lshr_b32 s6, s80, 2\ns_lshl_b32 s6, s6, 2\ns_add_u32 s27, s27, s6                               ; db')
    k('v_lshrrev_b32 v3, 4, v1\nv_and_b32 v4, 15, v1')
    k('v_lshlrev_b32 v5, 2, v3\nv_xor_b32 v5, v5, v4\nv_lshlrev_b32 v5, 4, v5\nv_lshl_add_u32 v5, v3, 12, v5')
    k('s_lshl_b32 s6, s20, 8\nv_add_u32 v5, s6, v5\nv_add_u32 v6, 16384, v5\nv_lshlrev_b32 v7, 4, v1')
    k('s_lshr_b32 s23, s22, 1          ; wi\ns_and_b32 s24, s22, 1      ; wj')
    k(f's_lshl_b32 s80, s21, 1\ns_cmp_lt_u32 s21, {NSP}\ns_cselect_b32 s81, 0, 1\ns_add_u32 s80, s80, s81')
    k('s_cmp_ge_u32 s80, 20\ns_cselect_b32 s81, 20, 0\ns_sub_u32 s80, s80, s81          ; st = s0')
    k('s_lshl_b32 s84, s22, 15         ; x2 const = w*32768')
    k('s_mul_i32 s85, s23, 96\ns_mul_i32 s81, s21, 6\ns_add_u32 s85, s85, s81\ns_mul_i32 s81, s24, 3\ns_add_u32 s85, s85, s81\ns_lshl_b32 s85, s85, 10    ; W const')
    def soff(j):
        return (f's_mul_i32 s{36+j}, s80, 131072\ns_mul_i32 s{56+j}, s80, 196608\n'
                f's_add_u32 s{36+j}, s{36+j}, s84\ns_add_u32 s{56+j}, s{56+j}, s85\n'
                's_add_u32 s80, s80, 1\ns_cmp_eq_u32 s80, 20\ns_cselect_b32 s80, 0, s80')
    PRE = NS - 2
    k(soff(0))
    k('s_lshl_b32 s6, s22, 11\ns_mul_i32 s7, s22, 3072\ns_add_u32 s7, s7, 8192')
    k(soff(1))
    k('s_waitcnt lgkmcnt(0)')
    k(f's_add_u32 s8, s4, {WS_X2T}\ns_addc_u32 s9, s5, 0\ns_mov_b32 s10, 2621440\ns_mov_b32 s11, {SRD3:#x}')
    k(f's_add_u32 s12, s4, {WS_WP}\ns_addc_u32 s13, s5, 0\ns_mov_b32 s14, 3932160\ns_mov_b32 s15, {SRD3:#x}')
    def dma_ops(j):
        sl = (j % NS) * STG
        if os.environ.get('EXP_HOT'):
            return [f's_add_u32 m0, s6, {sl}\ns_nop 0\nbuffer_load_dwordx4 v5, s[8:11], s36 offen lds',
                f's_add_u32 m0, s6, {sl+1024}\ns_nop 0\nbuffer_load_dwordx4 v6, s[8:11], s36 offen lds',
                f's_add_u32 m0, s7, {sl}\ns_nop 0\nbuffer_load_dwordx4 v7, s[12:15], s56 offen lds',
                f'buffer_load_dwordx4 v7, s[12:15], s56 offen offset:1024 lds',
                f'buffer_load_dwordx4 v7, s[12:15], s56 offen offset:2048 lds']
        return [f's_add_u32 m0, s6, {sl}\ns_nop 0\nbuffer_load_dwordx4 v5, s[8:11], s{36+j} offen lds',
                f's_add_u32 m0, s6, {sl+1024}\ns_nop 0\nbuffer_load_dwordx4 v6, s[8:11], s{36+j} offen lds',
                f's_add_u32 m0, s7, {sl}\ns_nop 0\nbuffer_load_dwordx4 v7, s[12:15], s{56+j} offen lds',
                f'buffer_load_dwordx4 v7, s[12:15], s{56+j} offen offset:1024 lds',
                f'buffer_load_dwordx4 v7, s[12:15], s{56+j} offen offset:2048 lds']
    for j in range(2, 20): job(soff(j))
    job('v_mov_b32 v29, 0x80000000')
    job('v_lshrrev_b32 v18, 2, v4\nv_and_b32 v19, 3, v4\nv_lshrrev_b32 v20, 1, v3\nv_and_b32 v21, 1, v3')
    job('v_lshl_add_u32 v22, v20, 3, v18\nv_lshlrev_b32 v22, 8, v22')
    job('v_lshrrev_b32 v23, 1, v19\nv_lshl_add_u32 v23, v21, 1, v23\nv_lshl_add_u32 v22, v23, 4, v22')
    job('v_and_b32 v23, 1, v19\nv_lshl_add_u32 v22, v23, 3, v22')
    job('s_lshl_b32 s25, s23, 1\ns_add_u32 s25, s25, s24\ns_xor_b32 s26, s25, 1')
    job('v_xor_b32 v23, s25, v18\nv_lshl_add_u32 v8, v23, 6, v22')
    job('v_xor_b32 v23, s26, v18\nv_lshl_add_u32 v9, v23, 6, v22')
    job('s_mul_i32 s81, s24, 3072\ns_add_u32 s81, s81, 8192\nv_add_u32 v10, s81, v7')
    for st_ in (1, 2):
        for i in range(3): job(f'v_add_u32 v{8+3*st_+i}, {61440*st_}, v{8+i}')
    job(f's_add_u32 s16, s4, {WS_ACT}\ns_addc_u32 s17, s5, 0\ns_mov_b32 s18, 6291456\ns_mov_b32 s19, {SRD3:#x}')
    job(f's_add_u32 s28, s4, {WS_FLAGS}\ns_addc_u32 s29, s5, 0\ns_mov_b32 s30, {WS_SP - WS_FLAGS + 327680}\ns_mov_b32 s31, {SRD3:#x}')
    job(f's_add_u32 s32, s4, {WS_WD}\ns_addc_u32 s33, s5, 0\ns_mov_b32 s34, 1966080\ns_mov_b32 s35, {SRD3:#x}')
    nd = 0
    for j in range(PRE):
        for o in dma_ops(j):
            vm.issue(o, ('st', j)); nd += 1
            pull(7 if j == 0 or nd < 20 else 7)
    flush()
    k('s_mul_i32 s84, s27, 48\ns_add_u32 s84, s84, s22\ns_mul_i32 s84, s84, 5120')
    stamp(1, 3)
    n = len(vm.ops) - 1 - max(i for i, t in enumerate(vm.ops) if t == ('st', 0))
    k(f's_waitcnt vmcnt({n})'); vm.done = max(vm.done, len(vm.ops) - n)
    k('s_barrier')
    stamp(1, 0)
    NOCOUNT = ('spst',)
    def vmwait_tag(tag):
        idx = max(i for i, t in enumerate(vm.ops) if t == tag)
        if idx < vm.done: return
        n = min(63, sum(1 for t in vm.ops[idx+1:] if t not in NOCOUNT))
        k(f's_waitcnt vmcnt({n})'); vm.done = max(vm.done, idx + 1)
    def vmwait_stage(j): vmwait_tag(('st', j))
    S0, S1 = 32, 52
    ACC = 96
    def acc(lt2, t): return ACC + 48 * lt2 + 16 * t
    def reads(s, j, ksl):
        sl = j % NS; base = 8 + 3 * (sl // 3); o = (sl % 3) * STG
        xo = o + ksl * 4096; wo = o + ksl * 6144
        tg = lambda n: (n, j, ksl)
        return [(f'ds_read_b64_tr_b16 v[{s}:{s+1}], v{base} offset:{xo}', tg('X0')),
                (f'ds_read_b64_tr_b16 v[{s+2}:{s+3}], v{base} offset:{xo+1024}', tg('X0')),
                (f'ds_read_b128 v[{s+8}:{s+11}], v{base+2} offset:{wo}', tg('W0')),
                (f'ds_read_b64_tr_b16 v[{s+4}:{s+5}], v{base+1} offset:{xo}', tg('X1')),
                (f'ds_read_b64_tr_b16 v[{s+6}:{s+7}], v{base+1} offset:{xo+1024}', tg('X1')),
                (f'ds_read_b128 v[{s+12}:{s+15}], v{base+2} offset:{wo+1024}', tg('W1')),
                (f'ds_read_b128 v[{s+16}:{s+19}], v{base+2} offset:{wo+2048}', tg('W2'))]
    def lgwait(tag):
        idx = max(i for i, t in enumerate(lg.ops) if t == tag)
        if idx < lg.done: return 0
        n = min(15, len(lg.ops) - 1 - idx)
        k(f's_waitcnt lgkmcnt({n})'); lg.done = max(lg.done, len(lg.ops) - n)
        return 1
    RD = os.environ.get('RD', 'C')
    def phase(s, j, ksl, first, nxt_reads, dm):
        order = [(0, 0), (0, 1), (1, 0), (1, 1), (2, 0), (2, 1)]
        rd_after = {'A': [[0, 1], [2, 3], [4, 5, 6], [], [], []], 'B': [[0, 1, 2], [3, 4], [5, 6], [], [], []], 'C': [[0, 1], [2], [3, 4], [5], [6], []]}[RD]
        pre = {}
        for g, (txt, tag) in dm.items():
            ls = [l for l in lines(txt) if l != 's_nop 0']
            pre[g] = (ls[:-1] if not ls[-1].startswith('s_') else None, ls)
        for i, (t, lt2) in enumerate(order):
            lgwait((f'W{t}', j, ksl)); lgwait((f'X{lt2}', j, ksl))
            a = acc(lt2, t)
            c = '0' if first else f'v[{a}:{a+15}]'
            k(f'v_mfma_f32_32x32x16_bf16 v[{a}:{a+15}], v[{s+8+4*t}:{s+11+4*t}], v[{s+4*lt2}:{s+3+4*lt2}], {c}')
            used = 0
            if i in dm:
                ls = [l for l in lines(dm[i][0]) if l != 's_nop 0']
                vi = max(q for q, l in enumerate(ls) if l.startswith('buffer_'))
                if i == 0 or not os.environ.get('PREM0', '1') == '1':
                    for l in ls[:vi]: k(l)
                    if vi: k('s_nop 0')
                vm.issue(ls[vi], dm[i][1])
                for l in ls[vi+1:]: k(l)
                used += 4
            if nxt_reads:
                for ri in rd_after[i]:
                    lg.issue(*nxt_reads[ri]); used += 1
            if (i + 1) in dm and os.environ.get('PREM0', '1') == '1':
                ls = [l for l in lines(dm[i + 1][0]) if l != 's_nop 0']
                vi = max(q for q, l in enumerate(ls) if l.startswith('buffer_'))
                pull(max(0, BUDGET - used - vi))
                for l in ls[:vi]: k(l); used += 1
            else:
                pull(max(0, BUDGET - used))
    def stat_ops(s, first):
        ops = []
        for i in range(4):
            a, b = 88 + 2 * (i & 1), 89 + 2 * (i & 1)
            ops.append(f'v_lshlrev_b32 v{a}, 16, v{s+i}')
            ops.append(f'v_and_b32 v{b}, 0xffff0000, v{s+i}')
            if first and i == 0:
                ops += [f'v_mov_b32 v84, v{a}', f'v_mov_b32 v85, v{b}', f'v_mul_f32 v86, v{a}, v{a}', f'v_mul_f32 v87, v{b}, v{b}']
            else:
                ops += [f'v_add_f32 v84, v84, v{a}', f'v_add_f32 v85, v85, v{b}', f'v_fma_f32 v86, v{a}, v{a}, v86', f'v_fma_f32 v87, v{b}, v{b}, v87']
        return ops
    wd_list = [(i, dt) for i in range(12) for dt in range(5)]
    k_wd = {'n': 0}
    def wd_load():
        i, dt = wd_list[k_wd['n']]; k_wd['n'] += 1
        pre = f's_add_u32 s85, s84, {i*4*5120}\n' if dt == 0 else ''
        if dt < 4:
            return (pre + f'buffer_load_dwordx4 a[{20*i+4*dt}:{20*i+4*dt+3}], v7, s[32:35], s85 offen offset:{1024*dt}', 'wd')
        return (f's_add_u32 s85, s85, 4096\nbuffer_load_dwordx4 a[{20*i+4*dt}:{20*i+4*dt+3}], v7, s[32:35], s85 offen', 'wd')
    def with_side(ops):
        for o in ops: side.append(('i', o))
    NVAR = int(os.environ.get('NVAR', '1'))
    GAPS = {0: [0, 2, 4, 7, 9], 1: [0, 3, 5, 7, 10], 2: [1, 3, 6, 8, 10], 3: [1, 4, 6, 9, 11]}
    import copy
    def mainloop(wv):
        for r in reads(S0, 0, 0): lg.issue(*r)
        for j in range(20):
            d = [(o, ('st', j + PRE)) for o in dma_ops(j + PRE)] if j + PRE < 20 else [wd_load() for _ in range(5)]
            if os.environ.get('EXP_NODMA') and j + PRE < 20: d = [('s_nop 0', ('st', j + PRE)) for _ in range(5)]
            gaps = GAPS[wv] if NVAR == 4 else [1, 3, 7, 9, 11]
            dmC = {g: d[q] for q, g in enumerate(gaps) if g < 6}
            dmE = {g - 6: d[q] for q, g in enumerate(gaps) if g >= 6}
            if j == 3:
                job(f's_add_u32 s76, s4, {WS_PQ}\ns_addc_u32 s77, s5, 0\ns_mov_b32 s78, 122880\ns_mov_b32 s79, {SRD3:#x}')
                job('s_mul_i32 s80, s21, 6*256\nv_min_u32 v17, 191, v0\nv_lshlrev_b32 v17, 3, v17\nv_add_u32 v17, s80, v17')
                for dq in range(5):
                    jobvm(f's_mov_b32 s80, {dq*96*256}\nbuffer_load_dwordx2 v[{224+2*dq}:{225+2*dq}], v17, s[76:79], s80 offen', 'pq')
                job(f's_add_u32 s76, s4, {WS_MODP}\ns_addc_u32 s77, s5, 0\ns_mov_b32 s78, 61440')
                job('s_mul_i32 s80, s27, 320\nv_min_u32 v18, 79, v0\nv_lshlrev_b32 v18, 2, v18\nv_add_u32 v17, s80, v18')
                for kq in range(4):
                    jobvm(f's_mov_b32 s80, {kq*15360 + 5*2560}\nbuffer_load_dword v{234+kq}, v17, s[76:79], s80 offen', 'pq')
            if j == 5:
                job('v_lshrrev_b32 v17, 3, v1\nv_and_b32 v18, 7, v1\nv_lshlrev_b32 v17, 12, v17\nv_lshl_add_u32 v17, v18, 4, v17')
                job('s_mul_i32 s76, s27, 80*4096\ns_lshl_b32 s81, s3, 7\ns_add_u32 s76, s76, s81')
                job('s_lshl_b32 s77, s22, 15\ns_add_u32 s77, s77, s76')
                job(f's_lshl_b32 s78, s22, 10\ns_add_u32 s78, s78, {X2OFF}')
                side.append(('call', lambda: (k('s_mov_b32 m0, s78\ns_nop 0'), vm.issue('buffer_load_dwordx4 v17, s[8:11], s77 offen lds', 'x2r'))))
                job(f's_add_u32 s77, s77, {32*4096}\ns_add_u32 s78, s78, 4096')
                side.append(('call', lambda: (k('s_mov_b32 m0, s78\ns_nop 0'), vm.issue('buffer_load_dwordx4 v17, s[8:11], s77 offen lds', 'x2r'))))
                job(f's_and_b32 s81, s22, 1\ns_add_u32 s81, s81, 8\ns_lshl_b32 s78, s81, 10\ns_add_u32 s78, s78, {X2OFF}\ns_lshl_b32 s81, s81, 15\ns_add_u32 s77, s76, s81')
                side.append(('call', lambda: (k('s_mov_b32 m0, s78\ns_nop 0'), vm.issue('buffer_load_dwordx4 v17, s[8:11], s77 offen lds', 'x2r'))))
            if j == 10:
                side.append(('wvm', 'pq'))
                for dq in range(1, 5): job(f'v_pk_add_f32 v[224:225], v[224:225], v[{224+2*dq}:{225+2*dq}]')
                job('v_add_f32 v234, v234, v235\nv_add_f32 v236, v236, v237\nv_add_f32 v234, v234, v236')
                job('v_cvt_pk_bf16_f32 v234, v234, v234\nv_lshlrev_b32 v234, 16, v234')
                job(f'v_lshlrev_b32 v17, 2, v0\nv_add_u32 v18, {GBOFF}, v17\nv_add_u32 v17, {TBL}, v17\nv_mov_b32 v19, {DUMMY}')
                job('v_cmp_gt_u32 vcc, 192, v0\nv_cndmask_b32 v17, v19, v17, vcc\nv_cmp_gt_u32 vcc, 80, v0\nv_cndmask_b32 v18, v19, v18, vcc')
                joblg('ds_write_b32 v17, v224', 'tbl'); joblg('ds_write_b32 v17, v225 offset:768', 'tbl'); joblg('ds_write_b32 v18, v234', 'tbl')
            if j > 0:
                if j - 1 < 2: with_side(stat_ops(S1, False))
                phase(S1, j - 1, 1, False, reads(S0, j, 0), dmC)
                if j - 1 < 2 or j == 5: flush()
            else:
                [vm.issue(*dmC[g]) for g in sorted(dmC)]
            if j == 2:
                job('v_add_f32 v84, v84, v85\nv_add_f32 v86, v86, v87\nv_mov_b32 v88, v84\nv_mov_b32 v89, v86')
                job(f's_mul_i32 s80, s20, {NSP}\ns_add_u32 s80, s80, s21\ns_lshl_b32 s80, s80, 11')
                job('v_permlane32_swap_b32 v84, v88\nv_permlane32_swap_b32 v86, v89')
                job(f's_lshl_b32 s81, s25, 9\ns_add_u32 s80, s80, s81\ns_add_u32 s80, s80, {WS_SP - WS_FLAGS}')
                job('v_add_f32 v84, v84, v88\nv_add_f32 v85, v86, v89\nv_mov_b32 v86, 1\nv_mov_b32 v87, 0')
                job(f's_cmp_lt_u32 s21, {NSP}\ns_cselect_b32 s81, 32, 0')
                job('v_lshlrev_b32 v88, 4, v1\nv_cmp_gt_u32 vcc, s81, v1\nv_cndmask_b32 v88, v29, v88, vcc')
                jobvm('buffer_store_dwordx4 v[84:87], v88, s[28:31], s80 offen sc0 sc1', 'spst')
            if j == 16:
                job('v_and_b32 v88, 31, v1\nv_lshlrev_b32 v88, 4, v88')
                job('s_lshl_b32 s80, s25, 9\ns_lshl_b32 s81, s26, 9\nv_mov_b32 v89, s80\nv_mov_b32 v91, s81')
                job('v_cmp_gt_u32 vcc, 32, v1\nv_cndmask_b32 v89, v91, v89, vcc\nv_add_u32 v28, v88, v89')
                job(f's_mul_i32 s79, s20, {NSP*2048}\ns_add_u32 s79, s79, {WS_SP - WS_FLAGS}\ns_mov_b32 s80, s79')
                for p in range(NSP):
                    jobvm(f'buffer_load_dwordx4 v[{192+4*p}:{195+4*p}], v28, s[28:31], s80 offen offset:{(p%2)*2048} sc0 sc1', 'spld')
                    if p % 2 == 1: job('s_add_u32 s80, s80, 4096')
            if j < 2: with_side(stat_ops(S0, j == 0))
            phase(S0, j, 0, j == 0, reads(S1, j, 1), dmE)
            if j < 2: flush()
            if j < 19:
                vmwait_stage(j + 1)
                if not os.environ.get('EXP_NOBAR'): k('s_barrier')
                if j in (2, 7, 12, 17): stamp(3, (2, 7, 12, 17).index(j))
        flush()
        extra = [wd_load() for _ in range(3)]
        phase(S1, 19, 1, False, None, {0: extra[0], 2: extra[1], 4: extra[2]})

    state0 = (list(vm.ops), vm.done, list(lg.ops), lg.done, k_wd['n'])
    ends = []
    if NVAR == 4:
        k('s_cmp_eq_u32 s22, 1\ns_cbranch_scc1 L_k5_var1\ns_cmp_eq_u32 s22, 2\ns_cbranch_scc1 L_k5_var2\ns_cmp_eq_u32 s22, 3\ns_cbranch_scc1 L_k5_var3')
    for wv in range(NVAR):
        vm.ops, vm.done, lg.ops, lg.done, k_wd['n'] = list(state0[0]), state0[1], list(state0[2]), state0[3], state0[4]
        if wv: k.label(f'L_k5_var{wv}')
        mainloop(wv)
        ends.append((list(vm.ops), vm.done, list(lg.ops), lg.done, k_wd['n']))
        if wv < NVAR - 1: k('s_branch L_k5_join')
    if NVAR > 1: k.label('L_k5_join')
    assert all(e[4] == ends[0][4] for e in ends)
    after = min(sum(1 for t in e[0][max(i for i, t in enumerate(e[0]) if t == 'spld') + 1:] if t not in NOCOUNT) for e in ends)
    vm.ops = ['spld'] + ['x'] * after; vm.done = 0
    lg.ops = []; lg.done = 0
    stamp(1, 1)
    k('v_lshrrev_b32 v36, 5, v1\nv_lshlrev_b32 v36, 4, v36')
    k(f's_mul_i32 s80, s24, 384\ns_add_u32 s80, s80, {TBL}\nv_add_u32 v36, s80, v36')
    PBs = [40, 192 + 32]
    def pq_reads(t, PB):
        for j in range(4):
            k(f'ds_read_b128 v[{PB+4*j}:{PB+4*j+3}], v36 offset:{128*t + 32*j}')
            k(f'ds_read_b128 v[{PB+16+4*j}:{PB+16+4*j+3}], v36 offset:{768 + 128*t + 32*j}')
    k('s_mov_b32 s78, 0')
    pq_reads(0, 40)
    vmwait_tag('spld')
    k.label('L_k5_st_chk')
    k('v_and_b32 v30, v194, v198')
    for p in range(2, NSP): k(f'v_and_b32 v30, v30, v{194+4*p}')
    k('v_cmp_ne_u32 vcc, 1, v30')
    k('s_nop 4\ns_cbranch_vccz L_k5_st_ok')
    k('s_add_u32 s78, s78, 1')
    k(f's_cmp_gt_u32 s78, {SPIN_MAX}\ns_cbranch_scc1 L_k5_st_ok')
    k('s_mov_b32 s80, s79')
    for p in range(NSP):
        k(f'buffer_load_dwordx4 v[{192+4*p}:{195+4*p}], v28, s[28:31], s80 offen offset:{(p%2)*2048} sc0 sc1')
        if p % 2 == 1: k('s_add_u32 s80, s80, 4096')
    k('s_waitcnt vmcnt(0)\ns_branch L_k5_st_chk')
    k.label('L_k5_st_ok')
    for p in range(1, NSP):
        k(f'v_pk_add_f32 v[192:193], v[192:193], v[{192+4*p}:{193+4*p}]')
    k('v_mul_f32 v30, 0x3acccccd, v192\nv_mul_f32 v31, 0x3acccccd, v193')
    k('s_lshl_b32 s80, s20, 2\ns_add_u32 s81, s80, s26\ns_add_u32 s80, s80, s25')
    k('v_fma_f32 v31, -v30, v30, v31\nv_max_f32 v31, 0, v31')
    k('s_mul_i32 s76, s21, 6\ns_mul_i32 s77, s24, 3\ns_add_u32 s76, s76, s77         ; T0')
    k('v_cvt_pk_bf16_f32 v30, v30, v31\nv_and_b32 v31, 0xffff0000, v30\nv_lshlrev_b32 v30, 16, v30')
    k('s_mul_i32 s80, s80, 96\ns_add_u32 s80, s80, s76\ns_lshl_b32 s80, s80, 10')
    k('v_add_f32 v31, 0x3727c5ac, v31\nv_cvt_pk_bf16_f32 v31, v31, v31\nv_lshlrev_b32 v31, 16, v31')
    k('v_sqrt_f32 v31, v31')
    k('s_mul_i32 s81, s81, 96\ns_add_u32 s81, s81, s76\ns_lshl_b32 s81, s81, 10')
    k('v_cvt_pk_bf16_f32 v31, v31, v31\nv_lshlrev_b32 v31, 16, v31')
    k('v_rcp_f32 v32, v31')
    k(f'v_mov_b32 v72, {f2h(GK1)}\nv_mov_b32 v73, {f2h(GK1)}\nv_mov_b32 v74, {f2h(GK2)}\nv_mov_b32 v75, {f2h(GK2)}')
    k('v_mul_f32 v33, v30, v32\nv_sub_f32 v33, 0, v33')
    k('v_mov_b32 v34, v32\nv_mov_b32 v35, v33')
    k('s_nop 0\nv_permlane32_swap_b32 v32, v34\nv_permlane32_swap_b32 v33, v35')
    grp = 0
    for t in range(3):
        PB = 40 if t != 1 else 224 - 12
        if t == 0: pass
        k('s_waitcnt lgkmcnt(0)')
        if t < 2:
            pq_reads(t + 1, 212 if t == 0 else 40)
        for lt2 in range(2):
            R = 32 if lt2 == 0 else 34
            a = acc(lt2, t)
            O = 76 + 4 * lt2
            for half in range(2):
                T = 84 if False else (192 if PB == 40 else 84)
                T = 192
                ag, au = a + 8 * half, a + 8 * half + 4
                pg, pu = PB + 8 * half, PB + 8 * half + 4
                qg, qu = pg + 16, pu + 16
                G = [T, T + 8]; U = [T + 2, T + 10]; T1 = [T + 4, T + 12]
                for p in range(2):
                    k(f'v_pk_fma_f32 v[{G[p]}:{G[p]+1}], v[{pg+2*p}:{pg+2*p+1}], v[{R}:{R+1}], v[{qg+2*p}:{qg+2*p+1}] op_sel:[0,1,0] op_sel_hi:[1,1,1]')
                    k(f'v_pk_fma_f32 v[{U[p]}:{U[p]+1}], v[{pu+2*p}:{pu+2*p+1}], v[{R}:{R+1}], v[{qu+2*p}:{qu+2*p+1}] op_sel:[0,1,0] op_sel_hi:[1,1,1]')
                for p in range(2):
                    k(f'v_pk_fma_f32 v[{G[p]}:{G[p]+1}], v[{ag+2*p}:{ag+2*p+1}], v[{R}:{R+1}], v[{G[p]}:{G[p]+1}] op_sel:[0,0,0] op_sel_hi:[1,0,1]')
                    k(f'v_pk_fma_f32 v[{U[p]}:{U[p]+1}], v[{au+2*p}:{au+2*p+1}], v[{R}:{R+1}], v[{U[p]}:{U[p]+1}] op_sel:[0,0,0] op_sel_hi:[1,0,1]')
                if WDEPI and k_wd['n'] < 60: vm.issue(*wd_load())
                for p in range(2): k(f'v_pk_mul_f32 v[{T1[p]}:{T1[p]+1}], v[{G[p]}:{G[p]+1}], v[{G[p]}:{G[p]+1}]')
                for p in range(2): k(f'v_pk_fma_f32 v[{T1[p]}:{T1[p]+1}], v[{T1[p]}:{T1[p]+1}], v[74:75], v[72:73]')
                for p in range(2): k(f'v_pk_mul_f32 v[{T1[p]}:{T1[p]+1}], v[{T1[p]}:{T1[p]+1}], v[{G[p]}:{G[p]+1}]')
                for p in range(2): k(f'v_exp_f32 v{T1[p]}, v{T1[p]}\nv_exp_f32 v{T1[p]+1}, v{T1[p]+1}')
                if WDEPI and k_wd['n'] < 60: vm.issue(*wd_load())
                for p in range(2): k(f'v_pk_mul_f32 v[{U[p]}:{U[p]+1}], v[{U[p]}:{U[p]+1}], v[{G[p]}:{G[p]+1}]')
                for p in range(2): k(f'v_pk_add_f32 v[{T1[p]}:{T1[p]+1}], v[{T1[p]}:{T1[p]+1}], 1.0 op_sel_hi:[1,0]')
                for p in range(2): k(f'v_rcp_f32 v{T1[p]}, v{T1[p]}\nv_rcp_f32 v{T1[p]+1}, v{T1[p]+1}')
                if WDEPI and k_wd['n'] < 60: vm.issue(*wd_load())
                for p in range(2): k(f'v_pk_mul_f32 v[{U[p]}:{U[p]+1}], v[{U[p]}:{U[p]+1}], v[{T1[p]}:{T1[p]+1}]')
                for p in range(2): k(f'v_cvt_pk_bf16_f32 v{O + 2*half + p}, v{U[p]}, v{U[p]+1}')
            so = 's80' if lt2 == 0 else 's81'
            vm.issue(f'buffer_store_dwordx4 v[{O}:{O+3}], v7, s[16:19], {so} offen offset:{1024*t} sc0 sc1', 'actst')
    if WDEPI:
        while k_wd['n'] < 60: vm.issue(*wd_load())
    stamp(1, 2); stamp(2, 0)
    k('v_lshrrev_b32 v10, 1, v3\nv_lshlrev_b32 v10, 10, v10')
    k('v_and_b32 v11, 1, v3\nv_lshlrev_b32 v11, 5, v11\nv_add_u32 v11, v11, v4\nv_lshl_add_u32 v10, v11, 4, v10     ; u=0')
    k(f'v_add_u32 v11, {96*1024}, v10                ; u=2')
    k('s_lshl_b32 s80, s20, 7\ns_add_u32 s80, s80, 2048')
    k('v_mov_b32 v88, 0\nv_mov_b32 v89, 1\nv_cmp_gt_u32 vcc, 1, v0\nv_cndmask_b32 v88, v29, v88, vcc')
    vm.drain()
    k('s_barrier')
    stamp(2, 1)
    k('s_cmp_lg_u32 s22, 0\ns_cbranch_scc1 L_k5_noatom')
    k('buffer_atomic_add v89, v88, s[28:31], s80 offen sc1')
    k.label('L_k5_noatom')
    k('s_mul_i32 s84, s27, 48\ns_add_u32 s84, s84, s22\ns_mul_i32 s84, s84, 5120')
    if k_wd['n'] % 5:
        i_, dt_ = wd_list[k_wd['n']]
        k(f's_add_u32 s85, s84, {i_*4*5120}')
    while k_wd['n'] < 60: k(wd_load()[0])
    k('s_mul_i32 s84, s3, 2*96\ns_lshl_b32 s85, s22, 1\ns_add_u32 s84, s84, s85\ns_lshl_b32 s84, s84, 10')
    k('s_cmp_lg_u32 s22, 0\ns_cbranch_scc1 L_k5_a_ok')
    k('s_mov_b32 s76, 0\nv_mov_b32 v88, 0')
    k.label('L_k5_a_spin')
    k('buffer_load_dword v90, v88, s[28:31], s80 offen sc0 sc1\ns_waitcnt vmcnt(0)')
    k('v_readfirstlane_b32 s81, v90\ns_add_u32 s76, s76, 1')
    k('s_cmp_eq_u32 s81, 16\ns_cbranch_scc1 L_k5_a_ok')
    k(f's_cmp_lt_u32 s76, {SPIN_MAX}\ns_cbranch_scc1 L_k5_a_spin')
    k.label('L_k5_a_ok')
    k('s_barrier')
    stamp(2, 2)
    vm.ops = []; vm.done = 0
    D = 6
    ACT = 16; ACC2 = 128
    def act_issue(i):
        r = ACT + 16 * (i % D)
        ops = [f'buffer_load_dwordx4 v[{r}:{r+3}], v10, s[16:19], s84 offen sc0 sc1',
               f'buffer_load_dwordx4 v[{r+4}:{r+7}], v10, s[16:19], s84 offen offset:256 sc0 sc1',
               f'buffer_load_dwordx4 v[{r+8}:{r+11}], v11, s[16:19], s84 offen sc0 sc1',
               f'buffer_load_dwordx4 v[{r+12}:{r+15}], v11, s[16:19], s84 offen offset:256 sc0 sc1\ns_add_u32 s84, s84, {8*1024}']
        return [(o, ('a', i, u)) for u, o in enumerate(ops)]
    for i in range(D):
        for o in act_issue(i): vm.issue(*o)
    k('s_mul_i32 s80, s22, 20480\nv_add_u32 v124, s80, v7')
    k(f's_mov_b32 s76, s82\ns_mov_b32 s77, s83\ns_mov_b32 s78, {SZ["out"]}\ns_mov_b32 s79, {SRD3:#x}')
    k('s_lshl_b32 s80, s22, 10\nv_add_u32 v125, s80, v7\nv_add_u32 v126, 40960, v125')
    k('v_lshrrev_b32 v120, 2, v4\nv_and_b32 v121, 3, v4')
    k('v_lshl_add_u32 v120, v3, 2, v120\nv_lshlrev_b32 v120, 7, v120\nv_lshl_add_u32 v120, v121, 3, v120')
    k(f's_lshl_b32 s80, s22, 5\ns_add_u32 s80, s80, {X2OFF}\nv_add_u32 v120, s80, v120')
    k(f'v_lshlrev_b32 v121, 4, v3\nv_add_u32 v121, {GBOFF}, v121')
    k('s_lshl_b32 s80, s3, 6\ns_lshl_b32 s81, s22, 4\ns_add_u32 s80, s80, s81\nv_add_u32 v122, s80, v4\nv_mul_u32_u24 v122, 1280, v122')
    k('s_mul_i32 s80, s27, 160\nv_lshl_add_u32 v122, v3, 3, v122\nv_add_u32 v122, s80, v122')
    for i in range(12):
        r = ACT + 16 * (i % D)
        nxt = act_issue(i + D) if i + D < 12 else []
        for u in range(4):
            idx = max(q for q, t in enumerate(vm.ops) if t == ('a', i, u))
            if idx >= vm.done:
                n = len(vm.ops) - 1 - idx
                k(f's_waitcnt vmcnt({n})'); vm.done = len(vm.ops) - n
            for dt in range(5):
                a = ACC2 + 4 * (4 * dt + u)
                c = '0' if i == 0 else f'v[{a}:{a+3}]'
                k(f'v_mfma_f32_16x16x32_bf16 v[{a}:{a+3}], a[{20*i+4*dt}:{20*i+4*dt+3}], v[{r+4*u}:{r+4*u+3}], {c}')
            if nxt: vm.issue(*nxt[u])
    stamp(2, 3)
    for dt in range(5):
        k(f'ds_read_b64_tr_b16 v[{228+2*dt}:{229+2*dt}], v120 offset:{2048*dt}')
    for dt in range(5):
        k(f'ds_read_b128 v[{208+4*dt}:{211+4*dt}], v121 offset:{64*dt}')
    k('s_mul_i32 s80, s22, 5120\nv_add_u32 v124, s80, v7')
    k('v_add_u32 v123, 40960, v124')
    for u in range(4):
        k(f's_cmp_eq_u32 s22, {u}\ns_cbranch_scc1 L_k5_skipw{u}')
        for dt in range(5):
            a = ACC2 + 4 * (4 * dt + u)
            base = 'v124' if u < 2 else 'v123'
            k(f'ds_write_b128 {base}, v[{a}:{a+3}] offset:{(u&1)*20480 + dt*1024}')
        k.label(f'L_k5_skipw{u}')
    for u in range(4):
        k(f's_cmp_lg_u32 s22, {u}\ns_cbranch_scc1 L_k5_skipm{u}')
        for dt in range(5):
            a = ACC2 + 4 * (4 * dt + u)
            k(f'v_mov_b32 v{16+16*dt}, v{a}\nv_mov_b32 v{17+16*dt}, v{a+1}\nv_mov_b32 v{18+16*dt}, v{a+2}\nv_mov_b32 v{19+16*dt}, v{a+3}')
        k.label(f'L_k5_skipm{u}')
    k('s_mul_i32 s80, s22, 20480\nv_add_u32 v125, s80, v7')
    for q in range(1, 4):
        k(f's_add_u32 s81, s22, {q}\ns_and_b32 s81, s81, 3\ns_mul_i32 s81, s81, 5120\nv_add_u32 v{124+q} , s81, v125'.replace(' ,', ',') if False else f's_add_u32 s81, s22, {q}\ns_and_b32 s81, s81, 3\ns_mul_i32 s81, s81, 5120\nv_add_u32 v{116+q}, s81, v125')
    k('s_waitcnt lgkmcnt(0)\ns_barrier')
    for dt in range(5):
        for q in range(1, 4):
            k(f'ds_read_b128 v[{16+16*dt+4*q}:{19+16*dt+4*q}], v{116+q} offset:{1024*dt}')
    for dt in range(5):
        x = 228 + 2 * dt
        k(f'v_lshlrev_b32 v{128+4*dt}, 16, v{x}\nv_and_b32 v{129+4*dt}, 0xffff0000, v{x}\nv_lshlrev_b32 v{130+4*dt}, 16, v{x+1}\nv_and_b32 v{131+4*dt}, 0xffff0000, v{x+1}')
    for dt in range(5):
        b = 16 + 16 * dt
        k(f's_waitcnt lgkmcnt({3*(4-dt)})')
        k(f'v_pk_add_f32 v[{b}:{b+1}], v[{b}:{b+1}], v[{b+4}:{b+5}]\nv_pk_add_f32 v[{b+2}:{b+3}], v[{b+2}:{b+3}], v[{b+6}:{b+7}]')
        k(f'v_pk_add_f32 v[{b+8}:{b+9}], v[{b+8}:{b+9}], v[{b+12}:{b+13}]\nv_pk_add_f32 v[{b+10}:{b+11}], v[{b+10}:{b+11}], v[{b+14}:{b+15}]')
        k(f'v_pk_add_f32 v[{b}:{b+1}], v[{b}:{b+1}], v[{b+8}:{b+9}]\nv_pk_add_f32 v[{b+2}:{b+3}], v[{b+2}:{b+3}], v[{b+10}:{b+11}]')
        g = 208 + 4 * dt; xr = 128 + 4 * dt
        k(f'v_pk_fma_f32 v[{b}:{b+1}], v[{b}:{b+1}], v[{g}:{g+1}], v[{xr}:{xr+1}]')
        k(f'v_pk_fma_f32 v[{b+2}:{b+3}], v[{b+2}:{b+3}], v[{g+2}:{g+3}], v[{xr+2}:{xr+3}]')
        k(f'v_cvt_pk_bf16_f32 v{b}, v{b}, v{b+1}\nv_cvt_pk_bf16_f32 v{b+1}, v{b+2}, v{b+3}')
        k(f'buffer_store_dwordx2 v[{b}:{b+1}], v122, s[76:79], 0 offen offset:{32*dt}')
    if STAMPS: k('s_waitcnt vmcnt(0)')
    stamp_end(k, 2)
    k.label('L_k5_exit')
    k('s_endpgm')
    return k
```

```python
from asmlib import K
from common import *

N_LN, N_MOD, N_KG, N_WD = 64, 120, 640, 48
K1_GRID = N_LN + N_MOD + N_KG + N_WD
K1_LDS = 40960
import os
KGFIRST = os.environ.get('KGFIRST', '1') == '1'
B_KG = 0 if KGFIRST else N_LN + N_MOD
B_LN = N_KG if KGFIRST else 0
B_MOD = N_KG + N_LN if KGFIRST else N_LN

def cmul(k, dst, x, y, tmp):
    k(f'v_pk_mul_f32 v[{tmp}:{tmp+1}], v[{x}:{x+1}], v[{y}:{y+1}] op_sel:[0,0] op_sel_hi:[0,1]')
    k(f'v_pk_fma_f32 v[{dst}:{dst+1}], v[{x}:{x+1}], v[{y}:{y+1}], v[{tmp}:{tmp+1}] op_sel:[1,1,0] op_sel_hi:[1,0,1] neg_lo:[1,0,0]')

def build_k1():
    k = K('prep_kernel')
    stamp_begin(k)
    if KGFIRST:
        k(f's_cmp_lt_u32 s2, {N_KG}\ns_cbranch_scc1 L_k1_kg')
        k(f's_cmp_lt_u32 s2, {N_KG+N_LN}\ns_cbranch_scc1 L_k1_ln')
        k(f's_cmp_lt_u32 s2, {N_KG+N_LN+N_MOD}\ns_cbranch_scc1 L_k1_mod')
    else:
        k(f's_cmp_lt_u32 s2, {N_LN}\ns_cbranch_scc1 L_k1_ln')
        k(f's_cmp_lt_u32 s2, {N_LN+N_MOD}\ns_cbranch_scc1 L_k1_mod')
        k(f's_cmp_lt_u32 s2, {N_LN+N_MOD+N_KG}\ns_cbranch_scc1 L_k1_kg')
    k(f's_cmp_lt_u32 s2, {K1_GRID}\ns_cbranch_scc1 L_k1_wd')
    k('s_endpgm')

    k.label('L_k1_kg')
    k(f's_sub_u32 s3, s2, {B_KG}      ; d')
    load_ptr(k, 4, 'lar'); load_ptr(k, 8, 'aim'); load_ptr(k, 12, 'cr'); load_ptr(k, 16, 'ci'); load_ptr(k, 20, 'ldt'); load_ptr(k, 24, 'ws')
    k('s_getpc_b64 s[28:29]')
    k.label('L_k1_pc')
    k('s_add_u32 s28, s28, ktable-L_k1_pc\ns_addc_u32 s29, s29, 0')
    k('v_lshrrev_b32 v1, 6, v0')
    k('v_and_b32 v2, 63, v0            ; lane')
    k('v_readfirstlane_b32 s30, v1     ; wave')
    k('v_lshlrev_b32 v3, 4, v0         ; t*16')
    k('global_load_dwordx4 v[60:63], v3, s[28:29]')
    k('s_mul_i32 s31, s3, 384')
    k('v_lshlrev_b32 v4, 1, v0')
    k('v_add_u32 v4, s31, v4           ; d*384 + n*2')
    k('s_lshl_b32 s32, s3, 1')
    k('v_mov_b32 v5, s32')
    k('s_waitcnt lgkmcnt(0)')
    for s, n in ((4, 'lar'), (8, 'aim'), (12, 'cr'), (16, 'ci'), (20, 'ldt')):
        srd_fin(k, s, SZ[n])
    srd_fin(k, 24, 640 * 4096, WS_R)
    k('s_cmp_ge_u32 s30, 3\ns_cbranch_scc1 L_k1_kg_sync1')
    k('buffer_load_ushort v6, v5, s[20:23], 0 offen')
    k('buffer_load_ushort v7, v4, s[4:7], 0 offen')
    k('buffer_load_ushort v8, v4, s[8:11], 0 offen')
    k('buffer_load_ushort v9, v4, s[12:15], 0 offen')
    k('buffer_load_ushort v10, v4, s[16:19], 0 offen')
    k('s_mul_i32 s33, s30, 13568')
    k('v_lshlrev_b32 v11, 2, v2')
    for kk in range(16):
        k(f'v_xor_b32 v{64+kk}, {16*kk}, v11')
    for kk in range(16):
        k(f'v_add_u32 v{64+kk}, s33, v{64+kk}')
    k('v_and_b32 v12, 31, v2           ; m')
    k('v_lshrrev_b32 v13, 5, v2        ; g')
    k('v_and_b32 v14, 15, v12')
    k('v_xor_b32 v14, v14, v13')
    k('v_lshlrev_b32 v14, 4, v14       ; 16*(g ^ (m&15))')
    k('v_lshl_add_u32 v14, v12, 8, v14')
    k('v_add_u32 v14, s33, v14')
    k('s_waitcnt vmcnt(0)')
    stamp_mid(k, 0)
    k('v_lshlrev_b32 v6, 16, v6\nv_lshlrev_b32 v7, 16, v7\nv_lshlrev_b32 v8, 16, v8\nv_lshlrev_b32 v9, 16, v9\nv_lshlrev_b32 v10, 16, v10')
    k(f'v_mul_f32 v6, {LOG2E:#x}, v6\nv_mul_f32 v7, {LOG2E:#x}, v7')
    k('v_exp_f32 v6, v6\nv_exp_f32 v7, v7')
    k('v_cvt_pk_bf16_f32 v6, v6, v7')
    k('v_and_b32 v7, 0xffff0000, v6\nv_lshlrev_b32 v6, 16, v6')
    k('v_mul_f32 v7, v7, v6            ; are*dt')
    k(f'v_mul_f32 v7, {NLOG2E:#x}, v7    ; a2')
    k('v_mul_f32 v8, v8, v6            ; theta')
    k(f'v_mul_f32 v8, {INV2PI:#x}, v8    ; theta_r')
    k('v_add_f32 v6, v6, v6            ; 2dt')
    k('v_mul_f32 v16, v9, v6           ; Cbar.re')
    k('v_mul_f32 v17, v10, v6')
    k('v_sub_f32 v17, 0, v17')
    def direct(dst, p, sign, t0):
        k(f'v_mul_f32 v{t0}, {float(p)}, v7' if p in (1, 2, 4) else f'v_mul_f32 v{t0}, {hexf(p)}, v7')
        k(f'v_mul_f32 v{t0+1}, {hexf(sign*p)}, v8')
        k(f'v_exp_f32 v{t0}, v{t0}')
        k(f'v_fract_f32 v{t0+1}, v{t0+1}')
        k(f'v_cos_f32 v{dst}, v{t0+1}')
        k(f'v_sin_f32 v{dst+1}, v{t0+1}')
        k(f'v_mul_f32 v{dst}, v{dst}, v{t0}')
        k(f'v_mul_f32 v{dst+1}, v{dst+1}, v{t0}')
    direct(18, 1, -1, 24)
    direct(20, 256, -1, 26)
    direct(22, 8, +1, 28)
    ZB1, ZB256, W8 = 18, 20, 22
    ZB2, ZB4 = 30, 32
    A, B, T, L = 34, 36, 38, 40
    TA, TL = 42, 44
    C0 = 46
    rot = [0]
    def put(src, row, lo):
        t = C0 + (rot[0] % 8); rot[0] += 1
        k(f'v_cvt_pk_bf16_f32 v{t}, v{src}, v{src+1}')
        k(f'ds_write_b32 v{64 + (row & 15)}, v{t} offset:{row*256 + (5376 if lo else 0)}')
    hi = []
    hi.append(lambda: put(16, 0, False))
    hi.append(lambda: (cmul(k, A, 16, ZB1, TA), put(A, 1, False)))
    for m in range(2, 8):
        hi.append(lambda m=m: (cmul(k, A, A, ZB1, TA), put(A, m, False)))
    hi.append(lambda: cmul(k, ZB2, ZB1, ZB1, TA))
    hi.append(lambda: (cmul(k, B, 16, ZB256, TA), put(B, 8, False)))
    hi.append(lambda: cmul(k, ZB4, ZB2, ZB2, TA))
    hi.append(lambda: (cmul(k, T, B, ZB2, TA), put(T, 9, False)))
    hi.append(lambda: (cmul(k, T, T, ZB2, TA), put(T, 10, False)))
    hi.append(lambda: (cmul(k, T, T, ZB2, TA), put(T, 11, False)))
    hi.append(lambda: (cmul(k, B, B, ZB256, TA), put(B, 12, False)))
    hi.append(lambda: (cmul(k, T, B, ZB4, TA), put(T, 13, False)))
    hi.append(lambda: (cmul(k, B, B, ZB256, TA), put(B, 14, False)))
    hi.append(lambda: (cmul(k, T, B, ZB4, TA), put(T, 15, False)))
    for m in range(16, 21):
        hi.append(lambda m=m: (cmul(k, B, B, ZB256, TA), put(B, m, False)))
    lo = []
    lo.append(lambda: (k(f'v_mov_b32 v{L}, 1.0\nv_mov_b32 v{L+1}, 0'), put(L, 0, True)))
    lo.append(lambda: put(W8, 1, True))
    lo.append(lambda: (cmul(k, L, W8, W8, TL), put(L, 2, True)))
    for u in range(3, 32):
        lo.append(lambda u=u: (cmul(k, L, L, W8, TL), put(L, u, True)))
    i = j = 0
    while i < len(hi) or j < len(lo):
        if j < len(lo): lo[j](); j += 1
        if i < len(hi) and (i * len(lo) <= j * len(hi) or j >= len(lo)): hi[i](); i += 1
    k('s_waitcnt lgkmcnt(0)')
    stamp_mid(k, 1)
    for ks in range(8):
        k(f'v_xor_b32 v15, {32*ks}, v14')
        k(f'ds_read_b128 v[{24+8*(ks%4)}:{27+8*(ks%4)}], v15')
        k(f'ds_read_b128 v[{28+8*(ks%4)}:{31+8*(ks%4)}], v15 offset:5376')
        if ks >= 1:
            p = ks - 1
            k('s_waitcnt lgkmcnt(2)')
            k(f'v_mfma_f32_32x32x16_bf16 v[96:111], v[{24+8*(p%4)}:{27+8*(p%4)}], v[{28+8*(p%4)}:{31+8*(p%4)}], ' + ('0' if p == 0 else 'v[96:111]'))
    k('s_waitcnt lgkmcnt(0)')
    k('v_mfma_f32_32x32x16_bf16 v[96:111], v[48:51], v[52:55], v[96:111]')
    k('v_and_b32 v12, 31, v2\nv_lshrrev_b32 v13, 5, v2')
    k('v_lshlrev_b32 v12, 2, v12')
    k('v_lshl_add_u32 v12, v13, 9, v12')
    k('v_add_u32 v12, s33, v12')
    for j in range(3):
        for i in range(4):
            k(f'ds_write_b32 v12, v{96+4*j+i} offset:{(8*j+i)*128}')
    k.label('L_k1_kg_sync1')
    k('s_waitcnt lgkmcnt(0)\ns_barrier')
    stamp_mid(k, 2)
    k('v_cmp_gt_u32 vcc, 168, v0')
    k('s_and_saveexec_b64 s[34:35], vcc')
    k('s_cbranch_execz L_k1_kg_skip')
    k('ds_read_b128 v[24:27], v3\nds_read_b128 v[28:31], v3 offset:13568\nds_read_b128 v[32:35], v3 offset:27136')
    k('s_waitcnt lgkmcnt(0)')
    k('v_pk_add_f32 v[24:25], v[24:25], v[28:29]\nv_pk_add_f32 v[26:27], v[26:27], v[30:31]')
    k('v_pk_add_f32 v[24:25], v[24:25], v[32:33]\nv_pk_add_f32 v[26:27], v[26:27], v[34:35]')
    k('v_cvt_pk_bf16_f32 v24, v24, v25\nv_cvt_pk_bf16_f32 v25, v26, v27')
    k('v_lshlrev_b32 v12, 3, v0')
    k('ds_write_b64 v12, v[24:25] offset:4096')
    k.label('L_k1_kg_skip')
    k('s_mov_b64 exec, s[34:35]')
    k('s_waitcnt vmcnt(0) lgkmcnt(0)\ns_barrier')
    for q in range(4):
        k(f'v_and_b32 v{24+2*q}, 0xffff, v{60+q}\nv_lshrrev_b32 v{25+2*q}, 16, v{60+q}')
    for q in range(4):
        k(f'ds_read_u16 v{36+q}, v{24+2*q} offset:4096')
        k(f'ds_read_u16 v{40+q}, v{25+2*q} offset:4096')
    k('s_lshl_b32 s33, s3, 12')
    k('s_waitcnt lgkmcnt(0)')
    for q in range(4):
        k(f'v_lshl_or_b32 v{36+q}, v{40+q}, 16, v{36+q}')
    k(f'buffer_store_dwordx4 v[36:39], v3, s[24:27], s33 offen{WT}')
    if STAMPS: k('s_waitcnt vmcnt(0)')
    stamp_end(k, 0)
    k('s_endpgm')

    k.label('L_k1_ln')
    load_ptr(k, 4, 'u'); load_ptr(k, 8, 'ws'); load_ptr(k, 12, 'ws')
    k('v_lshrrev_b32 v1, 4, v0       ; rg')
    k('v_and_b32 v2, 15, v0          ; c')
    k(f's_sub_u32 s3, s2, {B_LN}\ns_lshl_b32 s3, s3, 5          ; l0')
    k('v_add_u32 v3, s3, v1')
    k('v_mul_u32_u24 v4, 1280, v3')
    k('v_lshl_add_u32 v4, v2, 4, v4')
    k('s_mov_b32 s16, 20480')
    k('s_mov_b32 s17, 0x3f803f80')
    k('s_waitcnt lgkmcnt(0)')
    srd_fin(k, 4, SZ['u']); srd_fin(k, 8, 8192, WS_STATS); srd_fin(k, 12, 2621440, WS_XT)
    for p in range(2):
        for q in range(5):
            r = 16 + 4 * (5 * p + q)
            k(f'buffer_load_dwordx4 v[{r}:{r+3}], v4, s[4:7], {"s16" if p else "0"} offen offset:{256*q}{NT}')
    k('v_and_b32 v5, 3, v1\nv_lshrrev_b32 v6, 3, v1\nv_lshl_or_b32 v5, v6, 2, v5     ; f0')
    k('v_xor_b32 v5, v5, v2          ; c ^ f0')
    k('v_mul_u32_u24 v6, 1280, v1')
    k('v_xor_b32 v7, 8, v5')
    k('v_lshl_add_u32 v5, v5, 4, v6          ; p=0 addr')
    k('v_lshl_add_u32 v6, v7, 4, v6          ; p=1 addr - 20480')
    for p in range(2):
        k(f's_waitcnt vmcnt({5 if p == 0 else 0})')
        for q in range(5):
            r = 16 + 4 * (5 * p + q)
            k(f'ds_write_b128 v{5+p}, v[{r}:{r+3}] offset:{256*q + 20480*p}')
        for q in range(5):
            r = 16 + 4 * (5 * p + q)
            for i in range(4):
                first = (q == 0 and i == 0)
                k(f'v_dot2_f32_bf16 v{8+2*p}, v{r+i}, s17, ' + ('0' if first else f'v{8+2*p}'))
                k(f'v_dot2_f32_bf16 v{9+2*p}, v{r+i}, v{r+i}, ' + ('0' if first else f'v{9+2*p}'))
    for sh in (8, 4, 2, 1):
        for v in (8, 9, 10, 11):
            k(f'v_add_f32_dpp v{v}, v{v}, v{v} row_ror:{sh} row_mask:0xf bank_mask:0xf')
    for p in range(2):
        a, b = 8 + 2 * p, 9 + 2 * p
        k(f'v_mul_f32 v{a}, 0x3acccccd, v{a}          ; mean')
        k(f'v_mul_f32 v{b}, 0x3acccccd, v{b}')
        k(f'v_fma_f32 v{b}, -v{a}, v{a}, v{b}         ; var')
        k(f'v_max_f32 v{b}, 0, v{b}')
        k(f'v_cvt_pk_bf16_f32 v{b}, v{b}, v{b}\nv_lshlrev_b32 v{b}, 16, v{b}')
        k(f'v_add_f32 v{b}, 0x3727c5ac, v{b}')
        k(f'v_cvt_pk_bf16_f32 v{b}, v{b}, v{b}\nv_lshlrev_b32 v{b}, 16, v{b}')
        k(f'v_sqrt_f32 v{b}, v{b}')
        k(f'v_cvt_pk_bf16_f32 v{a}, v{a}, v{b}')
    k('v_lshlrev_b32 v7, 2, v3')
    k('v_cmp_eq_u32 vcc, 0, v2')
    k('s_and_saveexec_b64 s[18:19], vcc')
    k('s_cbranch_execz L_k1_ln_nost')
    k(f'buffer_store_dword v8, v7, s[8:11], 0 offen{WT}')
    k(f'buffer_store_dword v10, v7, s[8:11], 0 offen offset:64{WT}')
    k.label('L_k1_ln_nost')
    k('s_mov_b64 exec, s[18:19]')
    k('v_and_b32 v1, 63, v0          ; lane')
    k('v_lshrrev_b32 v2, 6, v0       ; w')
    k('v_lshrrev_b32 v3, 4, v1       ; grp')
    k('v_and_b32 v4, 15, v1          ; idx')
    k('v_lshrrev_b32 v5, 2, v4')
    k('v_and_b32 v6, 3, v4')
    k('v_lshl_add_u32 v7, v6, 3, v5  ; row = 8c + r')
    k('v_lshl_or_b32 v8, v6, 2, v5   ; f = r | c<<2')
    k('v_mul_u32_u24 v7, 1280, v7')
    k('v_and_b32 v9, 1, v3')
    k('v_lshl_add_u32 v7, v9, 3, v7')
    k('v_lshrrev_b32 v9, 1, v3')
    k('v_mul_u32_u24 v10, 20, v2')
    k('v_add_u32 v9, v9, v10         ; ch0')
    k('v_mul_u32_u24 v10, 40, v2\nv_add_u32 v10, v10, v3\nv_lshlrev_b32 v10, 14, v10')
    k('v_lshl_add_u32 v10, v5, 6, v10\nv_lshl_add_u32 v10, v6, 4, v10')
    k('s_lshl_b32 s16, s3, 3\nv_add_u32 v10, s16, v10')
    k('s_waitcnt lgkmcnt(0)\ns_barrier')
    for it in range(10):
        k(f'v_add_u32 v11, {2*it}, v9\nv_xor_b32 v11, v11, v8\nv_lshl_add_u32 v11, v11, 4, v7')
        r = 16 + 4 * it
        k(f'ds_read_b64_tr_b16 v[{r}:{r+1}], v11\nds_read_b64_tr_b16 v[{r+2}:{r+3}], v11 offset:5120')
    for it in range(10):
        r = 16 + 4 * it
        k(f's_mov_b32 s16, {it*65536}')
        k(f's_waitcnt lgkmcnt({min(15, 2*(9-it))})')
        k(f'buffer_store_dwordx4 v[{r}:{r+3}], v10, s[12:15], s16 offen{WT}')
    if STAMPS: k('s_waitcnt vmcnt(0)')
    stamp_end(k, 0)
    k('s_endpgm')

    k.label('L_k1_mod')
    load_ptr(k, 4, 'wmod'); load_ptr(k, 8, 'c'); load_ptr(k, 12, 'ws')
    k(f's_sub_u32 s3, s2, {B_MOD}')
    k('s_lshr_b32 s16, s3, 2          ; cb\ns_and_b32 s17, s3, 3     ; kq')
    k('v_lshrrev_b32 v1, 4, v0       ; rg\nv_and_b32 v2, 15, v0    ; c')
    k('v_mul_u32_u24 v4, 7680, v1\nv_lshl_add_u32 v4, v2, 4, v4')
    k(f's_mul_i32 s18, s17, {160*7680}\ns_lshl_b32 s19, s16, 8\ns_add_u32 s18, s18, s19')
    k('s_mul_i32 s19, s17, 320\nv_lshlrev_b32 v5, 1, v1\nv_add_u32 v5, s19, v5')
    k('s_waitcnt lgkmcnt(0)')
    srd_fin(k, 4, SZ['wmod']); srd_fin(k, 8, SZ['c']); srd_fin(k, 12, 4 * 3840 * 4, WS_MODP)
    for p in range(10):
        k(f'buffer_load_ushort v{56+p}, v5, s[8:11], 0 offen offset:{32*p}')
    for p in range(10):
        k(f'buffer_load_dwordx4 v[{16+4*p}:{19+4*p}], v4, s[4:7], s18 offen{NT}')
        if p < 9: k('s_add_u32 s18, s18, 122880')
    k('s_waitcnt vmcnt(10)')
    for p in range(10):
        k(f'v_lshlrev_b32 v{56+p}, 16, v{56+p}')
    for p in range(10):
        k(f'v_mul_f32 v{66+p}, {NLOG2E:#x}, v{56+p}')
    for p in range(10):
        k(f'v_exp_f32 v{66+p}, v{66+p}')
    for p in range(10):
        k(f'v_add_f32 v{66+p}, 1.0, v{66+p}')
    for p in range(10):
        k(f'v_rcp_f32 v{66+p}, v{66+p}')
    for p in range(10):
        k(f'v_mul_f32 v{56+p}, v{56+p}, v{66+p}')
    for p in range(10):
        k(f'v_cvt_pk_bf16_f32 v{56+p}, v{56+p}, 0        ; (s,0)')
    for p in range(10):
        k(f'v_lshlrev_b32 v{66+p}, 16, v{56+p}           ; (0,s)')
    for p in range(10):
        k(f's_waitcnt vmcnt({9-p})')
        for i in range(4):
            k(f'v_dot2_f32_bf16 v{76+2*i}, v{16+4*p+i}, v{56+p}, ' + ('0' if p == 0 else f'v{76+2*i}'))
            k(f'v_dot2_f32_bf16 v{77+2*i}, v{16+4*p+i}, v{66+p}, ' + ('0' if p == 0 else f'v{77+2*i}'))
    k('v_lshlrev_b32 v6, 5, v0')
    k('ds_write_b128 v6, v[76:79]\nds_write_b128 v6, v[80:83] offset:16')
    k('s_waitcnt lgkmcnt(0)\ns_barrier')
    k('v_cmp_gt_u32 vcc, 128, v0')
    k('s_and_saveexec_b64 s[20:21], vcc')
    k('s_cbranch_execz L_k1_mod_end')
    k('v_lshlrev_b32 v6, 2, v0')
    for rg in range(16):
        k(f'ds_read_b32 v{16+rg}, v6 offset:{rg*512}')
    k('s_waitcnt lgkmcnt(0)')
    for st in (8, 4, 2, 1):
        for i in range(st):
            k(f'v_add_f32 v{16+i}, v{16+i}, v{16+i+st}')
    k('s_mul_i32 s19, s17, 15360\ns_lshl_b32 s22, s16, 9\ns_add_u32 s19, s19, s22')
    k(f'buffer_store_dword v16, v6, s[12:15], s19 offen{WT}')
    k.label('L_k1_mod_end')
    k('s_mov_b64 exec, s[20:21]')
    if STAMPS: k('s_waitcnt vmcnt(0)')
    stamp_end(k, 0)
    k('s_endpgm')
    k.label('L_k1_wd')
    load_ptr(k, 4, 'wd'); load_ptr(k, 8, 'ws')
    k(f's_sub_u32 s3, s2, {N_LN+N_MOD+N_KG}      ; kappa')
    k('v_and_b32 v1, 63, v0\nv_lshrrev_b32 v2, 6, v0\nv_lshlrev_b32 v3, 4, v1\nv_readfirstlane_b32 s16, v2')
    k('s_mul_i32 s17, s3, 40960')
    k('s_mul_i32 s18, s16, 10240\ns_add_u32 s17, s17, s18')
    k('s_waitcnt lgkmcnt(0)')
    srd_fin(k, 4, SZ['wd'])
    k(f's_add_u32 s12, s8, {WS_WD}\ns_addc_u32 s13, s9, 0\ns_mov_b32 s14, 1966080\ns_mov_b32 s15, {SRD3:#x}')
    for q in range(10):
        k(f's_add_u32 m0, s18, {q*1024}')
        k(f's_add_u32 s19, s17, {q*1024}')
        k(f'buffer_load_dwordx4 v3, s[4:7], s19 offen{NT} lds')
    k(f's_add_u32 s20, s8, {WS_FLAGS}\ns_addc_u32 s21, s9, 0\ns_mov_b32 s22, {WS_SP - WS_FLAGS + 327680}\ns_mov_b32 s23, {SRD3:#x}')
    k('v_mov_b32 v8, 0\nv_mov_b32 v9, 0\nv_mov_b32 v10, 0\nv_mov_b32 v11, 0\nv_lshlrev_b32 v4, 4, v0')
    k('s_cmp_lg_u32 s3, 0\ns_cbranch_scc1 L_k1_wd_nz')
    k(f'buffer_store_dwordx4 v[8:11], v4, s[20:23], 0 offen{WT}')
    k.label('L_k1_wd_nz')
    k('s_cmp_ge_u32 s3, 40\ns_cbranch_scc1 L_k1_wd_nz2')
    k(f's_lshl_b32 s26, s3, 13\ns_add_u32 s26, s26, {WS_SP - WS_FLAGS}')
    k(f'buffer_store_dwordx4 v[8:11], v4, s[20:23], s26 offen{WT}')
    k('s_add_u32 s26, s26, 4096')
    k(f'buffer_store_dwordx4 v[8:11], v4, s[20:23], s26 offen{WT}')
    k.label('L_k1_wd_nz2')
    k('v_lshrrev_b32 v5, 4, v1\nv_and_b32 v6, 15, v1\nv_lshrrev_b32 v7, 2, v6\nv_and_b32 v6, 3, v6')
    k('v_lshrrev_b32 v12, 1, v5\nv_lshlrev_b32 v12, 4, v12\nv_and_b32 v13, 1, v5\nv_lshl_add_u32 v12, v13, 2, v12\nv_add_u32 v12, v12, v7')
    k('v_mul_u32_u24 v12, 1280, v12\nv_lshl_add_u32 v12, v6, 3, v12')
    k('s_mul_i32 s24, s16, 320\nv_add_u32 v12, s24, v12')
    k('s_mul_i32 s24, s16, 96\ns_add_u32 s24, s24, s3\ns_mul_i32 s24, s24, 5120')
    k('s_waitcnt vmcnt(0)\ns_barrier')
    for b in range(2):
        for dt in range(5):
            r = 16 + 4 * (5 * b + dt)
            o = 160 * b + 32 * dt
            k(f'ds_read_b64_tr_b16 v[{r}:{r+1}], v12 offset:{o}\nds_read_b64_tr_b16 v[{r+2}:{r+3}], v12 offset:{o + 8*1280}')
    for b in range(2):
        for dt in range(5):
            r = 16 + 4 * (5 * b + dt)
            k(f's_waitcnt lgkmcnt({min(15, 2*(9 - 5*b - dt))})')
            k(f's_add_u32 s25, s24, {b*48*5120 + dt*1024}')
            k(f'buffer_store_dwordx4 v[{r}:{r+3}], v3, s[12:15], s25 offen{WT}')
    if STAMPS: k('s_waitcnt vmcnt(0)')
    stamp_end(k, 0)
    k('s_endpgm')
    return k

def hexf(x):
    import struct
    return hex(struct.unpack('<I', struct.pack('<f', float(x)))[0])

def ktable_data():
    t = ktable()
    s = '.p2align 8\n.type ktable,@object\nktable:\n'
    for i in range(0, 2048, 16):
        s += '.short ' + ', '.join(str(x) for x in t[i:i + 16]) + '\n'
    s += '.size ktable, 4096\n'
    return s
```

```python
from asmlib import K
from common import *
import os

import os
N_WP, N_CV = 120, int(os.environ.get('EXP_NCV', 640))
K2_GRID = N_WP + N_CV
K2_LDS = 40960
CVFIRST = os.environ.get('CVFIRST', '1') == '1'

def build_k2():
    k = K('conv_kernel')
    stamp_begin(k)
    if CVFIRST:
        k(f's_cmp_lt_u32 s2, {N_CV}\ns_cbranch_scc1 L_k2_cv')
        k(f's_cmp_lt_u32 s2, {K2_GRID}\ns_cbranch_scc1 L_k2_wp')
    else:
        k(f's_cmp_lt_u32 s2, {N_WP}\ns_cbranch_scc1 L_k2_wp')
        k(f's_cmp_lt_u32 s2, {K2_GRID}\ns_cbranch_scc1 L_k2_cv')
    k('s_endpgm')

    k.label('L_k2_cv')
    load_ptr(k, 4, 'ws'); load_ptr(k, 20, 'dsk')
    k(f's_sub_u32 s3, s2, {0 if CVFIRST else N_WP}')
    k('s_and_b32 s24, s3, 0xffffffe0\ns_and_b32 s25, s3, 7\ns_lshl_b32 s25, s25, 2\ns_or_b32 s24, s24, s25')
    k('s_lshr_b32 s25, s3, 3\ns_and_b32 s25, s25, 3\ns_or_b32 s3, s24, s25          ; d')
    k('v_lshlrev_b32 v1, 6, v0            ; t*64')
    k('s_and_b32 s24, s3, 3\ns_lshl_b32 s24, s24, 4')
    k('v_add_u32 v1, s24, v1')
    if os.environ.get('EXP_XT'): k('v_lshlrev_b32 v1, 4, v0')
    k('v_lshlrev_b32 v2, 5, v0')
    k('v_lshlrev_b32 v3, 4, v0            ; t*16')
    k('s_lshr_b32 s25, s3, 2\ns_lshl_b32 s25, s25, 14')
    if os.environ.get('EXP_XT'): k('s_lshl_b32 s25, s3, 12')
    k('s_lshl_b32 s26, s3, 12             ; d*4096')
    k('s_lshl_b32 s27, s3, 2              ; d*4')
    k('s_lshr_b32 s28, s3, 1\ns_lshl_b32 s28, s28, 2')
    k('s_waitcnt lgkmcnt(0)')
    stamp_mid(k, 3)
    k('s_add_u32 s30, s4, s27\ns_addc_u32 s31, s5, 0')
    for kq in range(4):
        for i in range(3):
            k(f's_load_dword s{40+4*i+kq}, s[30:31], {WS_MODP + kq*15360 + i*2560}')
    k('s_add_u32 s20, s20, s28\ns_addc_u32 s21, s21, 0')
    k('s_load_dword s52, s[20:21], 0')
    k(f's_add_u32 s8, s4, {WS_XT}\ns_addc_u32 s9, s5, 0\ns_mov_b32 s10, 2621440\ns_mov_b32 s11, {SRD3:#x}')
    k(f's_add_u32 s12, s4, {WS_STATS}\ns_addc_u32 s13, s5, 0\ns_mov_b32 s14, 8192\ns_mov_b32 s15, {SRD3:#x}')
    k(f's_add_u32 s16, s4, {WS_R}\ns_addc_u32 s17, s5, 0\ns_add_u32 s16, s16, s26\ns_addc_u32 s17, s17, 0\ns_mov_b32 s18, 4096\ns_mov_b32 s19, {SRD3:#x}')
    k('buffer_load_dwordx4 v[8:11], v3, s[16:19], 0 offen')
    k('buffer_load_dwordx4 v[12:15], v3, s[16:19], 0 offen offset:4')
    k('buffer_load_dwordx4 v[16:19], v3, s[16:19], 0 offen offset:8')
    k('buffer_load_dwordx4 v[20:23], v1, s[8:11], s25 offen        ; x')
    k('buffer_load_dwordx4 v[24:27], v2, s[12:15], 0 offen')
    k('buffer_load_dwordx4 v[28:31], v2, s[12:15], 0 offen offset:16')
    k(f's_add_u32 s32, s4, {WS_X2T}\ns_addc_u32 s33, s5, 0\ns_mov_b32 s34, 2621440\ns_mov_b32 s35, {SRD3:#x}')
    HB = 16640
    k('v_mov_b32 v32, 0\nv_mov_b32 v33, 0\nv_mov_b32 v34, 0\nv_mov_b32 v35, 0')
    k('v_lshrrev_b32 v4, 2, v0\nv_and_b32 v5, 3, v0')
    k('v_mul_u32_u24 v6, 80, v4\nv_lshl_add_u32 v6, v5, 4, v6        ; (t>>2)*80 + (t&3)*16')
    k('v_mul_u32_u24 v7, 4160, v4\nv_lshl_add_u32 v7, v5, 4, v7')
    k('v_cmp_gt_u32 vcc, 128, v0')
    k('s_and_saveexec_b64 s[36:37], vcc')
    k(f'ds_write_b128 v6, v[32:35] offset:{HB}')
    k('v_cmp_gt_u32 vcc, 16, v0')
    k('s_and_b64 exec, exec, vcc')
    k('ds_write_b128 v7, v[32:35] offset:4096')
    k('s_mov_b64 exec, s[36:37]')
    k('v_and_b32 v36, 63, v0            ; lane')
    k('v_lshrrev_b32 v37, 6, v0         ; w')
    k('v_and_b32 v38, 31, v36           ; b / n')
    k('v_lshrrev_b32 v39, 5, v36        ; g')
    k('v_sub_u32 v40, 3, v38\nv_and_b32 v40, 3, v40       ; s_b')
    k('v_mul_u32_u24 v41, 4160, v40')
    k('v_sub_u32 v42, 2047, v38\nv_lshl_add_u32 v42, v39, 3, v42\nv_sub_u32 v42, v42, v40')
    k('v_lshl_add_u32 v41, v42, 1, v41')
    k('v_lshlrev_b32 v42, 9, v37        ; w*512 = 64*8w')
    k(f'v_sub_u32 v41, v41, v42\nv_subrev_u32 v41, {64*39}, v41      ; baseA')
    k('v_lshlrev_b32 v42, 3, v37\nv_sub_u32 v42, v38, v42\nv_add_u32 v42, 25, v42      ; 32 + n - 8w - 7')
    k('v_mul_u32_u24 v42, 80, v42\nv_lshl_add_u32 v42, v39, 4, v42')
    k(f'v_add_u32 v42, {HB}, v42           ; baseB')
    k('v_mul_u32_u24 v43, 9216, v37\nv_mul_u32_u24 v44, 144, v38\nv_add_u32 v43, v43, v44\nv_lshl_add_u32 v43, v39, 4, v43')
    k('v_mul_u32_u24 v44, 144, v4\nv_lshl_add_u32 v44, v5, 5, v44')
    k('s_waitcnt lgkmcnt(0)')
    for i, dst in enumerate((45, 46, 47)):
        k(f'v_mov_b32 v{dst}, s{40+4*i}')
        for kq in range(1, 4):
            k(f'v_add_f32 v{dst}, s{40+4*i+kq}, v{dst}')
    k('v_cvt_pk_bf16_f32 v45, v45, v46')
    k('v_cvt_pk_bf16_f32 v47, v47, v47')
    k('v_and_b32 v46, 0xffff0000, v45\nv_lshlrev_b32 v45, 16, v45\nv_lshlrev_b32 v47, 16, v47')
    k('v_add_f32 v46, 1.0, v46\nv_cvt_pk_bf16_f32 v46, v46, v46\nv_lshlrev_b32 v46, 16, v46')
    k('s_and_b32 s53, s3, 1\ns_lshl_b32 s53, s53, 4\ns_lshr_b32 s52, s52, s53\ns_lshl_b32 s52, s52, 16')
    k('s_waitcnt vmcnt(3)')
    k('ds_write_b128 v3, v[8:11]')
    k('ds_write_b128 v3, v[12:15] offset:8320')
    for i in range(4):
        k(f'v_alignbit_b32 v{48+i}, v{12+i}, v{8+i}, 16')
    for i in range(4):
        k(f'v_alignbit_b32 v{52+i}, v{16+i}, v{12+i}, 16')
    k('ds_write_b128 v3, v[48:51] offset:4160')
    k('ds_write_b128 v3, v[52:55] offset:12480')
    stamp_mid(k, 0)
    k('s_waitcnt vmcnt(0)')
    for i in range(8):
        st = 24 + i
        k(f'v_and_b32 v{56+i}, 0xffff0000, v{st}      ; sd')
    for i in range(8):
        k(f'v_rcp_f32 v{56+i}, v{56+i}')
    for i in range(8):
        k(f'v_lshlrev_b32 v{24+i}, 16, v{24+i}        ; mean')
    for i in range(4):
        k(f'v_lshlrev_b32 v{64+2*i}, 16, v{20+i}\nv_and_b32 v{65+2*i}, 0xffff0000, v{20+i}')
    for i in range(4):
        k(f'v_pk_add_f32 v[{64+2*i}:{65+2*i}], v[{64+2*i}:{65+2*i}], v[{24+2*i}:{25+2*i}] neg_lo:[0,1] neg_hi:[0,1]')
    for i in range(4):
        k(f'v_pk_mul_f32 v[{64+2*i}:{65+2*i}], v[{64+2*i}:{65+2*i}], v[{56+2*i}:{57+2*i}]')
    for i in range(8):
        k(f'v_fma_f32 v{64+i}, v{64+i}, v46, v45')
    for i in range(4):
        k(f'v_cvt_pk_bf16_f32 v{8+i}, v{64+2*i}, v{65+2*i}       ; h packed v8..11')
    k(f'ds_write_b128 v6, v[8:11] offset:{HB + 32*80}')
    k('s_waitcnt lgkmcnt(0)\ns_barrier')
    stamp_mid(k, 1)
    steps = [(e, ks) for e in range(8) for ks in range(2)]
    def loads(si):
        e, ks = steps[si]
        r = 64 + 16 * (si & 1)
        oa = 64 * e + 32 * ks
        ob = 80 * e + 32 * ks
        k(f'ds_read_b64 v[{r}:{r+1}], v41 offset:{oa+2048}')
        k(f'ds_read_b64 v[{r+2}:{r+3}], v41 offset:{oa+2048+8}')
        k(f'ds_read_b128 v[{r+12}:{r+15}], v42 offset:{ob+2560}')
        k(f'ds_read_b128 v[{r+8}:{r+11}], v42 offset:{ob}')
        k(f'ds_read_b64 v[{r+4}:{r+5}], v41 offset:{oa}')
        k(f'ds_read_b64 v[{r+6}:{r+7}], v41 offset:{oa+8}')
    loads(0)
    for si in range(16):
        r = 64 + 16 * (si & 1)
        if si + 1 < 16:
            loads(si + 1)
            k('s_waitcnt lgkmcnt(6)')
        else:
            k('s_waitcnt lgkmcnt(0)')
        c1 = '0' if si == 0 else 'v[112:127]'
        c0 = '0' if si == 0 else 'v[96:111]'
        k(f'v_mfma_f32_32x32x16_bf16 v[112:127], v[{r}:{r+3}], v[{r+12}:{r+15}], {c1}')
        k(f'v_mfma_f32_32x32x16_bf16 v[96:111], v[{r}:{r+3}], v[{r+8}:{r+11}], {c0}')
        k(f'v_mfma_f32_32x32x16_bf16 v[112:127], v[{r+4}:{r+7}], v[{r+8}:{r+11}], v[112:127]')
    stamp_mid(k, 2)
    k('s_barrier')
    for j in range(4):
        k(f'ds_write_b128 v43, v[{96+4*j}:{99+4*j}] offset:{32*j}')
    for j in range(4):
        k(f'ds_write_b128 v43, v[{112+4*j}:{115+4*j}] offset:{32*j+4608}')
    k('s_waitcnt lgkmcnt(0)\ns_barrier')
    for w in range(4):
        k(f'ds_read_b128 v[{64+8*w}:{67+8*w}], v44 offset:{9216*w}')
        k(f'ds_read_b128 v[{68+8*w}:{71+8*w}], v44 offset:{9216*w+16}')
    for i in range(4):
        k(f'v_lshlrev_b32 v{24+2*i}, 16, v{8+i}\nv_and_b32 v{25+2*i}, 0xffff0000, v{8+i}')
    for i in range(4):
        k(f'v_lshlrev_b32 v{48+2*i}, 16, v{20+i}\nv_and_b32 v{49+2*i}, 0xffff0000, v{20+i}')
    k('s_waitcnt lgkmcnt(0)')
    for i in range(4):
        k(f'v_pk_add_f32 v[{64+2*i}:{65+2*i}], v[{64+2*i}:{65+2*i}], v[{72+2*i}:{73+2*i}]')
        k(f'v_pk_add_f32 v[{80+2*i}:{81+2*i}], v[{80+2*i}:{81+2*i}], v[{88+2*i}:{89+2*i}]')
    for i in range(4):
        k(f'v_pk_add_f32 v[{64+2*i}:{65+2*i}], v[{64+2*i}:{65+2*i}], v[{80+2*i}:{81+2*i}]')
    for i in range(8):
        k(f'v_fma_f32 v{64+i}, v{24+i}, s52, v{64+i}        ; y + h*D')
    for i in range(8):
        k(f'v_fma_f32 v{64+i}, v{64+i}, v47, v{48+i}        ; x + ga*(.)')
    for i in range(4):
        k(f'v_cvt_pk_bf16_f32 v{64+i}, v{64+2*i}, v{65+2*i}')
    k(f'buffer_store_dwordx4 v[64:67], v3, s[32:35], s26 offen{WT}')
    if STAMPS: k('s_waitcnt vmcnt(0)')
    stamp_end(k, 1)
    k('s_endpgm')

    k.label('L_k2_wp')
    if os.environ.get('EXP_NOWP'): k('s_endpgm')
    load_ptr(k, 4, 'wg'); load_ptr(k, 8, 'wu'); load_ptr(k, 12, 'ws')
    k(f's_sub_u32 s3, s2, {N_CV if CVFIRST else 0}')
    k('s_mul_hi_u32 s16, s3, 0x33333334')
    k('s_mul_i32 s17, s16, 5\ns_sub_u32 s17, s3, s17       ; dq')
    k('v_and_b32 v1, 63, v0            ; lane')
    k('v_lshrrev_b32 v2, 6, v0\nv_readfirstlane_b32 s18, v2     ; w')
    k('v_lshrrev_b32 v3, 3, v1\nv_and_b32 v4, 7, v1')
    k('v_lshrrev_b32 v5, 4, v1\nv_and_b32 v5, 1, v5\nv_lshlrev_b32 v5, 1, v5\nv_xor_b32 v4, v4, v5')
    k('v_xor_b32 v5, 4, v4')
    k('v_mul_u32_u24 v3, 3072, v3')
    k('v_lshl_add_u32 v4, v4, 4, v3')
    k('v_lshl_add_u32 v5, v5, 4, v3')
    k('s_mul_i32 s19, s17, 128*3072\ns_lshl_b32 s20, s16, 7\ns_add_u32 s19, s19, s20')
    k('s_mul_i32 s20, s18, 4*24576\ns_add_u32 s19, s19, s20')
    k('s_lshl_b32 s21, s18, 12')
    k('s_lshl_b32 s22, s17, 9\nv_lshlrev_b32 v6, 2, v0\nv_add_u32 v6, s22, v6     ; d*4')
    k('s_waitcnt lgkmcnt(0)')
    srd_fin(k, 4, SZ['wg']); srd_fin(k, 8, SZ['wu'])
    k(f's_add_u32 s24, s12, {WS_MODP}\ns_addc_u32 s25, s13, 0\ns_mov_b32 s26, 61440\ns_mov_b32 s27, {SRD3:#x}')
    for kq in range(4):
        k(f's_mov_b32 s23, {kq*15360 + 3*2560}')
        k(f'buffer_load_dword v{8+kq}, v6, s[24:27], s23 offen')
        k(f'buffer_load_dword v{12+kq}, v6, s[24:27], s23 offen offset:2560')
    for q in range(4):
        k(f's_add_u32 m0, s21, {q*1024}')
        k(f's_add_u32 s23, s19, {q*24576}')
        k(f'buffer_load_dwordx4 v4, s[4:7], s23 offen{NT} lds')
        k(f's_add_u32 m0, s21, {q*1024 + 16384}')
        k('s_nop 0')
        k(f'buffer_load_dwordx4 v5, s[8:11], s23 offen{NT} lds')
    k(f's_add_u32 s28, s12, {WS_WP}\ns_addc_u32 s29, s13, 0\ns_mov_b32 s30, 3932160\ns_mov_b32 s31, {SRD3:#x}')
    k(f's_add_u32 s32, s12, {WS_PQ}\ns_addc_u32 s33, s13, 0\ns_mov_b32 s34, 122880\ns_mov_b32 s35, {SRD3:#x}')
    k('s_waitcnt vmcnt(8)')
    k('v_add_f32 v8, v8, v9\nv_add_f32 v10, v10, v11\nv_add_f32 v12, v12, v13\nv_add_f32 v14, v14, v15')
    k('v_add_f32 v8, v8, v10\nv_add_f32 v12, v12, v14')
    k('v_cvt_pk_bf16_f32 v8, v8, v12')
    k('v_and_b32 v12, 0xffff0000, v8\nv_add_f32 v12, 1.0, v12\nv_cvt_pk_bf16_f32 v12, v12, v12\nv_lshlrev_b32 v12, 16, v12')
    k('v_lshlrev_b32 v9, 2, v0\nv_lshlrev_b32 v10, 1, v0')
    k('v_cmp_gt_u32 vcc, 128, v0')
    k('s_and_saveexec_b64 s[36:37], vcc')
    k('ds_write_b32 v9, v12 offset:32768')
    k('ds_write_b16 v10, v8 offset:33280')
    k('s_mov_b64 exec, s[36:37]')
    k('v_lshrrev_b32 v3, 4, v1          ; grp')
    k('v_and_b32 v7, 15, v1\nv_lshrrev_b32 v8, 2, v7      ; r\nv_and_b32 v7, 3, v7       ; c')
    k('v_lshrrev_b32 v9, 1, v3          ; g')
    k('v_and_b32 v10, 1, v3             ; grp&1')
    k('v_lshrrev_b32 v11, 1, v7         ; mat')
    k('v_lshrrev_b32 v12, 1, v8\nv_lshlrev_b32 v12, 1, v12      ; 2*((r>>1)&1)')
    k('v_xor_b32 v10, v10, v12\nv_lshlrev_b32 v12, 2, v11\nv_xor_b32 v10, v10, v12     ; X')
    k('v_lshlrev_b32 v10, 4, v10')
    k('v_lshl_add_u32 v10, v11, 14, v10         ; + mat*16384')
    k('v_lshl_add_u32 v12, v9, 3, v8            ; 8g + r')
    k('v_lshl_add_u32 v10, v12, 7, v10          ; + row*128')
    k('v_and_b32 v12, 1, v7\nv_lshl_add_u32 v10, v12, 3, v10')
    k('s_lshl_b32 s23, s18, 5\nv_xor_b32 v10, s23, v10      ; ^ 32*tl')
    k('v_lshlrev_b32 v11, 5, v9\nv_lshlrev_b32 v12, 4, v9')
    k('s_lshl_b32 s23, s16, 2\ns_add_u32 s23, s23, s18        ; T')
    k('s_mul_i32 s38, s17, 8*96\ns_add_u32 s38, s38, s23\ns_lshl_b32 s38, s38, 10')
    k('v_lshlrev_b32 v13, 4, v1')
    k('s_mov_b32 s39, 0x3f803f80')
    k('v_mov_b32 v14, 0\nv_mov_b32 v15, 0')
    k('s_waitcnt vmcnt(0) lgkmcnt(0)\ns_barrier')
    for ksl in range(8):
        b = 16 + 32 * (ksl & 1)
        k(f'ds_read_b64_tr_b16 v[{b}:{b+1}], v10 offset:{ksl*2048}')
        k(f'ds_read_b64_tr_b16 v[{b+2}:{b+3}], v10 offset:{ksl*2048+512}')
        k(f'ds_read_b128 v[{b+4}:{b+7}], v11 offset:{32768 + ksl*64}')
        k(f'ds_read_b128 v[{b+8}:{b+11}], v11 offset:{32768 + ksl*64 + 16}')
        k(f'ds_read_b128 v[{b+12}:{b+15}], v12 offset:{33280 + ksl*32}')
        k('s_waitcnt lgkmcnt(0)')
        for j in range(4):
            k(f'v_lshlrev_b32 v{b+16+2*j}, 16, v{b+j}\nv_and_b32 v{b+17+2*j}, 0xffff0000, v{b+j}')
        for j in range(4):
            k(f'v_pk_mul_f32 v[{b+16+2*j}:{b+17+2*j}], v[{b+16+2*j}:{b+17+2*j}], v[{b+4+2*j}:{b+5+2*j}]')
        for j in range(4):
            k(f'v_dot2_f32_bf16 v15, v{b+j}, v{b+12+j}, v15')
        for j in range(4):
            k(f'v_cvt_pk_bf16_f32 v{b+24+j}, v{b+16+2*j}, v{b+17+2*j}')
        for j in range(4):
            k(f'v_dot2_f32_bf16 v14, v{b+24+j}, s39, v14')
        k(f'buffer_store_dwordx4 v[{b+24}:{b+27}], v13, s[28:31], s38 offen{WT}')
        k(f's_add_u32 s38, s38, {96*1024}')
    k('v_mov_b32 v16, v14\nv_mov_b32 v17, v15')
    k('v_permlane32_swap_b32 v14, v16\nv_permlane32_swap_b32 v15, v17')
    k('v_add_f32 v14, v14, v16\nv_add_f32 v15, v15, v17')
    k('s_mul_i32 s38, s17, 96\ns_add_u32 s38, s38, s23\ns_lshl_b32 s38, s38, 8       ; (dq*96+T)*256')
    k('v_lshlrev_b32 v13, 3, v1')
    k('v_cmp_gt_u32 vcc, 32, v1')
    k('s_and_saveexec_b64 s[36:37], vcc')
    k(f'buffer_store_dwordx2 v[14:15], v13, s[32:35], s38 offen{WT}')
    k('s_mov_b64 exec, s[36:37]')
    if STAMPS: k('s_waitcnt vmcnt(0)')
    stamp_end(k, 1)
    k('s_endpgm')
    return k
```

```python
import sys, re
from common import *
src, out, mode, dur = sys.argv[1], sys.argv[2], sys.argv[3], int(sys.argv[4])
txt = open(src).read()
body = '''
.globl warm_kernel
.p2align 8
.type warm_kernel,@function
warm_kernel:
    s_memrealtime s[40:41]
    s_cmp_ge_u32 s2, 256
    s_cbranch_scc1 L_warm_exit
'''
if mode in ('tlb',):
    body += '    v_lshrrev_b32 v1, 0, v0\n    s_lshr_b32 s3, s2, 3\n    s_lshl_b32 s3, s3, 8\n    v_add_u32 v1, s3, v1\n    v_lshlrev_b32 v1, 12, v1      ; ((wg>>3)*256+t)*4096\n'
    items = [('u', SZ['u']), ('lar', SZ['lar']), ('aim', SZ['aim']), ('cr', SZ['cr']), ('ci', SZ['ci']), ('wg', SZ['wg']), ('wu', SZ['wu']), ('wd', SZ['wd']), ('wmod', SZ['wmod']), ('ldt', 1280), ('dsk', 1280), ('c', 1280), ('out', SZ['out']), ('ws', WS_END)]
    for n, sz in items:
        body += f'    s_load_dwordx2 s[4:5], s[0:1], {KA[n]}\n    s_waitcnt lgkmcnt(0)\n    s_mov_b32 s6, {sz}\n    s_mov_b32 s7, 0x20000\n    buffer_load_dword v4, v1, s[4:7], 0 offen\n'
    body += '    s_waitcnt vmcnt(0)\n'
if mode == 'code':
    body += '    v_lshlrev_b32 v1, 4, v0\n    s_lshr_b32 s3, s2, 3\n    s_lshl_b32 s3, s3, 12\n    v_add_u32 v1, s3, v1\n'
    body += '''    s_getpc_b64 s[4:5]
L_warm_pc:
    s_sub_u32 s4, s4, L_warm_pc-prep_kernel
    s_subb_u32 s5, s5, 0
    s_mov_b32 s6, warm_kernel-prep_kernel
    s_mov_b32 s7, 0x20000
    buffer_load_dwordx4 v[4:7], v1, s[4:7], 0 offen
    s_waitcnt vmcnt(0)
'''
if mode in ('inputs', 'all'):
    body += '    v_lshlrev_b32 v1, 4, v0\n    s_lshl_b32 s3, s2, 12\n    v_add_u32 v1, s3, v1       ; wg*4096 + t*16\n'
    items = [('u', SZ['u']), ('lar', SZ['lar']), ('aim', SZ['aim']), ('cr', SZ['cr']), ('ci', SZ['ci']), ('wg', SZ['wg']), ('wu', SZ['wu']), ('wd', SZ['wd']), ('wmod', SZ['wmod']), ('ldt', 1280), ('dsk', 1280), ('c', 1280), ('out', SZ['out'])]
    if mode == 'all': items.append(('ws', WS_END))
    for n, sz in items:
        body += f'    s_load_dwordx2 s[4:5], s[0:1], {KA[n]}\n    s_waitcnt lgkmcnt(0)\n    s_mov_b32 s6, {sz}\n    s_mov_b32 s7, 0x20000\n'
        for rep in range((sz + (1 << 20) - 1) >> 20):
            body += f'    s_mov_b32 s8, {rep << 20}\n    buffer_load_dwordx4 v[4:7], v1, s[4:7], s8 offen\n'
        body += '    s_waitcnt vmcnt(0)\n'
    body += '''    s_getpc_b64 s[4:5]
L_warm_pc:
    s_sub_u32 s4, s4, L_warm_pc-prep_kernel
    s_subb_u32 s5, s5, 0
    s_mov_b32 s6, warm_kernel-prep_kernel
    s_mov_b32 s7, 0x20000
    v_and_b32 v2, 0xffff, v1
    buffer_load_dwordx4 v[4:7], v2, s[4:7], 0 offen
    s_waitcnt vmcnt(0)
'''
body += f'''    s_waitcnt lgkmcnt(0)
    s_add_u32 s42, s40, {dur*100}
L_warm_spin:
    s_memrealtime s[44:45]
    s_waitcnt lgkmcnt(0)
    s_cmp_lt_u32 s44, s42
    s_cbranch_scc1 L_warm_spin
L_warm_exit:
    s_endpgm
'''
desc = '''.p2align 6
.amdhsa_kernel warm_kernel
  .amdhsa_next_free_vgpr 16
  .amdhsa_next_free_sgpr 48
  .amdhsa_accum_offset 16
  .amdhsa_group_segment_fixed_size 0
  .amdhsa_kernarg_size 128
  .amdhsa_user_sgpr_count 2
  .amdhsa_user_sgpr_kernarg_segment_ptr 1
  .amdhsa_system_sgpr_workgroup_id_x 1
.end_amdhsa_kernel
'''
txt = '; @launch kernel=warm_kernel grid=(256,1,1) block=(256,1,1) lds=0\n' + txt
txt = txt.replace('.section .rodata,"a"\n', '.text\n' + body + '.section .rodata,"a"\n' + desc, 1)
open(out, 'w').write(txt)
```

```python
from asmlib import K
from common import *

N_LN, N_MOD, N_KG, N_WD = 64, 120, 640, 48
K1_GRID = N_LN + N_MOD + N_KG + N_WD
K1_LDS = 40960
import os
KGFIRST = os.environ.get('KGFIRST', '1') == '1'
CODEPF = os.environ.get('CODEPF', '1') == '1'
B_KG = 0 if KGFIRST else N_LN + N_MOD
B_LN = N_KG if KGFIRST else 0
B_MOD = N_KG + N_LN if KGFIRST else N_LN

def cmul(k, dst, x, y, tmp):
    k(f'v_pk_mul_f32 v[{tmp}:{tmp+1}], v[{x}:{x+1}], v[{y}:{y+1}] op_sel:[0,0] op_sel_hi:[0,1]')
    k(f'v_pk_fma_f32 v[{dst}:{dst+1}], v[{x}:{x+1}], v[{y}:{y+1}], v[{tmp}:{tmp+1}] op_sel:[1,1,0] op_sel_hi:[1,0,1] neg_lo:[1,0,0]')

def build_k1():
    k = K('prep_kernel')
    stamp_begin(k)
    if KGFIRST:
        k(f's_cmp_lt_u32 s2, {N_KG}\ns_cbranch_scc1 L_k1_kg')
        k(f's_cmp_lt_u32 s2, {N_KG+N_LN}\ns_cbranch_scc1 L_k1_ln')
        k(f's_cmp_lt_u32 s2, {N_KG+N_LN+N_MOD}\ns_cbranch_scc1 L_k1_mod')
    else:
        k(f's_cmp_lt_u32 s2, {N_LN}\ns_cbranch_scc1 L_k1_ln')
        k(f's_cmp_lt_u32 s2, {N_LN+N_MOD}\ns_cbranch_scc1 L_k1_mod')
        k(f's_cmp_lt_u32 s2, {N_LN+N_MOD+N_KG}\ns_cbranch_scc1 L_k1_kg')
    k(f's_cmp_lt_u32 s2, {K1_GRID}\ns_cbranch_scc1 L_k1_wd')
    k('s_endpgm')

    k.label('L_k1_kg')
    k(f's_sub_u32 s3, s2, {B_KG}      ; d')
    load_ptr(k, 4, 'lar'); load_ptr(k, 8, 'aim'); load_ptr(k, 12, 'cr'); load_ptr(k, 16, 'ci'); load_ptr(k, 20, 'ldt'); load_ptr(k, 24, 'ws')
    k('s_getpc_b64 s[28:29]')
    k.label('L_k1_pc')
    k('s_add_u32 s28, s28, ktable-L_k1_pc\ns_addc_u32 s29, s29, 0')
    k('v_lshrrev_b32 v1, 6, v0')
    k('v_and_b32 v2, 63, v0            ; lane')
    k('v_readfirstlane_b32 s30, v1     ; wave')
    k('v_lshlrev_b32 v3, 4, v0         ; t*16')
    k('global_load_dwordx4 v[60:63], v3, s[28:29]')
    k('s_mul_i32 s31, s3, 384')
    k('v_lshlrev_b32 v4, 1, v0')
    k('v_add_u32 v4, s31, v4           ; d*384 + n*2')
    k('s_lshl_b32 s32, s3, 1')
    k('v_mov_b32 v5, s32')
    k('s_waitcnt lgkmcnt(0)')
    for s, n in ((4, 'lar'), (8, 'aim'), (12, 'cr'), (16, 'ci'), (20, 'ldt')):
        srd_fin(k, s, SZ[n])
    srd_fin(k, 24, 640 * 4096, WS_R)
    k('s_cmp_ge_u32 s30, 3\ns_cbranch_scc1 L_k1_kg_sync1')
    k('buffer_load_ushort v6, v5, s[20:23], 0 offen')
    k('buffer_load_ushort v7, v4, s[4:7], 0 offen')
    k('buffer_load_ushort v8, v4, s[8:11], 0 offen')
    k('buffer_load_ushort v9, v4, s[12:15], 0 offen')
    k('buffer_load_ushort v10, v4, s[16:19], 0 offen')
    k('s_mul_i32 s33, s30, 13568')
    k('v_lshlrev_b32 v11, 2, v2')
    for kk in range(16):
        k(f'v_xor_b32 v{64+kk}, {16*kk}, v11')
    for kk in range(16):
        k(f'v_add_u32 v{64+kk}, s33, v{64+kk}')
    k('v_and_b32 v12, 31, v2           ; m')
    k('v_lshrrev_b32 v13, 5, v2        ; g')
    k('v_and_b32 v14, 15, v12')
    k('v_xor_b32 v14, v14, v13')
    k('v_lshlrev_b32 v14, 4, v14       ; 16*(g ^ (m&15))')
    k('v_lshl_add_u32 v14, v12, 8, v14')
    k('v_add_u32 v14, s33, v14')
    k('s_waitcnt vmcnt(0)')
    stamp_mid(k, 0)
    k('v_lshlrev_b32 v6, 16, v6\nv_lshlrev_b32 v7, 16, v7\nv_lshlrev_b32 v8, 16, v8\nv_lshlrev_b32 v9, 16, v9\nv_lshlrev_b32 v10, 16, v10')
    k(f'v_mul_f32 v6, {LOG2E:#x}, v6\nv_mul_f32 v7, {LOG2E:#x}, v7')
    k('v_exp_f32 v6, v6\nv_exp_f32 v7, v7')
    k('v_cvt_pk_bf16_f32 v6, v6, v7')
    k('v_and_b32 v7, 0xffff0000, v6\nv_lshlrev_b32 v6, 16, v6')
    k('v_mul_f32 v7, v7, v6            ; are*dt')
    k(f'v_mul_f32 v7, {NLOG2E:#x}, v7    ; a2')
    k('v_mul_f32 v8, v8, v6            ; theta')
    k(f'v_mul_f32 v8, {INV2PI:#x}, v8    ; theta_r')
    k('v_add_f32 v6, v6, v6            ; 2dt')
    k('v_mul_f32 v16, v9, v6           ; Cbar.re')
    k('v_mul_f32 v17, v10, v6')
    k('v_sub_f32 v17, 0, v17')
    def direct(dst, p, sign, t0):
        k(f'v_mul_f32 v{t0}, {float(p)}, v7' if p in (1, 2, 4) else f'v_mul_f32 v{t0}, {hexf(p)}, v7')
        k(f'v_mul_f32 v{t0+1}, {hexf(sign*p)}, v8')
        k(f'v_exp_f32 v{t0}, v{t0}')
        k(f'v_fract_f32 v{t0+1}, v{t0+1}')
        k(f'v_cos_f32 v{dst}, v{t0+1}')
        k(f'v_sin_f32 v{dst+1}, v{t0+1}')
        k(f'v_mul_f32 v{dst}, v{dst}, v{t0}')
        k(f'v_mul_f32 v{dst+1}, v{dst+1}, v{t0}')
    direct(18, 1, -1, 24)
    direct(20, 256, -1, 26)
    direct(22, 8, +1, 28)
    ZB1, ZB256, W8 = 18, 20, 22
    ZB2, ZB4 = 30, 32
    A, B, T, L = 34, 36, 38, 40
    TA, TL = 42, 44
    C0 = 46
    rot = [0]
    def put(src, row, lo):
        t = C0 + (rot[0] % 8); rot[0] += 1
        k(f'v_cvt_pk_bf16_f32 v{t}, v{src}, v{src+1}')
        k(f'ds_write_b32 v{64 + (row & 15)}, v{t} offset:{row*256 + (5376 if lo else 0)}')
    hi = []
    hi.append(lambda: put(16, 0, False))
    hi.append(lambda: (cmul(k, A, 16, ZB1, TA), put(A, 1, False)))
    for m in range(2, 8):
        hi.append(lambda m=m: (cmul(k, A, A, ZB1, TA), put(A, m, False)))
    hi.append(lambda: cmul(k, ZB2, ZB1, ZB1, TA))
    hi.append(lambda: (cmul(k, B, 16, ZB256, TA), put(B, 8, False)))
    hi.append(lambda: cmul(k, ZB4, ZB2, ZB2, TA))
    hi.append(lambda: (cmul(k, T, B, ZB2, TA), put(T, 9, False)))
    hi.append(lambda: (cmul(k, T, T, ZB2, TA), put(T, 10, False)))
    hi.append(lambda: (cmul(k, T, T, ZB2, TA), put(T, 11, False)))
    hi.append(lambda: (cmul(k, B, B, ZB256, TA), put(B, 12, False)))
    hi.append(lambda: (cmul(k, T, B, ZB4, TA), put(T, 13, False)))
    hi.append(lambda: (cmul(k, B, B, ZB256, TA), put(B, 14, False)))
    hi.append(lambda: (cmul(k, T, B, ZB4, TA), put(T, 15, False)))
    for m in range(16, 21):
        hi.append(lambda m=m: (cmul(k, B, B, ZB256, TA), put(B, m, False)))
    lo = []
    lo.append(lambda: (k(f'v_mov_b32 v{L}, 1.0\nv_mov_b32 v{L+1}, 0'), put(L, 0, True)))
    lo.append(lambda: put(W8, 1, True))
    lo.append(lambda: (cmul(k, L, W8, W8, TL), put(L, 2, True)))
    for u in range(3, 32):
        lo.append(lambda u=u: (cmul(k, L, L, W8, TL), put(L, u, True)))
    i = j = 0
    while i < len(hi) or j < len(lo):
        if j < len(lo): lo[j](); j += 1
        if i < len(hi) and (i * len(lo) <= j * len(hi) or j >= len(lo)): hi[i](); i += 1
    k('s_waitcnt lgkmcnt(0)')
    stamp_mid(k, 1)
    for ks in range(8):
        k(f'v_xor_b32 v15, {32*ks}, v14')
        k(f'ds_read_b128 v[{24+8*(ks%4)}:{27+8*(ks%4)}], v15')
        k(f'ds_read_b128 v[{28+8*(ks%4)}:{31+8*(ks%4)}], v15 offset:5376')
        if ks >= 1:
            p = ks - 1
            k('s_waitcnt lgkmcnt(2)')
            k(f'v_mfma_f32_32x32x16_bf16 v[96:111], v[{24+8*(p%4)}:{27+8*(p%4)}], v[{28+8*(p%4)}:{31+8*(p%4)}], ' + ('0' if p == 0 else 'v[96:111]'))
    k('s_waitcnt lgkmcnt(0)')
    k('v_mfma_f32_32x32x16_bf16 v[96:111], v[48:51], v[52:55], v[96:111]')
    k('v_and_b32 v12, 31, v2\nv_lshrrev_b32 v13, 5, v2')
    k('v_lshlrev_b32 v12, 2, v12')
    k('v_lshl_add_u32 v12, v13, 9, v12')
    k('v_add_u32 v12, s33, v12')
    for j in range(3):
        for i in range(4):
            k(f'ds_write_b32 v12, v{96+4*j+i} offset:{(8*j+i)*128}')
    k.label('L_k1_kg_sync1')
    k('s_waitcnt lgkmcnt(0)\ns_barrier')
    stamp_mid(k, 2)
    k('v_cmp_gt_u32 vcc, 168, v0')
    k('s_and_saveexec_b64 s[34:35], vcc')
    k('s_cbranch_execz L_k1_kg_skip')
    k('ds_read_b128 v[24:27], v3\nds_read_b128 v[28:31], v3 offset:13568\nds_read_b128 v[32:35], v3 offset:27136')
    k('s_waitcnt lgkmcnt(0)')
    k('v_pk_add_f32 v[24:25], v[24:25], v[28:29]\nv_pk_add_f32 v[26:27], v[26:27], v[30:31]')
    k('v_pk_add_f32 v[24:25], v[24:25], v[32:33]\nv_pk_add_f32 v[26:27], v[26:27], v[34:35]')
    k('v_cvt_pk_bf16_f32 v24, v24, v25\nv_cvt_pk_bf16_f32 v25, v26, v27')
    k('v_lshlrev_b32 v12, 3, v0')
    k('ds_write_b64 v12, v[24:25] offset:4096')
    k.label('L_k1_kg_skip')
    k('s_mov_b64 exec, s[34:35]')
    k('s_waitcnt vmcnt(0) lgkmcnt(0)\ns_barrier')
    for q in range(4):
        k(f'v_and_b32 v{24+2*q}, 0xffff, v{60+q}\nv_lshrrev_b32 v{25+2*q}, 16, v{60+q}')
    for q in range(4):
        k(f'ds_read_u16 v{36+q}, v{24+2*q} offset:4096')
        k(f'ds_read_u16 v{40+q}, v{25+2*q} offset:4096')
    k('s_lshl_b32 s33, s3, 12')
    k('s_waitcnt lgkmcnt(0)')
    for q in range(4):
        k(f'v_lshl_or_b32 v{36+q}, v{40+q}, 16, v{36+q}')
    k(f'buffer_store_dwordx4 v[36:39], v3, s[24:27], s33 offen{WT}')
    if STAMPS: k('s_waitcnt vmcnt(0)')
    stamp_end(k, 0)
    k('s_endpgm')

    k.label('L_k1_ln')
    load_ptr(k, 4, 'u'); load_ptr(k, 8, 'ws'); load_ptr(k, 12, 'ws')
    k('v_lshrrev_b32 v1, 4, v0       ; rg')
    k('v_and_b32 v2, 15, v0          ; c')
    k(f's_sub_u32 s3, s2, {B_LN}\ns_lshl_b32 s3, s3, 5          ; l0')
    k('v_add_u32 v3, s3, v1')
    k('v_mul_u32_u24 v4, 1280, v3')
    k('v_lshl_add_u32 v4, v2, 4, v4')
    k('s_mov_b32 s16, 20480')
    k('s_mov_b32 s17, 0x3f803f80')
    k('s_waitcnt lgkmcnt(0)')
    srd_fin(k, 4, SZ['u']); srd_fin(k, 8, 8192, WS_STATS); srd_fin(k, 12, 2621440, WS_XT)
    for p in range(2):
        for q in range(5):
            r = 16 + 4 * (5 * p + q)
            k(f'buffer_load_dwordx4 v[{r}:{r+3}], v4, s[4:7], {"s16" if p else "0"} offen offset:{256*q}{NT}')
    k('v_and_b32 v5, 3, v1\nv_lshrrev_b32 v6, 3, v1\nv_lshl_or_b32 v5, v6, 2, v5     ; f0')
    k('v_xor_b32 v5, v5, v2          ; c ^ f0')
    k('v_mul_u32_u24 v6, 1280, v1')
    k('v_xor_b32 v7, 8, v5')
    k('v_lshl_add_u32 v5, v5, 4, v6          ; p=0 addr')
    k('v_lshl_add_u32 v6, v7, 4, v6          ; p=1 addr - 20480')
    for p in range(2):
        k(f's_waitcnt vmcnt({5 if p == 0 else 0})')
        for q in range(5):
            r = 16 + 4 * (5 * p + q)
            k(f'ds_write_b128 v{5+p}, v[{r}:{r+3}] offset:{256*q + 20480*p}')
        for q in range(5):
            r = 16 + 4 * (5 * p + q)
            for i in range(4):
                first = (q == 0 and i == 0)
                k(f'v_dot2_f32_bf16 v{8+2*p}, v{r+i}, s17, ' + ('0' if first else f'v{8+2*p}'))
                k(f'v_dot2_f32_bf16 v{9+2*p}, v{r+i}, v{r+i}, ' + ('0' if first else f'v{9+2*p}'))
    for sh in (8, 4, 2, 1):
        for v in (8, 9, 10, 11):
            k(f'v_add_f32_dpp v{v}, v{v}, v{v} row_ror:{sh} row_mask:0xf bank_mask:0xf')
    for p in range(2):
        a, b = 8 + 2 * p, 9 + 2 * p
        k(f'v_mul_f32 v{a}, 0x3acccccd, v{a}          ; mean')
        k(f'v_mul_f32 v{b}, 0x3acccccd, v{b}')
        k(f'v_fma_f32 v{b}, -v{a}, v{a}, v{b}         ; var')
        k(f'v_max_f32 v{b}, 0, v{b}')
        k(f'v_cvt_pk_bf16_f32 v{b}, v{b}, v{b}\nv_lshlrev_b32 v{b}, 16, v{b}')
        k(f'v_add_f32 v{b}, 0x3727c5ac, v{b}')
        k(f'v_cvt_pk_bf16_f32 v{b}, v{b}, v{b}\nv_lshlrev_b32 v{b}, 16, v{b}')
        k(f'v_sqrt_f32 v{b}, v{b}')
        k(f'v_cvt_pk_bf16_f32 v{a}, v{a}, v{b}')
    k('v_lshlrev_b32 v7, 2, v3')
    k('v_cmp_eq_u32 vcc, 0, v2')
    k('s_and_saveexec_b64 s[18:19], vcc')
    k('s_cbranch_execz L_k1_ln_nost')
    k(f'buffer_store_dword v8, v7, s[8:11], 0 offen{WT}')
    k(f'buffer_store_dword v10, v7, s[8:11], 0 offen offset:64{WT}')
    k.label('L_k1_ln_nost')
    k('s_mov_b64 exec, s[18:19]')
    k('v_and_b32 v1, 63, v0          ; lane')
    k('v_lshrrev_b32 v2, 6, v0       ; w')
    k('v_lshrrev_b32 v3, 4, v1       ; grp')
    k('v_and_b32 v4, 15, v1          ; idx')
    k('v_lshrrev_b32 v5, 2, v4')
    k('v_and_b32 v6, 3, v4')
    k('v_lshl_add_u32 v7, v6, 3, v5  ; row = 8c + r')
    k('v_lshl_or_b32 v8, v6, 2, v5   ; f = r | c<<2')
    k('v_mul_u32_u24 v7, 1280, v7')
    k('v_and_b32 v9, 1, v3')
    k('v_lshl_add_u32 v7, v9, 3, v7')
    k('v_lshrrev_b32 v9, 1, v3')
    k('v_mul_u32_u24 v10, 20, v2')
    k('v_add_u32 v9, v9, v10         ; ch0')
    k('v_mul_u32_u24 v10, 40, v2\nv_add_u32 v10, v10, v3\nv_lshlrev_b32 v10, 14, v10')
    k('v_lshl_add_u32 v10, v5, 6, v10\nv_lshl_add_u32 v10, v6, 4, v10')
    k('s_lshl_b32 s16, s3, 3\nv_add_u32 v10, s16, v10')
    k('s_waitcnt lgkmcnt(0)\ns_barrier')
    for it in range(10):
        k(f'v_add_u32 v11, {2*it}, v9\nv_xor_b32 v11, v11, v8\nv_lshl_add_u32 v11, v11, 4, v7')
        r = 16 + 4 * it
        k(f'ds_read_b64_tr_b16 v[{r}:{r+1}], v11\nds_read_b64_tr_b16 v[{r+2}:{r+3}], v11 offset:5120')
    for it in range(10):
        r = 16 + 4 * it
        k(f's_mov_b32 s16, {it*65536}')
        k(f's_waitcnt lgkmcnt({min(15, 2*(9-it))})')
        k(f'buffer_store_dwordx4 v[{r}:{r+3}], v10, s[12:15], s16 offen{WT}')
    if STAMPS: k('s_waitcnt vmcnt(0)')
    stamp_end(k, 0)
    k('s_endpgm')

    k.label('L_k1_mod')
    load_ptr(k, 4, 'wmod'); load_ptr(k, 8, 'c'); load_ptr(k, 12, 'ws')
    k(f's_sub_u32 s3, s2, {B_MOD}')
    k('s_lshr_b32 s16, s3, 2          ; cb\ns_and_b32 s17, s3, 3     ; kq')
    k('v_lshrrev_b32 v1, 4, v0       ; rg\nv_and_b32 v2, 15, v0    ; c')
    k('v_mul_u32_u24 v4, 7680, v1\nv_lshl_add_u32 v4, v2, 4, v4')
    k(f's_mul_i32 s18, s17, {160*7680}\ns_lshl_b32 s19, s16, 8\ns_add_u32 s18, s18, s19')
    k('s_mul_i32 s19, s17, 320\nv_lshlrev_b32 v5, 1, v1\nv_add_u32 v5, s19, v5')
    k('s_waitcnt lgkmcnt(0)')
    srd_fin(k, 4, SZ['wmod']); srd_fin(k, 8, SZ['c']); srd_fin(k, 12, 4 * 3840 * 4, WS_MODP)
    for p in range(10):
        k(f'buffer_load_ushort v{56+p}, v5, s[8:11], 0 offen offset:{32*p}')
    for p in range(10):
        k(f'buffer_load_dwordx4 v[{16+4*p}:{19+4*p}], v4, s[4:7], s18 offen{NT}')
        if p < 9: k('s_add_u32 s18, s18, 122880')
    k('s_waitcnt vmcnt(10)')
    for p in range(10):
        k(f'v_lshlrev_b32 v{56+p}, 16, v{56+p}')
    for p in range(10):
        k(f'v_mul_f32 v{66+p}, {NLOG2E:#x}, v{56+p}')
    for p in range(10):
        k(f'v_exp_f32 v{66+p}, v{66+p}')
    for p in range(10):
        k(f'v_add_f32 v{66+p}, 1.0, v{66+p}')
    for p in range(10):
        k(f'v_rcp_f32 v{66+p}, v{66+p}')
    for p in range(10):
        k(f'v_mul_f32 v{56+p}, v{56+p}, v{66+p}')
    for p in range(10):
        k(f'v_cvt_pk_bf16_f32 v{56+p}, v{56+p}, 0        ; (s,0)')
    for p in range(10):
        k(f'v_lshlrev_b32 v{66+p}, 16, v{56+p}           ; (0,s)')
    for p in range(10):
        k(f's_waitcnt vmcnt({9-p})')
        for i in range(4):
            k(f'v_dot2_f32_bf16 v{76+2*i}, v{16+4*p+i}, v{56+p}, ' + ('0' if p == 0 else f'v{76+2*i}'))
            k(f'v_dot2_f32_bf16 v{77+2*i}, v{16+4*p+i}, v{66+p}, ' + ('0' if p == 0 else f'v{77+2*i}'))
    k('v_lshlrev_b32 v6, 5, v0')
    k('ds_write_b128 v6, v[76:79]\nds_write_b128 v6, v[80:83] offset:16')
    k('s_waitcnt lgkmcnt(0)\ns_barrier')
    k('v_cmp_gt_u32 vcc, 128, v0')
    k('s_and_saveexec_b64 s[20:21], vcc')
    k('s_cbranch_execz L_k1_mod_end')
    k('v_lshlrev_b32 v6, 2, v0')
    for rg in range(16):
        k(f'ds_read_b32 v{16+rg}, v6 offset:{rg*512}')
    k('s_waitcnt lgkmcnt(0)')
    for st in (8, 4, 2, 1):
        for i in range(st):
            k(f'v_add_f32 v{16+i}, v{16+i}, v{16+i+st}')
    k('s_mul_i32 s19, s17, 15360\ns_lshl_b32 s22, s16, 9\ns_add_u32 s19, s19, s22')
    k(f'buffer_store_dword v16, v6, s[12:15], s19 offen{WT}')
    k.label('L_k1_mod_end')
    k('s_mov_b64 exec, s[20:21]')
    if STAMPS: k('s_waitcnt vmcnt(0)')
    stamp_end(k, 0)
    k('s_endpgm')
    k.label('L_k1_wd')
    load_ptr(k, 4, 'wd'); load_ptr(k, 8, 'ws')
    k(f's_sub_u32 s3, s2, {N_LN+N_MOD+N_KG}      ; kappa')
    k('v_and_b32 v1, 63, v0\nv_lshrrev_b32 v2, 6, v0\nv_lshlrev_b32 v3, 4, v1\nv_readfirstlane_b32 s16, v2')
    k('s_mul_i32 s17, s3, 40960')
    k('s_mul_i32 s18, s16, 10240\ns_add_u32 s17, s17, s18')
    k('s_waitcnt lgkmcnt(0)')
    srd_fin(k, 4, SZ['wd'])
    k(f's_add_u32 s12, s8, {WS_WD}\ns_addc_u32 s13, s9, 0\ns_mov_b32 s14, 1966080\ns_mov_b32 s15, {SRD3:#x}')
    for q in range(10):
        k(f's_add_u32 m0, s18, {q*1024}')
        k(f's_add_u32 s19, s17, {q*1024}')
        k(f'buffer_load_dwordx4 v3, s[4:7], s19 offen{NT} lds')
    if CODEPF:
        k('s_getpc_b64 s[28:29]')
        k.label('L_k1_pc2')
        k('s_add_u32 s28, s28, conv_kernel-L_k1_pc2\ns_addc_u32 s29, s29, 0')
        k('s_mov_b32 s30, code_end-conv_kernel\ns_mov_b32 s31, 0x20000')
        k('v_lshlrev_b32 v60, 4, v0')
        for q in range(8):
            k(f's_mov_b32 s27, {q*4096}')
            k(f'buffer_load_dwordx4 v[{64+4*q}:{67+4*q}], v60, s[28:31], s27 offen')
    k(f's_add_u32 s20, s8, {WS_FLAGS}\ns_addc_u32 s21, s9, 0\ns_mov_b32 s22, {WS_SP - WS_FLAGS + 327680}\ns_mov_b32 s23, {SRD3:#x}')
    k('v_mov_b32 v8, 0\nv_mov_b32 v9, 0\nv_mov_b32 v10, 0\nv_mov_b32 v11, 0\nv_lshlrev_b32 v4, 4, v0')
    k('s_cmp_lg_u32 s3, 0\ns_cbranch_scc1 L_k1_wd_nz')
    k(f'buffer_store_dwordx4 v[8:11], v4, s[20:23], 0 offen{WT}')
    k.label('L_k1_wd_nz')
    k('s_cmp_ge_u32 s3, 40\ns_cbranch_scc1 L_k1_wd_nz2')
    k(f's_lshl_b32 s26, s3, 13\ns_add_u32 s26, s26, {WS_SP - WS_FLAGS}')
    k(f'buffer_store_dwordx4 v[8:11], v4, s[20:23], s26 offen{WT}')
    k('s_add_u32 s26, s26, 4096')
    k(f'buffer_store_dwordx4 v[8:11], v4, s[20:23], s26 offen{WT}')
    k.label('L_k1_wd_nz2')
    k('v_lshrrev_b32 v5, 4, v1\nv_and_b32 v6, 15, v1\nv_lshrrev_b32 v7, 2, v6\nv_and_b32 v6, 3, v6')
    k('v_lshrrev_b32 v12, 1, v5\nv_lshlrev_b32 v12, 4, v12\nv_and_b32 v13, 1, v5\nv_lshl_add_u32 v12, v13, 2, v12\nv_add_u32 v12, v12, v7')
    k('v_mul_u32_u24 v12, 1280, v12\nv_lshl_add_u32 v12, v6, 3, v12')
    k('s_mul_i32 s24, s16, 320\nv_add_u32 v12, s24, v12')
    k('s_mul_i32 s24, s16, 96\ns_add_u32 s24, s24, s3\ns_mul_i32 s24, s24, 5120')
    k('s_waitcnt vmcnt(0)\ns_barrier')
    for b in range(2):
        for dt in range(5):
            r = 16 + 4 * (5 * b + dt)
            o = 160 * b + 32 * dt
            k(f'ds_read_b64_tr_b16 v[{r}:{r+1}], v12 offset:{o}\nds_read_b64_tr_b16 v[{r+2}:{r+3}], v12 offset:{o + 8*1280}')
    for b in range(2):
        for dt in range(5):
            r = 16 + 4 * (5 * b + dt)
            k(f's_waitcnt lgkmcnt({min(15, 2*(9 - 5*b - dt))})')
            k(f's_add_u32 s25, s24, {b*48*5120 + dt*1024}')
            k(f'buffer_store_dwordx4 v[{r}:{r+3}], v3, s[12:15], s25 offen{WT}')
    if STAMPS: k('s_waitcnt vmcnt(0)')
    stamp_end(k, 0)
    k('s_endpgm')
    return k

def hexf(x):
    import struct
    return hex(struct.unpack('<I', struct.pack('<f', float(x)))[0])

def ktable_data():
    t = ktable()
    s = 'code_end:\n.p2align 8\n.type ktable,@object\nktable:\n'
    for i in range(0, 2048, 16):
        s += '.short ' + ', '.join(str(x) for x in t[i:i + 16]) + '\n'
    s += '.size ktable, 4096\n'
    return s
```

```python
from asmlib import K
from common import *

import os
FUSEK = os.environ.get('FUSEK', '0') == '1'
N_LN, N_MOD, N_KG, N_WD = 64, 120, (0 if FUSEK else 640), 48
K1_GRID = N_LN + N_MOD + N_KG + N_WD
K1_LDS = 40960
import os
KGFIRST = os.environ.get('KGFIRST', '1') == '1'
CODEPF = os.environ.get('CODEPF', '1') == '1'
SELFPF = os.environ.get('SELFPF', '0') == '1'
B_KG = 0 if KGFIRST else N_LN + N_MOD
B_LN = N_KG if KGFIRST else 0
B_MOD = N_KG + N_LN if KGFIRST else N_LN

import os as _os
def cmul(k, dst, x, y, tmp):
    if _os.environ.get('PKCMUL', '1') == '1':
        k(f'v_pk_mul_f32 v[{tmp}:{tmp+1}], v[{x}:{x+1}], v[{y}:{y+1}] op_sel:[0,0] op_sel_hi:[0,1]')
        k(f'v_pk_fma_f32 v[{dst}:{dst+1}], v[{x}:{x+1}], v[{y}:{y+1}], v[{tmp}:{tmp+1}] op_sel:[1,1,0] op_sel_hi:[1,0,1] neg_lo:[1,0,0]')
    else:
        assert dst != y or x == y and False or dst != y
        k(f'v_mul_f32 v{tmp}, v{x}, v{y}\nv_mul_f32 v{tmp+1}, v{x}, v{y+1}')
        k(f'v_fma_f32 v{dst}, -v{x+1}, v{y+1}, v{tmp}\nv_fma_f32 v{dst+1}, v{x+1}, v{y}, v{tmp+1}')

def build_k1():
    k = K('prep_kernel')
    stamp_begin(k)
    if SELFPF:
        k('s_cmp_ge_u32 s2, 32\ns_cbranch_scc1 L_k1_nopf')
        k('s_getpc_b64 s[28:29]')
        k.label('L_k1_pc0')
        k('s_mov_b32 s30, conv_kernel-L_k1_pc0\ns_mov_b32 s31, 0x20000')
        k('v_lshlrev_b32 v60, 4, v0')
        k('buffer_load_dwordx4 v[100:103], v60, s[28:31], 0 offen')
        k('s_mov_b32 s27, 4096')
        k('buffer_load_dwordx4 v[104:107], v60, s[28:31], s27 offen')
        k.label('L_k1_nopf')
    if KGFIRST:
        k(f's_cmp_lt_u32 s2, {N_KG}\ns_cbranch_scc1 L_k1_kg')
        k(f's_cmp_lt_u32 s2, {N_KG+N_LN}\ns_cbranch_scc1 L_k1_ln')
        k(f's_cmp_lt_u32 s2, {N_KG+N_LN+N_MOD}\ns_cbranch_scc1 L_k1_mod')
    else:
        k(f's_cmp_lt_u32 s2, {N_LN}\ns_cbranch_scc1 L_k1_ln')
        k(f's_cmp_lt_u32 s2, {N_LN+N_MOD}\ns_cbranch_scc1 L_k1_mod')
        k(f's_cmp_lt_u32 s2, {N_LN+N_MOD+N_KG}\ns_cbranch_scc1 L_k1_kg')
    k(f's_cmp_lt_u32 s2, {K1_GRID}\ns_cbranch_scc1 L_k1_wd')
    k('s_endpgm')

    k.label('L_k1_kg')
    if os.environ.get('KGPRIO') == '1': k('s_setprio 1')
    k(f's_sub_u32 s3, s2, {B_KG}      ; d')
    load_ptr(k, 4, 'lar'); load_ptr(k, 8, 'aim'); load_ptr(k, 12, 'cr'); load_ptr(k, 16, 'ci'); load_ptr(k, 20, 'ldt'); load_ptr(k, 24, 'ws')
    k('s_getpc_b64 s[28:29]')
    k.label('L_k1_pc')
    k('s_add_u32 s28, s28, ktable-L_k1_pc\ns_addc_u32 s29, s29, 0')
    k('v_lshrrev_b32 v1, 6, v0')
    k('v_and_b32 v2, 63, v0            ; lane')
    k('v_readfirstlane_b32 s30, v1     ; wave')
    k('v_lshlrev_b32 v3, 4, v0         ; t*16')
    k('global_load_dwordx4 v[60:63], v3, s[28:29]')
    k('s_mul_i32 s31, s3, 384')
    k('v_lshlrev_b32 v4, 1, v0')
    k('v_add_u32 v4, s31, v4           ; d*384 + n*2')
    k('s_lshl_b32 s32, s3, 1')
    k('v_mov_b32 v5, s32')
    k('s_waitcnt lgkmcnt(0)')
    for s, n in ((4, 'lar'), (8, 'aim'), (12, 'cr'), (16, 'ci'), (20, 'ldt')):
        srd_fin(k, s, SZ[n])
    srd_fin(k, 24, 640 * 4096, WS_R)
    k('s_cmp_ge_u32 s30, 3\ns_cbranch_scc1 L_k1_kg_sync1')
    k('buffer_load_ushort v6, v5, s[20:23], 0 offen')
    k('buffer_load_ushort v7, v4, s[4:7], 0 offen')
    k('buffer_load_ushort v8, v4, s[8:11], 0 offen')
    k('buffer_load_ushort v9, v4, s[12:15], 0 offen')
    k('buffer_load_ushort v10, v4, s[16:19], 0 offen')
    k('s_mul_i32 s33, s30, 13568')
    k('v_lshlrev_b32 v11, 2, v2')
    for kk in range(16):
        k(f'v_xor_b32 v{64+kk}, {16*kk}, v11')
    for kk in range(16):
        k(f'v_add_u32 v{64+kk}, s33, v{64+kk}')
    k('v_and_b32 v12, 31, v2           ; m')
    k('v_lshrrev_b32 v13, 5, v2        ; g')
    k('v_and_b32 v14, 15, v12')
    k('v_xor_b32 v14, v14, v13')
    k('v_lshlrev_b32 v14, 4, v14       ; 16*(g ^ (m&15))')
    k('v_lshl_add_u32 v14, v12, 8, v14')
    k('v_add_u32 v14, s33, v14')
    k('s_waitcnt vmcnt(0)')
    stamp_mid(k, 0)
    k('v_lshlrev_b32 v6, 16, v6\nv_lshlrev_b32 v7, 16, v7\nv_lshlrev_b32 v8, 16, v8\nv_lshlrev_b32 v9, 16, v9\nv_lshlrev_b32 v10, 16, v10')
    k(f'v_mul_f32 v6, {LOG2E:#x}, v6\nv_mul_f32 v7, {LOG2E:#x}, v7')
    k('v_exp_f32 v6, v6\nv_exp_f32 v7, v7')
    k('v_cvt_pk_bf16_f32 v6, v6, v7')
    k('v_and_b32 v7, 0xffff0000, v6\nv_lshlrev_b32 v6, 16, v6')
    k('v_mul_f32 v7, v7, v6            ; are*dt')
    k(f'v_mul_f32 v7, {NLOG2E:#x}, v7    ; a2')
    k('v_mul_f32 v8, v8, v6            ; theta')
    k(f'v_mul_f32 v8, {INV2PI:#x}, v8    ; theta_r')
    k('v_add_f32 v6, v6, v6            ; 2dt')
    k('v_mul_f32 v16, v9, v6           ; Cbar.re')
    k('v_mul_f32 v17, v10, v6')
    k('v_sub_f32 v17, 0, v17')
    def direct(dst, p, sign, t0):
        k(f'v_mul_f32 v{t0}, {float(p)}, v7' if p in (1, 2, 4) else f'v_mul_f32 v{t0}, {hexf(p)}, v7')
        k(f'v_mul_f32 v{t0+1}, {hexf(sign*p)}, v8')
        k(f'v_exp_f32 v{t0}, v{t0}')
        k(f'v_fract_f32 v{t0+1}, v{t0+1}')
        k(f'v_cos_f32 v{dst}, v{t0+1}')
        k(f'v_sin_f32 v{dst+1}, v{t0+1}')
        k(f'v_mul_f32 v{dst}, v{dst}, v{t0}')
        k(f'v_mul_f32 v{dst+1}, v{dst+1}, v{t0}')
    direct(18, 1, -1, 24)
    direct(20, 256, -1, 26)
    direct(22, 8, +1, 28)
    ZB1, ZB256, W8 = 18, 20, 22
    ZB2, ZB4 = 30, 32
    A, B, T, L = 34, 36, 38, 40
    TA, TL = 42, 44
    C0 = 46
    rot = [0]
    def put(src, row, lo):
        t = C0 + (rot[0] % 8); rot[0] += 1
        k(f'v_cvt_pk_bf16_f32 v{t}, v{src}, v{src+1}')
        k(f'ds_write_b32 v{64 + (row & 15)}, v{t} offset:{row*256 + (5376 if lo else 0)}')
    hi = []
    hi.append(lambda: put(16, 0, False))
    hi.append(lambda: (cmul(k, A, 16, ZB1, TA), put(A, 1, False)))
    for m in range(2, 8):
        hi.append(lambda m=m: (cmul(k, A, A, ZB1, TA), put(A, m, False)))
    hi.append(lambda: cmul(k, ZB2, ZB1, ZB1, TA))
    hi.append(lambda: (cmul(k, B, 16, ZB256, TA), put(B, 8, False)))
    hi.append(lambda: cmul(k, ZB4, ZB2, ZB2, TA))
    hi.append(lambda: (cmul(k, T, B, ZB2, TA), put(T, 9, False)))
    hi.append(lambda: (cmul(k, T, T, ZB2, TA), put(T, 10, False)))
    hi.append(lambda: (cmul(k, T, T, ZB2, TA), put(T, 11, False)))
    hi.append(lambda: (cmul(k, B, B, ZB256, TA), put(B, 12, False)))
    hi.append(lambda: (cmul(k, T, B, ZB4, TA), put(T, 13, False)))
    hi.append(lambda: (cmul(k, B, B, ZB256, TA), put(B, 14, False)))
    hi.append(lambda: (cmul(k, T, B, ZB4, TA), put(T, 15, False)))
    for m in range(16, 21):
        hi.append(lambda m=m: (cmul(k, B, B, ZB256, TA), put(B, m, False)))
    lo = []
    lo.append(lambda: (k(f'v_mov_b32 v{L}, 1.0\nv_mov_b32 v{L+1}, 0'), put(L, 0, True)))
    lo.append(lambda: put(W8, 1, True))
    lo.append(lambda: (cmul(k, L, W8, W8, TL), put(L, 2, True)))
    for u in range(3, 32):
        lo.append(lambda u=u: (cmul(k, L, L, W8, TL), put(L, u, True)))
    i = j = 0
    while i < len(hi) or j < len(lo):
        if j < len(lo): lo[j](); j += 1
        if i < len(hi) and (i * len(lo) <= j * len(hi) or j >= len(lo)): hi[i](); i += 1
    k('s_waitcnt lgkmcnt(0)')
    stamp_mid(k, 1)
    for ks in range(8):
        k(f'v_xor_b32 v15, {32*ks}, v14')
        k(f'ds_read_b128 v[{24+8*(ks%4)}:{27+8*(ks%4)}], v15')
        k(f'ds_read_b128 v[{28+8*(ks%4)}:{31+8*(ks%4)}], v15 offset:5376')
        if ks >= 1:
            p = ks - 1
            k('s_waitcnt lgkmcnt(2)')
            k(f'v_mfma_f32_32x32x16_bf16 v[96:111], v[{24+8*(p%4)}:{27+8*(p%4)}], v[{28+8*(p%4)}:{31+8*(p%4)}], ' + ('0' if p == 0 else 'v[96:111]'))
    k('s_waitcnt lgkmcnt(0)')
    k('v_mfma_f32_32x32x16_bf16 v[96:111], v[48:51], v[52:55], v[96:111]')
    k('v_and_b32 v12, 31, v2\nv_lshrrev_b32 v13, 5, v2')
    k('v_lshlrev_b32 v12, 2, v12')
    k('v_lshl_add_u32 v12, v13, 9, v12')
    k('v_add_u32 v12, s33, v12')
    for j in range(3):
        for i in range(4):
            k(f'ds_write_b32 v12, v{96+4*j+i} offset:{(8*j+i)*128}')
    k.label('L_k1_kg_sync1')
    k('s_waitcnt lgkmcnt(0)\ns_barrier')
    stamp_mid(k, 2)
    k('v_cmp_gt_u32 vcc, 168, v0')
    k('s_and_saveexec_b64 s[34:35], vcc')
    k('s_cbranch_execz L_k1_kg_skip')
    k('ds_read_b128 v[24:27], v3\nds_read_b128 v[28:31], v3 offset:13568\nds_read_b128 v[32:35], v3 offset:27136')
    k('s_waitcnt lgkmcnt(0)')
    k('v_pk_add_f32 v[24:25], v[24:25], v[28:29]\nv_pk_add_f32 v[26:27], v[26:27], v[30:31]')
    k('v_pk_add_f32 v[24:25], v[24:25], v[32:33]\nv_pk_add_f32 v[26:27], v[26:27], v[34:35]')
    k('v_cvt_pk_bf16_f32 v24, v24, v25\nv_cvt_pk_bf16_f32 v25, v26, v27')
    k('v_lshlrev_b32 v12, 3, v0')
    k('ds_write_b64 v12, v[24:25] offset:4096')
    k.label('L_k1_kg_skip')
    k('s_mov_b64 exec, s[34:35]')
    k('s_waitcnt vmcnt(0) lgkmcnt(0)\ns_barrier')
    for q in range(4):
        k(f'v_and_b32 v{24+2*q}, 0xffff, v{60+q}\nv_lshrrev_b32 v{25+2*q}, 16, v{60+q}')
    for q in range(4):
        k(f'ds_read_u16 v{36+q}, v{24+2*q} offset:4096')
        k(f'ds_read_u16 v{40+q}, v{25+2*q} offset:4096')
    k('s_lshl_b32 s33, s3, 12')
    k('s_waitcnt lgkmcnt(0)')
    for q in range(4):
        k(f'v_lshl_or_b32 v{36+q}, v{40+q}, 16, v{36+q}')
    k(f'buffer_store_dwordx4 v[36:39], v3, s[24:27], s33 offen{WT}')
    if STAMPS: k('s_waitcnt vmcnt(0)')
    stamp_end(k, 0)
    k('s_endpgm')

    k.label('L_k1_ln')
    load_ptr(k, 4, 'u'); load_ptr(k, 8, 'ws'); load_ptr(k, 12, 'ws')
    k('v_lshrrev_b32 v1, 4, v0       ; rg')
    k('v_and_b32 v2, 15, v0          ; c')
    k(f's_sub_u32 s3, s2, {B_LN}\ns_lshl_b32 s3, s3, 5          ; l0')
    k('v_add_u32 v3, s3, v1')
    k('v_mul_u32_u24 v4, 1280, v3')
    k('v_lshl_add_u32 v4, v2, 4, v4')
    k('s_mov_b32 s16, 20480')
    k('s_mov_b32 s17, 0x3f803f80')
    k('s_waitcnt lgkmcnt(0)')
    srd_fin(k, 4, SZ['u']); srd_fin(k, 8, 8192, WS_STATS); srd_fin(k, 12, 2621440, WS_XT)
    for p in range(2):
        for q in range(5):
            r = 16 + 4 * (5 * p + q)
            k(f'buffer_load_dwordx4 v[{r}:{r+3}], v4, s[4:7], {"s16" if p else "0"} offen offset:{256*q}{NT}')
    k('v_and_b32 v5, 3, v1\nv_lshrrev_b32 v6, 3, v1\nv_lshl_or_b32 v5, v6, 2, v5     ; f0')
    k('v_xor_b32 v5, v5, v2          ; c ^ f0')
    k('v_mul_u32_u24 v6, 1280, v1')
    k('v_xor_b32 v7, 8, v5')
    k('v_lshl_add_u32 v5, v5, 4, v6          ; p=0 addr')
    k('v_lshl_add_u32 v6, v7, 4, v6          ; p=1 addr - 20480')
    for p in range(2):
        k(f's_waitcnt vmcnt({5 if p == 0 else 0})')
        for q in range(5):
            r = 16 + 4 * (5 * p + q)
            k(f'ds_write_b128 v{5+p}, v[{r}:{r+3}] offset:{256*q + 20480*p}')
        for q in range(5):
            r = 16 + 4 * (5 * p + q)
            for i in range(4):
                first = (q == 0 and i == 0)
                k(f'v_dot2_f32_bf16 v{8+2*p}, v{r+i}, s17, ' + ('0' if first else f'v{8+2*p}'))
                k(f'v_dot2_f32_bf16 v{9+2*p}, v{r+i}, v{r+i}, ' + ('0' if first else f'v{9+2*p}'))
    for sh in (8, 4, 2, 1):
        for v in (8, 9, 10, 11):
            k(f'v_add_f32_dpp v{v}, v{v}, v{v} row_ror:{sh} row_mask:0xf bank_mask:0xf')
    for p in range(2):
        a, b = 8 + 2 * p, 9 + 2 * p
        k(f'v_mul_f32 v{a}, 0x3acccccd, v{a}          ; mean')
        k(f'v_mul_f32 v{b}, 0x3acccccd, v{b}')
        k(f'v_fma_f32 v{b}, -v{a}, v{a}, v{b}         ; var')
        k(f'v_max_f32 v{b}, 0, v{b}')
        k(f'v_cvt_pk_bf16_f32 v{b}, v{b}, v{b}\nv_lshlrev_b32 v{b}, 16, v{b}')
        k(f'v_add_f32 v{b}, 0x3727c5ac, v{b}')
        k(f'v_cvt_pk_bf16_f32 v{b}, v{b}, v{b}\nv_lshlrev_b32 v{b}, 16, v{b}')
        k(f'v_sqrt_f32 v{b}, v{b}')
        k(f'v_cvt_pk_bf16_f32 v{a}, v{a}, v{b}')
    k('v_lshlrev_b32 v7, 2, v3')
    k('v_cmp_eq_u32 vcc, 0, v2')
    k('s_and_saveexec_b64 s[18:19], vcc')
    k('s_cbranch_execz L_k1_ln_nost')
    k(f'buffer_store_dword v8, v7, s[8:11], 0 offen{WT}')
    k(f'buffer_store_dword v10, v7, s[8:11], 0 offen offset:64{WT}')
    k.label('L_k1_ln_nost')
    k('s_mov_b64 exec, s[18:19]')
    k('v_and_b32 v1, 63, v0          ; lane')
    k('v_lshrrev_b32 v2, 6, v0       ; w')
    k('v_lshrrev_b32 v3, 4, v1       ; grp')
    k('v_and_b32 v4, 15, v1          ; idx')
    k('v_lshrrev_b32 v5, 2, v4')
    k('v_and_b32 v6, 3, v4')
    k('v_lshl_add_u32 v7, v6, 3, v5  ; row = 8c + r')
    k('v_lshl_or_b32 v8, v6, 2, v5   ; f = r | c<<2')
    k('v_mul_u32_u24 v7, 1280, v7')
    k('v_and_b32 v9, 1, v3')
    k('v_lshl_add_u32 v7, v9, 3, v7')
    k('v_lshrrev_b32 v9, 1, v3')
    k('v_mul_u32_u24 v10, 20, v2')
    k('v_add_u32 v9, v9, v10         ; ch0')
    k('v_mul_u32_u24 v10, 40, v2\nv_add_u32 v10, v10, v3\nv_lshlrev_b32 v10, 14, v10')
    k('v_lshl_add_u32 v10, v5, 6, v10\nv_lshl_add_u32 v10, v6, 4, v10')
    k('s_lshl_b32 s16, s3, 3\nv_add_u32 v10, s16, v10')
    k('s_waitcnt lgkmcnt(0)\ns_barrier')
    for it in range(10):
        k(f'v_add_u32 v11, {2*it}, v9\nv_xor_b32 v11, v11, v8\nv_lshl_add_u32 v11, v11, 4, v7')
        r = 16 + 4 * it
        k(f'ds_read_b64_tr_b16 v[{r}:{r+1}], v11\nds_read_b64_tr_b16 v[{r+2}:{r+3}], v11 offset:5120')
    for it in range(10):
        r = 16 + 4 * it
        k(f's_mov_b32 s16, {it*65536}')
        k(f's_waitcnt lgkmcnt({min(15, 2*(9-it))})')
        k(f'buffer_store_dwordx4 v[{r}:{r+3}], v10, s[12:15], s16 offen{WT}')
    if STAMPS: k('s_waitcnt vmcnt(0)')
    stamp_end(k, 0)
    k('s_endpgm')

    k.label('L_k1_mod')
    load_ptr(k, 4, 'wmod'); load_ptr(k, 8, 'c'); load_ptr(k, 12, 'ws')
    k(f's_sub_u32 s3, s2, {B_MOD}')
    k('s_lshr_b32 s16, s3, 2          ; cb\ns_and_b32 s17, s3, 3     ; kq')
    k('v_lshrrev_b32 v1, 4, v0       ; rg\nv_and_b32 v2, 15, v0    ; c')
    k('v_mul_u32_u24 v4, 7680, v1\nv_lshl_add_u32 v4, v2, 4, v4')
    k(f's_mul_i32 s18, s17, {160*7680}\ns_lshl_b32 s19, s16, 8\ns_add_u32 s18, s18, s19')
    k('s_mul_i32 s19, s17, 320\nv_lshlrev_b32 v5, 1, v1\nv_add_u32 v5, s19, v5')
    k('s_waitcnt lgkmcnt(0)')
    srd_fin(k, 4, SZ['wmod']); srd_fin(k, 8, SZ['c']); srd_fin(k, 12, 4 * 3840 * 4, WS_MODP)
    for p in range(10):
        k(f'buffer_load_ushort v{56+p}, v5, s[8:11], 0 offen offset:{32*p}')
    for p in range(10):
        k(f'buffer_load_dwordx4 v[{16+4*p}:{19+4*p}], v4, s[4:7], s18 offen{NT}')
        if p < 9: k('s_add_u32 s18, s18, 122880')
    k('s_waitcnt vmcnt(10)')
    for p in range(10):
        k(f'v_lshlrev_b32 v{56+p}, 16, v{56+p}')
    for p in range(10):
        k(f'v_mul_f32 v{66+p}, {NLOG2E:#x}, v{56+p}')
    for p in range(10):
        k(f'v_exp_f32 v{66+p}, v{66+p}')
    for p in range(10):
        k(f'v_add_f32 v{66+p}, 1.0, v{66+p}')
    for p in range(10):
        k(f'v_rcp_f32 v{66+p}, v{66+p}')
    for p in range(10):
        k(f'v_mul_f32 v{56+p}, v{56+p}, v{66+p}')
    for p in range(10):
        k(f'v_cvt_pk_bf16_f32 v{56+p}, v{56+p}, 0        ; (s,0)')
    for p in range(10):
        k(f'v_lshlrev_b32 v{66+p}, 16, v{56+p}           ; (0,s)')
    for p in range(10):
        k(f's_waitcnt vmcnt({9-p})')
        for i in range(4):
            k(f'v_dot2_f32_bf16 v{76+2*i}, v{16+4*p+i}, v{56+p}, ' + ('0' if p == 0 else f'v{76+2*i}'))
            k(f'v_dot2_f32_bf16 v{77+2*i}, v{16+4*p+i}, v{66+p}, ' + ('0' if p == 0 else f'v{77+2*i}'))
    k('v_lshlrev_b32 v6, 5, v0')
    k('ds_write_b128 v6, v[76:79]\nds_write_b128 v6, v[80:83] offset:16')
    k('s_waitcnt lgkmcnt(0)\ns_barrier')
    k('v_cmp_gt_u32 vcc, 128, v0')
    k('s_and_saveexec_b64 s[20:21], vcc')
    k('s_cbranch_execz L_k1_mod_end')
    k('v_lshlrev_b32 v6, 2, v0')
    for rg in range(16):
        k(f'ds_read_b32 v{16+rg}, v6 offset:{rg*512}')
    k('s_waitcnt lgkmcnt(0)')
    for st in (8, 4, 2, 1):
        for i in range(st):
            k(f'v_add_f32 v{16+i}, v{16+i}, v{16+i+st}')
    k('s_mul_i32 s19, s17, 15360\ns_lshl_b32 s22, s16, 9\ns_add_u32 s19, s19, s22')
    k(f'buffer_store_dword v16, v6, s[12:15], s19 offen{WT}')
    k.label('L_k1_mod_end')
    k('s_mov_b64 exec, s[20:21]')
    if STAMPS: k('s_waitcnt vmcnt(0)')
    stamp_end(k, 0)
    k('s_endpgm')
    k.label('L_k1_wd')
    load_ptr(k, 4, 'wd'); load_ptr(k, 8, 'ws')
    k(f's_sub_u32 s3, s2, {N_LN+N_MOD+N_KG}      ; kappa')
    k('v_and_b32 v1, 63, v0\nv_lshrrev_b32 v2, 6, v0\nv_lshlrev_b32 v3, 4, v1\nv_readfirstlane_b32 s16, v2')
    k('s_mul_i32 s17, s3, 40960')
    k('s_mul_i32 s18, s16, 10240\ns_add_u32 s17, s17, s18')
    k('s_waitcnt lgkmcnt(0)')
    srd_fin(k, 4, SZ['wd'])
    k(f's_add_u32 s12, s8, {WS_WD}\ns_addc_u32 s13, s9, 0\ns_mov_b32 s14, 1966080\ns_mov_b32 s15, {SRD3:#x}')
    for q in range(10):
        k(f's_add_u32 m0, s18, {q*1024}')
        k(f's_add_u32 s19, s17, {q*1024}')
        k(f'buffer_load_dwordx4 v3, s[4:7], s19 offen{NT} lds')
    if CODEPF:
        k('s_getpc_b64 s[28:29]')
        k.label('L_k1_pc2')
        k('s_add_u32 s28, s28, conv_kernel-L_k1_pc2\ns_addc_u32 s29, s29, 0')
        k('s_mov_b32 s30, code_end-conv_kernel\ns_mov_b32 s31, 0x20000')
        k('v_lshlrev_b32 v60, 4, v0')
        for q in range(11):
            k(f's_mov_b32 s27, {q*4096}')
            k(f'buffer_load_dwordx4 v[{64+4*q}:{67+4*q}], v60, s[28:31], s27 offen')
    k(f's_add_u32 s20, s8, {WS_FLAGS}\ns_addc_u32 s21, s9, 0\ns_mov_b32 s22, {WS_SP - WS_FLAGS + 327680}\ns_mov_b32 s23, {SRD3:#x}')
    k('v_mov_b32 v8, 0\nv_mov_b32 v9, 0\nv_mov_b32 v10, 0\nv_mov_b32 v11, 0\nv_lshlrev_b32 v4, 4, v0')
    k('s_cmp_lg_u32 s3, 0\ns_cbranch_scc1 L_k1_wd_nz')
    k(f'buffer_store_dwordx4 v[8:11], v4, s[20:23], 0 offen{WT}')
    k.label('L_k1_wd_nz')
    k('s_cmp_ge_u32 s3, 40\ns_cbranch_scc1 L_k1_wd_nz2')
    k(f's_lshl_b32 s26, s3, 13\ns_add_u32 s26, s26, {WS_SP - WS_FLAGS}')
    k(f'buffer_store_dwordx4 v[8:11], v4, s[20:23], s26 offen{WT}')
    k('s_add_u32 s26, s26, 4096')
    k(f'buffer_store_dwordx4 v[8:11], v4, s[20:23], s26 offen{WT}')
    k.label('L_k1_wd_nz2')
    k('v_lshrrev_b32 v5, 4, v1\nv_and_b32 v6, 15, v1\nv_lshrrev_b32 v7, 2, v6\nv_and_b32 v6, 3, v6')
    k('v_lshrrev_b32 v12, 1, v5\nv_lshlrev_b32 v12, 4, v12\nv_and_b32 v13, 1, v5\nv_lshl_add_u32 v12, v13, 2, v12\nv_add_u32 v12, v12, v7')
    k('v_mul_u32_u24 v12, 1280, v12\nv_lshl_add_u32 v12, v6, 3, v12')
    k('s_mul_i32 s24, s16, 320\nv_add_u32 v12, s24, v12')
    k('s_mul_i32 s24, s16, 96\ns_add_u32 s24, s24, s3\ns_mul_i32 s24, s24, 5120')
    k('s_waitcnt vmcnt(0)\ns_barrier')
    for b in range(2):
        for dt in range(5):
            r = 16 + 4 * (5 * b + dt)
            o = 160 * b + 32 * dt
            k(f'ds_read_b64_tr_b16 v[{r}:{r+1}], v12 offset:{o}\nds_read_b64_tr_b16 v[{r+2}:{r+3}], v12 offset:{o + 8*1280}')
    for b in range(2):
        for dt in range(5):
            r = 16 + 4 * (5 * b + dt)
            k(f's_waitcnt lgkmcnt({min(15, 2*(9 - 5*b - dt))})')
            k(f's_add_u32 s25, s24, {b*48*5120 + dt*1024}')
            k(f'buffer_store_dwordx4 v[{r}:{r+3}], v3, s[12:15], s25 offen{WT}')
    if STAMPS: k('s_waitcnt vmcnt(0)')
    stamp_end(k, 0)
    k('s_endpgm')
    return k

def hexf(x):
    import struct
    return hex(struct.unpack('<I', struct.pack('<f', float(x)))[0])

def ktable_data():
    t = ktable() + [1344] * 16
    s = 'code_end:\n.p2align 8\n.type ktable,@object\nktable:\n'
    for i in range(0, 2064, 16):
        s += '.short ' + ', '.join(str(x) for x in t[i:i + 16]) + '\n'
    s += '.size ktable, 4128\n'
    return s
```

```python
from asmlib import K
from common import *
import os

import os
N_WP, N_CV = 120, int(os.environ.get('EXP_NCV', 640))
K2_GRID = N_WP + N_CV
K2_LDS = 40960
CVFIRST = os.environ.get('CVFIRST', '1') == '1'

def build_k2():
    k = K('conv_kernel')
    stamp_begin(k)
    if CVFIRST:
        k(f's_cmp_lt_u32 s2, {N_CV}\ns_cbranch_scc1 L_k2_cv')
        k(f's_cmp_lt_u32 s2, {K2_GRID}\ns_cbranch_scc1 L_k2_wp')
    else:
        k(f's_cmp_lt_u32 s2, {N_WP}\ns_cbranch_scc1 L_k2_wp')
        k(f's_cmp_lt_u32 s2, {K2_GRID}\ns_cbranch_scc1 L_k2_cv')
    k('s_endpgm')

    k.label('L_k2_cv')
    load_ptr(k, 4, 'ws'); load_ptr(k, 20, 'dsk')
    k(f's_sub_u32 s3, s2, {0 if CVFIRST else N_WP}')
    k('s_and_b32 s24, s3, 0xffffffe0\ns_and_b32 s25, s3, 7\ns_lshl_b32 s25, s25, 2\ns_or_b32 s24, s24, s25')
    k('s_lshr_b32 s25, s3, 3\ns_and_b32 s25, s25, 3\ns_or_b32 s3, s24, s25          ; d')
    k('v_lshlrev_b32 v1, 6, v0            ; t*64')
    k('s_and_b32 s24, s3, 3\ns_lshl_b32 s24, s24, 4')
    k('v_add_u32 v1, s24, v1')
    if os.environ.get('EXP_XT'): k('v_lshlrev_b32 v1, 4, v0')
    k('v_lshlrev_b32 v2, 5, v0')
    k('v_lshlrev_b32 v3, 4, v0            ; t*16')
    k('s_lshr_b32 s25, s3, 2\ns_lshl_b32 s25, s25, 14')
    if os.environ.get('EXP_XT'): k('s_lshl_b32 s25, s3, 12')
    k('s_lshl_b32 s26, s3, 12             ; d*4096')
    k('s_lshl_b32 s27, s3, 2              ; d*4')
    k('s_lshr_b32 s28, s3, 1\ns_lshl_b32 s28, s28, 2')
    k('s_waitcnt lgkmcnt(0)')
    stamp_mid(k, 3)
    k('s_add_u32 s30, s4, s27\ns_addc_u32 s31, s5, 0')
    for kq in range(4):
        for i in range(3):
            k(f's_load_dword s{40+4*i+kq}, s[30:31], {WS_MODP + kq*15360 + i*2560}')
    k('s_add_u32 s20, s20, s28\ns_addc_u32 s21, s21, 0')
    k('s_load_dword s52, s[20:21], 0')
    k(f's_add_u32 s8, s4, {WS_XT}\ns_addc_u32 s9, s5, 0\ns_mov_b32 s10, 2621440\ns_mov_b32 s11, {SRD3:#x}')
    k(f's_add_u32 s12, s4, {WS_STATS}\ns_addc_u32 s13, s5, 0\ns_mov_b32 s14, 8192\ns_mov_b32 s15, {SRD3:#x}')
    k(f's_add_u32 s16, s4, {WS_R}\ns_addc_u32 s17, s5, 0\ns_add_u32 s16, s16, s26\ns_addc_u32 s17, s17, 0\ns_mov_b32 s18, 4096\ns_mov_b32 s19, {SRD3:#x}')
    k('buffer_load_dwordx4 v[8:11], v3, s[16:19], 0 offen')
    k('buffer_load_dwordx4 v[12:15], v3, s[16:19], 0 offen offset:4')
    k('buffer_load_dwordx4 v[16:19], v3, s[16:19], 0 offen offset:8')
    k('buffer_load_dwordx4 v[20:23], v1, s[8:11], s25 offen        ; x')
    k('buffer_load_dwordx4 v[24:27], v2, s[12:15], 0 offen')
    k('buffer_load_dwordx4 v[28:31], v2, s[12:15], 0 offen offset:16')
    k(f's_add_u32 s32, s4, {WS_X2T}\ns_addc_u32 s33, s5, 0\ns_mov_b32 s34, 2621440\ns_mov_b32 s35, {SRD3:#x}')
    HB = 16640
    k('v_mov_b32 v32, 0\nv_mov_b32 v33, 0\nv_mov_b32 v34, 0\nv_mov_b32 v35, 0')
    k('v_lshrrev_b32 v4, 2, v0\nv_and_b32 v5, 3, v0')
    k('v_mul_u32_u24 v6, 80, v4\nv_lshl_add_u32 v6, v5, 4, v6        ; (t>>2)*80 + (t&3)*16')
    k('v_mul_u32_u24 v7, 4160, v4\nv_lshl_add_u32 v7, v5, 4, v7')
    k('v_cmp_gt_u32 vcc, 128, v0')
    k('s_and_saveexec_b64 s[36:37], vcc')
    k(f'ds_write_b128 v6, v[32:35] offset:{HB}')
    k('v_cmp_gt_u32 vcc, 16, v0')
    k('s_and_b64 exec, exec, vcc')
    k('ds_write_b128 v7, v[32:35] offset:4096')
    k('s_mov_b64 exec, s[36:37]')
    k('v_and_b32 v36, 63, v0            ; lane')
    k('v_lshrrev_b32 v37, 6, v0         ; w')
    k('v_and_b32 v38, 31, v36           ; b / n')
    k('v_lshrrev_b32 v39, 5, v36        ; g')
    k('v_sub_u32 v40, 3, v38\nv_and_b32 v40, 3, v40       ; s_b')
    k('v_mul_u32_u24 v41, 4160, v40')
    k('v_sub_u32 v42, 2047, v38\nv_lshl_add_u32 v42, v39, 3, v42\nv_sub_u32 v42, v42, v40')
    k('v_lshl_add_u32 v41, v42, 1, v41')
    k('v_lshlrev_b32 v42, 9, v37        ; w*512 = 64*8w')
    k(f'v_sub_u32 v41, v41, v42\nv_subrev_u32 v41, {64*39}, v41      ; baseA')
    k('v_lshlrev_b32 v42, 3, v37\nv_sub_u32 v42, v38, v42\nv_add_u32 v42, 25, v42      ; 32 + n - 8w - 7')
    k('v_mul_u32_u24 v42, 80, v42\nv_lshl_add_u32 v42, v39, 4, v42')
    k(f'v_add_u32 v42, {HB}, v42           ; baseB')
    k('v_mul_u32_u24 v43, 9216, v37\nv_mul_u32_u24 v44, 144, v38\nv_add_u32 v43, v43, v44\nv_lshl_add_u32 v43, v39, 4, v43')
    k('v_mul_u32_u24 v44, 144, v4\nv_lshl_add_u32 v44, v5, 5, v44')
    k('s_waitcnt lgkmcnt(0)')
    for i, dst in enumerate((45, 46, 47)):
        k(f'v_mov_b32 v{dst}, s{40+4*i}')
        for kq in range(1, 4):
            k(f'v_add_f32 v{dst}, s{40+4*i+kq}, v{dst}')
    k('v_cvt_pk_bf16_f32 v45, v45, v46')
    k('v_cvt_pk_bf16_f32 v47, v47, v47')
    k('v_and_b32 v46, 0xffff0000, v45\nv_lshlrev_b32 v45, 16, v45\nv_lshlrev_b32 v47, 16, v47')
    k('v_add_f32 v46, 1.0, v46\nv_cvt_pk_bf16_f32 v46, v46, v46\nv_lshlrev_b32 v46, 16, v46')
    k('s_and_b32 s53, s3, 1\ns_lshl_b32 s53, s53, 4\ns_lshr_b32 s52, s52, s53\ns_lshl_b32 s52, s52, 16')
    k('s_waitcnt vmcnt(3)')
    k('ds_write_b128 v3, v[8:11]')
    k('ds_write_b128 v3, v[12:15] offset:8320')
    for i in range(4):
        k(f'v_alignbit_b32 v{48+i}, v{12+i}, v{8+i}, 16')
    for i in range(4):
        k(f'v_alignbit_b32 v{52+i}, v{16+i}, v{12+i}, 16')
    k('ds_write_b128 v3, v[48:51] offset:4160')
    k('ds_write_b128 v3, v[52:55] offset:12480')
    stamp_mid(k, 0)
    k('s_waitcnt vmcnt(0)')
    for i in range(8):
        st = 24 + i
        k(f'v_and_b32 v{56+i}, 0xffff0000, v{st}      ; sd')
    for i in range(8):
        k(f'v_rcp_f32 v{56+i}, v{56+i}')
    for i in range(8):
        k(f'v_lshlrev_b32 v{24+i}, 16, v{24+i}        ; mean')
    for i in range(4):
        k(f'v_lshlrev_b32 v{64+2*i}, 16, v{20+i}\nv_and_b32 v{65+2*i}, 0xffff0000, v{20+i}')
    for i in range(8): k(f'v_sub_f32 v{64+i}, v{64+i}, v{24+i}')
    for i in range(8): k(f'v_mul_f32 v{64+i}, v{64+i}, v{56+i}')
    for i in range(8):
        k(f'v_fma_f32 v{64+i}, v{64+i}, v46, v45')
    for i in range(4):
        k(f'v_cvt_pk_bf16_f32 v{8+i}, v{64+2*i}, v{65+2*i}       ; h packed v8..11')
    k(f'ds_write_b128 v6, v[8:11] offset:{HB + 32*80}')
    k('s_waitcnt lgkmcnt(0)\ns_barrier')
    stamp_mid(k, 1)
    steps = [(e, ks) for e in range(8) for ks in range(2)]
    def loads(si):
        e, ks = steps[si]
        r = 64 + 16 * (si & 1)
        oa = 64 * e + 32 * ks
        ob = 80 * e + 32 * ks
        k(f'ds_read_b64 v[{r}:{r+1}], v41 offset:{oa+2048}')
        k(f'ds_read_b64 v[{r+2}:{r+3}], v41 offset:{oa+2048+8}')
        k(f'ds_read_b128 v[{r+12}:{r+15}], v42 offset:{ob+2560}')
        k(f'ds_read_b128 v[{r+8}:{r+11}], v42 offset:{ob}')
        k(f'ds_read_b64 v[{r+4}:{r+5}], v41 offset:{oa}')
        k(f'ds_read_b64 v[{r+6}:{r+7}], v41 offset:{oa+8}')
    loads(0)
    for si in range(16):
        r = 64 + 16 * (si & 1)
        if si + 1 < 16:
            loads(si + 1)
            k('s_waitcnt lgkmcnt(6)')
        else:
            k('s_waitcnt lgkmcnt(0)')
        c1 = '0' if si == 0 else 'v[112:127]'
        c0 = '0' if si == 0 else 'v[96:111]'
        k(f'v_mfma_f32_32x32x16_bf16 v[112:127], v[{r}:{r+3}], v[{r+12}:{r+15}], {c1}')
        k(f'v_mfma_f32_32x32x16_bf16 v[96:111], v[{r}:{r+3}], v[{r+8}:{r+11}], {c0}')
        k(f'v_mfma_f32_32x32x16_bf16 v[112:127], v[{r+4}:{r+7}], v[{r+8}:{r+11}], v[112:127]')
    stamp_mid(k, 2)
    k('s_barrier')
    for j in range(4):
        k(f'ds_write_b128 v43, v[{96+4*j}:{99+4*j}] offset:{32*j}')
    for j in range(4):
        k(f'ds_write_b128 v43, v[{112+4*j}:{115+4*j}] offset:{32*j+4608}')
    k('s_waitcnt lgkmcnt(0)\ns_barrier')
    for w in range(4):
        k(f'ds_read_b128 v[{64+8*w}:{67+8*w}], v44 offset:{9216*w}')
        k(f'ds_read_b128 v[{68+8*w}:{71+8*w}], v44 offset:{9216*w+16}')
    for i in range(4):
        k(f'v_lshlrev_b32 v{24+2*i}, 16, v{8+i}\nv_and_b32 v{25+2*i}, 0xffff0000, v{8+i}')
    for i in range(4):
        k(f'v_lshlrev_b32 v{48+2*i}, 16, v{20+i}\nv_and_b32 v{49+2*i}, 0xffff0000, v{20+i}')
    k('s_waitcnt lgkmcnt(0)')
    for i in range(8): k(f'v_add_f32 v{64+i}, v{64+i}, v{72+i}')
    for i in range(8): k(f'v_add_f32 v{80+i}, v{80+i}, v{88+i}')
    for i in range(8): k(f'v_add_f32 v{64+i}, v{64+i}, v{80+i}')
    for i in range(8):
        k(f'v_fma_f32 v{64+i}, v{24+i}, s52, v{64+i}        ; y + h*D')
    for i in range(8):
        k(f'v_fma_f32 v{64+i}, v{64+i}, v47, v{48+i}        ; x + ga*(.)')
    for i in range(4):
        k(f'v_cvt_pk_bf16_f32 v{64+i}, v{64+2*i}, v{65+2*i}')
    k(f'buffer_store_dwordx4 v[64:67], v3, s[32:35], s26 offen{WT}')
    if STAMPS: k('s_waitcnt vmcnt(0)')
    stamp_end(k, 1)
    k('s_endpgm')

    emit_wprep(k, N_CV if CVFIRST else 0)
    return k

def emit_wprep(k, base_id):
    k.label('L_k2_wp')
    if os.environ.get('EXP_NOWP'): k('s_endpgm')
    load_ptr(k, 4, 'wg'); load_ptr(k, 8, 'wu'); load_ptr(k, 12, 'ws')
    k(f's_sub_u32 s3, s2, {base_id}')
    k('s_mul_hi_u32 s16, s3, 0x33333334')
    k('s_mul_i32 s17, s16, 5\ns_sub_u32 s17, s3, s17       ; dq')
    k('v_and_b32 v1, 63, v0            ; lane')
    k('v_lshrrev_b32 v2, 6, v0\nv_readfirstlane_b32 s18, v2     ; w')
    k('v_lshrrev_b32 v3, 3, v1\nv_and_b32 v4, 7, v1')
    k('v_lshrrev_b32 v5, 4, v1\nv_and_b32 v5, 1, v5\nv_lshlrev_b32 v5, 1, v5\nv_xor_b32 v4, v4, v5')
    k('v_xor_b32 v5, 4, v4')
    k('v_mul_u32_u24 v3, 3072, v3')
    k('v_lshl_add_u32 v4, v4, 4, v3')
    k('v_lshl_add_u32 v5, v5, 4, v3')
    k('s_mul_i32 s19, s17, 128*3072\ns_lshl_b32 s20, s16, 7\ns_add_u32 s19, s19, s20')
    k('s_mul_i32 s20, s18, 4*24576\ns_add_u32 s19, s19, s20')
    k('s_lshl_b32 s21, s18, 12')
    k('s_lshl_b32 s22, s17, 9\nv_lshlrev_b32 v6, 2, v0\nv_add_u32 v6, s22, v6     ; d*4')
    k('s_waitcnt lgkmcnt(0)')
    srd_fin(k, 4, SZ['wg']); srd_fin(k, 8, SZ['wu'])
    k(f's_add_u32 s24, s12, {WS_MODP}\ns_addc_u32 s25, s13, 0\ns_mov_b32 s26, 61440\ns_mov_b32 s27, {SRD3:#x}')
    for kq in range(4):
        k(f's_mov_b32 s23, {kq*15360 + 3*2560}')
        k(f'buffer_load_dword v{8+kq}, v6, s[24:27], s23 offen')
        k(f'buffer_load_dword v{12+kq}, v6, s[24:27], s23 offen offset:2560')
    for q in range(4):
        k(f's_add_u32 m0, s21, {q*1024}')
        k(f's_add_u32 s23, s19, {q*24576}')
        k(f'buffer_load_dwordx4 v4, s[4:7], s23 offen{NT} lds')
        k(f's_add_u32 m0, s21, {q*1024 + 16384}')
        k('s_nop 0')
        k(f'buffer_load_dwordx4 v5, s[8:11], s23 offen{NT} lds')
    k(f's_add_u32 s28, s12, {WS_WP}\ns_addc_u32 s29, s13, 0\ns_mov_b32 s30, 3932160\ns_mov_b32 s31, {SRD3:#x}')
    k(f's_add_u32 s32, s12, {WS_PQ}\ns_addc_u32 s33, s13, 0\ns_mov_b32 s34, 122880\ns_mov_b32 s35, {SRD3:#x}')
    k('s_waitcnt vmcnt(8)')
    k('v_add_f32 v8, v8, v9\nv_add_f32 v10, v10, v11\nv_add_f32 v12, v12, v13\nv_add_f32 v14, v14, v15')
    k('v_add_f32 v8, v8, v10\nv_add_f32 v12, v12, v14')
    k('v_cvt_pk_bf16_f32 v8, v8, v12')
    k('v_and_b32 v12, 0xffff0000, v8\nv_add_f32 v12, 1.0, v12\nv_cvt_pk_bf16_f32 v12, v12, v12\nv_lshlrev_b32 v12, 16, v12')
    k('v_lshlrev_b32 v9, 2, v0\nv_lshlrev_b32 v10, 1, v0')
    k('v_cmp_gt_u32 vcc, 128, v0')
    k('s_and_saveexec_b64 s[36:37], vcc')
    k('ds_write_b32 v9, v12 offset:32768')
    k('ds_write_b16 v10, v8 offset:33280')
    k('s_mov_b64 exec, s[36:37]')
    k('v_lshrrev_b32 v3, 4, v1          ; grp')
    k('v_and_b32 v7, 15, v1\nv_lshrrev_b32 v8, 2, v7      ; r\nv_and_b32 v7, 3, v7       ; c')
    k('v_lshrrev_b32 v9, 1, v3          ; g')
    k('v_and_b32 v10, 1, v3             ; grp&1')
    k('v_lshrrev_b32 v11, 1, v7         ; mat')
    k('v_lshrrev_b32 v12, 1, v8\nv_lshlrev_b32 v12, 1, v12      ; 2*((r>>1)&1)')
    k('v_xor_b32 v10, v10, v12\nv_lshlrev_b32 v12, 2, v11\nv_xor_b32 v10, v10, v12     ; X')
    k('v_lshlrev_b32 v10, 4, v10')
    k('v_lshl_add_u32 v10, v11, 14, v10         ; + mat*16384')
    k('v_lshl_add_u32 v12, v9, 3, v8            ; 8g + r')
    k('v_lshl_add_u32 v10, v12, 7, v10          ; + row*128')
    k('v_and_b32 v12, 1, v7\nv_lshl_add_u32 v10, v12, 3, v10')
    k('s_lshl_b32 s23, s18, 5\nv_xor_b32 v10, s23, v10      ; ^ 32*tl')
    k('v_lshlrev_b32 v11, 5, v9\nv_lshlrev_b32 v12, 4, v9')
    k('s_lshl_b32 s23, s16, 2\ns_add_u32 s23, s23, s18        ; T')
    k('s_mul_i32 s38, s17, 8*96\ns_add_u32 s38, s38, s23\ns_lshl_b32 s38, s38, 10')
    k('v_lshlrev_b32 v13, 4, v1')
    k('s_mov_b32 s39, 0x3f803f80')
    k('v_mov_b32 v14, 0\nv_mov_b32 v15, 0\nv_mov_b32 v98, 0\nv_mov_b32 v99, 0')
    k('s_waitcnt vmcnt(0) lgkmcnt(0)\ns_barrier')
    for ksl in range(8):
        b = 16 + 32 * (ksl & 1)
        k(f'ds_read_b64_tr_b16 v[{b}:{b+1}], v10 offset:{ksl*2048}')
        k(f'ds_read_b64_tr_b16 v[{b+2}:{b+3}], v10 offset:{ksl*2048+512}')
        k(f'ds_read_b128 v[{b+4}:{b+7}], v11 offset:{32768 + ksl*64}')
        k(f'ds_read_b128 v[{b+8}:{b+11}], v11 offset:{32768 + ksl*64 + 16}')
        k(f'ds_read_b128 v[{b+12}:{b+15}], v12 offset:{33280 + ksl*32}')
        k('s_waitcnt lgkmcnt(0)')
        for j in range(4):
            k(f'v_lshlrev_b32 v{b+16+2*j}, 16, v{b+j}\nv_and_b32 v{b+17+2*j}, 0xffff0000, v{b+j}')
        for j in range(4):
            k(f'v_lshlrev_b32 v{96}, 16, v{b+12+j}\nv_and_b32 v{97}, 0xffff0000, v{b+12+j}')
            k(f'v_fma_f32 v15, v{b+16+2*j}, v96, v15\nv_fma_f32 v98, v{b+17+2*j}, v97, v98')
        for j in range(8):
            k(f'v_mul_f32 v{b+16+j}, v{b+16+j}, v{b+4+j}')
        for j in range(4):
            k(f'v_cvt_pk_bf16_f32 v{b+24+j}, v{b+16+2*j}, v{b+17+2*j}')
        for j in range(4):
            k(f'v_lshlrev_b32 v96, 16, v{b+24+j}\nv_and_b32 v97, 0xffff0000, v{b+24+j}')
            k(f'v_add_f32 v14, v14, v96\nv_add_f32 v99, v99, v97')
        k(f'buffer_store_dwordx4 v[{b+24}:{b+27}], v13, s[28:31], s38 offen{WT}')
        k(f's_add_u32 s38, s38, {96*1024}')
    k('v_add_f32 v14, v14, v99\nv_add_f32 v15, v15, v98')
    k('v_mov_b32 v16, v14\nv_mov_b32 v17, v15')
    k('v_permlane32_swap_b32 v14, v16\nv_permlane32_swap_b32 v15, v17')
    k('v_add_f32 v14, v14, v16\nv_add_f32 v15, v15, v17')
    k('s_mul_i32 s38, s17, 96\ns_add_u32 s38, s38, s23\ns_lshl_b32 s38, s38, 8       ; (dq*96+T)*256')
    k('v_lshlrev_b32 v13, 3, v1')
    k('v_cmp_gt_u32 vcc, 32, v1')
    k('s_and_saveexec_b64 s[36:37], vcc')
    k(f'buffer_store_dwordx2 v[14:15], v13, s[32:35], s38 offen{WT}')
    k('s_mov_b64 exec, s[36:37]')
    if STAMPS: k('s_waitcnt vmcnt(0)')
    stamp_end(k, 1)
    k('s_endpgm')
```

```python
from asmlib import K
from common import *
from k1 import hexf
def cmul(k, dst, x, y, tmp):
    k(f'v_mul_f32 v{tmp}, v{x}, v{y}\nv_mul_f32 v{tmp+1}, v{x}, v{y+1}')
    k(f'v_fma_f32 v{dst}, -v{x+1}, v{y+1}, v{tmp}\nv_fma_f32 v{dst+1}, v{x+1}, v{y}, v{tmp+1}')
from k2 import emit_wprep
import os

N_WP, N_CV = 120, 640
K2F_GRID = N_WP + N_CV
K2F_LDS = 40960
TOFF = 38912

def build_k2f():
    k = K('conv_kernel')
    stamp_begin(k)
    k(f's_cmp_lt_u32 s2, {N_CV}\ns_cbranch_scc1 L_k2_cv')
    k(f's_cmp_lt_u32 s2, {K2F_GRID}\ns_cbranch_scc1 L_k2_wp')
    k('s_endpgm')
    k.label('L_k2_cv')
    load_ptr(k, 4, 'ws'); load_ptr(k, 20, 'dsk'); load_ptr(k, 56, 'lar'); load_ptr(k, 60, 'aim'); load_ptr(k, 64, 'cr'); load_ptr(k, 68, 'ci'); load_ptr(k, 72, 'ldt')
    k('s_and_b32 s24, s2, 0xffffffe0\ns_and_b32 s25, s2, 7\ns_lshl_b32 s25, s25, 2\ns_or_b32 s24, s24, s25')
    k('s_lshr_b32 s25, s2, 3\ns_and_b32 s25, s25, 3\ns_or_b32 s3, s24, s25          ; d')
    k('s_getpc_b64 s[28:29]')
    k.label('L_k2_pc')
    k('s_add_u32 s28, s28, ktable-L_k2_pc\ns_addc_u32 s29, s29, 0')
    k('v_lshrrev_b32 v2, 6, v0\nv_and_b32 v1, 63, v0\nv_readfirstlane_b32 s30, v2     ; wave')
    k('v_lshlrev_b32 v110, 4, v0          ; t*16')
    k('s_mul_i32 s31, s3, 384\nv_lshlrev_b32 v4, 1, v0\nv_add_u32 v4, s31, v4           ; d*384 + n*2')
    k('s_lshl_b32 s32, s3, 1\nv_mov_b32 v5, s32')
    k('v_lshlrev_b32 v11, 6, v0\ns_and_b32 s24, s3, 3\ns_lshl_b32 s24, s24, 4\nv_add_u32 v11, s24, v11')
    k('v_lshlrev_b32 v12, 5, v0')
    k('s_lshr_b32 s25, s3, 2\ns_lshl_b32 s25, s25, 14')
    k('s_lshl_b32 s26, s3, 12             ; d*4096')
    k('s_lshl_b32 s27, s3, 2\ns_lshr_b32 s33, s3, 1\ns_lshl_b32 s33, s33, 2')
    k('s_waitcnt lgkmcnt(0)')
    stamp_mid(k, 3)
    for s, n in ((56, 'lar'), (60, 'aim'), (64, 'cr'), (68, 'ci'), (72, 'ldt')):
        srd_fin(k, s, SZ[n])
    k('s_cmp_ge_u32 s30, 3\ns_cbranch_scc1 L_k2_nopar')
    k('buffer_load_ushort v6, v5, s[72:75], 0 offen')
    k('buffer_load_ushort v7, v4, s[56:59], 0 offen')
    k('buffer_load_ushort v8, v4, s[60:63], 0 offen')
    k('buffer_load_ushort v9, v4, s[64:67], 0 offen')
    k('buffer_load_ushort v10, v4, s[68:71], 0 offen')
    k.label('L_k2_nopar')
    k(f's_add_u32 s8, s4, {WS_XT}\ns_addc_u32 s9, s5, 0\ns_mov_b32 s10, 2621440\ns_mov_b32 s11, {SRD3:#x}')
    k(f's_add_u32 s12, s4, {WS_STATS}\ns_addc_u32 s13, s5, 0\ns_mov_b32 s14, 8192\ns_mov_b32 s15, {SRD3:#x}')
    k('buffer_load_dwordx4 v[96:99], v11, s[8:11], s25 offen        ; x')
    k('buffer_load_dwordx4 v[56:59], v12, s[12:15], 0 offen')
    k('buffer_load_dwordx4 v[60:63], v12, s[12:15], 0 offen offset:16')
    k('global_load_dwordx4 v[104:107], v110, s[28:29]')
    k('global_load_dwordx2 v[108:109], v110, s[28:29] offset:16')
    k('s_add_u32 s34, s4, s27\ns_addc_u32 s35, s5, 0')
    for kq in range(4):
        for i in range(3):
            k(f's_load_dword s{40+4*i+kq}, s[34:35], {WS_MODP + kq*15360 + i*2560}')
    k('s_add_u32 s20, s20, s33\ns_addc_u32 s21, s21, 0')
    k('s_load_dword s52, s[20:21], 0')
    k(f's_add_u32 s16, s4, {WS_X2T}\ns_addc_u32 s17, s5, 0\ns_mov_b32 s18, 2621440\ns_mov_b32 s19, {SRD3:#x}')
    k('s_cmp_ge_u32 s30, 3\ns_cbranch_scc1 L_k2_h')
    k('s_mul_i32 s33, s30, 13568')
    k('v_lshlrev_b32 v11, 2, v1')
    for kk in range(16): k(f'v_xor_b32 v{64+kk}, {16*kk}, v11')
    for kk in range(16): k(f'v_add_u32 v{64+kk}, s33, v{64+kk}')
    k('v_and_b32 v12, 31, v1\nv_lshrrev_b32 v13, 5, v1\nv_and_b32 v14, 15, v12\nv_xor_b32 v14, v14, v13')
    k('v_lshlrev_b32 v14, 4, v14\nv_lshl_add_u32 v14, v12, 8, v14\nv_add_u32 v14, s33, v14')
    k('s_waitcnt vmcnt(5)')
    stamp_mid(k, 0)
    k('v_lshlrev_b32 v6, 16, v6\nv_lshlrev_b32 v7, 16, v7\nv_lshlrev_b32 v8, 16, v8\nv_lshlrev_b32 v9, 16, v9\nv_lshlrev_b32 v10, 16, v10')
    k(f'v_mul_f32 v6, {LOG2E:#x}, v6\nv_mul_f32 v7, {LOG2E:#x}, v7')
    k('v_exp_f32 v6, v6\nv_exp_f32 v7, v7')
    k('v_cvt_pk_bf16_f32 v6, v6, v7')
    k('v_and_b32 v7, 0xffff0000, v6\nv_lshlrev_b32 v6, 16, v6')
    k('v_mul_f32 v7, v7, v6')
    k(f'v_mul_f32 v7, {NLOG2E:#x}, v7')
    k('v_mul_f32 v8, v8, v6')
    k(f'v_mul_f32 v8, {INV2PI:#x}, v8')
    k('v_add_f32 v6, v6, v6')
    k('v_mul_f32 v16, v9, v6\nv_mul_f32 v17, v10, v6\nv_sub_f32 v17, 0, v17')
    def direct(dst, p, sign, t0):
        k(f'v_mul_f32 v{t0}, {hexf(p)}, v7')
        k(f'v_mul_f32 v{t0+1}, {hexf(sign*p)}, v8')
        k(f'v_exp_f32 v{t0}, v{t0}')
        k(f'v_fract_f32 v{t0+1}, v{t0+1}')
        k(f'v_cos_f32 v{dst}, v{t0+1}')
        k(f'v_sin_f32 v{dst+1}, v{t0+1}')
        k(f'v_mul_f32 v{dst}, v{dst}, v{t0}')
        k(f'v_mul_f32 v{dst+1}, v{dst+1}, v{t0}')
    direct(18, 1, -1, 24); direct(20, 256, -1, 26); direct(22, 8, +1, 28)
    ZB1, ZB256, W8 = 18, 20, 22
    ZB2, ZB4 = 30, 32
    A, B, T, L = 34, 36, 38, 40
    TA, TL = 42, 44
    C0 = 46
    rot = [0]
    def put(src, row, lo):
        t = C0 + (rot[0] % 8); rot[0] += 1
        k(f'v_cvt_pk_bf16_f32 v{t}, v{src}, v{src+1}')
        k(f'ds_write_b32 v{64 + (row & 15)}, v{t} offset:{row*256 + (5376 if lo else 0)}')
    hi = []
    hi.append(lambda: put(16, 0, False))
    hi.append(lambda: (cmul(k, A, 16, ZB1, TA), put(A, 1, False)))
    for m in range(2, 8): hi.append(lambda m=m: (cmul(k, A, A, ZB1, TA), put(A, m, False)))
    hi.append(lambda: cmul(k, ZB2, ZB1, ZB1, TA))
    hi.append(lambda: (cmul(k, B, 16, ZB256, TA), put(B, 8, False)))
    hi.append(lambda: cmul(k, ZB4, ZB2, ZB2, TA))
    hi.append(lambda: (cmul(k, T, B, ZB2, TA), put(T, 9, False)))
    hi.append(lambda: (cmul(k, T, T, ZB2, TA), put(T, 10, False)))
    hi.append(lambda: (cmul(k, T, T, ZB2, TA), put(T, 11, False)))
    hi.append(lambda: (cmul(k, B, B, ZB256, TA), put(B, 12, False)))
    hi.append(lambda: (cmul(k, T, B, ZB4, TA), put(T, 13, False)))
    hi.append(lambda: (cmul(k, B, B, ZB256, TA), put(B, 14, False)))
    hi.append(lambda: (cmul(k, T, B, ZB4, TA), put(T, 15, False)))
    for m in range(16, 21): hi.append(lambda m=m: (cmul(k, B, B, ZB256, TA), put(B, m, False)))
    lo = []
    lo.append(lambda: (k(f'v_mov_b32 v{L}, 1.0\nv_mov_b32 v{L+1}, 0'), put(L, 0, True)))
    lo.append(lambda: put(W8, 1, True))
    lo.append(lambda: (cmul(k, L, W8, W8, TL), put(L, 2, True)))
    for u in range(3, 32): lo.append(lambda u=u: (cmul(k, L, L, W8, TL), put(L, u, True)))
    i = j = 0
    while i < len(hi) or j < len(lo):
        if j < len(lo): lo[j](); j += 1
        if i < len(hi) and (i * len(lo) <= j * len(hi) or j >= len(lo)): hi[i](); i += 1
    k('s_waitcnt lgkmcnt(0)')
    for ks in range(8):
        k(f'v_xor_b32 v15, {32*ks}, v14')
        k(f'ds_read_b128 v[{24+8*(ks%4)}:{27+8*(ks%4)}], v15')
        k(f'ds_read_b128 v[{28+8*(ks%4)}:{31+8*(ks%4)}], v15 offset:5376')
        if ks >= 1:
            p = ks - 1
            k('s_waitcnt lgkmcnt(2)')
            k(f'v_mfma_f32_32x32x16_bf16 v[80:95], v[{24+8*(p%4)}:{27+8*(p%4)}], v[{28+8*(p%4)}:{31+8*(p%4)}], ' + ('0' if p == 0 else 'v[80:95]'))
    k('s_waitcnt lgkmcnt(0)')
    k('v_mfma_f32_32x32x16_bf16 v[80:95], v[48:51], v[52:55], v[80:95]')
    k('v_and_b32 v12, 31, v1\nv_lshrrev_b32 v13, 5, v1\nv_lshlrev_b32 v12, 2, v12\nv_lshl_add_u32 v12, v13, 9, v12\nv_add_u32 v12, s33, v12')
    for j in range(3):
        for i in range(4):
            k(f'ds_write_b32 v12, v{80+4*j+i} offset:{(8*j+i)*128}')
    k.label('L_k2_h')
    k('s_waitcnt vmcnt(2) lgkmcnt(0)')
    for i, dst in enumerate((45, 46, 47)):
        k(f'v_mov_b32 v{dst}, s{40+4*i}')
        for kq in range(1, 4): k(f'v_add_f32 v{dst}, s{40+4*i+kq}, v{dst}')
    k('v_cvt_pk_bf16_f32 v45, v45, v46\nv_cvt_pk_bf16_f32 v111, v47, v47')
    k('v_and_b32 v46, 0xffff0000, v45\nv_lshlrev_b32 v45, 16, v45\nv_lshlrev_b32 v111, 16, v111')
    k('v_add_f32 v46, 1.0, v46\nv_cvt_pk_bf16_f32 v46, v46, v46\nv_lshlrev_b32 v46, 16, v46')
    k('s_and_b32 s53, s3, 1\ns_lshl_b32 s53, s53, 4\ns_lshr_b32 s52, s52, s53\ns_lshl_b32 s52, s52, 16      ; D')
    for i in range(8): k(f'v_and_b32 v{24+i}, 0xffff0000, v{56+i}      ; sd')
    for i in range(8): k(f'v_rcp_f32 v{24+i}, v{24+i}')
    for i in range(8): k(f'v_lshlrev_b32 v{56+i}, 16, v{56+i}        ; mean')
    for i in range(4): k(f'v_lshlrev_b32 v{32+2*i}, 16, v{96+i}\nv_and_b32 v{33+2*i}, 0xffff0000, v{96+i}')
    for i in range(8): k(f'v_sub_f32 v{32+i}, v{32+i}, v{56+i}')
    for i in range(8): k(f'v_mul_f32 v{32+i}, v{32+i}, v{24+i}')
    for i in range(8): k(f'v_fma_f32 v{32+i}, v{32+i}, v46, v45')
    for i in range(4): k(f'v_cvt_pk_bf16_f32 v{100+i}, v{32+2*i}, v{33+2*i}       ; h packed')
    k('s_waitcnt lgkmcnt(0)\ns_barrier')
    stamp_mid(k, 1)
    k('v_cmp_gt_u32 vcc, 168, v0')
    k('s_and_saveexec_b64 s[36:37], vcc')
    k('s_cbranch_execz L_k2_skipT')
    k('ds_read_b128 v[24:27], v110\nds_read_b128 v[28:31], v110 offset:13568\nds_read_b128 v[32:35], v110 offset:27136')
    k('s_waitcnt lgkmcnt(0)')
    for i in range(4): k(f'v_add_f32 v{24+i}, v{24+i}, v{28+i}')
    for i in range(4): k(f'v_add_f32 v{24+i}, v{24+i}, v{32+i}')
    k('v_cvt_pk_bf16_f32 v24, v24, v25\nv_cvt_pk_bf16_f32 v25, v26, v27')
    k('v_lshlrev_b32 v12, 3, v0')
    k(f'ds_write_b64 v12, v[24:25] offset:{TOFF}')
    k.label('L_k2_skipT')
    k('s_mov_b64 exec, s[36:37]')
    k(f'v_mov_b32 v24, 0\nv_mov_b32 v25, {TOFF + 1344}\nds_write_b32 v25, v24')
    HB = 16640
    k('v_lshrrev_b32 v4, 2, v0\nv_and_b32 v5, 3, v0')
    k('v_mul_u32_u24 v6, 80, v4\nv_lshl_add_u32 v6, v5, 4, v6        ; (t>>2)*80 + (t&3)*16')
    k('v_mul_u32_u24 v7, 4160, v4\nv_lshl_add_u32 v7, v5, 4, v7')
    k('v_lshrrev_b32 v37, 6, v0\nv_and_b32 v38, 31, v1\nv_lshrrev_b32 v39, 5, v1')
    k('v_sub_u32 v40, 3, v38\nv_and_b32 v40, 3, v40\nv_mul_u32_u24 v41, 4160, v40')
    k('v_sub_u32 v42, 2047, v38\nv_lshl_add_u32 v42, v39, 3, v42\nv_sub_u32 v42, v42, v40\nv_lshl_add_u32 v41, v42, 1, v41')
    k(f'v_lshlrev_b32 v42, 9, v37\nv_sub_u32 v41, v41, v42\nv_subrev_u32 v8, {64*39}, v41      ; baseA -> v8')
    k('v_lshlrev_b32 v42, 3, v37\nv_sub_u32 v42, v38, v42\nv_add_u32 v42, 25, v42')
    k(f'v_mul_u32_u24 v42, 80, v42\nv_lshl_add_u32 v42, v39, 4, v42\nv_add_u32 v9, {HB}, v42           ; baseB -> v9')
    k('v_mul_u32_u24 v43, 9216, v37\nv_mul_u32_u24 v44, 144, v38\nv_add_u32 v43, v43, v44\nv_lshl_add_u32 v10, v39, 4, v43')
    k('v_mul_u32_u24 v44, 144, v4\nv_lshl_add_u32 v11, v5, 5, v44')
    for q in range(6):
        k(f'v_and_b32 v{48+2*q}, 0xffff, v{104+q}\nv_lshrrev_b32 v{49+2*q}, 16, v{104+q}') if False else None
    k('s_waitcnt vmcnt(0) lgkmcnt(0)\ns_barrier')
    for q in range(6):
        k(f'v_and_b32 v{48+2*q}, 0xffff, v{104+q}\nv_lshrrev_b32 v{49+2*q}, 16, v{104+q}')
    for e in range(12):
        k(f'ds_read_u16 v{24+e}, v{48+e} offset:{TOFF}')
    k('v_mov_b32 v12, 0\nv_mov_b32 v13, 0\nv_mov_b32 v14, 0\nv_mov_b32 v15, 0')
    k(f'ds_write_b128 v6, v[100:103] offset:{HB + 32*80}')
    k('v_cmp_gt_u32 vcc, 128, v0')
    k('s_and_saveexec_b64 s[36:37], vcc')
    k(f'ds_write_b128 v6, v[12:15] offset:{HB}')
    k('v_cmp_gt_u32 vcc, 16, v0')
    k('s_and_b64 exec, exec, vcc')
    k('ds_write_b128 v7, v[12:15] offset:4096')
    k('s_mov_b64 exec, s[36:37]')
    k('s_waitcnt lgkmcnt(0)')
    for s_ in range(4):
        for i in range(4):
            k(f'v_lshl_or_b32 v{64+4*s_+i}, v{24+s_+2*i+1}, 16, v{24+s_+2*i}')
    for s_ in range(4):
        k(f'ds_write_b128 v110, v[{64+4*s_}:{67+4*s_}] offset:{4160*s_}')
    k('s_waitcnt lgkmcnt(0)\ns_barrier')
    stamp_mid(k, 2)
    steps = [(e, ks) for e in range(8) for ks in range(2)]
    def loads(si):
        e, ks = steps[si]
        r = 32 + 16 * (si & 1)
        oa = 64 * e + 32 * ks; ob = 80 * e + 32 * ks
        k(f'ds_read_b64 v[{r}:{r+1}], v8 offset:{oa+2048}')
        k(f'ds_read_b64 v[{r+2}:{r+3}], v8 offset:{oa+2048+8}')
        k(f'ds_read_b128 v[{r+12}:{r+15}], v9 offset:{ob+2560}')
        k(f'ds_read_b128 v[{r+8}:{r+11}], v9 offset:{ob}')
        k(f'ds_read_b64 v[{r+4}:{r+5}], v8 offset:{oa}')
        k(f'ds_read_b64 v[{r+6}:{r+7}], v8 offset:{oa+8}')
    loads(0)
    for si in range(16):
        r = 32 + 16 * (si & 1)
        if si + 1 < 16:
            loads(si + 1)
            k('s_waitcnt lgkmcnt(6)')
        else:
            k('s_waitcnt lgkmcnt(0)')
        c1 = '0' if si == 0 else 'v[80:95]'
        c0 = '0' if si == 0 else 'v[64:79]'
        k(f'v_mfma_f32_32x32x16_bf16 v[80:95], v[{r}:{r+3}], v[{r+12}:{r+15}], {c1}')
        k(f'v_mfma_f32_32x32x16_bf16 v[64:79], v[{r}:{r+3}], v[{r+8}:{r+11}], {c0}')
        k(f'v_mfma_f32_32x32x16_bf16 v[80:95], v[{r+4}:{r+7}], v[{r+8}:{r+11}], v[80:95]')
    k('s_barrier')
    for j in range(4): k(f'ds_write_b128 v10, v[{64+4*j}:{67+4*j}] offset:{32*j}')
    for j in range(4): k(f'ds_write_b128 v10, v[{80+4*j}:{83+4*j}] offset:{32*j+4608}')
    k('s_waitcnt lgkmcnt(0)\ns_barrier')
    for w in range(4):
        k(f'ds_read_b128 v[{32+8*w}:{35+8*w}], v11 offset:{9216*w}')
        k(f'ds_read_b128 v[{36+8*w}:{39+8*w}], v11 offset:{9216*w+16}')
    for i in range(4): k(f'v_lshlrev_b32 v{16+2*i}, 16, v{100+i}\nv_and_b32 v{17+2*i}, 0xffff0000, v{100+i}')
    for i in range(4): k(f'v_lshlrev_b32 v{24+2*i}, 16, v{96+i}\nv_and_b32 v{25+2*i}, 0xffff0000, v{96+i}')
    k('s_waitcnt lgkmcnt(0)')
    for i in range(8): k(f'v_add_f32 v{32+i}, v{32+i}, v{40+i}')
    for i in range(8): k(f'v_add_f32 v{48+i}, v{48+i}, v{56+i}')
    for i in range(8): k(f'v_add_f32 v{32+i}, v{32+i}, v{48+i}')
    for i in range(8): k(f'v_fma_f32 v{32+i}, v{16+i}, s52, v{32+i}')
    for i in range(8): k(f'v_fma_f32 v{32+i}, v{32+i}, v111, v{24+i}')
    for i in range(4): k(f'v_cvt_pk_bf16_f32 v{32+i}, v{32+2*i}, v{33+2*i}')
    k(f'buffer_store_dwordx4 v[32:35], v110, s[16:19], s26 offen{WT}')
    if STAMPS: k('s_waitcnt vmcnt(0)')
    stamp_end(k, 1)
    k('s_endpgm')
    emit_wprep(k, N_CV)
    return k
```

```python
from asmlib import K, Q
from common import *
import os, struct
from collections import deque

K5_GRID = 256
NS = 7
STG = 20480
TBL = NS * STG
X2OFF = TBL + 1536
GBOFF = X2OFF + 10240
DUMMY = GBOFF + 320
K5_LDS = DUMMY + 1024 + 16
def f2h(x): return hex(struct.unpack('<I', struct.pack('<f', x))[0])
GK1 = -2.302208198144325
GK2 = GK1 * 0.044715
NSP = 10
SPIN_MAX = 400000
SS = int(os.environ.get('STAMPSET', '1'))
BUDGET = int(os.environ.get('BUDGET', '5'))
WDEPI = os.environ.get('WDEPI', '0') == '1'
WDN = int(os.environ.get('WDN', '12'))

def lines(s): return [l.strip() for l in s.split('\n') if l.strip()]

def build_k5():
    k = K('ffn_kernel')
    def stamp(setno, i):
        if SS == setno: stamp_mid(k, i)
    vm = Q(k, 'vmcnt', 63); lg = Q(k, 'lgkmcnt', 15)
    side = deque()
    def job(text):
        for l in lines(text): side.append(('i', l))
    def jobvm(text, tag):
        ls = lines(text)
        for l in ls[:-1]: side.append(('i', l))
        side.append(('vm', ls[-1], tag))
    def joblg(text, tag): side.append(('lg', text, tag))
    def pull(n):
        while n > 0 and side:
            it = side.popleft()
            if it[0] == 'i':
                k(it[1]); n -= 1
                while side and side[0][0] == 'i' and side[0][1].split()[0] in ('s_addc_u32', 's_subb_u32', 's_cselect_b32', 's_cselect_b64'):
                    k(side.popleft()[1]); n -= 1
            elif it[0] == 'vm': vm.issue(it[1], it[2]); n -= 2
            elif it[0] == 'lg': lg.issue(it[1], it[2]); n -= 1
            elif it[0] == 'wvm': vmwait_tag(it[1])
            elif it[0] == 'call': it[1]()
    def flush(): pull(1 << 30)

    stamp_begin(k)
    k(f's_cmp_ge_u32 s2, {K5_GRID}\ns_cbranch_scc1 L_k5_exit')
    k('s_load_dwordx2 s[4:5], s[0:1], 120')
    k('s_load_dwordx2 s[82:83], s[0:1], 104       ; out')
    k('v_lshrrev_b32 v2, 6, v0\nv_and_b32 v1, 63, v0\nv_readfirstlane_b32 s22, v2     ; w')
    k('s_and_b32 s80, s2, 7\ns_lshr_b32 s81, s2, 3')
    k('s_and_b32 s20, s80, 1\ns_lshl_b32 s20, s20, 3\ns_and_b32 s21, s81, 7\ns_add_u32 s20, s20, s21      ; rb')
    k('s_lshr_b32 s21, s80, 1\ns_lshl_b32 s21, s21, 2\ns_lshr_b32 s27, s81, 3\ns_add_u32 s21, s21, s27    ; fb')
    k('s_lshr_b32 s3, s80, 1\ns_and_b32 s3, s3, 1\ns_lshl_b32 s6, s20, 1\ns_add_u32 s3, s3, s6')
    k('s_lshr_b32 s6, s80, 2\ns_lshl_b32 s6, s6, 2\ns_add_u32 s27, s27, s6                               ; db')
    k('v_lshrrev_b32 v3, 4, v1\nv_and_b32 v4, 15, v1')
    k('v_lshlrev_b32 v5, 2, v3\nv_xor_b32 v5, v5, v4\nv_lshlrev_b32 v5, 4, v5\nv_lshl_add_u32 v5, v3, 12, v5')
    k('s_lshl_b32 s6, s20, 8\nv_add_u32 v5, s6, v5\nv_add_u32 v6, 16384, v5\nv_lshlrev_b32 v7, 4, v1')
    k('s_lshr_b32 s23, s22, 1          ; wi\ns_and_b32 s24, s22, 1      ; wj')
    k(f's_mul_i32 s80, s20, {int(os.environ.get("ROT", "0"))}\ns_add_u32 s80, s80, s21\ns_lshl_b32 s80, s80, 1\ns_cmp_lt_u32 s21, {NSP}\ns_cselect_b32 s81, 0, 1\ns_add_u32 s80, s80, s81')
    k('s_mul_hi_u32 s81, s80, 0x0CCCCCCD\ns_mul_i32 s81, s81, 20\ns_sub_u32 s80, s80, s81          ; st = s0')
    k('s_lshl_b32 s84, s22, 15         ; x2 const = w*32768')
    k('s_mul_i32 s85, s23, 96\ns_mul_i32 s81, s21, 6\ns_add_u32 s85, s85, s81\ns_mul_i32 s81, s24, 3\ns_add_u32 s85, s85, s81\ns_lshl_b32 s85, s85, 10    ; W const')
    def soff(j):
        return (f's_mul_i32 s{36+j}, s80, 131072\ns_mul_i32 s{56+j}, s80, 196608\n'
                f's_add_u32 s{36+j}, s{36+j}, s84\ns_add_u32 s{56+j}, s{56+j}, s85\n'
                's_add_u32 s80, s80, 1\ns_cmp_eq_u32 s80, 20\ns_cselect_b32 s80, 0, s80')
    PRE = NS - 2
    k(soff(0))
    k('s_lshl_b32 s6, s22, 11\ns_mul_i32 s7, s22, 3072\ns_add_u32 s7, s7, 8192')
    k(soff(1))
    k('s_waitcnt lgkmcnt(0)')
    k(f's_add_u32 s8, s4, {WS_X2T}\ns_addc_u32 s9, s5, 0\ns_mov_b32 s10, 2621440\ns_mov_b32 s11, {SRD3:#x}')
    k(f's_add_u32 s12, s4, {WS_WP}\ns_addc_u32 s13, s5, 0\ns_mov_b32 s14, 3932160\ns_mov_b32 s15, {SRD3:#x}')
    def dma_ops(j):
        sl = (j % NS) * STG
        if os.environ.get('EXP_HOT'):
            return [f's_add_u32 m0, s6, {sl}\ns_nop 0\nbuffer_load_dwordx4 v5, s[8:11], s36 offen lds',
                f's_add_u32 m0, s6, {sl+1024}\ns_nop 0\nbuffer_load_dwordx4 v6, s[8:11], s36 offen lds',
                f's_add_u32 m0, s7, {sl}\ns_nop 0\nbuffer_load_dwordx4 v7, s[12:15], s56 offen lds',
                f'buffer_load_dwordx4 v7, s[12:15], s56 offen offset:1024 lds',
                f'buffer_load_dwordx4 v7, s[12:15], s56 offen offset:2048 lds']
        return [f's_add_u32 m0, s6, {sl}\ns_nop 0\nbuffer_load_dwordx4 v5, s[8:11], s{36+j} offen lds',
                f's_add_u32 m0, s6, {sl+1024}\ns_nop 0\nbuffer_load_dwordx4 v6, s[8:11], s{36+j} offen lds',
                f's_add_u32 m0, s7, {sl}\ns_nop 0\nbuffer_load_dwordx4 v7, s[12:15], s{56+j} offen lds',
                f'buffer_load_dwordx4 v7, s[12:15], s{56+j} offen offset:1024 lds',
                f'buffer_load_dwordx4 v7, s[12:15], s{56+j} offen offset:2048 lds']
    for j in range(2, 20): job(soff(j))
    job('v_mov_b32 v29, 0x80000000')
    job('v_lshrrev_b32 v18, 2, v4\nv_and_b32 v19, 3, v4\nv_lshrrev_b32 v20, 1, v3\nv_and_b32 v21, 1, v3')
    job('v_lshl_add_u32 v22, v20, 3, v18\nv_lshlrev_b32 v22, 8, v22')
    job('v_lshrrev_b32 v23, 1, v19\nv_lshl_add_u32 v23, v21, 1, v23\nv_lshl_add_u32 v22, v23, 4, v22')
    job('v_and_b32 v23, 1, v19\nv_lshl_add_u32 v22, v23, 3, v22')
    job('s_lshl_b32 s25, s23, 1\ns_add_u32 s25, s25, s24\ns_xor_b32 s26, s25, 1')
    job('v_xor_b32 v23, s25, v18\nv_lshl_add_u32 v8, v23, 6, v22')
    job('v_xor_b32 v23, s26, v18\nv_lshl_add_u32 v9, v23, 6, v22')
    job('s_mul_i32 s81, s24, 3072\ns_add_u32 s81, s81, 8192\nv_add_u32 v10, s81, v7')
    for st_ in (1, 2):
        for i in range(3): job(f'v_add_u32 v{8+3*st_+i}, {61440*st_}, v{8+i}')
    job(f's_add_u32 s16, s4, {WS_ACT}\ns_addc_u32 s17, s5, 0\ns_mov_b32 s18, 6291456\ns_mov_b32 s19, {SRD3:#x}')
    job(f's_add_u32 s28, s4, {WS_FLAGS}\ns_addc_u32 s29, s5, 0\ns_mov_b32 s30, {WS_SP - WS_FLAGS + 327680}\ns_mov_b32 s31, {SRD3:#x}')
    job(f's_add_u32 s32, s4, {WS_WD}\ns_addc_u32 s33, s5, 0\ns_mov_b32 s34, 1966080\ns_mov_b32 s35, {SRD3:#x}')
    nd = 0
    for j in range(PRE):
        for o in dma_ops(j):
            vm.issue(o, ('st', j)); nd += 1
            pull(7 if j == 0 or nd < 20 else 7)
    flush()
    k('s_mul_i32 s84, s27, 48\ns_add_u32 s84, s84, s22\ns_mul_i32 s84, s84, 5120')
    stamp(1, 3)
    n = len(vm.ops) - 1 - max(i for i, t in enumerate(vm.ops) if t == ('st', 0))
    k(f's_waitcnt vmcnt({n})'); vm.done = max(vm.done, len(vm.ops) - n)
    k('s_barrier')
    stamp(1, 0)
    NOCOUNT = ('spst',)
    def vmwait_tag(tag):
        idx = max(i for i, t in enumerate(vm.ops) if t == tag)
        if idx < vm.done: return
        n = min(63, sum(1 for t in vm.ops[idx+1:] if t not in NOCOUNT))
        k(f's_waitcnt vmcnt({n})'); vm.done = max(vm.done, idx + 1)
    def vmwait_stage(j): vmwait_tag(('st', j))
    S0, S1 = 32, 52
    ACC = 96
    def acc(lt2, t): return ACC + 48 * lt2 + 16 * t
    def reads(s, j, ksl):
        sl = j % NS; base = 8 + 3 * (sl // 3); o = (sl % 3) * STG
        xo = o + ksl * 4096; wo = o + ksl * 6144
        tg = lambda n: (n, j, ksl)
        return [(f'ds_read_b64_tr_b16 v[{s}:{s+1}], v{base} offset:{xo}', tg('X0')),
                (f'ds_read_b64_tr_b16 v[{s+2}:{s+3}], v{base} offset:{xo+1024}', tg('X0')),
                (f'ds_read_b128 v[{s+8}:{s+11}], v{base+2} offset:{wo}', tg('W0')),
                (f'ds_read_b64_tr_b16 v[{s+4}:{s+5}], v{base+1} offset:{xo}', tg('X1')),
                (f'ds_read_b64_tr_b16 v[{s+6}:{s+7}], v{base+1} offset:{xo+1024}', tg('X1')),
                (f'ds_read_b128 v[{s+12}:{s+15}], v{base+2} offset:{wo+1024}', tg('W1')),
                (f'ds_read_b128 v[{s+16}:{s+19}], v{base+2} offset:{wo+2048}', tg('W2'))]
    def lgwait(tag):
        idx = max(i for i, t in enumerate(lg.ops) if t == tag)
        if idx < lg.done: return 0
        n = min(15, len(lg.ops) - 1 - idx)
        k(f's_waitcnt lgkmcnt({n})'); lg.done = max(lg.done, len(lg.ops) - n)
        return 1
    RD = os.environ.get('RD', 'C')
    def phase(s, j, ksl, first, nxt_reads, dm):
        order = [(0, 0), (0, 1), (1, 0), (1, 1), (2, 0), (2, 1)]
        rd_after = {'A': [[0, 1], [2, 3], [4, 5, 6], [], [], []], 'B': [[0, 1, 2], [3, 4], [5, 6], [], [], []], 'C': [[0, 1], [2], [3, 4], [5], [6], []]}[RD]
        pre = {}
        for g, (txt, tag) in dm.items():
            ls = [l for l in lines(txt) if l != 's_nop 0']
            pre[g] = (ls[:-1] if not ls[-1].startswith('s_') else None, ls)
        for i, (t, lt2) in enumerate(order):
            lgwait((f'W{t}', j, ksl)); lgwait((f'X{lt2}', j, ksl))
            a = acc(lt2, t)
            c = '0' if first else f'v[{a}:{a+15}]'
            k(f'v_mfma_f32_32x32x16_bf16 v[{a}:{a+15}], v[{s+8+4*t}:{s+11+4*t}], v[{s+4*lt2}:{s+3+4*lt2}], {c}')
            used = 0
            if i in dm:
                ls = [l for l in lines(dm[i][0]) if l != 's_nop 0']
                vi = max(q for q, l in enumerate(ls) if l.startswith('buffer_'))
                if i == 0 or not os.environ.get('PREM0', '1') == '1':
                    for l in ls[:vi]: k(l)
                    if vi: k('s_nop 0')
                vm.issue(ls[vi], dm[i][1])
                for l in ls[vi+1:]: k(l)
                used += 4
            if nxt_reads:
                for ri in rd_after[i]:
                    lg.issue(*nxt_reads[ri]); used += 1
            if (i + 1) in dm and os.environ.get('PREM0', '1') == '1':
                ls = [l for l in lines(dm[i + 1][0]) if l != 's_nop 0']
                vi = max(q for q, l in enumerate(ls) if l.startswith('buffer_'))
                pull(max(0, BUDGET - used - vi))
                for l in ls[:vi]: k(l); used += 1
            else:
                pull(max(0, BUDGET - used))
    def stat_ops(s, first):
        ops = []
        for i in range(4):
            a, b = 88 + 2 * (i & 1), 89 + 2 * (i & 1)
            ops.append(f'v_lshlrev_b32 v{a}, 16, v{s+i}')
            ops.append(f'v_and_b32 v{b}, 0xffff0000, v{s+i}')
            if first and i == 0:
                ops += [f'v_mov_b32 v84, v{a}', f'v_mov_b32 v85, v{b}', f'v_mul_f32 v86, v{a}, v{a}', f'v_mul_f32 v87, v{b}, v{b}']
            else:
                ops += [f'v_add_f32 v84, v84, v{a}', f'v_add_f32 v85, v85, v{b}', f'v_fma_f32 v86, v{a}, v{a}, v86', f'v_fma_f32 v87, v{b}, v{b}, v87']
        return ops
    wd_list = [(i, dt) for i in range(12) for dt in range(5)]
    k_wd = {'n': 0}
    def wd_load():
        i, dt = wd_list[k_wd['n']]; k_wd['n'] += 1
        pre = f's_add_u32 s85, s84, {i*4*5120}\n' if dt == 0 else ''
        if dt < 4:
            return (pre + f'buffer_load_dwordx4 a[{20*i+4*dt}:{20*i+4*dt+3}], v7, s[32:35], s85 offen offset:{1024*dt}', 'wd')
        return (f's_add_u32 s85, s85, 4096\nbuffer_load_dwordx4 a[{20*i+4*dt}:{20*i+4*dt+3}], v7, s[32:35], s85 offen', 'wd')
    def with_side(ops):
        for o in ops: side.append(('i', o))
    NVAR = int(os.environ.get('NVAR', '1'))
    GAPS = {0: [0, 2, 4, 7, 9], 1: [0, 3, 5, 7, 10], 2: [1, 3, 6, 8, 10], 3: [1, 4, 6, 9, 11]}
    import copy
    def mainloop(wv):
        for r in reads(S0, 0, 0): lg.issue(*r)
        for j in range(20):
            d = [(o, ('st', j + PRE)) for o in dma_ops(j + PRE)] if j + PRE < 20 else [wd_load() for _ in range(5)]
            if os.environ.get('EXP_NODMA') and j + PRE < 20: d = [('s_nop 0', ('st', j + PRE)) for _ in range(5)]
            gaps = GAPS[wv] if NVAR == 4 else [1, 3, 7, 9, 11]
            dmC = {g: d[q] for q, g in enumerate(gaps) if g < 6}
            dmE = {g - 6: d[q] for q, g in enumerate(gaps) if g >= 6}
            if j == 3:
                job(f's_add_u32 s76, s4, {WS_PQ}\ns_addc_u32 s77, s5, 0\ns_mov_b32 s78, 122880\ns_mov_b32 s79, {SRD3:#x}')
                job('s_mul_i32 s80, s21, 6*256\nv_min_u32 v17, 191, v0\nv_lshlrev_b32 v17, 3, v17\nv_add_u32 v17, s80, v17')
                for dq in range(5):
                    jobvm(f's_mov_b32 s80, {dq*96*256}\nbuffer_load_dwordx2 v[{224+2*dq}:{225+2*dq}], v17, s[76:79], s80 offen', 'pq')
                job(f's_add_u32 s76, s4, {WS_MODP}\ns_addc_u32 s77, s5, 0\ns_mov_b32 s78, 61440')
                job('s_mul_i32 s80, s27, 320\nv_min_u32 v18, 79, v0\nv_lshlrev_b32 v18, 2, v18\nv_add_u32 v17, s80, v18')
                for kq in range(4):
                    jobvm(f's_mov_b32 s80, {kq*15360 + 5*2560}\nbuffer_load_dword v{234+kq}, v17, s[76:79], s80 offen', 'pq')
            if j == 5:
                job('v_lshrrev_b32 v17, 3, v1\nv_and_b32 v18, 7, v1\nv_lshlrev_b32 v17, 12, v17\nv_lshl_add_u32 v17, v18, 4, v17')
                job('s_mul_i32 s76, s27, 80*4096\ns_lshl_b32 s81, s3, 7\ns_add_u32 s76, s76, s81')
                job('s_lshl_b32 s77, s22, 15\ns_add_u32 s77, s77, s76')
                job(f's_lshl_b32 s78, s22, 10\ns_add_u32 s78, s78, {X2OFF}')
                side.append(('call', lambda: (k('s_mov_b32 m0, s78\ns_nop 0'), vm.issue('buffer_load_dwordx4 v17, s[8:11], s77 offen lds', 'x2r'))))
                job(f's_add_u32 s77, s77, {32*4096}\ns_add_u32 s78, s78, 4096')
                side.append(('call', lambda: (k('s_mov_b32 m0, s78\ns_nop 0'), vm.issue('buffer_load_dwordx4 v17, s[8:11], s77 offen lds', 'x2r'))))
                job(f's_and_b32 s81, s22, 1\ns_add_u32 s81, s81, 8\ns_lshl_b32 s78, s81, 10\ns_add_u32 s78, s78, {X2OFF}\ns_lshl_b32 s81, s81, 15\ns_add_u32 s77, s76, s81')
                side.append(('call', lambda: (k('s_mov_b32 m0, s78\ns_nop 0'), vm.issue('buffer_load_dwordx4 v17, s[8:11], s77 offen lds', 'x2r'))))
            if j == 10:
                side.append(('wvm', 'pq'))
                for dq in range(1, 5): job(f'v_pk_add_f32 v[224:225], v[224:225], v[{224+2*dq}:{225+2*dq}]')
                job('v_add_f32 v234, v234, v235\nv_add_f32 v236, v236, v237\nv_add_f32 v234, v234, v236')
                job('v_cvt_pk_bf16_f32 v234, v234, v234\nv_lshlrev_b32 v234, 16, v234')
                job(f'v_lshlrev_b32 v17, 2, v0\nv_add_u32 v18, {GBOFF}, v17\nv_add_u32 v17, {TBL}, v17\nv_mov_b32 v19, {DUMMY}')
                job('v_cmp_gt_u32 vcc, 192, v0\nv_cndmask_b32 v17, v19, v17, vcc\nv_cmp_gt_u32 vcc, 80, v0\nv_cndmask_b32 v18, v19, v18, vcc')
                joblg('ds_write_b32 v17, v224', 'tbl'); joblg('ds_write_b32 v17, v225 offset:768', 'tbl'); joblg('ds_write_b32 v18, v234', 'tbl')
            if j > 0:
                if j - 1 < 2: with_side(stat_ops(S1, False))
                phase(S1, j - 1, 1, False, reads(S0, j, 0), dmC)
                if j - 1 < 2 or j == 5: flush()
            else:
                [vm.issue(*dmC[g]) for g in sorted(dmC)]
            if j == 2:
                job('v_add_f32 v84, v84, v85\nv_add_f32 v86, v86, v87\nv_mov_b32 v88, v84\nv_mov_b32 v89, v86')
                job(f's_mul_i32 s80, s20, {NSP}\ns_add_u32 s80, s80, s21\ns_lshl_b32 s80, s80, 11')
                job('v_permlane32_swap_b32 v84, v88\nv_permlane32_swap_b32 v86, v89')
                job(f's_lshl_b32 s81, s25, 9\ns_add_u32 s80, s80, s81\ns_add_u32 s80, s80, {WS_SP - WS_FLAGS}')
                job('v_add_f32 v84, v84, v88\nv_add_f32 v85, v86, v89\nv_mov_b32 v86, 1\nv_mov_b32 v87, 0')
                job(f's_cmp_lt_u32 s21, {NSP}\ns_cselect_b32 s81, 32, 0')
                job('v_lshlrev_b32 v88, 4, v1\nv_cmp_gt_u32 vcc, s81, v1\nv_cndmask_b32 v88, v29, v88, vcc')
                jobvm('buffer_store_dwordx4 v[84:87], v88, s[28:31], s80 offen sc0 sc1', 'spst')
            if j == 16:
                job('v_and_b32 v88, 31, v1\nv_lshlrev_b32 v88, 4, v88')
                job('s_lshl_b32 s80, s25, 9\ns_lshl_b32 s81, s26, 9\nv_mov_b32 v89, s80\nv_mov_b32 v91, s81')
                job('v_cmp_gt_u32 vcc, 32, v1\nv_cndmask_b32 v89, v91, v89, vcc\nv_add_u32 v28, v88, v89')
                job(f's_mul_i32 s79, s20, {NSP*2048}\ns_add_u32 s79, s79, {WS_SP - WS_FLAGS}\ns_mov_b32 s80, s79')
                for p in range(NSP):
                    jobvm(f'buffer_load_dwordx4 v[{192+4*p}:{195+4*p}], v28, s[28:31], s80 offen offset:{(p%2)*2048} sc0 sc1', 'spld')
                    if p % 2 == 1: job('s_add_u32 s80, s80, 4096')
            if j < 2: with_side(stat_ops(S0, j == 0))
            phase(S0, j, 0, j == 0, reads(S1, j, 1), dmE)
            if j < 2: flush()
            if j < 19:
                vmwait_stage(j + 1)
                if not os.environ.get('EXP_NOBAR'): k('s_barrier')
                if j in (2, 7, 12, 17): stamp(3, (2, 7, 12, 17).index(j))
        flush()
        extra = [wd_load() for _ in range(3)]
        phase(S1, 19, 1, False, None, {0: extra[0], 2: extra[1], 4: extra[2]})

    state0 = (list(vm.ops), vm.done, list(lg.ops), lg.done, k_wd['n'])
    ends = []
    if NVAR == 4:
        k('s_cmp_eq_u32 s22, 1\ns_cbranch_scc1 L_k5_var1\ns_cmp_eq_u32 s22, 2\ns_cbranch_scc1 L_k5_var2\ns_cmp_eq_u32 s22, 3\ns_cbranch_scc1 L_k5_var3')
    for wv in range(NVAR):
        vm.ops, vm.done, lg.ops, lg.done, k_wd['n'] = list(state0[0]), state0[1], list(state0[2]), state0[3], state0[4]
        if wv: k.label(f'L_k5_var{wv}')
        mainloop(wv)
        ends.append((list(vm.ops), vm.done, list(lg.ops), lg.done, k_wd['n']))
        if wv < NVAR - 1: k('s_branch L_k5_join')
    if NVAR > 1: k.label('L_k5_join')
    assert all(e[4] == ends[0][4] for e in ends)
    after = min(sum(1 for t in e[0][max(i for i, t in enumerate(e[0]) if t == 'spld') + 1:] if t not in NOCOUNT) for e in ends)
    vm.ops = ['spld'] + ['x'] * after; vm.done = 0
    lg.ops = []; lg.done = 0
    stamp(1, 1)
    k('v_lshrrev_b32 v36, 5, v1\nv_lshlrev_b32 v36, 4, v36')
    k(f's_mul_i32 s80, s24, 384\ns_add_u32 s80, s80, {TBL}\nv_add_u32 v36, s80, v36')
    PBs = [40, 192 + 32]
    def pq_reads(t, PB):
        for j in range(4):
            k(f'ds_read_b128 v[{PB+4*j}:{PB+4*j+3}], v36 offset:{128*t + 32*j}')
            k(f'ds_read_b128 v[{PB+16+4*j}:{PB+16+4*j+3}], v36 offset:{768 + 128*t + 32*j}')
    k('s_mov_b32 s78, 0')
    pq_reads(0, 40)
    vmwait_tag('spld')
    k.label('L_k5_st_chk')
    k('v_and_b32 v30, v194, v198')
    for p in range(2, NSP): k(f'v_and_b32 v30, v30, v{194+4*p}')
    k('v_cmp_ne_u32 vcc, 1, v30')
    k('s_nop 4\ns_cbranch_vccz L_k5_st_ok')
    k('s_add_u32 s78, s78, 1')
    k(f's_cmp_gt_u32 s78, {SPIN_MAX}\ns_cbranch_scc1 L_k5_st_ok')
    k('s_mov_b32 s80, s79')
    for p in range(NSP):
        k(f'buffer_load_dwordx4 v[{192+4*p}:{195+4*p}], v28, s[28:31], s80 offen offset:{(p%2)*2048} sc0 sc1')
        if p % 2 == 1: k('s_add_u32 s80, s80, 4096')
    k('s_waitcnt vmcnt(0)\ns_branch L_k5_st_chk')
    k.label('L_k5_st_ok')
    for p in range(1, NSP):
        k(f'v_pk_add_f32 v[192:193], v[192:193], v[{192+4*p}:{193+4*p}]')
    k('v_mul_f32 v30, 0x3acccccd, v192\nv_mul_f32 v31, 0x3acccccd, v193')
    k('s_lshl_b32 s80, s20, 2\ns_add_u32 s81, s80, s26\ns_add_u32 s80, s80, s25')
    k('v_fma_f32 v31, -v30, v30, v31\nv_max_f32 v31, 0, v31')
    k('s_mul_i32 s76, s21, 6\ns_mul_i32 s77, s24, 3\ns_add_u32 s76, s76, s77         ; T0')
    k('v_cvt_pk_bf16_f32 v30, v30, v31\nv_and_b32 v31, 0xffff0000, v30\nv_lshlrev_b32 v30, 16, v30')
    k('s_mul_i32 s80, s80, 96\ns_add_u32 s80, s80, s76\ns_lshl_b32 s80, s80, 10')
    k('v_add_f32 v31, 0x3727c5ac, v31\nv_cvt_pk_bf16_f32 v31, v31, v31\nv_lshlrev_b32 v31, 16, v31')
    k('v_sqrt_f32 v31, v31')
    k('s_mul_i32 s81, s81, 96\ns_add_u32 s81, s81, s76\ns_lshl_b32 s81, s81, 10')
    k('v_cvt_pk_bf16_f32 v31, v31, v31\nv_lshlrev_b32 v31, 16, v31')
    k('v_rcp_f32 v32, v31')
    k(f'v_mov_b32 v72, {f2h(GK1)}\nv_mov_b32 v73, {f2h(GK1)}\nv_mov_b32 v74, {f2h(GK2)}\nv_mov_b32 v75, {f2h(GK2)}')
    k('v_mul_f32 v33, v30, v32\nv_sub_f32 v33, 0, v33')
    k('v_mov_b32 v34, v32\nv_mov_b32 v35, v33')
    k('s_nop 0\nv_permlane32_swap_b32 v32, v34\nv_permlane32_swap_b32 v33, v35')
    grp = 0
    for t in range(3):
        PB = 40 if t != 1 else 224 - 12
        if t == 0: pass
        k('s_waitcnt lgkmcnt(0)')
        if t < 2:
            pq_reads(t + 1, 212 if t == 0 else 40)
        for lt2 in range(2):
            R = 32 if lt2 == 0 else 34
            a = acc(lt2, t)
            O = 76 + 4 * lt2
            for half in range(2):
                T = 84 if False else (192 if PB == 40 else 84)
                T = 192
                ag, au = a + 8 * half, a + 8 * half + 4
                pg, pu = PB + 8 * half, PB + 8 * half + 4
                qg, qu = pg + 16, pu + 16
                G = [T, T + 8]; U = [T + 2, T + 10]; T1 = [T + 4, T + 12]
                for p in range(2):
                    k(f'v_pk_fma_f32 v[{G[p]}:{G[p]+1}], v[{pg+2*p}:{pg+2*p+1}], v[{R}:{R+1}], v[{qg+2*p}:{qg+2*p+1}] op_sel:[0,1,0] op_sel_hi:[1,1,1]')
                    k(f'v_pk_fma_f32 v[{U[p]}:{U[p]+1}], v[{pu+2*p}:{pu+2*p+1}], v[{R}:{R+1}], v[{qu+2*p}:{qu+2*p+1}] op_sel:[0,1,0] op_sel_hi:[1,1,1]')
                for p in range(2):
                    k(f'v_pk_fma_f32 v[{G[p]}:{G[p]+1}], v[{ag+2*p}:{ag+2*p+1}], v[{R}:{R+1}], v[{G[p]}:{G[p]+1}] op_sel:[0,0,0] op_sel_hi:[1,0,1]')
                    k(f'v_pk_fma_f32 v[{U[p]}:{U[p]+1}], v[{au+2*p}:{au+2*p+1}], v[{R}:{R+1}], v[{U[p]}:{U[p]+1}] op_sel:[0,0,0] op_sel_hi:[1,0,1]')
                if k_wd['n'] < 28 + WDN: vm.issue(*wd_load())
                for p in range(2): k(f'v_pk_mul_f32 v[{T1[p]}:{T1[p]+1}], v[{G[p]}:{G[p]+1}], v[{G[p]}:{G[p]+1}]')
                for p in range(2): k(f'v_pk_fma_f32 v[{T1[p]}:{T1[p]+1}], v[{T1[p]}:{T1[p]+1}], v[74:75], v[72:73]')
                for p in range(2): k(f'v_pk_mul_f32 v[{T1[p]}:{T1[p]+1}], v[{T1[p]}:{T1[p]+1}], v[{G[p]}:{G[p]+1}]')
                for p in range(2): k(f'v_exp_f32 v{T1[p]}, v{T1[p]}\nv_exp_f32 v{T1[p]+1}, v{T1[p]+1}')
                if WDEPI and k_wd['n'] < 60: vm.issue(*wd_load())
                for p in range(2): k(f'v_pk_mul_f32 v[{U[p]}:{U[p]+1}], v[{U[p]}:{U[p]+1}], v[{G[p]}:{G[p]+1}]')
                for p in range(2): k(f'v_pk_add_f32 v[{T1[p]}:{T1[p]+1}], v[{T1[p]}:{T1[p]+1}], 1.0 op_sel_hi:[1,0]')
                for p in range(2): k(f'v_rcp_f32 v{T1[p]}, v{T1[p]}\nv_rcp_f32 v{T1[p]+1}, v{T1[p]+1}')
                if WDEPI and k_wd['n'] < 60: vm.issue(*wd_load())
                for p in range(2): k(f'v_pk_mul_f32 v[{U[p]}:{U[p]+1}], v[{U[p]}:{U[p]+1}], v[{T1[p]}:{T1[p]+1}]')
                for p in range(2): k(f'v_cvt_pk_bf16_f32 v{O + 2*half + p}, v{U[p]}, v{U[p]+1}')
            so = 's80' if lt2 == 0 else 's81'
            vm.issue(f'buffer_store_dwordx4 v[{O}:{O+3}], v7, s[16:19], {so} offen offset:{1024*t} sc0 sc1', 'actst')
    if WDEPI:
        while k_wd['n'] < 60: vm.issue(*wd_load())
    stamp(1, 2); stamp(2, 0)
    k('v_lshrrev_b32 v10, 1, v3\nv_lshlrev_b32 v10, 10, v10')
    k('v_and_b32 v11, 1, v3\nv_lshlrev_b32 v11, 5, v11\nv_add_u32 v11, v11, v4\nv_lshl_add_u32 v10, v11, 4, v10     ; u=0')
    k(f'v_add_u32 v11, {96*1024}, v10                ; u=2')
    k('s_lshl_b32 s80, s20, 7\ns_add_u32 s80, s80, 2048')
    k('v_mov_b32 v88, 0\nv_mov_b32 v89, 1\nv_cmp_gt_u32 vcc, 1, v0\nv_cndmask_b32 v88, v29, v88, vcc')
    k('s_mul_i32 s84, s27, 48\ns_add_u32 s84, s84, s22\ns_mul_i32 s84, s84, 5120')
    n0 = k_wd['n']
    def rest_wd():
        k_wd['n'] = n0
        if k_wd['n'] % 5:
            i_, dt_ = wd_list[k_wd['n']]
            k(f's_add_u32 s85, s84, {i_*4*5120}')
        while k_wd['n'] < 60: k(wd_load()[0])
    k('s_waitcnt vmcnt(0)')
    k('s_barrier')
    stamp(2, 1)
    k('s_cmp_lg_u32 s22, 0\ns_cbranch_scc1 L_k5_noatom')
    k('buffer_atomic_add v89, v88, s[28:31], s80 offen sc1')
    k.label('L_k5_noatom')
    rest_wd()
    k('s_cmp_lg_u32 s22, 0\ns_cbranch_scc1 L_k5_a_ok')
    k('s_mov_b32 s76, 0\nv_mov_b32 v88, 0')
    k.label('L_k5_a_spin')
    k('buffer_load_dword v90, v88, s[28:31], s80 offen sc0 sc1\ns_waitcnt vmcnt(0)')
    k('v_readfirstlane_b32 s81, v90\ns_add_u32 s76, s76, 1')
    k('s_cmp_eq_u32 s81, 16\ns_cbranch_scc1 L_k5_a_ok')
    k(f's_cmp_lt_u32 s76, {SPIN_MAX}\ns_cbranch_scc1 L_k5_a_spin')
    k.label('L_k5_a_ok')
    k('s_mul_i32 s84, s3, 2*96\ns_lshl_b32 s85, s22, 1\ns_add_u32 s84, s84, s85\ns_lshl_b32 s84, s84, 10')
    k('s_barrier')
    stamp(2, 2)
    vm.ops = []; vm.done = 0
    D = 6
    ACT = 16; ACC2 = 128
    def act_issue(i):
        r = ACT + 16 * (i % D)
        ops = [f'buffer_load_dwordx4 v[{r}:{r+3}], v10, s[16:19], s84 offen sc0 sc1',
               f'buffer_load_dwordx4 v[{r+4}:{r+7}], v10, s[16:19], s84 offen offset:256 sc0 sc1',
               f'buffer_load_dwordx4 v[{r+8}:{r+11}], v11, s[16:19], s84 offen sc0 sc1',
               f'buffer_load_dwordx4 v[{r+12}:{r+15}], v11, s[16:19], s84 offen offset:256 sc0 sc1\ns_add_u32 s84, s84, {8*1024}']
        return [(o, ('a', i, u)) for u, o in enumerate(ops)]
    for i in range(D):
        for o in act_issue(i): vm.issue(*o)
    k('s_mul_i32 s80, s22, 20480\nv_add_u32 v124, s80, v7')
    k(f's_mov_b32 s76, s82\ns_mov_b32 s77, s83\ns_mov_b32 s78, {SZ["out"]}\ns_mov_b32 s79, {SRD3:#x}')
    k('s_lshl_b32 s80, s22, 10\nv_add_u32 v125, s80, v7\nv_add_u32 v126, 40960, v125')
    k('v_lshrrev_b32 v120, 2, v4\nv_and_b32 v121, 3, v4')
    k('v_lshl_add_u32 v120, v3, 2, v120\nv_lshlrev_b32 v120, 7, v120\nv_lshl_add_u32 v120, v121, 3, v120')
    k(f's_lshl_b32 s80, s22, 5\ns_add_u32 s80, s80, {X2OFF}\nv_add_u32 v120, s80, v120')
    k(f'v_lshlrev_b32 v121, 4, v3\nv_add_u32 v121, {GBOFF}, v121')
    k('s_lshl_b32 s80, s3, 6\ns_lshl_b32 s81, s22, 4\ns_add_u32 s80, s80, s81\nv_add_u32 v122, s80, v4\nv_mul_u32_u24 v122, 1280, v122')
    k('s_mul_i32 s80, s27, 160\nv_lshl_add_u32 v122, v3, 3, v122\nv_add_u32 v122, s80, v122')
    for i in range(12):
        r = ACT + 16 * (i % D)
        nxt = act_issue(i + D) if i + D < 12 else []
        for u in range(4):
            idx = max(q for q, t in enumerate(vm.ops) if t == ('a', i, u))
            if idx >= vm.done:
                n = len(vm.ops) - 1 - idx
                k(f's_waitcnt vmcnt({n})'); vm.done = len(vm.ops) - n
            for dt in range(5):
                a = ACC2 + 4 * (4 * dt + u)
                c = '0' if i == 0 else f'v[{a}:{a+3}]'
                k(f'v_mfma_f32_16x16x32_bf16 v[{a}:{a+3}], a[{20*i+4*dt}:{20*i+4*dt+3}], v[{r+4*u}:{r+4*u+3}], {c}')
            if nxt: vm.issue(*nxt[u])
    stamp(2, 3); stamp(4, 0)
    for dt in range(5):
        k(f'ds_read_b64_tr_b16 v[{228+2*dt}:{229+2*dt}], v120 offset:{2048*dt}')
    for dt in range(5):
        k(f'ds_read_b128 v[{208+4*dt}:{211+4*dt}], v121 offset:{64*dt}')
    k('s_mul_i32 s80, s22, 5120\nv_add_u32 v124, s80, v7')
    k('v_add_u32 v123, 40960, v124')
    for u in range(4):
        k(f's_cmp_eq_u32 s22, {u}\ns_cbranch_scc1 L_k5_skipw{u}')
        for dt in range(5):
            a = ACC2 + 4 * (4 * dt + u)
            base = 'v124' if u < 2 else 'v123'
            k(f'ds_write_b128 {base}, v[{a}:{a+3}] offset:{(u&1)*20480 + dt*1024}')
        k.label(f'L_k5_skipw{u}')
    for u in range(4):
        k(f's_cmp_lg_u32 s22, {u}\ns_cbranch_scc1 L_k5_skipm{u}')
        for dt in range(5):
            a = ACC2 + 4 * (4 * dt + u)
            k(f'v_mov_b32 v{16+16*dt}, v{a}\nv_mov_b32 v{17+16*dt}, v{a+1}\nv_mov_b32 v{18+16*dt}, v{a+2}\nv_mov_b32 v{19+16*dt}, v{a+3}')
        k.label(f'L_k5_skipm{u}')
    k('s_mul_i32 s80, s22, 20480\nv_add_u32 v125, s80, v7')
    for q in range(1, 4):
        k(f's_add_u32 s81, s22, {q}\ns_and_b32 s81, s81, 3\ns_mul_i32 s81, s81, 5120\nv_add_u32 v{124+q} , s81, v125'.replace(' ,', ',') if False else f's_add_u32 s81, s22, {q}\ns_and_b32 s81, s81, 3\ns_mul_i32 s81, s81, 5120\nv_add_u32 v{116+q}, s81, v125')
    stamp(4, 1)
    k('s_waitcnt lgkmcnt(0)\ns_barrier')
    stamp(4, 2)
    for dt in range(5):
        for q in range(1, 4):
            k(f'ds_read_b128 v[{16+16*dt+4*q}:{19+16*dt+4*q}], v{116+q} offset:{1024*dt}')
    for dt in range(5):
        x = 228 + 2 * dt
        k(f'v_lshlrev_b32 v{128+4*dt}, 16, v{x}\nv_and_b32 v{129+4*dt}, 0xffff0000, v{x}\nv_lshlrev_b32 v{130+4*dt}, 16, v{x+1}\nv_and_b32 v{131+4*dt}, 0xffff0000, v{x+1}')
    for dt in range(5):
        b = 16 + 16 * dt
        k(f's_waitcnt lgkmcnt({3*(4-dt)})')
        k(f'v_pk_add_f32 v[{b}:{b+1}], v[{b}:{b+1}], v[{b+4}:{b+5}]\nv_pk_add_f32 v[{b+2}:{b+3}], v[{b+2}:{b+3}], v[{b+6}:{b+7}]')
        k(f'v_pk_add_f32 v[{b+8}:{b+9}], v[{b+8}:{b+9}], v[{b+12}:{b+13}]\nv_pk_add_f32 v[{b+10}:{b+11}], v[{b+10}:{b+11}], v[{b+14}:{b+15}]')
        k(f'v_pk_add_f32 v[{b}:{b+1}], v[{b}:{b+1}], v[{b+8}:{b+9}]\nv_pk_add_f32 v[{b+2}:{b+3}], v[{b+2}:{b+3}], v[{b+10}:{b+11}]')
        g = 208 + 4 * dt; xr = 128 + 4 * dt
        k(f'v_pk_fma_f32 v[{b}:{b+1}], v[{b}:{b+1}], v[{g}:{g+1}], v[{xr}:{xr+1}]')
        k(f'v_pk_fma_f32 v[{b+2}:{b+3}], v[{b+2}:{b+3}], v[{g+2}:{g+3}], v[{xr+2}:{xr+3}]')
        k(f'v_cvt_pk_bf16_f32 v{b}, v{b}, v{b+1}\nv_cvt_pk_bf16_f32 v{b+1}, v{b+2}, v{b+3}')
        k(f'buffer_store_dwordx2 v[{b}:{b+1}], v122, s[76:79], 0 offen offset:{32*dt}{OUTWT}')
    stamp(4, 3)
    if STAMPS: k('s_waitcnt vmcnt(0)')
    stamp_end(k, 2)
    k.label('L_k5_exit')
    k('s_endpgm')
    return k
```

```python
from asmlib import K, Q
from common import *
import os, struct
from collections import deque

K7_GRID = 256
NS = 7
STG = 20480
TBL = NS * STG
STT = TBL + 1536
X2OFF = STT + 1024
GBOFF = X2OFF + 10240
DUMMY = GBOFF + 320
K7_LDS = DUMMY + 1024 + 16
def f2h(x): return hex(struct.unpack('<I', struct.pack('<f', x))[0])
GK1 = -2.302208198144325
GK2 = GK1 * 0.044715
NSP = 10
SPIN_MAX = 400000
SS = int(os.environ.get('STAMPSET', '1'))
L2PF = os.environ.get('L2PF', '0') == '1'
WDE = int(os.environ.get('WDE', '10'))
LWD = [int(x) for x in os.environ.get('LWD', '2,2,2,2,2').split(',')]
def lines(s): return [l.strip() for l in s.split('\n') if l.strip()]

def build_k7():
    k = K('ffn_kernel')
    def stamp(setno, i):
        if SS == setno: stamp_mid(k, i)
    vm = Q(k, 'vmcnt', 63); lg = Q(k, 'lgkmcnt', 15)
    PRE = NS - 2
    stamp_begin(k)
    k(f's_cmp_ge_u32 s2, {K7_GRID}\ns_cbranch_scc1 L_k7_exit')
    k('s_load_dwordx2 s[4:5], s[0:1], 120')
    k('s_load_dwordx2 s[82:83], s[0:1], 104       ; out')
    k('v_lshrrev_b32 v2, 6, v0\nv_and_b32 v1, 63, v0\nv_readfirstlane_b32 s26, v2     ; w (0..7)')
    k('s_and_b32 s80, s2, 7\ns_lshr_b32 s81, s2, 3')
    k('s_and_b32 s20, s80, 1\ns_lshl_b32 s20, s20, 3\ns_and_b32 s21, s81, 7\ns_add_u32 s20, s20, s21      ; rb')
    k('s_lshr_b32 s21, s80, 1\ns_lshl_b32 s21, s21, 2\ns_lshr_b32 s27, s81, 3\ns_add_u32 s21, s21, s27    ; fb')
    k('s_lshr_b32 s3, s80, 1\ns_and_b32 s3, s3, 1\ns_lshl_b32 s6, s20, 1\ns_add_u32 s3, s3, s6')
    k('s_lshr_b32 s6, s80, 2\ns_lshl_b32 s6, s6, 2\ns_add_u32 s27, s27, s6                               ; db')
    k('v_lshrrev_b32 v3, 4, v1\nv_and_b32 v4, 15, v1\nv_lshlrev_b32 v7, 4, v1')
    k('s_and_b32 s22, s26, 3')
    k('s_cmp_ge_u32 s26, 4\ns_cbranch_scc1 L_k7_loader')

    S0, S1 = 16, 36
    ACC = 56
    def acc(lt2, t): return ACC + 48 * lt2 + 16 * t
    k('s_lshr_b32 s23, s22, 1          ; wi\ns_and_b32 s24, s22, 1      ; wj')
    k('v_lshrrev_b32 v152, 2, v4\nv_and_b32 v153, 3, v4\nv_lshrrev_b32 v154, 1, v3\nv_and_b32 v155, 1, v3')
    k('v_lshl_add_u32 v156, v154, 3, v152\nv_lshlrev_b32 v156, 8, v156')
    k('v_lshrrev_b32 v157, 1, v153\nv_lshl_add_u32 v157, v155, 1, v157\nv_lshl_add_u32 v156, v157, 4, v156')
    k('v_and_b32 v157, 1, v153\nv_lshl_add_u32 v156, v157, 3, v156')
    k('s_lshl_b32 s25, s23, 1')
    k('v_xor_b32 v157, s25, v152\nv_lshl_add_u32 v8, v157, 6, v156')
    k('v_xor_b32 v157, 1, v157\nv_lshl_add_u32 v9, v157, 6, v156')
    k('s_mul_i32 s81, s24, 3072\ns_add_u32 s81, s81, 8192\nv_add_u32 v10, s81, v7')
    XB = {0: (8, 9, 10), 1: (11, 12, 13), 2: (5, 6, 14)}
    for st_ in (1, 2):
        for i in range(3): k(f'v_add_u32 v{XB[st_][i]}, {61440*st_}, v{XB[0][i]}')
    k('s_waitcnt lgkmcnt(0)')
    k(f's_add_u32 s16, s4, {WS_ACT}\ns_addc_u32 s17, s5, 0\ns_mov_b32 s18, 6291456\ns_mov_b32 s19, {SRD3:#x}')
    k(f's_add_u32 s32, s4, {WS_WD}\ns_addc_u32 s33, s5, 0\ns_mov_b32 s34, 1966080\ns_mov_b32 s35, {SRD3:#x}')
    k(f's_add_u32 s28, s4, {WS_FLAGS}\ns_addc_u32 s29, s5, 0\ns_mov_b32 s30, {WS_SP - WS_FLAGS + 327680}\ns_mov_b32 s31, {SRD3:#x}')
    if L2PF:
        k(f's_add_u32 s8, s4, {WS_X2T}\ns_addc_u32 s9, s5, 0\ns_mov_b32 s10, 2621440\ns_mov_b32 s11, {SRD3:#x}')
        k(f's_add_u32 s12, s4, {WS_WP}\ns_addc_u32 s13, s5, 0\ns_mov_b32 s14, 3932160\ns_mov_b32 s15, {SRD3:#x}')
        k('s_lshr_b32 s80, s2, 3\ns_and_b32 s81, s80, 7\ns_lshr_b32 s80, s80, 3       ; s81=r s80=q')
        k('v_lshrrev_b32 v158, 1, v1\nv_lshlrev_b32 v158, 12, v158\nv_and_b32 v159, 1, v1\nv_lshl_add_u32 v158, v159, 7, v158')
        k('s_lshl_b32 s76, s20, 8\nv_add_u32 v158, s76, v158')
        k('s_lshl_b32 s76, s22, 2\ns_add_u32 s76, s76, s80\ns_lshl_b32 s76, s76, 17')
        k('buffer_load_dword v160, v158, s[8:11], s76 offen')
        k('s_cmp_lg_u32 s22, 0\ns_cbranch_scc1 L_k7_pf1')
        k('s_add_u32 s76, s80, 16\ns_lshl_b32 s76, s76, 17')
        k('buffer_load_dword v161, v158, s[8:11], s76 offen')
        k.label('L_k7_pf1')
        k('v_min_u32 v159, 47, v1\nv_lshlrev_b32 v159, 7, v159')
        k('s_mul_i32 s76, s21, 6144\nv_add_u32 v159, s76, v159')
        k('s_lshr_b32 s76, s22, 1\ns_lshl_b32 s76, s76, 3\ns_add_u32 s76, s76, s81\ns_lshl_b32 s76, s76, 1\ns_and_b32 s77, s22, 1\ns_add_u32 s76, s76, s77\ns_mul_i32 s76, s76, 98304')
        k('buffer_load_dword v162, v159, s[12:15], s76 offen')
        k('s_cmp_ge_u32 s22, 2\ns_cbranch_scc1 L_k7_pf2\ns_cmp_ge_u32 s81, 4\ns_cbranch_scc1 L_k7_pf2')
        k('s_add_u32 s76, s81, 16\ns_lshl_b32 s76, s76, 1\ns_add_u32 s76, s76, s22\ns_mul_i32 s76, s76, 98304')
        k('buffer_load_dword v163, v159, s[12:15], s76 offen')
        k.label('L_k7_pf2')
    k('s_barrier')
    stamp(1, 0)
    def reads(s, j, ksl):
        sl = j % NS; b = XB[sl // 3]; o = (sl % 3) * STG
        xo = o + ksl * 4096; wo = o + ksl * 6144
        tg = lambda n: (n, j, ksl)
        return [(f'ds_read_b64_tr_b16 v[{s}:{s+1}], v{b[0]} offset:{xo}', tg('X0')),
                (f'ds_read_b64_tr_b16 v[{s+2}:{s+3}], v{b[0]} offset:{xo+1024}', tg('X0')),
                (f'ds_read_b128 v[{s+8}:{s+11}], v{b[2]} offset:{wo}', tg('W0')),
                (f'ds_read_b64_tr_b16 v[{s+4}:{s+5}], v{b[1]} offset:{xo}', tg('X1')),
                (f'ds_read_b64_tr_b16 v[{s+6}:{s+7}], v{b[1]} offset:{xo+1024}', tg('X1')),
                (f'ds_read_b128 v[{s+12}:{s+15}], v{b[2]} offset:{wo+1024}', tg('W1')),
                (f'ds_read_b128 v[{s+16}:{s+19}], v{b[2]} offset:{wo+2048}', tg('W2'))]
    def lgwait(tag):
        idx = max(i for i, t in enumerate(lg.ops) if t == tag)
        if idx < lg.done: return
        n = min(15, len(lg.ops) - 1 - idx)
        k(f's_waitcnt lgkmcnt({n})'); lg.done = max(lg.done, len(lg.ops) - n)
    def phase(s, j, ksl, first, nxt_reads):
        order = [(0, 0), (0, 1), (1, 0), (1, 1), (2, 0), (2, 1)]
        rd_after = [[0, 1], [2], [3, 4], [5], [6], []]
        for i, (t, lt2) in enumerate(order):
            lgwait((f'W{t}', j, ksl)); lgwait((f'X{lt2}', j, ksl))
            a = acc(lt2, t)
            c = '0' if first else f'v[{a}:{a+15}]'
            k(f'v_mfma_f32_32x32x16_bf16 v[{a}:{a+15}], v[{s+8+4*t}:{s+11+4*t}], v[{s+4*lt2}:{s+3+4*lt2}], {c}')
            if nxt_reads:
                for ri in rd_after[i]: lg.issue(*nxt_reads[ri])
    for r in reads(S0, 0, 0): lg.issue(*r)
    for j in range(20):
        if j > 0: phase(S1, j - 1, 1, False, reads(S0, j, 0))
        phase(S0, j, 0, j == 0, reads(S1, j, 1))
        if j < 19:
            k('s_barrier')
            if j in (2, 7, 12, 17): stamp(3, (2, 7, 12, 17).index(j))
    phase(S1, 19, 1, False, None)
    if L2PF: k('s_waitcnt vmcnt(0)')
    WDV = 128
    def wd_reg(i, dt):
        return (f'a[{20*i+4*dt}:{20*i+4*dt+3}]' if i < 4 else f'v[{WDV+20*(i-4)+4*dt}:{WDV+20*(i-4)+4*dt+3}]')
    def wd_loads():
        out = []
        for i in range(6):
            for dt in range(5):
                pre = f's_add_u32 s85, s84, {i*8*5120}\n' if dt == 0 else ('s_add_u32 s85, s85, 4096\n' if dt == 4 else '')
                off = 1024 * dt if dt < 4 else 0
                out.append(pre + f'buffer_load_dwordx4 {wd_reg(i, dt)}, v7, s[32:35], s85 offen offset:{off}')
        return out
    wq = wd_loads(); wqi = [0]
    k('s_mul_i32 s84, s27, 48\ns_add_u32 s84, s84, s26\ns_mul_i32 s84, s84, 5120')
    stamp(1, 1)
    k(f'v_and_b32 v152, 31, v1\nv_lshlrev_b32 v152, 3, v152\ns_lshl_b32 s80, s25, 8\ns_add_u32 s80, s80, {STT}\nv_add_u32 v152, s80, v152')
    k('ds_read_b64 v[12:13], v152\nds_read_b64 v[8:9], v152 offset:256')
    k('v_lshrrev_b32 v15, 5, v1\nv_lshlrev_b32 v15, 4, v15')
    k(f's_mul_i32 s80, s24, 384\ns_add_u32 s80, s80, {TBL}\nv_add_u32 v15, s80, v15')
    HB = [16, 32]
    def pq_reads(t, half, B):
        o = 128 * t + 64 * half
        k(f'ds_read_b128 v[{B}:{B+3}], v15 offset:{o}\nds_read_b128 v[{B+4}:{B+7}], v15 offset:{o+32}')
        k(f'ds_read_b128 v[{B+8}:{B+11}], v15 offset:{768+o}\nds_read_b128 v[{B+12}:{B+15}], v15 offset:{768+o+32}')
    groups = [(t, h) for t in range(3) for h in range(2)]
    pq_reads(0, 0, HB[0])
    k('s_lshl_b32 s80, s20, 2\ns_add_u32 s80, s80, s25\ns_add_u32 s81, s80, 1')
    k('s_mul_i32 s76, s21, 6\ns_mul_i32 s77, s24, 3\ns_add_u32 s76, s76, s77         ; T0')
    k('s_mul_i32 s80, s80, 96\ns_add_u32 s80, s80, s76\ns_lshl_b32 s80, s80, 10')
    k('s_mul_i32 s81, s81, 96\ns_add_u32 s81, s81, s76\ns_lshl_b32 s81, s81, 10')
    k(f's_mov_b32 s78, {f2h(GK2)}\ns_mov_b32 s79, {f2h(GK2)}\nv_mov_b32 v10, {f2h(GK1)}\nv_mov_b32 v11, {f2h(GK1)}')
    T = 152
    for gi, (t, half) in enumerate(groups):
        B = HB[gi & 1]
        k('s_waitcnt lgkmcnt(0)')
        if gi + 1 < len(groups): pq_reads(groups[gi + 1][0], groups[gi + 1][1], HB[(gi + 1) & 1])
        for lt2 in range(2):
            R = 12 if lt2 == 0 else 8
            a = acc(lt2, t)
            O = 168 + 4 * lt2
            ag, au = a + 8 * half, a + 8 * half + 4
            pg, pu, qg, qu = B, B + 4, B + 8, B + 12
            G = [T, T + 8]; U = [T + 2, T + 10]; T1 = [T + 4, T + 12]
            for p in range(2):
                k(f'v_pk_fma_f32 v[{G[p]}:{G[p]+1}], v[{pg+2*p}:{pg+2*p+1}], v[{R}:{R+1}], v[{qg+2*p}:{qg+2*p+1}] op_sel:[0,1,0] op_sel_hi:[1,1,1]')
                k(f'v_pk_fma_f32 v[{U[p]}:{U[p]+1}], v[{pu+2*p}:{pu+2*p+1}], v[{R}:{R+1}], v[{qu+2*p}:{qu+2*p+1}] op_sel:[0,1,0] op_sel_hi:[1,1,1]')
            for p in range(2):
                k(f'v_pk_fma_f32 v[{G[p]}:{G[p]+1}], v[{ag+2*p}:{ag+2*p+1}], v[{R}:{R+1}], v[{G[p]}:{G[p]+1}] op_sel:[0,0,0] op_sel_hi:[1,0,1]')
                k(f'v_pk_fma_f32 v[{U[p]}:{U[p]+1}], v[{au+2*p}:{au+2*p+1}], v[{R}:{R+1}], v[{U[p]}:{U[p]+1}] op_sel:[0,0,0] op_sel_hi:[1,0,1]')
            if wqi[0] < WDE: k(wq[wqi[0]]); wqi[0] += 1
            for p in range(2): k(f'v_pk_mul_f32 v[{T1[p]}:{T1[p]+1}], v[{G[p]}:{G[p]+1}], v[{G[p]}:{G[p]+1}]')
            for p in range(2): k(f'v_pk_fma_f32 v[{T1[p]}:{T1[p]+1}], v[{T1[p]}:{T1[p]+1}], s[78:79], v[10:11]')
            for p in range(2): k(f'v_pk_mul_f32 v[{T1[p]}:{T1[p]+1}], v[{T1[p]}:{T1[p]+1}], v[{G[p]}:{G[p]+1}]')
            for p in range(2): k(f'v_exp_f32 v{T1[p]}, v{T1[p]}\nv_exp_f32 v{T1[p]+1}, v{T1[p]+1}')
            for p in range(2): k(f'v_pk_mul_f32 v[{U[p]}:{U[p]+1}], v[{U[p]}:{U[p]+1}], v[{G[p]}:{G[p]+1}]')
            if wqi[0] < WDE: k(wq[wqi[0]]); wqi[0] += 1
            for p in range(2): k(f'v_pk_add_f32 v[{T1[p]}:{T1[p]+1}], v[{T1[p]}:{T1[p]+1}], 1.0 op_sel_hi:[1,0]')
            for p in range(2): k(f'v_rcp_f32 v{T1[p]}, v{T1[p]}\nv_rcp_f32 v{T1[p]+1}, v{T1[p]+1}')
            for p in range(2): k(f'v_pk_mul_f32 v[{U[p]}:{U[p]+1}], v[{U[p]}:{U[p]+1}], v[{T1[p]}:{T1[p]+1}]')
            for p in range(2): k(f'v_cvt_pk_bf16_f32 v{O + 2*half + p}, v{U[p]}, v{U[p]+1}')
            if half == 1:
                so = 's80' if lt2 == 0 else 's81'
                k(f'buffer_store_dwordx4 v[{O}:{O+3}], v7, s[16:19], {so} offen offset:{1024*t} sc0 sc1')
    stamp(1, 2); stamp(2, 0)
    k('s_waitcnt vmcnt(0)')
    k('s_barrier                 ; H1')
    stamp(2, 1)
    k('s_barrier')
    for o in wq[wqi[0]:]: k(o)
    k('s_branch L_k7_h2')

    k.label('L_k7_loader')
    side = deque()
    def job(text):
        for l in lines(text): side.append(('i', l))
    def jobvm(text, tag):
        ls = lines(text)
        for l in ls[:-1]: side.append(('i', l))
        side.append(('vm', ls[-1], tag))
    def joblg(text, tag): side.append(('lg', text, tag))
    def pull(n):
        while n > 0 and side:
            it = side.popleft()
            if it[0] == 'i':
                k(it[1]); n -= 1
                while side and side[0][0] == 'i' and side[0][1].split()[0] in ('s_addc_u32', 's_subb_u32', 's_cselect_b32', 's_cselect_b64'):
                    k(side.popleft()[1]); n -= 1
            elif it[0] == 'vm': vm.issue(it[1], it[2]); n -= 2
            elif it[0] == 'lg': lg.issue(it[1], it[2]); n -= 1
            elif it[0] == 'call': it[1](); n -= 3
    def flush(): pull(1 << 30)
    vm.ops = []; vm.done = 0; lg.ops = []; lg.done = 0
    NOCOUNT = ('spst',)
    def vmwait_tag(tag):
        idx = max(i for i, t in enumerate(vm.ops) if t == tag)
        if idx < vm.done: return
        n = min(63, sum(1 for t in vm.ops[idx+1:] if t not in NOCOUNT))
        k(f's_waitcnt vmcnt({n})'); vm.done = max(vm.done, idx + 1)
    k('v_lshlrev_b32 v5, 2, v3\nv_xor_b32 v5, v5, v4\nv_lshlrev_b32 v5, 4, v5\nv_lshl_add_u32 v5, v3, 12, v5')
    k('s_lshl_b32 s6, s20, 8\nv_add_u32 v5, s6, v5\nv_add_u32 v6, 16384, v5')
    k('s_lshr_b32 s23, s22, 1\ns_and_b32 s24, s22, 1')
    k(f's_mul_i32 s80, s20, {int(os.environ.get("ROT", "0"))}\ns_add_u32 s80, s80, s21\ns_lshl_b32 s80, s80, 1\ns_cmp_lt_u32 s21, {NSP}\ns_cselect_b32 s81, 0, 1\ns_add_u32 s80, s80, s81')
    k('s_mul_hi_u32 s81, s80, 0x0CCCCCCD\ns_mul_i32 s81, s81, 20\ns_sub_u32 s80, s80, s81          ; st = s0')
    k('s_lshl_b32 s84, s22, 15         ; x2 const = w*32768')
    k('s_mul_i32 s85, s23, 96\ns_mul_i32 s81, s21, 6\ns_add_u32 s85, s85, s81\ns_mul_i32 s81, s24, 3\ns_add_u32 s85, s85, s81\ns_lshl_b32 s85, s85, 10    ; W const')
    def soff(j):
        return (f's_mul_i32 s{36+j}, s80, 131072\ns_mul_i32 s{56+j}, s80, 196608\n'
                f's_add_u32 s{36+j}, s{36+j}, s84\ns_add_u32 s{56+j}, s{56+j}, s85\n'
                's_add_u32 s80, s80, 1\ns_cmp_eq_u32 s80, 20\ns_cselect_b32 s80, 0, s80')
    k(soff(0))
    k('s_lshl_b32 s6, s22, 11\ns_mul_i32 s7, s22, 3072\ns_add_u32 s7, s7, 8192')
    k(soff(1))
    k('s_waitcnt lgkmcnt(0)')
    k(f's_add_u32 s8, s4, {WS_X2T}\ns_addc_u32 s9, s5, 0\ns_mov_b32 s10, 2621440\ns_mov_b32 s11, {SRD3:#x}')
    k(f's_add_u32 s12, s4, {WS_WP}\ns_addc_u32 s13, s5, 0\ns_mov_b32 s14, 3932160\ns_mov_b32 s15, {SRD3:#x}')
    def dma_ops(j):
        sl = (j % NS) * STG
        if os.environ.get('EXP_HOT'): j = 0
        return [f's_add_u32 m0, s6, {sl}\ns_nop 0\nbuffer_load_dwordx4 v5, s[8:11], s{36+j} offen lds',
                f's_add_u32 m0, s6, {sl+1024}\ns_nop 0\nbuffer_load_dwordx4 v6, s[8:11], s{36+j} offen lds',
                f's_add_u32 m0, s7, {sl}\ns_nop 0\nbuffer_load_dwordx4 v7, s[12:15], s{56+j} offen lds',
                f'buffer_load_dwordx4 v7, s[12:15], s{56+j} offen offset:1024 lds',
                f'buffer_load_dwordx4 v7, s[12:15], s{56+j} offen offset:2048 lds']
    for j in range(2, 20): job(soff(j))
    job('v_mov_b32 v29, 0x80000000')
    job('v_lshrrev_b32 v18, 2, v4\nv_and_b32 v19, 3, v4\nv_lshrrev_b32 v20, 1, v3\nv_and_b32 v21, 1, v3')
    job('v_lshl_add_u32 v22, v20, 3, v18\nv_lshlrev_b32 v22, 8, v22')
    job('v_lshrrev_b32 v23, 1, v19\nv_lshl_add_u32 v23, v21, 1, v23\nv_lshl_add_u32 v22, v23, 4, v22')
    job('v_and_b32 v23, 1, v19\nv_lshl_add_u32 v22, v23, 3, v22')
    job('v_xor_b32 v23, s22, v18\nv_lshl_add_u32 v8, v23, 6, v22')
    job(f's_add_u32 s28, s4, {WS_FLAGS}\ns_addc_u32 s29, s5, 0\ns_mov_b32 s30, {WS_SP - WS_FLAGS + 327680}\ns_mov_b32 s31, {SRD3:#x}')
    job(f's_add_u32 s32, s4, {WS_WD}\ns_addc_u32 s33, s5, 0\ns_mov_b32 s34, 1966080\ns_mov_b32 s35, {SRD3:#x}')
    job(f's_add_u32 s16, s4, {WS_ACT}\ns_addc_u32 s17, s5, 0\ns_mov_b32 s18, 6291456\ns_mov_b32 s19, {SRD3:#x}')
    for j in range(PRE):
        for o in dma_ops(j):
            vm.issue(o, ('st', j)); pull(7)
    flush()
    stamp(1, 3)
    vmwait_tag(('st', 0))
    k('s_barrier')
    k('v_subrev_u32 v2, 256, v0')
    XS = 32
    def stat_ops(s, first):
        ops = []
        for i in range(4):
            a, b = 24 + 2 * (i & 1), 25 + 2 * (i & 1)
            ops.append(f'v_lshlrev_b32 v{a}, 16, v{s+i}')
            ops.append(f'v_and_b32 v{b}, 0xffff0000, v{s+i}')
            if first and i == 0:
                ops += [f'v_mov_b32 v16, v{a}', f'v_mov_b32 v17, v{b}', f'v_mul_f32 v18, v{a}, v{a}', f'v_mul_f32 v19, v{b}, v{b}']
            else:
                ops += [f'v_add_f32 v16, v16, v{a}', f'v_add_f32 v17, v17, v{b}', f'v_fma_f32 v18, v{a}, v{a}, v18', f'v_fma_f32 v19, v{b}, v{b}, v19']
        return ops
    WDVL = 128
    wl = wd_loads()
    wli = 0
    GR = 48
    for j in range(20):
        if j < 2:
            sl = j % NS
            for ksl in range(2):
                r = XS + 8 * j + 4 * ksl
                lg.issue(f'ds_read_b64_tr_b16 v[{r}:{r+1}], v8 offset:{sl*STG + ksl*4096}', ('xs', j))
                lg.issue(f'ds_read_b64_tr_b16 v[{r+2}:{r+3}], v8 offset:{sl*STG + ksl*4096 + 1024}', ('xs', j))
        if j == 2:
            for q in range(4):
                for o in stat_ops(XS + 4 * q, q == 0): side.append(('i', o))
            job('v_add_f32 v16, v16, v17\nv_add_f32 v18, v18, v19\nv_mov_b32 v20, v16\nv_mov_b32 v21, v18')
            job(f's_mul_i32 s80, s20, {NSP}\ns_add_u32 s80, s80, s21\ns_lshl_b32 s80, s80, 11')
            job('s_nop 1\nv_permlane32_swap_b32 v16, v20\nv_permlane32_swap_b32 v18, v21')
            job(f's_lshl_b32 s81, s22, 9\ns_add_u32 s80, s80, s81\ns_add_u32 s80, s80, {WS_SP - WS_FLAGS}')
            job('v_add_f32 v16, v16, v20\nv_add_f32 v17, v18, v21\nv_mov_b32 v18, 1\nv_mov_b32 v19, 0')
            job(f's_cmp_lt_u32 s21, {NSP}\ns_cselect_b32 s81, 32, 0')
            job('v_lshlrev_b32 v20, 4, v1\nv_cmp_gt_u32 vcc, s81, v1\nv_cndmask_b32 v20, v29, v20, vcc')
            jobvm('buffer_store_dwordx4 v[16:19], v20, s[28:31], s80 offen sc0 sc1', 'spst')
        if j == 5:
            job(f's_add_u32 s76, s4, {WS_PQ}\ns_addc_u32 s77, s5, 0\ns_mov_b32 s78, 122880\ns_mov_b32 s79, {SRD3:#x}')
            job('s_mul_i32 s80, s21, 6*256\nv_min_u32 v24, 191, v2\nv_lshlrev_b32 v24, 3, v24\nv_add_u32 v24, s80, v24')
            for dq in range(5):
                jobvm(f's_mov_b32 s80, {dq*96*256}\nbuffer_load_dwordx2 v[{88+2*dq}:{89+2*dq}], v24, s[76:79], s80 offen', 'pq')
            job(f's_add_u32 s76, s4, {WS_MODP}\ns_addc_u32 s77, s5, 0\ns_mov_b32 s78, 61440')
            job('s_mul_i32 s80, s27, 320\nv_min_u32 v25, 79, v2\nv_lshlrev_b32 v25, 2, v25\nv_add_u32 v24, s80, v25')
            for kq in range(4):
                jobvm(f's_mov_b32 s80, {kq*15360 + 5*2560}\nbuffer_load_dword v{98+kq}, v24, s[76:79], s80 offen', 'pq')
        if j == 7:
            job('v_lshrrev_b32 v24, 3, v1\nv_and_b32 v25, 7, v1\nv_lshlrev_b32 v24, 12, v24\nv_lshl_add_u32 v24, v25, 4, v24')
            job('s_mul_i32 s76, s27, 80*4096\ns_lshl_b32 s81, s3, 7\ns_add_u32 s76, s76, s81')
            job('s_lshl_b32 s77, s22, 15\ns_add_u32 s77, s77, s76')
            job(f's_lshl_b32 s78, s22, 10\ns_add_u32 s78, s78, {X2OFF}')
            side.append(('call', lambda: (k('s_mov_b32 m0, s78\ns_nop 0'), vm.issue('buffer_load_dwordx4 v24, s[8:11], s77 offen lds', 'x2r'))))
            job(f's_add_u32 s77, s77, {32*4096}\ns_add_u32 s78, s78, 4096')
            side.append(('call', lambda: (k('s_mov_b32 m0, s78\ns_nop 0'), vm.issue('buffer_load_dwordx4 v24, s[8:11], s77 offen lds', 'x2r'))))
            job(f's_and_b32 s81, s22, 1\ns_add_u32 s81, s81, 8\ns_lshl_b32 s78, s81, 10\ns_add_u32 s78, s78, {X2OFF}\ns_lshl_b32 s81, s81, 15\ns_add_u32 s77, s76, s81')
            side.append(('call', lambda: (k('s_mov_b32 m0, s78\ns_nop 0'), vm.issue('buffer_load_dwordx4 v24, s[8:11], s77 offen lds', 'x2r'))))
        if j == 12:
            side.append(('call', lambda: vmwait_tag('pq')))
            for dq in range(1, 5): job(f'v_pk_add_f32 v[88:89], v[88:89], v[{88+2*dq}:{89+2*dq}]')
            job('v_add_f32 v98, v98, v99\nv_add_f32 v100, v100, v101\nv_add_f32 v98, v98, v100')
            job('v_cvt_pk_bf16_f32 v98, v98, v98\nv_lshlrev_b32 v98, 16, v98')
            job(f'v_lshlrev_b32 v24, 2, v2\nv_add_u32 v25, {GBOFF}, v24\nv_add_u32 v24, {TBL}, v24\nv_mov_b32 v26, {DUMMY}')
            job('v_cmp_gt_u32 vcc, 192, v2\nv_cndmask_b32 v24, v26, v24, vcc\nv_cmp_gt_u32 vcc, 80, v2\nv_cndmask_b32 v25, v26, v25, vcc')
            joblg('ds_write_b32 v24, v88', 'tbl'); joblg('ds_write_b32 v24, v89 offset:768', 'tbl'); joblg('ds_write_b32 v25, v98', 'tbl')
        if j == 13:
            job('v_and_b32 v28, 31, v1\nv_lshlrev_b32 v28, 4, v28\ns_lshl_b32 s80, s22, 9\nv_add_u32 v28, s80, v28')
            job(f's_mul_i32 s79, s20, {NSP*2048}\ns_add_u32 s79, s79, {WS_SP - WS_FLAGS}\ns_mov_b32 s80, s79')
            for p in range(NSP):
                jobvm(f'buffer_load_dwordx4 v[{GR+4*p}:{GR+3+4*p}], v28, s[28:31], s80 offen offset:{(p%2)*2048} sc0 sc1', 'spld')
                if p % 2 == 1: job('s_add_u32 s80, s80, 4096')
        if j + PRE < 20: d = [(o, ('st', j + PRE)) for o in dma_ops(j + PRE)]
        else:
            nl = LWD[j - 15]
            if wli == 0: k('s_mul_i32 s84, s27, 48\ns_add_u32 s84, s84, s26\ns_mul_i32 s84, s84, 5120')
            d = [(wl[wli + q], 'wd') for q in range(nl)]; wli += nl
        for q, o in enumerate(d):
            if os.environ.get('EXP_NODMA') and j + PRE < 20:
                if q in os.environ.get('KEEP', ''). split(',') or str(q) in os.environ.get('KEEP', '').split(','): vm.issue(*o)
                else: vm.note(o[1])
                continue
            vm.issue(*o)
            if not (j + PRE < 20 and q in (2, 3)): pull(int(os.environ.get('LPULL', '14')))
        if j in (7, 8): flush()
        if j == 17:
            flush()
            vmwait_tag('spld')
            k('s_mov_b32 s78, 0')
            k.label('L_k7_st_chk')
            k(f'v_and_b32 v24, v{GR+2}, v{GR+6}')
            for p in range(2, NSP): k(f'v_and_b32 v24, v24, v{GR+2+4*p}')
            k('v_cmp_ne_u32 vcc, 1, v24')
            k('s_nop 4\ns_cbranch_vccz L_k7_st_ok')
            k('s_add_u32 s78, s78, 1')
            k(f's_cmp_gt_u32 s78, {SPIN_MAX}\ns_cbranch_scc1 L_k7_st_ok')
            k('s_mov_b32 s80, s79')
            for p in range(NSP):
                k(f'buffer_load_dwordx4 v[{GR+4*p}:{GR+3+4*p}], v28, s[28:31], s80 offen offset:{(p%2)*2048} sc0 sc1')
                if p % 2 == 1: k('s_add_u32 s80, s80, 4096')
            k('s_waitcnt vmcnt(0)\ns_branch L_k7_st_chk')
            k.label('L_k7_st_ok')
            for p in range(1, NSP): k(f'v_pk_add_f32 v[{GR}:{GR+1}], v[{GR}:{GR+1}], v[{GR+4*p}:{GR+1+4*p}]')
            k(f'v_mul_f32 v16, 0x3acccccd, v{GR}\nv_mul_f32 v17, 0x3acccccd, v{GR+1}')
            k('v_fma_f32 v17, -v16, v16, v17\nv_max_f32 v17, 0, v17')
            k('v_cvt_pk_bf16_f32 v16, v16, v17\nv_and_b32 v17, 0xffff0000, v16\nv_lshlrev_b32 v16, 16, v16')
            k('v_add_f32 v17, 0x3727c5ac, v17\nv_cvt_pk_bf16_f32 v17, v17, v17\nv_lshlrev_b32 v17, 16, v17')
            k('v_sqrt_f32 v17, v17\ns_nop 0\nv_cvt_pk_bf16_f32 v17, v17, v17\nv_lshlrev_b32 v17, 16, v17')
            k('v_rcp_f32 v18, v17\ns_nop 0\nv_mul_f32 v19, v16, v18\nv_sub_f32 v19, 0, v19')
            k(f'v_and_b32 v20, 31, v1\nv_lshlrev_b32 v20, 3, v20\ns_lshl_b32 s80, s22, 8\ns_add_u32 s80, s80, {STT}\nv_add_u32 v20, s80, v20')
            lg.issue('ds_write_b64 v20, v[18:19]', 'stt')
        if j < 19:
            if j + 1 < 20: vmwait_tag(('st', j + 1))
            k('s_waitcnt lgkmcnt(0)'); lg.done = len(lg.ops)
            k('s_barrier')
    flush()
    for o in wl[wli:]: k(o)
    k('s_waitcnt vmcnt(0)')
    k('s_barrier                 ; H1')
    k('s_cmp_lg_u32 s26, 4\ns_cbranch_scc1 L_k7_nosig')
    k('s_lshl_b32 s80, s20, 7\ns_add_u32 s80, s80, 2048')
    k('v_mov_b32 v20, 0\nv_mov_b32 v21, 1\nv_cmp_gt_u32 vcc, 1, v1\nv_cndmask_b32 v20, v29, v20, vcc')
    k('buffer_atomic_add v21, v20, s[28:31], s80 offen sc1')
    k.label('L_k7_nosig')
    k('s_barrier                 ; H1b')
    k('s_cmp_lg_u32 s26, 4\ns_cbranch_scc1 L_k7_h2')
    k('s_mov_b32 s76, 0\nv_mov_b32 v20, 0')
    k.label('L_k7_a_spin')
    k('buffer_load_dword v22, v20, s[28:31], s80 offen sc0 sc1\ns_waitcnt vmcnt(0)')
    k('v_readfirstlane_b32 s81, v22\ns_add_u32 s76, s76, 1')
    k('s_cmp_eq_u32 s81, 16\ns_cbranch_scc1 L_k7_h2')
    k(f's_cmp_lt_u32 s76, {SPIN_MAX}\ns_cbranch_scc1 L_k7_a_spin')

    k.label('L_k7_h2')
    k('v_lshrrev_b32 v10, 1, v3\nv_lshlrev_b32 v10, 10, v10')
    k('v_and_b32 v11, 1, v3\nv_lshlrev_b32 v11, 5, v11\nv_add_u32 v11, v11, v4\nv_lshl_add_u32 v10, v11, 4, v10     ; u=0')
    k(f'v_add_u32 v11, {96*1024}, v10                ; u=2')
    k('s_mul_i32 s84, s3, 2*96\ns_lshl_b32 s85, s26, 1\ns_add_u32 s84, s84, s85\ns_lshl_b32 s84, s84, 10')
    k('s_barrier                 ; H2')
    stamp(2, 2)
    vm.ops = []; vm.done = 0
    ACC2 = 48
    D = 2
    ACT = 16
    def act_issue(i):
        r = ACT + 16 * (i % D)
        ops = [f'buffer_load_dwordx4 v[{r}:{r+3}], v10, s[16:19], s84 offen sc0 sc1',
               f'buffer_load_dwordx4 v[{r+4}:{r+7}], v10, s[16:19], s84 offen offset:256 sc0 sc1',
               f'buffer_load_dwordx4 v[{r+8}:{r+11}], v11, s[16:19], s84 offen sc0 sc1',
               f'buffer_load_dwordx4 v[{r+12}:{r+15}], v11, s[16:19], s84 offen offset:256 sc0 sc1\ns_add_u32 s84, s84, {16*1024}']
        return [(o, ('a', i, u)) for u, o in enumerate(ops)]
    for i in range(D):
        for o in act_issue(i): vm.issue(*o)
    k(f's_mov_b32 s76, s82\ns_mov_b32 s77, s83\ns_mov_b32 s78, {SZ["out"]}\ns_mov_b32 s79, {SRD3:#x}')
    for i in range(6):
        r = ACT + 16 * (i % D)
        nxt = act_issue(i + D) if i + D < 6 else []
        for u in range(4):
            idx = max(q for q, t in enumerate(vm.ops) if t == ('a', i, u))
            if idx >= vm.done:
                n = len(vm.ops) - 1 - idx
                k(f's_waitcnt vmcnt({n})'); vm.done = len(vm.ops) - n
            for dt in range(5):
                a = ACC2 + 4 * (4 * dt + u)
                c = '0' if i == 0 else f'v[{a}:{a+3}]'
                k(f'v_mfma_f32_16x16x32_bf16 v[{a}:{a+3}], {wd_reg(i, dt)}, v[{r+4*u}:{r+4*u+3}], {c}')
            if nxt: vm.issue(*nxt[u])
    stamp(2, 3)
    k('s_mul_i32 s80, s26, 10240\nv_add_u32 v12, s80, v7')
    k('s_xor_b32 s81, s26, 4\ns_mul_i32 s81, s81, 10240\nv_add_u32 v13, s81, v7')
    k('s_cmp_ge_u32 s26, 4\ns_cbranch_scc1 L_k7_r1b')
    for grp in range(2):
        if grp: k.label('L_k7_r1b')
        su = 2 if grp == 0 else 0; ku = 2 - su
        for dt in range(5):
            for e in range(2):
                a = ACC2 + 4 * (4 * dt + su + e)
                k(f'ds_write_b128 v12, v[{a}:{a+3}] offset:{(2*dt+e)*1024}')
        k('s_waitcnt lgkmcnt(0)\ns_barrier')
        for dt in range(5):
            for e in range(2):
                k(f'ds_read_b128 v[{128+4*(2*dt+e)}:{131+4*(2*dt+e)}], v13 offset:{(2*dt+e)*1024}')
        for dt in range(5):
            for e in range(2):
                a = ACC2 + 4 * (4 * dt + ku + e); b = 128 + 4 * (2 * dt + e)
                k(f's_waitcnt lgkmcnt({min(15, 9 - (2*dt+e))})')
                k(f'v_pk_add_f32 v[{a}:{a+1}], v[{a}:{a+1}], v[{b}:{b+1}]\nv_pk_add_f32 v[{a+2}:{a+3}], v[{a+2}:{a+3}], v[{b+2}:{b+3}]')
        k('s_barrier')
        for q in range(10):
            dt, e = q // 2, q % 2
            a = ACC2 + 4 * (4 * dt + ku + e)
            k(f'ds_write_b128 v12, v[{a}:{a+3}] offset:{q*1024}')
        k('s_waitcnt lgkmcnt(0)\ns_barrier')
        if grp == 0: k('s_branch L_k7_r2')
    k.label('L_k7_r2')
    k('s_and_b32 s80, s26, 3\ns_and_b32 s81, s26, 4')
    k('s_mul_i32 s84, s81, 10240\ns_lshl_b32 s85, s80, 10\ns_add_u32 s84, s84, s85\nv_add_u32 v12, s84, v7')
    for m_ in range(3):
        for wp in range(4):
            k(f'ds_read_b128 v[{16+16*m_+4*wp}:{19+16*m_+4*wp}], v12 offset:{wp*10240 + m_*4096}')
    k('s_lshr_b32 s84, s80, 1          ; dt0\ns_and_b32 s85, s80, 1\ns_lshr_b32 s81, s81, 1\ns_add_u32 s85, s85, s81       ; u')
    k('v_lshrrev_b32 v64, 2, v4\nv_and_b32 v65, 3, v4')
    k('v_lshl_add_u32 v64, v3, 2, v64\nv_lshlrev_b32 v64, 7, v64\nv_lshl_add_u32 v64, v65, 3, v64')
    k(f's_lshl_b32 s80, s85, 5\ns_lshl_b32 s81, s84, 11\ns_add_u32 s80, s80, s81\ns_add_u32 s80, s80, {X2OFF}\nv_add_u32 v64, s80, v64')
    k(f's_lshl_b32 s80, s84, 6\ns_add_u32 s80, s80, {GBOFF}\nv_lshlrev_b32 v65, 4, v3\nv_add_u32 v65, s80, v65')
    for m_ in range(3):
        k(f'ds_read_b64_tr_b16 v[{68+2*m_}:{69+2*m_}], v64 offset:{4096*m_}')
        k(f'ds_read_b128 v[{76+4*m_}:{79+4*m_}], v65 offset:{128*m_}')
    k('s_lshl_b32 s80, s3, 6\ns_lshl_b32 s81, s85, 4\ns_add_u32 s80, s80, s81\nv_add_u32 v66, s80, v4\nv_mul_u32_u24 v66, 1280, v66')
    k('s_mul_i32 s80, s27, 160\ns_lshl_b32 s81, s84, 5\ns_add_u32 s80, s80, s81\nv_lshl_add_u32 v66, v3, 3, v66\nv_add_u32 v66, s80, v66')
    k('s_and_b32 s80, s26, 3\ns_cmp_lt_u32 s80, 2\ns_cselect_b32 s80, 0, 0x80000000\nv_or_b32 v67, s80, v66')
    k('s_waitcnt lgkmcnt(0)')
    for m_ in range(3):
        b = 16 + 16 * m_; x = 68 + 2 * m_; g = 76 + 4 * m_; xr = 88 + 4 * m_
        k(f'v_pk_add_f32 v[{b}:{b+1}], v[{b}:{b+1}], v[{b+4}:{b+5}]\nv_pk_add_f32 v[{b+2}:{b+3}], v[{b+2}:{b+3}], v[{b+6}:{b+7}]')
        k(f'v_pk_add_f32 v[{b+8}:{b+9}], v[{b+8}:{b+9}], v[{b+12}:{b+13}]\nv_pk_add_f32 v[{b+10}:{b+11}], v[{b+10}:{b+11}], v[{b+14}:{b+15}]')
        k(f'v_lshlrev_b32 v{xr}, 16, v{x}\nv_and_b32 v{xr+1}, 0xffff0000, v{x}\nv_lshlrev_b32 v{xr+2}, 16, v{x+1}\nv_and_b32 v{xr+3}, 0xffff0000, v{x+1}')
        k(f'v_pk_add_f32 v[{b}:{b+1}], v[{b}:{b+1}], v[{b+8}:{b+9}]\nv_pk_add_f32 v[{b+2}:{b+3}], v[{b+2}:{b+3}], v[{b+10}:{b+11}]')
        k(f'v_pk_fma_f32 v[{b}:{b+1}], v[{b}:{b+1}], v[{g}:{g+1}], v[{xr}:{xr+1}]')
        k(f'v_pk_fma_f32 v[{b+2}:{b+3}], v[{b+2}:{b+3}], v[{g+2}:{g+3}], v[{xr+2}:{xr+3}]')
        k(f'v_cvt_pk_bf16_f32 v{b}, v{b}, v{b+1}\nv_cvt_pk_bf16_f32 v{b+1}, v{b+2}, v{b+3}')
        k(f'buffer_store_dwordx2 v[{b}:{b+1}], v{66 if m_ < 2 else 67}, s[76:79], 0 offen offset:{64*m_}{OUTWT}')
    if STAMPS: k('s_waitcnt vmcnt(0)')
    stamp_end(k, 2)
    k.label('L_k7_exit')
    k('s_endpgm')
    return k
```

```python
import sys, os
from asmlib import emit_file
import k1, k2, k3, k4, k5, k6, k7, k2f
if k1.FUSEK:
    k2.build_k2 = k2f.build_k2f
log = []
if os.environ.get('UNFUSED'):
    kernels = [k1.build_k1(), k2.build_k2(), k3.build_k3(), k4.build_k4()]
    launches = [('prep_kernel', k1.K1_GRID, 256, k1.K1_LDS), ('conv_kernel', k2.K2_GRID, 256, k2.K2_LDS), ('gemm1_kernel', k3.K3_GRID, 256, k3.K3_LDS), ('gemm2_kernel', k4.K4_GRID, 256, k4.K4_LDS)]
elif os.environ.get('FFN', '5') == '7':
    kernels = [k1.build_k1(), k2.build_k2(), k7.build_k7()]
    launches = [('prep_kernel', k1.K1_GRID, 256, k1.K1_LDS), ('conv_kernel', k2.K2_GRID, 256, k2.K2_LDS), ('ffn_kernel', k7.K7_GRID, 512, k7.K7_LDS)]
elif os.environ.get('FFN') == '6':
    kernels = [k1.build_k1(), k2.build_k2(), k6.build_k6()]
    launches = [('prep_kernel', k1.K1_GRID, 256, k1.K1_LDS), ('conv_kernel', k2.K2_GRID, 256, k2.K2_LDS), ('ffn_kernel', k6.K6_GRID, 512, k6.K6_LDS)]
else:
    kernels = [k1.build_k1(), k2.build_k2(), k5.build_k5()]
    launches = [('prep_kernel', k1.K1_GRID, 256, k1.K1_LDS), ('conv_kernel', k2.K2_GRID, 256, k2.K2_LDS), ('ffn_kernel', k5.K5_GRID, 256, k5.K5_LDS)]
emit_file(sys.argv[1] if len(sys.argv) > 1 else 'out.s', kernels, launches, data=k1.ktable_data(), log=log)
print('\n'.join(log[:80]))
```

```python
from asmlib import K
from common import *
import os

import os
N_WP, N_CV = 120, int(os.environ.get('EXP_NCV', 640))
K2_GRID = N_WP + N_CV
K2_LDS = 40960
CVFIRST = os.environ.get('CVFIRST', '1') == '1'

def build_k2():
    k = K('conv_kernel')
    stamp_begin(k)
    if CVFIRST:
        k(f's_cmp_lt_u32 s2, {N_CV}\ns_cbranch_scc1 L_k2_cv')
        k(f's_cmp_lt_u32 s2, {K2_GRID}\ns_cbranch_scc1 L_k2_wp')
    else:
        k(f's_cmp_lt_u32 s2, {N_WP}\ns_cbranch_scc1 L_k2_wp')
        k(f's_cmp_lt_u32 s2, {K2_GRID}\ns_cbranch_scc1 L_k2_cv')
    k('s_endpgm')

    k.label('L_k2_cv')
    load_ptr(k, 4, 'ws'); load_ptr(k, 20, 'dsk')
    k(f's_sub_u32 s3, s2, {0 if CVFIRST else N_WP}')
    k('s_and_b32 s24, s3, 0xffffffe0\ns_and_b32 s25, s3, 7\ns_lshl_b32 s25, s25, 2\ns_or_b32 s24, s24, s25')
    k('s_lshr_b32 s25, s3, 3\ns_and_b32 s25, s25, 3\ns_or_b32 s3, s24, s25          ; d')
    k('v_lshlrev_b32 v1, 6, v0            ; t*64')
    k('s_and_b32 s24, s3, 3\ns_lshl_b32 s24, s24, 4')
    k('v_add_u32 v1, s24, v1')
    if os.environ.get('EXP_XT'): k('v_lshlrev_b32 v1, 4, v0')
    k('v_lshlrev_b32 v2, 5, v0')
    k('v_lshlrev_b32 v3, 4, v0            ; t*16')
    k('s_lshr_b32 s25, s3, 2\ns_lshl_b32 s25, s25, 14')
    if os.environ.get('EXP_XT'): k('s_lshl_b32 s25, s3, 12')
    k('s_lshl_b32 s26, s3, 12             ; d*4096')
    k('s_lshl_b32 s27, s3, 2              ; d*4')
    k('s_lshr_b32 s28, s3, 1\ns_lshl_b32 s28, s28, 2')
    k('s_waitcnt lgkmcnt(0)')
    stamp_mid(k, 3)
    k('s_add_u32 s30, s4, s27\ns_addc_u32 s31, s5, 0')
    for kq in range(4):
        for i in range(3):
            k(f's_load_dword s{40+4*i+kq}, s[30:31], {WS_MODP + kq*15360 + i*2560}')
    k('s_add_u32 s20, s20, s28\ns_addc_u32 s21, s21, 0')
    k('s_load_dword s52, s[20:21], 0')
    k(f's_add_u32 s8, s4, {WS_XT}\ns_addc_u32 s9, s5, 0\ns_mov_b32 s10, 2621440\ns_mov_b32 s11, {SRD3:#x}')
    k(f's_add_u32 s12, s4, {WS_STATS}\ns_addc_u32 s13, s5, 0\ns_mov_b32 s14, 8192\ns_mov_b32 s15, {SRD3:#x}')
    k(f's_add_u32 s16, s4, {WS_R}\ns_addc_u32 s17, s5, 0\ns_add_u32 s16, s16, s26\ns_addc_u32 s17, s17, 0\ns_mov_b32 s18, 4096\ns_mov_b32 s19, {SRD3:#x}')
    k('buffer_load_dwordx4 v[8:11], v3, s[16:19], 0 offen')
    k('buffer_load_dwordx4 v[12:15], v3, s[16:19], 0 offen offset:4')
    k('buffer_load_dwordx4 v[16:19], v3, s[16:19], 0 offen offset:8')
    k('buffer_load_dwordx4 v[20:23], v1, s[8:11], s25 offen        ; x')
    k('buffer_load_dwordx4 v[24:27], v2, s[12:15], 0 offen')
    k('buffer_load_dwordx4 v[28:31], v2, s[12:15], 0 offen offset:16')
    k(f's_add_u32 s32, s4, {WS_X2T}\ns_addc_u32 s33, s5, 0\ns_mov_b32 s34, 2621440\ns_mov_b32 s35, {SRD3:#x}')
    HB = 16640
    k('v_mov_b32 v32, 0\nv_mov_b32 v33, 0\nv_mov_b32 v34, 0\nv_mov_b32 v35, 0')
    k('v_lshrrev_b32 v4, 2, v0\nv_and_b32 v5, 3, v0')
    k('v_mul_u32_u24 v6, 80, v4\nv_lshl_add_u32 v6, v5, 4, v6        ; (t>>2)*80 + (t&3)*16')
    k('v_mul_u32_u24 v7, 4160, v4\nv_lshl_add_u32 v7, v5, 4, v7')
    k('v_cmp_gt_u32 vcc, 128, v0')
    k('s_and_saveexec_b64 s[36:37], vcc')
    k(f'ds_write_b128 v6, v[32:35] offset:{HB}')
    k('v_cmp_gt_u32 vcc, 16, v0')
    k('s_and_b64 exec, exec, vcc')
    k('ds_write_b128 v7, v[32:35] offset:4096')
    k('s_mov_b64 exec, s[36:37]')
    k('v_and_b32 v36, 63, v0            ; lane')
    k('v_lshrrev_b32 v37, 6, v0         ; w')
    k('v_and_b32 v38, 31, v36           ; b / n')
    k('v_lshrrev_b32 v39, 5, v36        ; g')
    k('v_sub_u32 v40, 3, v38\nv_and_b32 v40, 3, v40       ; s_b')
    k('v_mul_u32_u24 v41, 4160, v40')
    k('v_sub_u32 v42, 2047, v38\nv_lshl_add_u32 v42, v39, 3, v42\nv_sub_u32 v42, v42, v40')
    k('v_lshl_add_u32 v41, v42, 1, v41')
    k('v_lshlrev_b32 v42, 9, v37        ; w*512 = 64*8w')
    k(f'v_sub_u32 v41, v41, v42\nv_subrev_u32 v41, {64*39}, v41      ; baseA')
    k('v_lshlrev_b32 v42, 3, v37\nv_sub_u32 v42, v38, v42\nv_add_u32 v42, 25, v42      ; 32 + n - 8w - 7')
    k('v_mul_u32_u24 v42, 80, v42\nv_lshl_add_u32 v42, v39, 4, v42')
    k(f'v_add_u32 v42, {HB}, v42           ; baseB')
    k('v_mul_u32_u24 v43, 9216, v37\nv_mul_u32_u24 v44, 144, v38\nv_add_u32 v43, v43, v44\nv_lshl_add_u32 v43, v39, 4, v43')
    k('v_mul_u32_u24 v44, 144, v4\nv_lshl_add_u32 v44, v5, 5, v44')
    k('s_waitcnt lgkmcnt(0)')
    for i, dst in enumerate((45, 46, 47)):
        k(f'v_mov_b32 v{dst}, s{40+4*i}')
        for kq in range(1, 4):
            k(f'v_add_f32 v{dst}, s{40+4*i+kq}, v{dst}')
    k('v_cvt_pk_bf16_f32 v45, v45, v46')
    k('v_cvt_pk_bf16_f32 v47, v47, v47')
    k('v_and_b32 v46, 0xffff0000, v45\nv_lshlrev_b32 v45, 16, v45\nv_lshlrev_b32 v47, 16, v47')
    k('v_add_f32 v46, 1.0, v46\nv_cvt_pk_bf16_f32 v46, v46, v46\nv_lshlrev_b32 v46, 16, v46')
    k('s_and_b32 s53, s3, 1\ns_lshl_b32 s53, s53, 4\ns_lshr_b32 s52, s52, s53\ns_lshl_b32 s52, s52, 16')
    k('s_waitcnt vmcnt(3)')
    k('ds_write_b128 v3, v[8:11]')
    k('ds_write_b128 v3, v[12:15] offset:8320')
    for i in range(4):
        k(f'v_alignbit_b32 v{48+i}, v{12+i}, v{8+i}, 16')
    for i in range(4):
        k(f'v_alignbit_b32 v{52+i}, v{16+i}, v{12+i}, 16')
    k('ds_write_b128 v3, v[48:51] offset:4160')
    k('ds_write_b128 v3, v[52:55] offset:12480')
    stamp_mid(k, 0)
    k('s_waitcnt vmcnt(0)')
    for i in range(8):
        st = 24 + i
        k(f'v_and_b32 v{56+i}, 0xffff0000, v{st}      ; sd')
    for i in range(8):
        k(f'v_rcp_f32 v{56+i}, v{56+i}')
    for i in range(8):
        k(f'v_lshlrev_b32 v{24+i}, 16, v{24+i}        ; mean')
    for i in range(4):
        k(f'v_lshlrev_b32 v{64+2*i}, 16, v{20+i}\nv_and_b32 v{65+2*i}, 0xffff0000, v{20+i}')
    for i in range(8): k(f'v_sub_f32 v{64+i}, v{64+i}, v{24+i}')
    for i in range(8): k(f'v_mul_f32 v{64+i}, v{64+i}, v{56+i}')
    for i in range(8):
        k(f'v_fma_f32 v{64+i}, v{64+i}, v46, v45')
    for i in range(4):
        k(f'v_cvt_pk_bf16_f32 v{8+i}, v{64+2*i}, v{65+2*i}       ; h packed v8..11')
    k(f'ds_write_b128 v6, v[8:11] offset:{HB + 32*80}')
    k('s_waitcnt lgkmcnt(0)\ns_barrier')
    stamp_mid(k, 1)
    steps = [(e, ks) for e in range(8) for ks in range(2)]
    def loads(si):
        e, ks = steps[si]
        r = 64 + 16 * (si & 1)
        oa = 64 * e + 32 * ks
        ob = 80 * e + 32 * ks
        k(f'ds_read_b64 v[{r}:{r+1}], v41 offset:{oa+2048}')
        k(f'ds_read_b64 v[{r+2}:{r+3}], v41 offset:{oa+2048+8}')
        k(f'ds_read_b128 v[{r+12}:{r+15}], v42 offset:{ob+2560}')
        k(f'ds_read_b128 v[{r+8}:{r+11}], v42 offset:{ob}')
        k(f'ds_read_b64 v[{r+4}:{r+5}], v41 offset:{oa}')
        k(f'ds_read_b64 v[{r+6}:{r+7}], v41 offset:{oa+8}')
    def rd_list(si):
        e, ks = steps[si]
        r = 64 + 16 * (si & 1)
        oa = 64 * e + 32 * ks
        ob = 80 * e + 32 * ks
        return [f'ds_read_b64 v[{r}:{r+1}], v41 offset:{oa+2048}', f'ds_read_b64 v[{r+2}:{r+3}], v41 offset:{oa+2048+8}',
                f'ds_read_b128 v[{r+12}:{r+15}], v42 offset:{ob+2560}', f'ds_read_b128 v[{r+8}:{r+11}], v42 offset:{ob}',
                f'ds_read_b64 v[{r+4}:{r+5}], v41 offset:{oa}', f'ds_read_b64 v[{r+6}:{r+7}], v41 offset:{oa+8}']
    if os.environ.get('CVSCHED', '1') == '1':
        for x in rd_list(0): k(x)
        for si in range(16):
            r = 64 + 16 * (si & 1)
            nx = rd_list(si + 1) if si + 1 < 16 else []
            c1 = '0' if si == 0 else 'v[112:127]'
            c0 = '0' if si == 0 else 'v[96:111]'
            k('s_waitcnt lgkmcnt(3)')
            k(f'v_mfma_f32_32x32x16_bf16 v[112:127], v[{r}:{r+3}], v[{r+12}:{r+15}], {c1}')
            for x in nx[0:2]: k(x)
            k(f's_waitcnt lgkmcnt({2 + len(nx[0:2])})')
            k(f'v_mfma_f32_32x32x16_bf16 v[96:111], v[{r}:{r+3}], v[{r+8}:{r+11}], {c0}')
            for x in nx[2:4]: k(x)
            k(f's_waitcnt lgkmcnt({len(nx[0:4])})')
            k(f'v_mfma_f32_32x32x16_bf16 v[112:127], v[{r+4}:{r+7}], v[{r+8}:{r+11}], v[112:127]')
            for x in nx[4:6]: k(x)
    else:
        loads(0)
        for si in range(16):
            r = 64 + 16 * (si & 1)
            if si + 1 < 16:
                loads(si + 1)
                k('s_waitcnt lgkmcnt(6)')
            else:
                k('s_waitcnt lgkmcnt(0)')
            c1 = '0' if si == 0 else 'v[112:127]'
            c0 = '0' if si == 0 else 'v[96:111]'
            k(f'v_mfma_f32_32x32x16_bf16 v[112:127], v[{r}:{r+3}], v[{r+12}:{r+15}], {c1}')
            k(f'v_mfma_f32_32x32x16_bf16 v[96:111], v[{r}:{r+3}], v[{r+8}:{r+11}], {c0}')
            k(f'v_mfma_f32_32x32x16_bf16 v[112:127], v[{r+4}:{r+7}], v[{r+8}:{r+11}], v[112:127]')
    stamp_mid(k, 2)
    k('s_barrier')
    for j in range(4):
        k(f'ds_write_b128 v43, v[{96+4*j}:{99+4*j}] offset:{32*j}')
    for j in range(4):
        k(f'ds_write_b128 v43, v[{112+4*j}:{115+4*j}] offset:{32*j+4608}')
    k('s_waitcnt lgkmcnt(0)\ns_barrier')
    for w in range(4):
        k(f'ds_read_b128 v[{64+8*w}:{67+8*w}], v44 offset:{9216*w}')
        k(f'ds_read_b128 v[{68+8*w}:{71+8*w}], v44 offset:{9216*w+16}')
    for i in range(4):
        k(f'v_lshlrev_b32 v{24+2*i}, 16, v{8+i}\nv_and_b32 v{25+2*i}, 0xffff0000, v{8+i}')
    for i in range(4):
        k(f'v_lshlrev_b32 v{48+2*i}, 16, v{20+i}\nv_and_b32 v{49+2*i}, 0xffff0000, v{20+i}')
    k('s_waitcnt lgkmcnt(0)')
    for i in range(8): k(f'v_add_f32 v{64+i}, v{64+i}, v{72+i}')
    for i in range(8): k(f'v_add_f32 v{80+i}, v{80+i}, v{88+i}')
    for i in range(8): k(f'v_add_f32 v{64+i}, v{64+i}, v{80+i}')
    for i in range(8):
        k(f'v_fma_f32 v{64+i}, v{24+i}, s52, v{64+i}        ; y + h*D')
    for i in range(8):
        k(f'v_fma_f32 v{64+i}, v{64+i}, v47, v{48+i}        ; x + ga*(.)')
    for i in range(4):
        k(f'v_cvt_pk_bf16_f32 v{64+i}, v{64+2*i}, v{65+2*i}')
    k(f'buffer_store_dwordx4 v[64:67], v3, s[32:35], s26 offen{WT}')
    if STAMPS: k('s_waitcnt vmcnt(0)')
    stamp_end(k, 1)
    k('s_endpgm')

    emit_wprep(k, N_CV if CVFIRST else 0)
    return k

def emit_wprep(k, base_id):
    k.label('L_k2_wp')
    if os.environ.get('EXP_NOWP'): k('s_endpgm')
    load_ptr(k, 4, 'wg'); load_ptr(k, 8, 'wu'); load_ptr(k, 12, 'ws')
    k(f's_sub_u32 s3, s2, {base_id}')
    k('s_mul_hi_u32 s16, s3, 0x33333334')
    k('s_mul_i32 s17, s16, 5\ns_sub_u32 s17, s3, s17       ; dq')
    k('v_and_b32 v1, 63, v0            ; lane')
    k('v_lshrrev_b32 v2, 6, v0\nv_readfirstlane_b32 s18, v2     ; w')
    k('v_lshrrev_b32 v3, 3, v1\nv_and_b32 v4, 7, v1')
    k('v_lshrrev_b32 v5, 4, v1\nv_and_b32 v5, 1, v5\nv_lshlrev_b32 v5, 1, v5\nv_xor_b32 v4, v4, v5')
    k('v_xor_b32 v5, 4, v4')
    k('v_mul_u32_u24 v3, 3072, v3')
    k('v_lshl_add_u32 v4, v4, 4, v3')
    k('v_lshl_add_u32 v5, v5, 4, v3')
    k('s_mul_i32 s19, s17, 128*3072\ns_lshl_b32 s20, s16, 7\ns_add_u32 s19, s19, s20')
    k('s_mul_i32 s20, s18, 4*24576\ns_add_u32 s19, s19, s20')
    k('s_lshl_b32 s21, s18, 12')
    k('s_lshl_b32 s22, s17, 9\nv_lshlrev_b32 v6, 2, v0\nv_add_u32 v6, s22, v6     ; d*4')
    k('s_waitcnt lgkmcnt(0)')
    srd_fin(k, 4, SZ['wg']); srd_fin(k, 8, SZ['wu'])
    k(f's_add_u32 s24, s12, {WS_MODP}\ns_addc_u32 s25, s13, 0\ns_mov_b32 s26, 61440\ns_mov_b32 s27, {SRD3:#x}')
    for kq in range(4):
        k(f's_mov_b32 s23, {kq*15360 + 3*2560}')
        k(f'buffer_load_dword v{8+kq}, v6, s[24:27], s23 offen')
        k(f'buffer_load_dword v{12+kq}, v6, s[24:27], s23 offen offset:2560')
    for q in range(4):
        k(f's_add_u32 m0, s21, {q*1024}')
        k(f's_add_u32 s23, s19, {q*24576}')
        k(f'buffer_load_dwordx4 v4, s[4:7], s23 offen{NT} lds')
        k(f's_add_u32 m0, s21, {q*1024 + 16384}')
        k('s_nop 0')
        k(f'buffer_load_dwordx4 v5, s[8:11], s23 offen{NT} lds')
    k(f's_add_u32 s28, s12, {WS_WP}\ns_addc_u32 s29, s13, 0\ns_mov_b32 s30, 3932160\ns_mov_b32 s31, {SRD3:#x}')
    k(f's_add_u32 s32, s12, {WS_PQ}\ns_addc_u32 s33, s13, 0\ns_mov_b32 s34, 122880\ns_mov_b32 s35, {SRD3:#x}')
    k('s_waitcnt vmcnt(8)')
    k('v_add_f32 v8, v8, v9\nv_add_f32 v10, v10, v11\nv_add_f32 v12, v12, v13\nv_add_f32 v14, v14, v15')
    k('v_add_f32 v8, v8, v10\nv_add_f32 v12, v12, v14')
    k('v_cvt_pk_bf16_f32 v8, v8, v12')
    k('v_and_b32 v12, 0xffff0000, v8\nv_add_f32 v12, 1.0, v12\nv_cvt_pk_bf16_f32 v12, v12, v12\nv_lshlrev_b32 v12, 16, v12')
    k('v_lshlrev_b32 v9, 2, v0\nv_lshlrev_b32 v10, 1, v0')
    k('v_cmp_gt_u32 vcc, 128, v0')
    k('s_and_saveexec_b64 s[36:37], vcc')
    k('ds_write_b32 v9, v12 offset:32768')
    k('ds_write_b16 v10, v8 offset:33280')
    k('s_mov_b64 exec, s[36:37]')
    k('v_lshrrev_b32 v3, 4, v1          ; grp')
    k('v_and_b32 v7, 15, v1\nv_lshrrev_b32 v8, 2, v7      ; r\nv_and_b32 v7, 3, v7       ; c')
    k('v_lshrrev_b32 v9, 1, v3          ; g')
    k('v_and_b32 v10, 1, v3             ; grp&1')
    k('v_lshrrev_b32 v11, 1, v7         ; mat')
    k('v_lshrrev_b32 v12, 1, v8\nv_lshlrev_b32 v12, 1, v12      ; 2*((r>>1)&1)')
    k('v_xor_b32 v10, v10, v12\nv_lshlrev_b32 v12, 2, v11\nv_xor_b32 v10, v10, v12     ; X')
    k('v_lshlrev_b32 v10, 4, v10')
    k('v_lshl_add_u32 v10, v11, 14, v10         ; + mat*16384')
    k('v_lshl_add_u32 v12, v9, 3, v8            ; 8g + r')
    k('v_lshl_add_u32 v10, v12, 7, v10          ; + row*128')
    k('v_and_b32 v12, 1, v7\nv_lshl_add_u32 v10, v12, 3, v10')
    k('s_lshl_b32 s23, s18, 5\nv_xor_b32 v10, s23, v10      ; ^ 32*tl')
    k('v_lshlrev_b32 v11, 5, v9\nv_lshlrev_b32 v12, 4, v9')
    k('s_lshl_b32 s23, s16, 2\ns_add_u32 s23, s23, s18        ; T')
    k('s_mul_i32 s38, s17, 8*96\ns_add_u32 s38, s38, s23\ns_lshl_b32 s38, s38, 10')
    k('v_lshlrev_b32 v13, 4, v1')
    k('s_mov_b32 s39, 0x3f803f80')
    k('v_mov_b32 v14, 0\nv_mov_b32 v15, 0\nv_mov_b32 v98, 0\nv_mov_b32 v99, 0')
    k('s_waitcnt vmcnt(0) lgkmcnt(0)\ns_barrier')
    for ksl in range(8):
        b = 16 + 32 * (ksl & 1)
        k(f'ds_read_b64_tr_b16 v[{b}:{b+1}], v10 offset:{ksl*2048}')
        k(f'ds_read_b64_tr_b16 v[{b+2}:{b+3}], v10 offset:{ksl*2048+512}')
        k(f'ds_read_b128 v[{b+4}:{b+7}], v11 offset:{32768 + ksl*64}')
        k(f'ds_read_b128 v[{b+8}:{b+11}], v11 offset:{32768 + ksl*64 + 16}')
        k(f'ds_read_b128 v[{b+12}:{b+15}], v12 offset:{33280 + ksl*32}')
        k('s_waitcnt lgkmcnt(0)')
        for j in range(4):
            k(f'v_lshlrev_b32 v{b+16+2*j}, 16, v{b+j}\nv_and_b32 v{b+17+2*j}, 0xffff0000, v{b+j}')
        for j in range(4):
            k(f'v_lshlrev_b32 v{96}, 16, v{b+12+j}\nv_and_b32 v{97}, 0xffff0000, v{b+12+j}')
            k(f'v_fma_f32 v15, v{b+16+2*j}, v96, v15\nv_fma_f32 v98, v{b+17+2*j}, v97, v98')
        for j in range(8):
            k(f'v_mul_f32 v{b+16+j}, v{b+16+j}, v{b+4+j}')
        for j in range(4):
            k(f'v_cvt_pk_bf16_f32 v{b+24+j}, v{b+16+2*j}, v{b+17+2*j}')
        for j in range(4):
            k(f'v_lshlrev_b32 v96, 16, v{b+24+j}\nv_and_b32 v97, 0xffff0000, v{b+24+j}')
            k(f'v_add_f32 v14, v14, v96\nv_add_f32 v99, v99, v97')
        k(f'buffer_store_dwordx4 v[{b+24}:{b+27}], v13, s[28:31], s38 offen{WT}')
        k(f's_add_u32 s38, s38, {96*1024}')
    k('v_add_f32 v14, v14, v99\nv_add_f32 v15, v15, v98')
    k('v_mov_b32 v16, v14\nv_mov_b32 v17, v15')
    k('v_permlane32_swap_b32 v14, v16\nv_permlane32_swap_b32 v15, v17')
    k('v_add_f32 v14, v14, v16\nv_add_f32 v15, v15, v17')
    k('s_mul_i32 s38, s17, 96\ns_add_u32 s38, s38, s23\ns_lshl_b32 s38, s38, 8       ; (dq*96+T)*256')
    k('v_lshlrev_b32 v13, 3, v1')
    k('v_cmp_gt_u32 vcc, 32, v1')
    k('s_and_saveexec_b64 s[36:37], vcc')
    k(f'buffer_store_dwordx2 v[14:15], v13, s[32:35], s38 offen{WT}')
    k('s_mov_b64 exec, s[36:37]')
    if STAMPS: k('s_waitcnt vmcnt(0)')
    stamp_end(k, 1)
    k('s_endpgm')
```

```python
from asmlib import K, Q
from common import *
import os, struct
from collections import deque

K5_GRID = 256
NS = 7
STG = 20480
TBL = NS * STG
X2OFF = TBL + 1536
GBOFF = X2OFF + 10240
DUMMY = GBOFF + 320
K5_LDS = DUMMY + 1024 + 16
def f2h(x): return hex(struct.unpack('<I', struct.pack('<f', x))[0])
GK1 = -2.302208198144325
GK2 = GK1 * 0.044715
NSP = 10
SPIN_MAX = 400000
SS = int(os.environ.get('STAMPSET', '1'))
BUDGET = int(os.environ.get('BUDGET', '5'))
WDEPI = os.environ.get('WDEPI', '0') == '1'
WDN = int(os.environ.get('WDN', '12'))

def lines(s): return [l.strip() for l in s.split('\n') if l.strip()]

def build_k5():
    k = K('ffn_kernel')
    def stamp(setno, i):
        if SS == setno: stamp_mid(k, i)
    vm = Q(k, 'vmcnt', 63); lg = Q(k, 'lgkmcnt', 15)
    side = deque()
    def job(text):
        for l in lines(text): side.append(('i', l))
    def jobvm(text, tag):
        ls = lines(text)
        for l in ls[:-1]: side.append(('i', l))
        side.append(('vm', ls[-1], tag))
    def joblg(text, tag): side.append(('lg', text, tag))
    def pull(n):
        while n > 0 and side:
            it = side.popleft()
            if it[0] == 'i':
                k(it[1]); n -= 1
                while side and side[0][0] == 'i' and side[0][1].split()[0] in ('s_addc_u32', 's_subb_u32', 's_cselect_b32', 's_cselect_b64'):
                    k(side.popleft()[1]); n -= 1
            elif it[0] == 'vm': vm.issue(it[1], it[2]); n -= 2
            elif it[0] == 'lg': lg.issue(it[1], it[2]); n -= 1
            elif it[0] == 'wvm': vmwait_tag(it[1])
            elif it[0] == 'call': it[1]()
    def flush(): pull(1 << 30)

    stamp_begin(k)
    k(f's_cmp_ge_u32 s2, {K5_GRID}\ns_cbranch_scc1 L_k5_exit')
    k('s_load_dwordx2 s[4:5], s[0:1], 120')
    k('s_load_dwordx2 s[82:83], s[0:1], 104       ; out')
    k('v_lshrrev_b32 v2, 6, v0\nv_and_b32 v1, 63, v0\nv_readfirstlane_b32 s22, v2     ; w')
    k('s_and_b32 s80, s2, 7\ns_lshr_b32 s81, s2, 3')
    k('s_and_b32 s20, s80, 1\ns_lshl_b32 s20, s20, 3\ns_and_b32 s21, s81, 7\ns_add_u32 s20, s20, s21      ; rb')
    k('s_lshr_b32 s21, s80, 1\ns_lshl_b32 s21, s21, 2\ns_lshr_b32 s27, s81, 3\ns_add_u32 s21, s21, s27    ; fb')
    k('s_lshr_b32 s3, s80, 1\ns_and_b32 s3, s3, 1\ns_lshl_b32 s6, s20, 1\ns_add_u32 s3, s3, s6')
    k('s_lshr_b32 s6, s80, 2\ns_lshl_b32 s6, s6, 2\ns_add_u32 s27, s27, s6                               ; db')
    k('v_lshrrev_b32 v3, 4, v1\nv_and_b32 v4, 15, v1')
    k('v_lshlrev_b32 v5, 2, v3\nv_xor_b32 v5, v5, v4\nv_lshlrev_b32 v5, 4, v5\nv_lshl_add_u32 v5, v3, 12, v5')
    k('s_lshl_b32 s6, s20, 8\nv_add_u32 v5, s6, v5\nv_add_u32 v6, 16384, v5\nv_lshlrev_b32 v7, 4, v1')
    k('s_lshr_b32 s23, s22, 1          ; wi\ns_and_b32 s24, s22, 1      ; wj')
    k(f's_mul_i32 s80, s20, {int(os.environ.get("ROT", "0"))}\ns_add_u32 s80, s80, s21\ns_lshl_b32 s80, s80, 1\ns_cmp_lt_u32 s21, {NSP}\ns_cselect_b32 s81, 0, 1\ns_add_u32 s80, s80, s81')
    k('s_mul_hi_u32 s81, s80, 0x0CCCCCCD\ns_mul_i32 s81, s81, 20\ns_sub_u32 s80, s80, s81          ; st = s0')
    k('s_lshl_b32 s84, s22, 15         ; x2 const = w*32768')
    k('s_mul_i32 s85, s23, 96\ns_mul_i32 s81, s21, 6\ns_add_u32 s85, s85, s81\ns_mul_i32 s81, s24, 3\ns_add_u32 s85, s85, s81\ns_lshl_b32 s85, s85, 10    ; W const')
    def soff(j):
        return (f's_mul_i32 s{36+j}, s80, 131072\ns_mul_i32 s{56+j}, s80, 196608\n'
                f's_add_u32 s{36+j}, s{36+j}, s84\ns_add_u32 s{56+j}, s{56+j}, s85\n'
                's_add_u32 s80, s80, 1\ns_cmp_eq_u32 s80, 20\ns_cselect_b32 s80, 0, s80')
    DEEP = os.environ.get('DEEP', '0') == '1'
    PRE = NS - 1 if DEEP else NS - 2
    k(soff(0))
    k('s_lshl_b32 s6, s22, 11\ns_mul_i32 s7, s22, 3072\ns_add_u32 s7, s7, 8192')
    k(soff(1))
    k('s_waitcnt lgkmcnt(0)')
    k(f's_add_u32 s8, s4, {WS_X2T}\ns_addc_u32 s9, s5, 0\ns_mov_b32 s10, 2621440\ns_mov_b32 s11, {SRD3:#x}')
    k(f's_add_u32 s12, s4, {WS_WP}\ns_addc_u32 s13, s5, 0\ns_mov_b32 s14, 3932160\ns_mov_b32 s15, {SRD3:#x}')
    def dma_ops(j):
        sl = (j % NS) * STG
        if os.environ.get('EXP_HOT'):
            return [f's_add_u32 m0, s6, {sl}\ns_nop 0\nbuffer_load_dwordx4 v5, s[8:11], s36 offen lds',
                f's_add_u32 m0, s6, {sl+1024}\ns_nop 0\nbuffer_load_dwordx4 v6, s[8:11], s36 offen lds',
                f's_add_u32 m0, s7, {sl}\ns_nop 0\nbuffer_load_dwordx4 v7, s[12:15], s56 offen lds',
                f'buffer_load_dwordx4 v7, s[12:15], s56 offen offset:1024 lds',
                f'buffer_load_dwordx4 v7, s[12:15], s56 offen offset:2048 lds']
        return [f's_add_u32 m0, s6, {sl}\ns_nop 0\nbuffer_load_dwordx4 v5, s[8:11], s{36+j} offen lds',
                f's_add_u32 m0, s6, {sl+1024}\ns_nop 0\nbuffer_load_dwordx4 v6, s[8:11], s{36+j} offen lds',
                f's_add_u32 m0, s7, {sl}\ns_nop 0\nbuffer_load_dwordx4 v7, s[12:15], s{56+j} offen lds',
                f'buffer_load_dwordx4 v7, s[12:15], s{56+j} offen offset:1024 lds',
                f'buffer_load_dwordx4 v7, s[12:15], s{56+j} offen offset:2048 lds']
    for j in range(2, 20): job(soff(j))
    job('v_mov_b32 v29, 0x80000000')
    job('v_lshrrev_b32 v18, 2, v4\nv_and_b32 v19, 3, v4\nv_lshrrev_b32 v20, 1, v3\nv_and_b32 v21, 1, v3')
    job('v_lshl_add_u32 v22, v20, 3, v18\nv_lshlrev_b32 v22, 8, v22')
    job('v_lshrrev_b32 v23, 1, v19\nv_lshl_add_u32 v23, v21, 1, v23\nv_lshl_add_u32 v22, v23, 4, v22')
    job('v_and_b32 v23, 1, v19\nv_lshl_add_u32 v22, v23, 3, v22')
    job('s_lshl_b32 s25, s23, 1\ns_add_u32 s25, s25, s24\ns_xor_b32 s26, s25, 1')
    job('v_xor_b32 v23, s25, v18\nv_lshl_add_u32 v8, v23, 6, v22')
    job('v_xor_b32 v23, s26, v18\nv_lshl_add_u32 v9, v23, 6, v22')
    job('s_mul_i32 s81, s24, 3072\ns_add_u32 s81, s81, 8192\nv_add_u32 v10, s81, v7')
    for st_ in (1, 2):
        for i in range(3): job(f'v_add_u32 v{8+3*st_+i}, {61440*st_}, v{8+i}')
    job(f's_add_u32 s16, s4, {WS_ACT}\ns_addc_u32 s17, s5, 0\ns_mov_b32 s18, 6291456\ns_mov_b32 s19, {SRD3:#x}')
    job(f's_add_u32 s28, s4, {WS_FLAGS}\ns_addc_u32 s29, s5, 0\ns_mov_b32 s30, {WS_SP - WS_FLAGS + 327680}\ns_mov_b32 s31, {SRD3:#x}')
    job(f's_add_u32 s32, s4, {WS_WD}\ns_addc_u32 s33, s5, 0\ns_mov_b32 s34, 1966080\ns_mov_b32 s35, {SRD3:#x}')
    nd = 0
    for j in range(PRE):
        for o in dma_ops(j):
            vm.issue(o, ('st', j)); nd += 1
            pull(7 if j == 0 or nd < 20 else 7)
    flush()
    k('s_mul_i32 s84, s27, 48\ns_add_u32 s84, s84, s22\ns_mul_i32 s84, s84, 5120')
    stamp(1, 3)
    n = len(vm.ops) - 1 - max(i for i, t in enumerate(vm.ops) if t == ('st', 0))
    k(f's_waitcnt vmcnt({n})'); vm.done = max(vm.done, len(vm.ops) - n)
    k('s_barrier')
    stamp(1, 0)
    NOCOUNT = ('spst',)
    def vmwait_tag(tag):
        idx = max(i for i, t in enumerate(vm.ops) if t == tag)
        if idx < vm.done: return
        n = min(63, sum(1 for t in vm.ops[idx+1:] if t not in NOCOUNT))
        k(f's_waitcnt vmcnt({n})'); vm.done = max(vm.done, idx + 1)
    def vmwait_stage(j): vmwait_tag(('st', j))
    S0, S1 = 32, 52
    ACC = 96
    def acc(lt2, t): return ACC + 48 * lt2 + 16 * t
    def reads(s, j, ksl):
        sl = j % NS; base = 8 + 3 * (sl // 3); o = (sl % 3) * STG
        xo = o + ksl * 4096; wo = o + ksl * 6144
        tg = lambda n: (n, j, ksl)
        return [(f'ds_read_b64_tr_b16 v[{s}:{s+1}], v{base} offset:{xo}', tg('X0')),
                (f'ds_read_b64_tr_b16 v[{s+2}:{s+3}], v{base} offset:{xo+1024}', tg('X0')),
                (f'ds_read_b128 v[{s+8}:{s+11}], v{base+2} offset:{wo}', tg('W0')),
                (f'ds_read_b64_tr_b16 v[{s+4}:{s+5}], v{base+1} offset:{xo}', tg('X1')),
                (f'ds_read_b64_tr_b16 v[{s+6}:{s+7}], v{base+1} offset:{xo+1024}', tg('X1')),
                (f'ds_read_b128 v[{s+12}:{s+15}], v{base+2} offset:{wo+1024}', tg('W1')),
                (f'ds_read_b128 v[{s+16}:{s+19}], v{base+2} offset:{wo+2048}', tg('W2'))]
    def lgwait(tag):
        idx = max(i for i, t in enumerate(lg.ops) if t == tag)
        if idx < lg.done: return 0
        n = min(15, len(lg.ops) - 1 - idx)
        k(f's_waitcnt lgkmcnt({n})'); lg.done = max(lg.done, len(lg.ops) - n)
        return 1
    RD = os.environ.get('RD', 'C')
    def phase(s, j, ksl, first, nxt_reads, dm):
        order = [(0, 0), (0, 1), (1, 0), (1, 1), (2, 0), (2, 1)]
        rd_after = {'A': [[0, 1], [2, 3], [4, 5, 6], [], [], []], 'B': [[0, 1, 2], [3, 4], [5, 6], [], [], []], 'C': [[0, 1], [2], [3, 4], [5], [6], []]}[RD]
        pre = {}
        for g, (txt, tag) in dm.items():
            ls = [l for l in lines(txt) if l != 's_nop 0']
            pre[g] = (ls[:-1] if not ls[-1].startswith('s_') else None, ls)
        for i, (t, lt2) in enumerate(order):
            lgwait((f'W{t}', j, ksl)); lgwait((f'X{lt2}', j, ksl))
            a = acc(lt2, t)
            c = '0' if first else f'v[{a}:{a+15}]'
            k(f'v_mfma_f32_32x32x16_bf16 v[{a}:{a+15}], v[{s+8+4*t}:{s+11+4*t}], v[{s+4*lt2}:{s+3+4*lt2}], {c}')
            used = 0
            if i in dm:
                ls = [l for l in lines(dm[i][0]) if l != 's_nop 0']
                vi = max(q for q, l in enumerate(ls) if l.startswith('buffer_'))
                if i == 0 or not os.environ.get('PREM0', '1') == '1':
                    for l in ls[:vi]: k(l)
                    if vi: k('s_nop 0')
                vm.issue(ls[vi], dm[i][1])
                for l in ls[vi+1:]: k(l)
                used += 4
            if nxt_reads:
                for ri in rd_after[i]:
                    lg.issue(*nxt_reads[ri]); used += 1
            if (i + 1) in dm and os.environ.get('PREM0', '1') == '1':
                ls = [l for l in lines(dm[i + 1][0]) if l != 's_nop 0']
                vi = max(q for q, l in enumerate(ls) if l.startswith('buffer_'))
                pull(max(0, BUDGET - used - vi))
                for l in ls[:vi]: k(l); used += 1
            else:
                pull(max(0, BUDGET - used))
    def stat_ops(s, first):
        ops = []
        for i in range(4):
            a, b = 88 + 2 * (i & 1), 89 + 2 * (i & 1)
            ops.append(f'v_lshlrev_b32 v{a}, 16, v{s+i}')
            ops.append(f'v_and_b32 v{b}, 0xffff0000, v{s+i}')
            if first and i == 0:
                ops += [f'v_mov_b32 v84, v{a}', f'v_mov_b32 v85, v{b}', f'v_mul_f32 v86, v{a}, v{a}', f'v_mul_f32 v87, v{b}, v{b}']
            else:
                ops += [f'v_add_f32 v84, v84, v{a}', f'v_add_f32 v85, v85, v{b}', f'v_fma_f32 v86, v{a}, v{a}, v86', f'v_fma_f32 v87, v{b}, v{b}, v87']
        return ops
    wd_list = [(i, dt) for i in range(12) for dt in range(5)]
    k_wd = {'n': 0}
    def wd_load():
        i, dt = wd_list[k_wd['n']]; k_wd['n'] += 1
        pre = f's_add_u32 s85, s84, {i*4*5120}\n' if dt == 0 else ''
        if dt < 4:
            return (pre + f'buffer_load_dwordx4 a[{20*i+4*dt}:{20*i+4*dt+3}], v7, s[32:35], s85 offen offset:{1024*dt}', 'wd')
        return (f's_add_u32 s85, s85, 4096\nbuffer_load_dwordx4 a[{20*i+4*dt}:{20*i+4*dt+3}], v7, s[32:35], s85 offen', 'wd')
    def with_side(ops):
        for o in ops: side.append(('i', o))
    NVAR = int(os.environ.get('NVAR', '1'))
    GAPS = {0: [0, 2, 4, 7, 9], 1: [0, 3, 5, 7, 10], 2: [1, 3, 6, 8, 10], 3: [1, 4, 6, 9, 11]}
    import copy
    def mainloop(wv):
        for r in reads(S0, 0, 0): lg.issue(*r)
        for j in range(20):
            d = [(o, ('st', j + PRE)) for o in dma_ops(j + PRE)] if j + PRE < 20 else [wd_load() for _ in range(5)]
            if os.environ.get('EXP_NODMA') and j + PRE < 20: d = [('s_nop 0', ('st', j + PRE)) for _ in range(5)]
            gaps = GAPS[wv] if NVAR == 4 else [1, 3, 7, 9, 11]
            dmC = {g: d[q] for q, g in enumerate(gaps) if g < 6}
            dmE = {g - 6: d[q] for q, g in enumerate(gaps) if g >= 6}
            if j == 3:
                job(f's_add_u32 s76, s4, {WS_PQ}\ns_addc_u32 s77, s5, 0\ns_mov_b32 s78, 122880\ns_mov_b32 s79, {SRD3:#x}')
                job('s_mul_i32 s80, s21, 6*256\nv_min_u32 v17, 191, v0\nv_lshlrev_b32 v17, 3, v17\nv_add_u32 v17, s80, v17')
                for dq in range(5):
                    jobvm(f's_mov_b32 s80, {dq*96*256}\nbuffer_load_dwordx2 v[{224+2*dq}:{225+2*dq}], v17, s[76:79], s80 offen', 'pq')
                job(f's_add_u32 s76, s4, {WS_MODP}\ns_addc_u32 s77, s5, 0\ns_mov_b32 s78, 61440')
                job('s_mul_i32 s80, s27, 320\nv_min_u32 v18, 79, v0\nv_lshlrev_b32 v18, 2, v18\nv_add_u32 v17, s80, v18')
                for kq in range(4):
                    jobvm(f's_mov_b32 s80, {kq*15360 + 5*2560}\nbuffer_load_dword v{234+kq}, v17, s[76:79], s80 offen', 'pq')
            if j == 5:
                job('v_lshrrev_b32 v17, 3, v1\nv_and_b32 v18, 7, v1\nv_lshlrev_b32 v17, 12, v17\nv_lshl_add_u32 v17, v18, 4, v17')
                job('s_mul_i32 s76, s27, 80*4096\ns_lshl_b32 s81, s3, 7\ns_add_u32 s76, s76, s81')
                job('s_lshl_b32 s77, s22, 15\ns_add_u32 s77, s77, s76')
                job(f's_lshl_b32 s78, s22, 10\ns_add_u32 s78, s78, {X2OFF}')
                side.append(('call', lambda: (k('s_mov_b32 m0, s78\ns_nop 0'), vm.issue('buffer_load_dwordx4 v17, s[8:11], s77 offen lds', 'x2r'))))
                job(f's_add_u32 s77, s77, {32*4096}\ns_add_u32 s78, s78, 4096')
                side.append(('call', lambda: (k('s_mov_b32 m0, s78\ns_nop 0'), vm.issue('buffer_load_dwordx4 v17, s[8:11], s77 offen lds', 'x2r'))))
                job(f's_and_b32 s81, s22, 1\ns_add_u32 s81, s81, 8\ns_lshl_b32 s78, s81, 10\ns_add_u32 s78, s78, {X2OFF}\ns_lshl_b32 s81, s81, 15\ns_add_u32 s77, s76, s81')
                side.append(('call', lambda: (k('s_mov_b32 m0, s78\ns_nop 0'), vm.issue('buffer_load_dwordx4 v17, s[8:11], s77 offen lds', 'x2r'))))
            if j == 10:
                side.append(('wvm', 'pq'))
                for dq in range(1, 5): job(f'v_pk_add_f32 v[224:225], v[224:225], v[{224+2*dq}:{225+2*dq}]')
                job('v_add_f32 v234, v234, v235\nv_add_f32 v236, v236, v237\nv_add_f32 v234, v234, v236')
                job('v_cvt_pk_bf16_f32 v234, v234, v234\nv_lshlrev_b32 v234, 16, v234')
                job(f'v_lshlrev_b32 v17, 2, v0\nv_add_u32 v18, {GBOFF}, v17\nv_add_u32 v17, {TBL}, v17\nv_mov_b32 v19, {DUMMY}')
                job('v_cmp_gt_u32 vcc, 192, v0\nv_cndmask_b32 v17, v19, v17, vcc\nv_cmp_gt_u32 vcc, 80, v0\nv_cndmask_b32 v18, v19, v18, vcc')
                joblg('ds_write_b32 v17, v224', 'tbl'); joblg('ds_write_b32 v17, v225 offset:768', 'tbl'); joblg('ds_write_b32 v18, v234', 'tbl')
            if j > 0:
                if j - 1 < 2: with_side(stat_ops(S1, False))
                phase(S1, j - 1, 1, False, reads(S0, j, 0), dmC)
                if j - 1 < 2 or j == 5: flush()
            else:
                [vm.issue(*dmC[g]) for g in sorted(dmC)]
            if j == 2:
                job('v_add_f32 v84, v84, v85\nv_add_f32 v86, v86, v87\nv_mov_b32 v88, v84\nv_mov_b32 v89, v86')
                job(f's_mul_i32 s80, s20, {NSP}\ns_add_u32 s80, s80, s21\ns_lshl_b32 s80, s80, 11')
                job('v_permlane32_swap_b32 v84, v88\nv_permlane32_swap_b32 v86, v89')
                job(f's_lshl_b32 s81, s25, 9\ns_add_u32 s80, s80, s81\ns_add_u32 s80, s80, {WS_SP - WS_FLAGS}')
                job('v_add_f32 v84, v84, v88\nv_add_f32 v85, v86, v89\nv_mov_b32 v86, 1\nv_mov_b32 v87, 0')
                job(f's_cmp_lt_u32 s21, {NSP}\ns_cselect_b32 s81, 32, 0')
                job('v_lshlrev_b32 v88, 4, v1\nv_cmp_gt_u32 vcc, s81, v1\nv_cndmask_b32 v88, v29, v88, vcc')
                jobvm('buffer_store_dwordx4 v[84:87], v88, s[28:31], s80 offen sc0 sc1', 'spst')
            if j == 14:
                job('v_and_b32 v88, 31, v1\nv_lshlrev_b32 v88, 4, v88')
                job('s_lshl_b32 s80, s25, 9\ns_lshl_b32 s81, s26, 9\nv_mov_b32 v89, s80\nv_mov_b32 v91, s81')
                job('v_cmp_gt_u32 vcc, 32, v1\nv_cndmask_b32 v89, v91, v89, vcc\nv_add_u32 v28, v88, v89')
                job(f's_mul_i32 s79, s20, {NSP*2048}\ns_add_u32 s79, s79, {WS_SP - WS_FLAGS}\ns_mov_b32 s80, s79')
                for p in range(NSP):
                    jobvm(f'buffer_load_dwordx4 v[{192+4*p}:{195+4*p}], v28, s[28:31], s80 offen offset:{(p%2)*2048} sc0 sc1', 'spld')
                    if p % 2 == 1: job('s_add_u32 s80, s80, 4096')
            if j == 18:
                flush()
                vmwait_tag('spld')
                k('s_mov_b32 s78, 0')
                k.label(f'L_k5_st_chk{wv}')
                k('v_and_b32 v88, v194, v198')
                for p in range(2, NSP): k(f'v_and_b32 v88, v88, v{194+4*p}')
                k('v_cmp_ne_u32 vcc, 1, v88')
                k(f's_nop 4\ns_cbranch_vccz L_k5_st_ok{wv}')
                k('s_add_u32 s78, s78, 1')
                k(f's_cmp_gt_u32 s78, {SPIN_MAX}\ns_cbranch_scc1 L_k5_st_ok{wv}')
                k('s_mov_b32 s80, s79')
                for p in range(NSP):
                    k(f'buffer_load_dwordx4 v[{192+4*p}:{195+4*p}], v28, s[28:31], s80 offen offset:{(p%2)*2048} sc0 sc1')
                    if p % 2 == 1: k('s_add_u32 s80, s80, 4096')
                k(f's_waitcnt vmcnt(0)\ns_branch L_k5_st_chk{wv}')
                k.label(f'L_k5_st_ok{wv}')
                for p in range(1, NSP):
                    job(f'v_add_f32 v192, v192, v{192+4*p}\nv_add_f32 v193, v193, v{193+4*p}')
                job('v_mul_f32 v88, 0x3acccccd, v192\nv_mul_f32 v89, 0x3acccccd, v193')
                job('v_fma_f32 v89, -v88, v88, v89\nv_max_f32 v89, 0, v89')
                job('v_cvt_pk_bf16_f32 v88, v88, v89\nv_and_b32 v89, 0xffff0000, v88\nv_lshlrev_b32 v88, 16, v88')
                job('v_add_f32 v89, 0x3727c5ac, v89\nv_cvt_pk_bf16_f32 v89, v89, v89\nv_lshlrev_b32 v89, 16, v89')
                job('v_sqrt_f32 v89, v89\ns_lshl_b32 s80, s20, 2\ns_add_u32 s81, s80, s26\ns_add_u32 s80, s80, s25')
                job('v_cvt_pk_bf16_f32 v89, v89, v89\nv_lshlrev_b32 v89, 16, v89')
                job('v_rcp_f32 v84, v89\ns_mul_i32 s76, s21, 6\ns_mul_i32 s77, s24, 3\ns_add_u32 s76, s76, s77')
                job('v_mul_f32 v85, v88, v84\nv_sub_f32 v85, 0, v85')
                job('v_mov_b32 v86, v84\nv_mov_b32 v87, v85')
                job('s_mul_i32 s80, s80, 96\ns_add_u32 s80, s80, s76\ns_lshl_b32 s80, s80, 10')
                job('v_permlane32_swap_b32 v84, v86\nv_permlane32_swap_b32 v85, v87')
                job('s_mul_i32 s81, s81, 96\ns_add_u32 s81, s81, s76\ns_lshl_b32 s81, s81, 10')
                job(f'v_mov_b32 v72, {f2h(GK1)}\nv_mov_b32 v73, {f2h(GK1)}\nv_mov_b32 v74, {f2h(GK2)}\nv_mov_b32 v75, {f2h(GK2)}')
                job(f'v_lshrrev_b32 v27, 5, v1\nv_lshlrev_b32 v27, 4, v27\ns_mul_i32 s77, s24, 384\ns_add_u32 s77, s77, {TBL}\nv_add_u32 v27, s77, v27')
            if j < 2: with_side(stat_ops(S0, j == 0))
            phase(S0, j, 0, j == 0, reads(S1, j, 1), dmE)
            if j < 2: flush()
            if j < 19:
                vmwait_stage(j + 1)
                if DEEP:
                    k('s_waitcnt lgkmcnt(0)'); lg.done = len(lg.ops)
                if not os.environ.get('EXP_NOBAR'): k('s_barrier')
                if j in (2, 7, 12, 17): stamp(3, (2, 7, 12, 17).index(j))
        flush()
        extra = [wd_load() for _ in range(3)]
        phase(S1, 19, 1, False, None, {0: extra[0], 2: extra[1], 4: extra[2]})

    state0 = (list(vm.ops), vm.done, list(lg.ops), lg.done, k_wd['n'])
    ends = []
    if NVAR == 4:
        k('s_cmp_eq_u32 s22, 1\ns_cbranch_scc1 L_k5_var1\ns_cmp_eq_u32 s22, 2\ns_cbranch_scc1 L_k5_var2\ns_cmp_eq_u32 s22, 3\ns_cbranch_scc1 L_k5_var3')
    for wv in range(NVAR):
        vm.ops, vm.done, lg.ops, lg.done, k_wd['n'] = list(state0[0]), state0[1], list(state0[2]), state0[3], state0[4]
        if wv: k.label(f'L_k5_var{wv}')
        mainloop(wv)
        ends.append((list(vm.ops), vm.done, list(lg.ops), lg.done, k_wd['n']))
        if wv < NVAR - 1: k('s_branch L_k5_join')
    if NVAR > 1: k.label('L_k5_join')
    assert all(e[4] == ends[0][4] for e in ends)
    vm.ops = []; vm.done = 0
    lg.ops = []; lg.done = 0
    stamp(1, 1)
    WD0 = k_wd['n']
    def pq_reads(t, PB):
        for j in range(4):
            k(f'ds_read_b128 v[{PB+4*j}:{PB+4*j+3}], v27 offset:{128*t + 32*j}')
            k(f'ds_read_b128 v[{PB+16+4*j}:{PB+16+4*j+3}], v27 offset:{768 + 128*t + 32*j}')
    pq_reads(0, 40)
    grp = 0
    for t in range(3):
        PB = 40 if t != 1 else 224 - 12
        if t == 0: pass
        k('s_waitcnt lgkmcnt(0)')
        if t < 2:
            pq_reads(t + 1, 212 if t == 0 else 40)
        for lt2 in range(2):
            R = 84 if lt2 == 0 else 86
            a = acc(lt2, t)
            O = 76 + 4 * lt2
            for half in range(2):
                T = 84 if False else (192 if PB == 40 else 84)
                T = 192
                ag, au = a + 8 * half, a + 8 * half + 4
                pg, pu = PB + 8 * half, PB + 8 * half + 4
                qg, qu = pg + 16, pu + 16
                G = [T, T + 8]; U = [T + 2, T + 10]; T1 = [T + 4, T + 12]
                for p in range(2):
                    k(f'v_pk_fma_f32 v[{G[p]}:{G[p]+1}], v[{pg+2*p}:{pg+2*p+1}], v[{R}:{R+1}], v[{qg+2*p}:{qg+2*p+1}] op_sel:[0,1,0] op_sel_hi:[1,1,1]')
                    k(f'v_pk_fma_f32 v[{U[p]}:{U[p]+1}], v[{pu+2*p}:{pu+2*p+1}], v[{R}:{R+1}], v[{qu+2*p}:{qu+2*p+1}] op_sel:[0,1,0] op_sel_hi:[1,1,1]')
                for p in range(2):
                    k(f'v_pk_fma_f32 v[{G[p]}:{G[p]+1}], v[{ag+2*p}:{ag+2*p+1}], v[{R}:{R+1}], v[{G[p]}:{G[p]+1}] op_sel:[0,0,0] op_sel_hi:[1,0,1]')
                    k(f'v_pk_fma_f32 v[{U[p]}:{U[p]+1}], v[{au+2*p}:{au+2*p+1}], v[{R}:{R+1}], v[{U[p]}:{U[p]+1}] op_sel:[0,0,0] op_sel_hi:[1,0,1]')
                if k_wd['n'] < WD0 + WDN: vm.issue(*wd_load())
                for p in range(2): k(f'v_pk_mul_f32 v[{T1[p]}:{T1[p]+1}], v[{G[p]}:{G[p]+1}], v[{G[p]}:{G[p]+1}]')
                for p in range(2): k(f'v_pk_fma_f32 v[{T1[p]}:{T1[p]+1}], v[{T1[p]}:{T1[p]+1}], v[74:75], v[72:73]')
                for p in range(2): k(f'v_pk_mul_f32 v[{T1[p]}:{T1[p]+1}], v[{T1[p]}:{T1[p]+1}], v[{G[p]}:{G[p]+1}]')
                for p in range(2): k(f'v_exp_f32 v{T1[p]}, v{T1[p]}\nv_exp_f32 v{T1[p]+1}, v{T1[p]+1}')
                if WDEPI and k_wd['n'] < 60: vm.issue(*wd_load())
                for p in range(2): k(f'v_pk_mul_f32 v[{U[p]}:{U[p]+1}], v[{U[p]}:{U[p]+1}], v[{G[p]}:{G[p]+1}]')
                for p in range(2): k(f'v_pk_add_f32 v[{T1[p]}:{T1[p]+1}], v[{T1[p]}:{T1[p]+1}], 1.0 op_sel_hi:[1,0]')
                for p in range(2): k(f'v_rcp_f32 v{T1[p]}, v{T1[p]}\nv_rcp_f32 v{T1[p]+1}, v{T1[p]+1}')
                if WDEPI and k_wd['n'] < 60: vm.issue(*wd_load())
                for p in range(2): k(f'v_pk_mul_f32 v[{U[p]}:{U[p]+1}], v[{U[p]}:{U[p]+1}], v[{T1[p]}:{T1[p]+1}]')
                for p in range(2): k(f'v_cvt_pk_bf16_f32 v{O + 2*half + p}, v{U[p]}, v{U[p]+1}')
            so = 's80' if lt2 == 0 else 's81'
            vm.issue(f'buffer_store_dwordx4 v[{O}:{O+3}], v7, s[16:19], {so} offen offset:{1024*t} sc0 sc1', 'actst')
    if WDEPI:
        while k_wd['n'] < 60: vm.issue(*wd_load())
    stamp(1, 2); stamp(2, 0)
    k('v_lshrrev_b32 v10, 1, v3\nv_lshlrev_b32 v10, 10, v10')
    k('v_and_b32 v11, 1, v3\nv_lshlrev_b32 v11, 5, v11\nv_add_u32 v11, v11, v4\nv_lshl_add_u32 v10, v11, 4, v10     ; u=0')
    k(f'v_add_u32 v11, {96*1024}, v10                ; u=2')
    k('s_lshl_b32 s80, s20, 7\ns_add_u32 s80, s80, 2048')
    k('v_mov_b32 v88, 0\nv_mov_b32 v89, 1\nv_cmp_gt_u32 vcc, 1, v0\nv_cndmask_b32 v88, v29, v88, vcc')
    k('s_mul_i32 s84, s27, 48\ns_add_u32 s84, s84, s22\ns_mul_i32 s84, s84, 5120')
    n0 = k_wd['n']
    def rest_wd():
        k_wd['n'] = n0
        if k_wd['n'] % 5:
            i_, dt_ = wd_list[k_wd['n']]
            k(f's_add_u32 s85, s84, {i_*4*5120}')
        while k_wd['n'] < 60: k(wd_load()[0])
    k('s_waitcnt vmcnt(0)')
    k('s_barrier')
    stamp(2, 1)
    k('s_cmp_lg_u32 s22, 0\ns_cbranch_scc1 L_k5_noatom')
    k('buffer_atomic_add v89, v88, s[28:31], s80 offen sc1')
    k.label('L_k5_noatom')
    rest_wd()
    k('s_cmp_lg_u32 s22, 0\ns_cbranch_scc1 L_k5_a_ok')
    k('s_mov_b32 s76, 0\nv_mov_b32 v88, 0')
    k.label('L_k5_a_spin')
    k('buffer_load_dword v90, v88, s[28:31], s80 offen sc0 sc1\ns_waitcnt vmcnt(0)')
    k('v_readfirstlane_b32 s81, v90\ns_add_u32 s76, s76, 1')
    k('s_cmp_eq_u32 s81, 16\ns_cbranch_scc1 L_k5_a_ok')
    k(f's_cmp_lt_u32 s76, {SPIN_MAX}\ns_cbranch_scc1 L_k5_a_spin')
    k.label('L_k5_a_ok')
    k('s_mul_i32 s84, s3, 2*96\ns_lshl_b32 s85, s22, 1\ns_add_u32 s84, s84, s85\ns_lshl_b32 s84, s84, 10')
    k('s_barrier')
    stamp(2, 2)
    vm.ops = []; vm.done = 0
    D = 6
    ACT = 16; ACC2 = 128
    def act_issue(i):
        r = ACT + 16 * (i % D)
        ops = [f'buffer_load_dwordx4 v[{r}:{r+3}], v10, s[16:19], s84 offen sc0 sc1',
               f'buffer_load_dwordx4 v[{r+4}:{r+7}], v10, s[16:19], s84 offen offset:256 sc0 sc1',
               f'buffer_load_dwordx4 v[{r+8}:{r+11}], v11, s[16:19], s84 offen sc0 sc1',
               f'buffer_load_dwordx4 v[{r+12}:{r+15}], v11, s[16:19], s84 offen offset:256 sc0 sc1\ns_add_u32 s84, s84, {8*1024}']
        return [(o, ('a', i, u)) for u, o in enumerate(ops)]
    for i in range(D):
        for o in act_issue(i): vm.issue(*o)
    k('s_mul_i32 s80, s22, 20480\nv_add_u32 v124, s80, v7')
    k(f's_mov_b32 s76, s82\ns_mov_b32 s77, s83\ns_mov_b32 s78, {SZ["out"]}\ns_mov_b32 s79, {SRD3:#x}')
    k('s_lshl_b32 s80, s22, 10\nv_add_u32 v125, s80, v7\nv_add_u32 v126, 40960, v125')
    k('v_lshrrev_b32 v120, 2, v4\nv_and_b32 v121, 3, v4')
    k('v_lshl_add_u32 v120, v3, 2, v120\nv_lshlrev_b32 v120, 7, v120\nv_lshl_add_u32 v120, v121, 3, v120')
    k(f's_lshl_b32 s80, s22, 5\ns_add_u32 s80, s80, {X2OFF}\nv_add_u32 v120, s80, v120')
    k(f'v_lshlrev_b32 v121, 4, v3\nv_add_u32 v121, {GBOFF}, v121')
    k('s_lshl_b32 s80, s3, 6\ns_lshl_b32 s81, s22, 4\ns_add_u32 s80, s80, s81\nv_add_u32 v122, s80, v4\nv_mul_u32_u24 v122, 1280, v122')
    k('s_mul_i32 s80, s27, 160\nv_lshl_add_u32 v122, v3, 3, v122\nv_add_u32 v122, s80, v122')
    for dt in range(5):
        k(f'ds_read_b64_tr_b16 v[{228+2*dt}:{229+2*dt}], v120 offset:{2048*dt}')
    for dt in range(5):
        k(f'ds_read_b128 v[{208+4*dt}:{211+4*dt}], v121 offset:{64*dt}')
    def mf(i, u, dt):
        r = ACT + 16 * (i % D)
        a = ACC2 + 4 * (4 * dt + u)
        c = '0' if i == 0 else f'v[{a}:{a+3}]'
        k(f'v_mfma_f32_16x16x32_bf16 v[{a}:{a+3}], a[{20*i+4*dt}:{20*i+4*dt+3}], v[{r+4*u}:{r+4*u+3}], {c}')
    def await_(i, u):
        idx = max(q for q, t in enumerate(vm.ops) if t == ('a', i, u))
        if idx >= vm.done:
            n = len(vm.ops) - 1 - idx
            k(f's_waitcnt vmcnt({n})'); vm.done = len(vm.ops) - n
    for i in range(10):
        nxt = act_issue(i + D) if i + D < 12 else []
        for u in range(4):
            await_(i, u)
            for dt in range(5): mf(i, u, dt)
            if nxt: vm.issue(*nxt[u])
    def wr(u, dt):
        a = ACC2 + 4 * (4 * dt + u)
        k(f'ds_write_b128 v124, v[{a}:{a+3}] offset:{1024*(4*dt+u)}')
    for u in range(4):
        await_(10, u); await_(11, u)
        seq = [(10, dt) for dt in range(5)] + [(11, dt) for dt in range(5)]
        for n_, (i, dt) in enumerate(seq):
            mf(i, u, dt)
            if u > 0 and 4 <= n_ < 9: wr(u - 1, n_ - 4)
    stamp(2, 3); stamp(4, 0)
    for dt in range(5): wr(3, dt)
    stamp(4, 1)
    k('s_waitcnt lgkmcnt(0)\ns_barrier')
    stamp(4, 2)
    for dt in range(5):
        for wp in range(4):
            base = 'v125' if wp < 2 else 'v126'
            k(f'ds_read_b128 v[{16+16*dt+4*wp}:{19+16*dt+4*wp}], {base} offset:{(wp&1)*20480 + 4096*dt}')
    for dt in range(5):
        x = 228 + 2 * dt
        k(f'v_lshlrev_b32 v{128+4*dt}, 16, v{x}\nv_and_b32 v{129+4*dt}, 0xffff0000, v{x}\nv_lshlrev_b32 v{130+4*dt}, 16, v{x+1}\nv_and_b32 v{131+4*dt}, 0xffff0000, v{x+1}')
    for dt in range(5):
        b = 16 + 16 * dt
        k(f's_waitcnt lgkmcnt({min(15, 4*(4-dt))})')
        k(f'v_pk_add_f32 v[{b}:{b+1}], v[{b}:{b+1}], v[{b+4}:{b+5}]\nv_pk_add_f32 v[{b+2}:{b+3}], v[{b+2}:{b+3}], v[{b+6}:{b+7}]')
        k(f'v_pk_add_f32 v[{b+8}:{b+9}], v[{b+8}:{b+9}], v[{b+12}:{b+13}]\nv_pk_add_f32 v[{b+10}:{b+11}], v[{b+10}:{b+11}], v[{b+14}:{b+15}]')
        k(f'v_pk_add_f32 v[{b}:{b+1}], v[{b}:{b+1}], v[{b+8}:{b+9}]\nv_pk_add_f32 v[{b+2}:{b+3}], v[{b+2}:{b+3}], v[{b+10}:{b+11}]')
        g = 208 + 4 * dt; xr = 128 + 4 * dt
        k(f'v_pk_fma_f32 v[{b}:{b+1}], v[{b}:{b+1}], v[{g}:{g+1}], v[{xr}:{xr+1}]')
        k(f'v_pk_fma_f32 v[{b+2}:{b+3}], v[{b+2}:{b+3}], v[{g+2}:{g+3}], v[{xr+2}:{xr+3}]')
        k(f'v_cvt_pk_bf16_f32 v{b}, v{b}, v{b+1}\nv_cvt_pk_bf16_f32 v{b+1}, v{b+2}, v{b+3}')
        k(f'buffer_store_dwordx2 v[{b}:{b+1}], v122, s[76:79], 0 offen offset:{32*dt}{OUTWT}')
    stamp(4, 3)
    if STAMPS: k('s_waitcnt vmcnt(0)')
    stamp_end(k, 2)
    k.label('L_k5_exit')
    k('s_endpgm')
    return k
```

```python
from asmlib import K, Q
from common import *
import os

import os
N_WP, N_CV = 120, int(os.environ.get('EXP_NCV', 640))
K2_GRID = N_WP + N_CV
K2_LDS = 40960
CVFIRST = os.environ.get('CVFIRST', '1') == '1'
CV16 = os.environ.get('CV16', '1') == '1'
HP = 96 if CV16 else 80

def build_k2():
    k = K('conv_kernel')
    stamp_begin(k)
    if CVFIRST:
        k(f's_cmp_lt_u32 s2, {N_CV}\ns_cbranch_scc1 L_k2_cv')
        k(f's_cmp_lt_u32 s2, {K2_GRID}\ns_cbranch_scc1 L_k2_wp')
    else:
        k(f's_cmp_lt_u32 s2, {N_WP}\ns_cbranch_scc1 L_k2_wp')
        k(f's_cmp_lt_u32 s2, {K2_GRID}\ns_cbranch_scc1 L_k2_cv')
    k('s_endpgm')

    k.label('L_k2_cv')
    load_ptr(k, 4, 'ws'); load_ptr(k, 20, 'dsk')
    k(f's_sub_u32 s3, s2, {0 if CVFIRST else N_WP}')
    k('s_and_b32 s24, s3, 0xffffffe0\ns_and_b32 s25, s3, 7\ns_lshl_b32 s25, s25, 2\ns_or_b32 s24, s24, s25')
    k('s_lshr_b32 s25, s3, 3\ns_and_b32 s25, s25, 3\ns_or_b32 s3, s24, s25          ; d')
    k('v_lshlrev_b32 v1, 6, v0            ; t*64')
    k('s_and_b32 s24, s3, 3\ns_lshl_b32 s24, s24, 4')
    k('v_add_u32 v1, s24, v1')
    if os.environ.get('EXP_XT'): k('v_lshlrev_b32 v1, 4, v0')
    k('v_lshlrev_b32 v2, 5, v0')
    k('v_lshlrev_b32 v3, 4, v0            ; t*16')
    k('s_lshr_b32 s25, s3, 2\ns_lshl_b32 s25, s25, 14')
    if os.environ.get('EXP_XT'): k('s_lshl_b32 s25, s3, 12')
    k('s_lshl_b32 s26, s3, 12             ; d*4096')
    k('s_lshl_b32 s27, s3, 2              ; d*4')
    k('s_lshr_b32 s28, s3, 1\ns_lshl_b32 s28, s28, 2')
    k('s_waitcnt lgkmcnt(0)')
    stamp_mid(k, 3)
    k('s_add_u32 s30, s4, s27\ns_addc_u32 s31, s5, 0')
    for kq in range(4):
        for i in range(3):
            k(f's_load_dword s{40+4*i+kq}, s[30:31], {WS_MODP + kq*15360 + i*2560}')
    k('s_add_u32 s20, s20, s28\ns_addc_u32 s21, s21, 0')
    k('s_load_dword s52, s[20:21], 0')
    k(f's_add_u32 s8, s4, {WS_XT}\ns_addc_u32 s9, s5, 0\ns_mov_b32 s10, 2621440\ns_mov_b32 s11, {SRD3:#x}')
    k(f's_add_u32 s12, s4, {WS_STATS}\ns_addc_u32 s13, s5, 0\ns_mov_b32 s14, 8192\ns_mov_b32 s15, {SRD3:#x}')
    k(f's_add_u32 s16, s4, {WS_R}\ns_addc_u32 s17, s5, 0\ns_add_u32 s16, s16, s26\ns_addc_u32 s17, s17, 0\ns_mov_b32 s18, 4096\ns_mov_b32 s19, {SRD3:#x}')
    k('buffer_load_dwordx4 v[8:11], v3, s[16:19], 0 offen')
    k('buffer_load_dwordx4 v[12:15], v3, s[16:19], 0 offen offset:4')
    k('buffer_load_dwordx4 v[16:19], v3, s[16:19], 0 offen offset:8')
    k('buffer_load_dwordx4 v[20:23], v1, s[8:11], s25 offen        ; x')
    k('buffer_load_dwordx4 v[24:27], v2, s[12:15], 0 offen')
    k('buffer_load_dwordx4 v[28:31], v2, s[12:15], 0 offen offset:16')
    k(f's_add_u32 s32, s4, {WS_X2T}\ns_addc_u32 s33, s5, 0\ns_mov_b32 s34, 2621440\ns_mov_b32 s35, {SRD3:#x}')
    HB = 16640
    k('v_mov_b32 v32, 0\nv_mov_b32 v33, 0\nv_mov_b32 v34, 0\nv_mov_b32 v35, 0')
    k('v_lshrrev_b32 v4, 2, v0\nv_and_b32 v5, 3, v0')
    k(f'v_mul_u32_u24 v6, {HP}, v4\nv_lshl_add_u32 v6, v5, 4, v6        ; (t>>2)*pitch + (t&3)*16')
    k('v_mul_u32_u24 v7, 4160, v4\nv_lshl_add_u32 v7, v5, 4, v7')
    k('v_cmp_gt_u32 vcc, 128, v0')
    k('s_and_saveexec_b64 s[36:37], vcc')
    k(f'ds_write_b128 v6, v[32:35] offset:{HB}')
    k('v_cmp_gt_u32 vcc, 16, v0')
    k('s_and_b64 exec, exec, vcc')
    k('ds_write_b128 v7, v[32:35] offset:4096')
    k('s_mov_b64 exec, s[36:37]')
    k('v_and_b32 v36, 63, v0            ; lane')
    k('v_lshrrev_b32 v37, 6, v0         ; w')
    k('v_and_b32 v38, 31, v36           ; b / n')
    k('v_lshrrev_b32 v39, 5, v36        ; g')
    k('v_sub_u32 v40, 3, v38\nv_and_b32 v40, 3, v40       ; s_b')
    k('v_mul_u32_u24 v41, 4160, v40')
    k('v_sub_u32 v42, 2047, v38\nv_lshl_add_u32 v42, v39, 3, v42\nv_sub_u32 v42, v42, v40')
    k('v_lshl_add_u32 v41, v42, 1, v41')
    k('v_lshlrev_b32 v42, 9, v37        ; w*512 = 64*8w')
    k(f'v_sub_u32 v41, v41, v42\nv_subrev_u32 v41, {64*39}, v41      ; baseA')
    k('v_lshlrev_b32 v42, 3, v37\nv_sub_u32 v42, v38, v42\nv_add_u32 v42, 25, v42      ; 32 + n - 8w - 7')
    k('v_mul_u32_u24 v42, 80, v42\nv_lshl_add_u32 v42, v39, 4, v42')
    k(f'v_add_u32 v42, {HB}, v42           ; baseB')
    k('v_mul_u32_u24 v43, 9216, v37\nv_mul_u32_u24 v44, 144, v38\nv_add_u32 v43, v43, v44\nv_lshl_add_u32 v43, v39, 4, v43')
    k('v_mul_u32_u24 v44, 144, v4\nv_lshl_add_u32 v44, v5, 5, v44')
    k('s_waitcnt lgkmcnt(0)')
    for i, dst in enumerate((45, 46, 47)):
        k(f'v_mov_b32 v{dst}, s{40+4*i}')
        for kq in range(1, 4):
            k(f'v_add_f32 v{dst}, s{40+4*i+kq}, v{dst}')
    k('v_cvt_pk_bf16_f32 v45, v45, v46')
    k('v_cvt_pk_bf16_f32 v47, v47, v47')
    k('v_and_b32 v46, 0xffff0000, v45\nv_lshlrev_b32 v45, 16, v45\nv_lshlrev_b32 v47, 16, v47')
    k('v_add_f32 v46, 1.0, v46\nv_cvt_pk_bf16_f32 v46, v46, v46\nv_lshlrev_b32 v46, 16, v46')
    k('s_and_b32 s53, s3, 1\ns_lshl_b32 s53, s53, 4\ns_lshr_b32 s52, s52, s53\ns_lshl_b32 s52, s52, 16')
    k('s_waitcnt vmcnt(3)')
    k('ds_write_b128 v3, v[8:11]')
    k('ds_write_b128 v3, v[12:15] offset:8320')
    for i in range(4):
        k(f'v_alignbit_b32 v{48+i}, v{12+i}, v{8+i}, 16')
    for i in range(4):
        k(f'v_alignbit_b32 v{52+i}, v{16+i}, v{12+i}, 16')
    k('ds_write_b128 v3, v[48:51] offset:4160')
    k('ds_write_b128 v3, v[52:55] offset:12480')
    stamp_mid(k, 0)
    k('s_waitcnt vmcnt(0)')
    for i in range(8):
        st = 24 + i
        k(f'v_and_b32 v{56+i}, 0xffff0000, v{st}      ; sd')
    for i in range(8):
        k(f'v_rcp_f32 v{56+i}, v{56+i}')
    for i in range(8):
        k(f'v_lshlrev_b32 v{24+i}, 16, v{24+i}        ; mean')
    for i in range(4):
        k(f'v_lshlrev_b32 v{64+2*i}, 16, v{20+i}\nv_and_b32 v{65+2*i}, 0xffff0000, v{20+i}')
    for i in range(8): k(f'v_sub_f32 v{64+i}, v{64+i}, v{24+i}')
    for i in range(8): k(f'v_mul_f32 v{64+i}, v{64+i}, v{56+i}')
    for i in range(8):
        k(f'v_fma_f32 v{64+i}, v{64+i}, v46, v45')
    for i in range(4):
        k(f'v_cvt_pk_bf16_f32 v{8+i}, v{64+2*i}, v{65+2*i}       ; h packed v8..11')
    k(f'ds_write_b128 v6, v[8:11] offset:{HB + 32*HP}')
    k('s_waitcnt lgkmcnt(0)\ns_barrier')
    stamp_mid(k, 1)
    if CV16:
        RANGES = [(0, 7), (7, 14), (14, 22), (22, 32)]
        lg = Q(k, 'lgkmcnt', 15)
        k('v_and_b32 v38, 15, v36\nv_lshrrev_b32 v39, 4, v36')
        k('v_sub_u32 v40, 3, v38\nv_and_b32 v40, 3, v40\nv_mul_u32_u24 v41, 4160, v40')
        k('v_sub_u32 v42, 2047, v38\nv_lshl_add_u32 v42, v39, 3, v42\nv_sub_u32 v42, v42, v40\nv_lshl_add_u32 v41, v42, 1, v41        ; A0')
        k('v_readfirstlane_b32 s54, v37')
        k('s_mov_b32 s55, 6\ns_cmp_eq_u32 s54, 1\ns_cselect_b32 s55, 13, s55\ns_cmp_eq_u32 s54, 2\ns_cselect_b32 s55, 21, s55\ns_cmp_eq_u32 s54, 3\ns_cselect_b32 s55, 31, s55      ; hi-1')
        k('s_add_u32 s56, s55, 32\ns_lshl_b32 s56, s56, 6\ns_add_u32 s56, s56, 32\nv_subrev_u32 v12, s56, v41       ; baseA')
        k(f'v_add_u32 v42, 32, v38\nv_subrev_u32 v42, s55, v42\nv_mul_u32_u24 v42, {HP}, v42\nv_lshl_add_u32 v42, v39, 4, v42\nv_add_u32 v13, {HB}, v42       ; baseB')
        k('v_mul_u32_u24 v14, 9216, v37\nv_mul_u32_u24 v42, 144, v38\nv_add_u32 v14, v14, v42\nv_lshl_add_u32 v14, v39, 4, v14')
        k('v_mov_b32 v15, v44\nv_mov_b32 v16, v47')
        ACC = 96
        def acc(rt, ct): return ACC + 4 * (4 * rt + ct)
        def step_reads(S, dp, hi):
            oa = lambda dl, rt: 64 * (hi - 1 + 32 - dl) + 32 * (1 - rt)
            ob = lambda ct: HP * (hi - 1 - dp + 16 * ct)
            out = []
            def A(slot, dl, rt):
                out.append((f'ds_read_b64 v[{S+4*slot}:{S+4*slot+1}], v12 offset:{oa(dl, rt)}', ('A', slot, dp)))
                out.append((f'ds_read_b64 v[{S+4*slot+2}:{S+4*slot+3}], v12 offset:{oa(dl, rt)+8}', ('A', slot, dp)))
            def B(ct): out.append((f'ds_read_b128 v[{S+16+4*ct}:{S+19+4*ct}], v13 offset:{ob(ct)}', ('B', ct, dp)))
            A(0, dp, 0); B(2); B(3); A(1, dp, 1); B(1)
            if dp < 16: B(0)
            A(2, dp + 32, 0); A(3, dp + 32, 1)
            return out
        def step_mfmas(dp):
            m = [(0, 2, 0, 2), (0, 3, 0, 3), (1, 2, 1, 2), (1, 3, 1, 3), (0, 1, 0, 1), (1, 1, 1, 1)]
            if dp < 16: m += [(0, 0, 0, 0), (1, 0, 1, 0)]
            m += [(2, 1, 0, 3), (3, 1, 1, 3)]
            if dp < 16: m += [(2, 0, 0, 2), (3, 0, 1, 2)]
            return m
        def lgw(tag):
            idx = max(i for i, t in enumerate(lg.ops) if t == tag)
            if idx < lg.done: return
            n = min(15, len(lg.ops) - 1 - idx)
            k(f's_waitcnt lgkmcnt({n})'); lg.done = max(lg.done, len(lg.ops) - n)
        for wv, (lo_, hi_) in enumerate(RANGES):
            if wv: k.label(f'L_cv16_w{wv}')
            if wv < 3: k(f's_cmp_lg_u32 s54, {wv}\ns_cbranch_scc1 L_cv16_w{wv+1}')
            lg.ops = []; lg.done = 0
            touched = set()
            dps = list(range(lo_, hi_))
            for r_ in step_reads(32, dps[0], hi_): lg.issue(*r_)
            for si, dp in enumerate(dps):
                S = 32 + 32 * (si & 1)
                nx = step_reads(32 + 32 * ((si + 1) & 1), dps[si + 1], hi_) if si + 1 < len(dps) else []
                ms = step_mfmas(dp)
                for mi, (sl, ct, rt, ac) in enumerate(ms):
                    lgw(('A', sl, dp)); lgw(('B', ct, dp))
                    a = acc(rt, ac)
                    c = f'v[{a}:{a+3}]' if (rt, ac) in touched else '0'
                    touched.add((rt, ac))
                    k(f'v_mfma_f32_16x16x32_bf16 v[{a}:{a+3}], v[{S+4*sl}:{S+4*sl+3}], v[{S+16+4*ct}:{S+19+4*ct}], {c}')
                    lo_i = mi * len(nx) // len(ms); hi_i = (mi + 1) * len(nx) // len(ms)
                    for r_ in nx[lo_i:hi_i]: lg.issue(*r_)
            for rt in range(2):
                for ct in range(4):
                    if (rt, ct) not in touched:
                        a = acc(rt, ct)
                        k(f'v_mov_b32 v{a}, 0\nv_mov_b32 v{a+1}, 0\nv_mov_b32 v{a+2}, 0\nv_mov_b32 v{a+3}, 0')
            if wv < 3: k('s_branch L_cv16_done')
        k.label('L_cv16_done')
        k('s_nop 7')
        stamp_mid(k, 2)
        k('s_barrier')
        for rt in range(2):
            for ct in range(4):
                a = acc(rt, ct)
                k(f'ds_write_b128 v14, v[{a}:{a+3}] offset:{ct*2304 + rt*64}')
        k('v_mov_b32 v44, v15\nv_mov_b32 v47, v16')
    else:
        steps = [(e, ks) for e in range(8) for ks in range(2)]
        def loads(si):
            e, ks = steps[si]
            r = 64 + 16 * (si & 1)
            oa = 64 * e + 32 * ks
            ob = 80 * e + 32 * ks
            k(f'ds_read_b64 v[{r}:{r+1}], v41 offset:{oa+2048}')
            k(f'ds_read_b64 v[{r+2}:{r+3}], v41 offset:{oa+2048+8}')
            k(f'ds_read_b128 v[{r+12}:{r+15}], v42 offset:{ob+2560}')
            k(f'ds_read_b128 v[{r+8}:{r+11}], v42 offset:{ob}')
            k(f'ds_read_b64 v[{r+4}:{r+5}], v41 offset:{oa}')
            k(f'ds_read_b64 v[{r+6}:{r+7}], v41 offset:{oa+8}')
        def rd_list(si):
            e, ks = steps[si]
            r = 64 + 16 * (si & 1)
            oa = 64 * e + 32 * ks
            ob = 80 * e + 32 * ks
            return [f'ds_read_b64 v[{r}:{r+1}], v41 offset:{oa+2048}', f'ds_read_b64 v[{r+2}:{r+3}], v41 offset:{oa+2048+8}',
                    f'ds_read_b128 v[{r+12}:{r+15}], v42 offset:{ob+2560}', f'ds_read_b128 v[{r+8}:{r+11}], v42 offset:{ob}',
                    f'ds_read_b64 v[{r+4}:{r+5}], v41 offset:{oa}', f'ds_read_b64 v[{r+6}:{r+7}], v41 offset:{oa+8}']
        if os.environ.get('CVSCHED', '1') == '1':
            for x in rd_list(0): k(x)
            for si in range(16):
                r = 64 + 16 * (si & 1)
                nx = rd_list(si + 1) if si + 1 < 16 else []
                c1 = '0' if si == 0 else 'v[112:127]'
                c0 = '0' if si == 0 else 'v[96:111]'
                k('s_waitcnt lgkmcnt(3)')
                k(f'v_mfma_f32_32x32x16_bf16 v[112:127], v[{r}:{r+3}], v[{r+12}:{r+15}], {c1}')
                for x in nx[0:2]: k(x)
                k(f's_waitcnt lgkmcnt({2 + len(nx[0:2])})')
                k(f'v_mfma_f32_32x32x16_bf16 v[96:111], v[{r}:{r+3}], v[{r+8}:{r+11}], {c0}')
                for x in nx[2:4]: k(x)
                k(f's_waitcnt lgkmcnt({len(nx[0:4])})')
                k(f'v_mfma_f32_32x32x16_bf16 v[112:127], v[{r+4}:{r+7}], v[{r+8}:{r+11}], v[112:127]')
                for x in nx[4:6]: k(x)
        else:
            loads(0)
            for si in range(16):
                r = 64 + 16 * (si & 1)
                if si + 1 < 16:
                    loads(si + 1)
                    k('s_waitcnt lgkmcnt(6)')
                else:
                    k('s_waitcnt lgkmcnt(0)')
                c1 = '0' if si == 0 else 'v[112:127]'
                c0 = '0' if si == 0 else 'v[96:111]'
                k(f'v_mfma_f32_32x32x16_bf16 v[112:127], v[{r}:{r+3}], v[{r+12}:{r+15}], {c1}')
                k(f'v_mfma_f32_32x32x16_bf16 v[96:111], v[{r}:{r+3}], v[{r+8}:{r+11}], {c0}')
                k(f'v_mfma_f32_32x32x16_bf16 v[112:127], v[{r+4}:{r+7}], v[{r+8}:{r+11}], v[112:127]')
        stamp_mid(k, 2)
        k('s_barrier')
        for j in range(4):
            k(f'ds_write_b128 v43, v[{96+4*j}:{99+4*j}] offset:{32*j}')
        for j in range(4):
            k(f'ds_write_b128 v43, v[{112+4*j}:{115+4*j}] offset:{32*j+4608}')
    k('s_waitcnt lgkmcnt(0)\ns_barrier')
    for w in range(4):
        k(f'ds_read_b128 v[{64+8*w}:{67+8*w}], v44 offset:{9216*w}')
        k(f'ds_read_b128 v[{68+8*w}:{71+8*w}], v44 offset:{9216*w+16}')
    for i in range(4):
        k(f'v_lshlrev_b32 v{24+2*i}, 16, v{8+i}\nv_and_b32 v{25+2*i}, 0xffff0000, v{8+i}')
    for i in range(4):
        k(f'v_lshlrev_b32 v{48+2*i}, 16, v{20+i}\nv_and_b32 v{49+2*i}, 0xffff0000, v{20+i}')
    k('s_waitcnt lgkmcnt(0)')
    for i in range(8): k(f'v_add_f32 v{64+i}, v{64+i}, v{72+i}')
    for i in range(8): k(f'v_add_f32 v{80+i}, v{80+i}, v{88+i}')
    for i in range(8): k(f'v_add_f32 v{64+i}, v{64+i}, v{80+i}')
    for i in range(8):
        k(f'v_fma_f32 v{64+i}, v{24+i}, s52, v{64+i}        ; y + h*D')
    for i in range(8):
        k(f'v_fma_f32 v{64+i}, v{64+i}, v47, v{48+i}        ; x + ga*(.)')
    for i in range(4):
        k(f'v_cvt_pk_bf16_f32 v{64+i}, v{64+2*i}, v{65+2*i}')
    k(f'buffer_store_dwordx4 v[64:67], v3, s[32:35], s26 offen{WT}')
    if STAMPS: k('s_waitcnt vmcnt(0)')
    stamp_end(k, 1)
    k('s_endpgm')

    emit_wprep(k, N_CV if CVFIRST else 0)
    return k

def emit_wprep(k, base_id):
    k.label('L_k2_wp')
    if os.environ.get('WPPRIO', '0') != '0': k(f"s_setprio {os.environ.get('WPPRIO')}")
    if os.environ.get('EXP_NOWP'): k('s_endpgm')
    load_ptr(k, 4, 'wg'); load_ptr(k, 8, 'wu'); load_ptr(k, 12, 'ws')
    k(f's_sub_u32 s3, s2, {base_id}')
    k('s_mul_hi_u32 s16, s3, 0x33333334')
    k('s_mul_i32 s17, s16, 5\ns_sub_u32 s17, s3, s17       ; dq')
    k('v_and_b32 v1, 63, v0            ; lane')
    k('v_lshrrev_b32 v2, 6, v0\nv_readfirstlane_b32 s18, v2     ; w')
    k('v_lshrrev_b32 v3, 3, v1\nv_and_b32 v4, 7, v1')
    k('v_lshrrev_b32 v5, 4, v1\nv_and_b32 v5, 1, v5\nv_lshlrev_b32 v5, 1, v5\nv_xor_b32 v4, v4, v5')
    k('v_xor_b32 v5, 4, v4')
    k('v_mul_u32_u24 v3, 3072, v3')
    k('v_lshl_add_u32 v4, v4, 4, v3')
    k('v_lshl_add_u32 v5, v5, 4, v3')
    k('s_mul_i32 s19, s17, 128*3072\ns_lshl_b32 s20, s16, 7\ns_add_u32 s19, s19, s20')
    k('s_mul_i32 s20, s18, 4*24576\ns_add_u32 s19, s19, s20')
    k('s_lshl_b32 s21, s18, 12')
    k('s_lshl_b32 s22, s17, 9\nv_lshlrev_b32 v6, 2, v0\nv_add_u32 v6, s22, v6     ; d*4')
    k('s_waitcnt lgkmcnt(0)')
    srd_fin(k, 4, SZ['wg']); srd_fin(k, 8, SZ['wu'])
    k(f's_add_u32 s24, s12, {WS_MODP}\ns_addc_u32 s25, s13, 0\ns_mov_b32 s26, 61440\ns_mov_b32 s27, {SRD3:#x}')
    for kq in range(4):
        k(f's_mov_b32 s23, {kq*15360 + 3*2560}')
        k(f'buffer_load_dword v{8+kq}, v6, s[24:27], s23 offen')
        k(f'buffer_load_dword v{12+kq}, v6, s[24:27], s23 offen offset:2560')
    for q in range(4):
        k(f's_add_u32 m0, s21, {q*1024}')
        k(f's_add_u32 s23, s19, {q*24576}')
        k(f'buffer_load_dwordx4 v4, s[4:7], s23 offen{NT} lds')
        k(f's_add_u32 m0, s21, {q*1024 + 16384}')
        k('s_nop 0')
        k(f'buffer_load_dwordx4 v5, s[8:11], s23 offen{NT} lds')
    k(f's_add_u32 s28, s12, {WS_WP}\ns_addc_u32 s29, s13, 0\ns_mov_b32 s30, 3932160\ns_mov_b32 s31, {SRD3:#x}')
    k(f's_add_u32 s32, s12, {WS_PQ}\ns_addc_u32 s33, s13, 0\ns_mov_b32 s34, 122880\ns_mov_b32 s35, {SRD3:#x}')
    k('s_waitcnt vmcnt(8)')
    k('v_add_f32 v8, v8, v9\nv_add_f32 v10, v10, v11\nv_add_f32 v12, v12, v13\nv_add_f32 v14, v14, v15')
    k('v_add_f32 v8, v8, v10\nv_add_f32 v12, v12, v14')
    k('v_cvt_pk_bf16_f32 v8, v8, v12')
    k('v_and_b32 v12, 0xffff0000, v8\nv_add_f32 v12, 1.0, v12\nv_cvt_pk_bf16_f32 v12, v12, v12\nv_lshlrev_b32 v12, 16, v12')
    k('v_lshlrev_b32 v9, 2, v0\nv_lshlrev_b32 v10, 1, v0')
    k('v_cmp_gt_u32 vcc, 128, v0')
    k('s_and_saveexec_b64 s[36:37], vcc')
    k('ds_write_b32 v9, v12 offset:32768')
    k('ds_write_b16 v10, v8 offset:33280')
    k('s_mov_b64 exec, s[36:37]')
    k('v_lshrrev_b32 v3, 4, v1          ; grp')
    k('v_and_b32 v7, 15, v1\nv_lshrrev_b32 v8, 2, v7      ; r\nv_and_b32 v7, 3, v7       ; c')
    k('v_lshrrev_b32 v9, 1, v3          ; g')
    k('v_and_b32 v10, 1, v3             ; grp&1')
    k('v_lshrrev_b32 v11, 1, v7         ; mat')
    k('v_lshrrev_b32 v12, 1, v8\nv_lshlrev_b32 v12, 1, v12      ; 2*((r>>1)&1)')
    k('v_xor_b32 v10, v10, v12\nv_lshlrev_b32 v12, 2, v11\nv_xor_b32 v10, v10, v12     ; X')
    k('v_lshlrev_b32 v10, 4, v10')
    k('v_lshl_add_u32 v10, v11, 14, v10         ; + mat*16384')
    k('v_lshl_add_u32 v12, v9, 3, v8            ; 8g + r')
    k('v_lshl_add_u32 v10, v12, 7, v10          ; + row*128')
    k('v_and_b32 v12, 1, v7\nv_lshl_add_u32 v10, v12, 3, v10')
    k('s_lshl_b32 s23, s18, 5\nv_xor_b32 v10, s23, v10      ; ^ 32*tl')
    k('v_lshlrev_b32 v11, 5, v9\nv_lshlrev_b32 v12, 4, v9')
    k('s_lshl_b32 s23, s16, 2\ns_add_u32 s23, s23, s18        ; T')
    k('s_mul_i32 s38, s17, 8*96\ns_add_u32 s38, s38, s23\ns_lshl_b32 s38, s38, 10')
    k('v_lshlrev_b32 v13, 4, v1')
    k('s_mov_b32 s39, 0x3f803f80')
    k('v_mov_b32 v14, 0\nv_mov_b32 v15, 0\nv_mov_b32 v98, 0\nv_mov_b32 v99, 0')
    k('s_waitcnt vmcnt(0) lgkmcnt(0)\ns_barrier')
    for ksl in range(8):
        b = 16 + 32 * (ksl & 1)
        k(f'ds_read_b64_tr_b16 v[{b}:{b+1}], v10 offset:{ksl*2048}')
        k(f'ds_read_b64_tr_b16 v[{b+2}:{b+3}], v10 offset:{ksl*2048+512}')
        k(f'ds_read_b128 v[{b+4}:{b+7}], v11 offset:{32768 + ksl*64}')
        k(f'ds_read_b128 v[{b+8}:{b+11}], v11 offset:{32768 + ksl*64 + 16}')
        k(f'ds_read_b128 v[{b+12}:{b+15}], v12 offset:{33280 + ksl*32}')
        k('s_waitcnt lgkmcnt(0)')
        for j in range(4):
            k(f'v_lshlrev_b32 v{b+16+2*j}, 16, v{b+j}\nv_and_b32 v{b+17+2*j}, 0xffff0000, v{b+j}')
        for j in range(4):
            k(f'v_lshlrev_b32 v{96}, 16, v{b+12+j}\nv_and_b32 v{97}, 0xffff0000, v{b+12+j}')
            k(f'v_fma_f32 v15, v{b+16+2*j}, v96, v15\nv_fma_f32 v98, v{b+17+2*j}, v97, v98')
        for j in range(8):
            k(f'v_mul_f32 v{b+16+j}, v{b+16+j}, v{b+4+j}')
        for j in range(4):
            k(f'v_cvt_pk_bf16_f32 v{b+24+j}, v{b+16+2*j}, v{b+17+2*j}')
        for j in range(4):
            k(f'v_lshlrev_b32 v96, 16, v{b+24+j}\nv_and_b32 v97, 0xffff0000, v{b+24+j}')
            k(f'v_add_f32 v14, v14, v96\nv_add_f32 v99, v99, v97')
        k(f'buffer_store_dwordx4 v[{b+24}:{b+27}], v13, s[28:31], s38 offen{WT}')
        k(f's_add_u32 s38, s38, {96*1024}')
    k('v_add_f32 v14, v14, v99\nv_add_f32 v15, v15, v98')
    k('v_mov_b32 v16, v14\nv_mov_b32 v17, v15')
    k('v_permlane32_swap_b32 v14, v16\nv_permlane32_swap_b32 v15, v17')
    k('v_add_f32 v14, v14, v16\nv_add_f32 v15, v15, v17')
    k('s_mul_i32 s38, s17, 96\ns_add_u32 s38, s38, s23\ns_lshl_b32 s38, s38, 8       ; (dq*96+T)*256')
    k('v_lshlrev_b32 v13, 3, v1')
    k('v_cmp_gt_u32 vcc, 32, v1')
    k('s_and_saveexec_b64 s[36:37], vcc')
    k(f'buffer_store_dwordx2 v[14:15], v13, s[32:35], s38 offen{WT}')
    k('s_mov_b64 exec, s[36:37]')
    if STAMPS: k('s_waitcnt vmcnt(0)')
    stamp_end(k, 1)
    k('s_endpgm')
```

```python
from asmlib import K, Q
from common import *
import os, struct
from collections import deque

K5_GRID = 256
NS = 7
STG = 20480
TBL = NS * STG
X2OFF = TBL + 1536
GBOFF = X2OFF + 10240
DUMMY = GBOFF + 320
K5_LDS = DUMMY + 1024 + 16
def f2h(x): return hex(struct.unpack('<I', struct.pack('<f', x))[0])
GK1 = -2.302208198144325
GK2 = GK1 * 0.044715
NSP = 10
SPIN_MAX = 400000
SS = int(os.environ.get('STAMPSET', '1'))
BUDGET = int(os.environ.get('BUDGET', '5'))
WDEPI = os.environ.get('WDEPI', '0') == '1'
WDN = int(os.environ.get('WDN', '12'))
WDL = int(os.environ.get('WDL', '5'))

def lines(s): return [l.strip() for l in s.split('\n') if l.strip()]

def build_k5():
    k = K('ffn_kernel')
    def stamp(setno, i):
        if SS == setno: stamp_mid(k, i)
    vm = Q(k, 'vmcnt', 63); lg = Q(k, 'lgkmcnt', 15)
    side = deque()
    def job(text):
        for l in lines(text): side.append(('i', l))
    def jobvm(text, tag):
        ls = lines(text)
        for l in ls[:-1]: side.append(('i', l))
        side.append(('vm', ls[-1], tag))
    def joblg(text, tag): side.append(('lg', text, tag))
    def pull(n):
        while n > 0 and side:
            it = side.popleft()
            if it[0] == 'i':
                k(it[1]); n -= 1
                while side and side[0][0] == 'i' and side[0][1].split()[0] in ('s_addc_u32', 's_subb_u32', 's_cselect_b32', 's_cselect_b64'):
                    k(side.popleft()[1]); n -= 1
            elif it[0] == 'vm': vm.issue(it[1], it[2]); n -= 2
            elif it[0] == 'lg': lg.issue(it[1], it[2]); n -= 1
            elif it[0] == 'wvm': vmwait_tag(it[1])
            elif it[0] == 'call': it[1]()
    def flush(): pull(1 << 30)

    stamp_begin(k)
    k(f's_cmp_ge_u32 s2, {K5_GRID}\ns_cbranch_scc1 L_k5_exit')
    k('s_load_dwordx2 s[4:5], s[0:1], 120')
    k('s_load_dwordx2 s[82:83], s[0:1], 104       ; out')
    k('v_lshrrev_b32 v2, 6, v0\nv_and_b32 v1, 63, v0\nv_readfirstlane_b32 s22, v2     ; w')
    k('s_and_b32 s80, s2, 7\ns_lshr_b32 s81, s2, 3')
    k('s_and_b32 s20, s80, 1\ns_lshl_b32 s20, s20, 3\ns_and_b32 s21, s81, 7\ns_add_u32 s20, s20, s21      ; rb')
    k('s_lshr_b32 s21, s80, 1\ns_lshl_b32 s21, s21, 2\ns_lshr_b32 s27, s81, 3\ns_add_u32 s21, s21, s27    ; fb')
    k('s_lshr_b32 s3, s80, 1\ns_and_b32 s3, s3, 1\ns_lshl_b32 s6, s20, 1\ns_add_u32 s3, s3, s6')
    k('s_lshr_b32 s6, s80, 2\ns_lshl_b32 s6, s6, 2\ns_add_u32 s27, s27, s6                               ; db')
    k('v_lshrrev_b32 v3, 4, v1\nv_and_b32 v4, 15, v1')
    k('v_lshlrev_b32 v5, 2, v3\nv_xor_b32 v5, v5, v4\nv_lshlrev_b32 v5, 4, v5\nv_lshl_add_u32 v5, v3, 12, v5')
    k('s_lshl_b32 s6, s20, 8\nv_add_u32 v5, s6, v5\nv_add_u32 v6, 16384, v5\nv_lshlrev_b32 v7, 4, v1')
    k('s_lshr_b32 s23, s22, 1          ; wi\ns_and_b32 s24, s22, 1      ; wj')
    k(f's_mul_i32 s80, s20, {int(os.environ.get("ROT", "0"))}\ns_add_u32 s80, s80, s21\ns_lshl_b32 s80, s80, 1\ns_cmp_lt_u32 s21, {NSP}\ns_cselect_b32 s81, 0, 1\ns_add_u32 s80, s80, s81')
    k('s_mul_hi_u32 s81, s80, 0x0CCCCCCD\ns_mul_i32 s81, s81, 20\ns_sub_u32 s80, s80, s81          ; st = s0')
    k('s_lshl_b32 s84, s22, 15         ; x2 const = w*32768')
    k('s_mul_i32 s85, s23, 96\ns_mul_i32 s81, s21, 6\ns_add_u32 s85, s85, s81\ns_mul_i32 s81, s24, 3\ns_add_u32 s85, s85, s81\ns_lshl_b32 s85, s85, 10    ; W const')
    def soff(j):
        return (f's_mul_i32 s{36+j}, s80, 131072\ns_mul_i32 s{56+j}, s80, 196608\n'
                f's_add_u32 s{36+j}, s{36+j}, s84\ns_add_u32 s{56+j}, s{56+j}, s85\n'
                's_add_u32 s80, s80, 1\ns_cmp_eq_u32 s80, 20\ns_cselect_b32 s80, 0, s80')
    DEEP = os.environ.get('DEEP', '0') == '1'
    PRE = NS - 1 if DEEP else NS - 2
    k(soff(0))
    k('s_lshl_b32 s6, s22, 11\ns_mul_i32 s7, s22, 3072\ns_add_u32 s7, s7, 8192')
    k(soff(1))
    k('s_waitcnt lgkmcnt(0)')
    k(f's_add_u32 s8, s4, {WS_X2T}\ns_addc_u32 s9, s5, 0\ns_mov_b32 s10, 2621440\ns_mov_b32 s11, {SRD3:#x}')
    k(f's_add_u32 s12, s4, {WS_WP}\ns_addc_u32 s13, s5, 0\ns_mov_b32 s14, 3932160\ns_mov_b32 s15, {SRD3:#x}')
    def dma_ops(j):
        sl = (j % NS) * STG
        if os.environ.get('EXP_HOT'):
            return [f's_add_u32 m0, s6, {sl}\ns_nop 0\nbuffer_load_dwordx4 v5, s[8:11], s36 offen lds',
                f's_add_u32 m0, s6, {sl+1024}\ns_nop 0\nbuffer_load_dwordx4 v6, s[8:11], s36 offen lds',
                f's_add_u32 m0, s7, {sl}\ns_nop 0\nbuffer_load_dwordx4 v7, s[12:15], s56 offen lds',
                f'buffer_load_dwordx4 v7, s[12:15], s56 offen offset:1024 lds',
                f'buffer_load_dwordx4 v7, s[12:15], s56 offen offset:2048 lds']
        return [f's_add_u32 m0, s6, {sl}\ns_nop 0\nbuffer_load_dwordx4 v5, s[8:11], s{36+j} offen lds',
                f's_add_u32 m0, s6, {sl+1024}\ns_nop 0\nbuffer_load_dwordx4 v6, s[8:11], s{36+j} offen lds',
                f's_add_u32 m0, s7, {sl}\ns_nop 0\nbuffer_load_dwordx4 v7, s[12:15], s{56+j} offen lds',
                f'buffer_load_dwordx4 v7, s[12:15], s{56+j} offen offset:1024 lds',
                f'buffer_load_dwordx4 v7, s[12:15], s{56+j} offen offset:2048 lds']
    for j in range(2, 20): job(soff(j))
    job('v_mov_b32 v29, 0x80000000')
    job('v_lshrrev_b32 v18, 2, v4\nv_and_b32 v19, 3, v4\nv_lshrrev_b32 v20, 1, v3\nv_and_b32 v21, 1, v3')
    job('v_lshl_add_u32 v22, v20, 3, v18\nv_lshlrev_b32 v22, 8, v22')
    job('v_lshrrev_b32 v23, 1, v19\nv_lshl_add_u32 v23, v21, 1, v23\nv_lshl_add_u32 v22, v23, 4, v22')
    job('v_and_b32 v23, 1, v19\nv_lshl_add_u32 v22, v23, 3, v22')
    job('s_lshl_b32 s25, s23, 1\ns_add_u32 s25, s25, s24\ns_xor_b32 s26, s25, 1')
    job('v_xor_b32 v23, s25, v18\nv_lshl_add_u32 v8, v23, 6, v22')
    job('v_xor_b32 v23, s26, v18\nv_lshl_add_u32 v9, v23, 6, v22')
    job('s_mul_i32 s81, s24, 3072\ns_add_u32 s81, s81, 8192\nv_add_u32 v10, s81, v7')
    for st_ in (1, 2):
        for i in range(3): job(f'v_add_u32 v{8+3*st_+i}, {61440*st_}, v{8+i}')
    job(f's_add_u32 s16, s4, {WS_ACT}\ns_addc_u32 s17, s5, 0\ns_mov_b32 s18, 6291456\ns_mov_b32 s19, {SRD3:#x}')
    job(f's_add_u32 s28, s4, {WS_FLAGS}\ns_addc_u32 s29, s5, 0\ns_mov_b32 s30, {WS_SP - WS_FLAGS + 327680}\ns_mov_b32 s31, {SRD3:#x}')
    job(f's_add_u32 s32, s4, {WS_WD}\ns_addc_u32 s33, s5, 0\ns_mov_b32 s34, 1966080\ns_mov_b32 s35, {SRD3:#x}')
    nd = 0
    for j in range(PRE):
        for o in dma_ops(j):
            vm.issue(o, ('st', j)); nd += 1
            pull(7 if j == 0 or nd < 20 else 7)
    flush()
    k('s_mul_i32 s84, s27, 48\ns_add_u32 s84, s84, s22\ns_mul_i32 s84, s84, 5120')
    stamp(1, 3)
    n = len(vm.ops) - 1 - max(i for i, t in enumerate(vm.ops) if t == ('st', 0))
    k(f's_waitcnt vmcnt({n})'); vm.done = max(vm.done, len(vm.ops) - n)
    k('s_barrier')
    stamp(1, 0)
    NOCOUNT = ('spst',)
    def vmwait_tag(tag):
        idx = max(i for i, t in enumerate(vm.ops) if t == tag)
        if idx < vm.done: return
        n = min(63, sum(1 for t in vm.ops[idx+1:] if t not in NOCOUNT))
        k(f's_waitcnt vmcnt({n})'); vm.done = max(vm.done, idx + 1)
    def vmwait_stage(j): vmwait_tag(('st', j))
    S0, S1 = 32, 52
    ACC = 96
    def acc(lt2, t): return ACC + 48 * lt2 + 16 * t
    def reads(s, j, ksl):
        sl = j % NS; base = 8 + 3 * (sl // 3); o = (sl % 3) * STG
        xo = o + ksl * 4096; wo = o + ksl * 6144
        tg = lambda n: (n, j, ksl)
        return [(f'ds_read_b64_tr_b16 v[{s}:{s+1}], v{base} offset:{xo}', tg('X0')),
                (f'ds_read_b64_tr_b16 v[{s+2}:{s+3}], v{base} offset:{xo+1024}', tg('X0')),
                (f'ds_read_b128 v[{s+8}:{s+11}], v{base+2} offset:{wo}', tg('W0')),
                (f'ds_read_b64_tr_b16 v[{s+4}:{s+5}], v{base+1} offset:{xo}', tg('X1')),
                (f'ds_read_b64_tr_b16 v[{s+6}:{s+7}], v{base+1} offset:{xo+1024}', tg('X1')),
                (f'ds_read_b128 v[{s+12}:{s+15}], v{base+2} offset:{wo+1024}', tg('W1')),
                (f'ds_read_b128 v[{s+16}:{s+19}], v{base+2} offset:{wo+2048}', tg('W2'))]
    def lgwait(tag):
        idx = max(i for i, t in enumerate(lg.ops) if t == tag)
        if idx < lg.done: return 0
        n = min(15, len(lg.ops) - 1 - idx)
        k(f's_waitcnt lgkmcnt({n})'); lg.done = max(lg.done, len(lg.ops) - n)
        return 1
    RD = os.environ.get('RD', 'C')
    def phase(s, j, ksl, first, nxt_reads, dm):
        order = [(0, 0), (0, 1), (1, 0), (1, 1), (2, 0), (2, 1)]
        rd_after = {'A': [[0, 1], [2, 3], [4, 5, 6], [], [], []], 'B': [[0, 1, 2], [3, 4], [5, 6], [], [], []], 'C': [[0, 1], [2], [3, 4], [5], [6], []]}[RD]
        pre = {}
        for g, (txt, tag) in dm.items():
            ls = [l for l in lines(txt) if l != 's_nop 0']
            pre[g] = (ls[:-1] if not ls[-1].startswith('s_') else None, ls)
        for i, (t, lt2) in enumerate(order):
            lgwait((f'W{t}', j, ksl)); lgwait((f'X{lt2}', j, ksl))
            a = acc(lt2, t)
            c = '0' if first else f'v[{a}:{a+15}]'
            k(f'v_mfma_f32_32x32x16_bf16 v[{a}:{a+15}], v[{s+8+4*t}:{s+11+4*t}], v[{s+4*lt2}:{s+3+4*lt2}], {c}')
            used = 0
            if i in dm:
                ls = [l for l in lines(dm[i][0]) if l != 's_nop 0']
                vi = max(q for q, l in enumerate(ls) if l.startswith('buffer_'))
                if i == 0 or not os.environ.get('PREM0', '1') == '1':
                    for l in ls[:vi]: k(l)
                    if vi: k('s_nop 0')
                vm.issue(ls[vi], dm[i][1])
                for l in ls[vi+1:]: k(l)
                used += 4
            if nxt_reads:
                for ri in rd_after[i]:
                    lg.issue(*nxt_reads[ri]); used += 1
            if (i + 1) in dm and os.environ.get('PREM0', '1') == '1':
                ls = [l for l in lines(dm[i + 1][0]) if l != 's_nop 0']
                vi = max(q for q, l in enumerate(ls) if l.startswith('buffer_'))
                pull(max(0, BUDGET - used - vi))
                for l in ls[:vi]: k(l); used += 1
            else:
                pull(max(0, BUDGET - used))
    def stat_ops(s, first):
        ops = []
        for i in range(4):
            a, b = 88 + 2 * (i & 1), 89 + 2 * (i & 1)
            ops.append(f'v_lshlrev_b32 v{a}, 16, v{s+i}')
            ops.append(f'v_and_b32 v{b}, 0xffff0000, v{s+i}')
            if first and i == 0:
                ops += [f'v_mov_b32 v84, v{a}', f'v_mov_b32 v85, v{b}', f'v_mul_f32 v86, v{a}, v{a}', f'v_mul_f32 v87, v{b}, v{b}']
            else:
                ops += [f'v_add_f32 v84, v84, v{a}', f'v_add_f32 v85, v85, v{b}', f'v_fma_f32 v86, v{a}, v{a}, v86', f'v_fma_f32 v87, v{b}, v{b}, v87']
        return ops
    wd_list = [(i, dt) for i in range(12) for dt in range(5)]
    k_wd = {'n': 0}
    def wd_load():
        i, dt = wd_list[k_wd['n']]; k_wd['n'] += 1
        pre = f's_add_u32 s85, s84, {i*4*5120}\n' if dt == 0 else ''
        if dt < 4:
            return (pre + f'buffer_load_dwordx4 a[{20*i+4*dt}:{20*i+4*dt+3}], v7, s[32:35], s85 offen offset:{1024*dt}', 'wd')
        return (f's_add_u32 s85, s85, 4096\nbuffer_load_dwordx4 a[{20*i+4*dt}:{20*i+4*dt+3}], v7, s[32:35], s85 offen', 'wd')
    def with_side(ops):
        for o in ops: side.append(('i', o))
    NVAR = int(os.environ.get('NVAR', '1'))
    GAPS = {0: [0, 2, 4, 7, 9], 1: [0, 3, 5, 7, 10], 2: [1, 3, 6, 8, 10], 3: [1, 4, 6, 9, 11]}
    import copy
    def mainloop(wv):
        for r in reads(S0, 0, 0): lg.issue(*r)
        for j in range(20):
            d = [(o, ('st', j + PRE)) for o in dma_ops(j + PRE)] if j + PRE < 20 else [wd_load() for _ in range(WDL)]
            if os.environ.get('EXP_NODMA') and j + PRE < 20: d = [('s_nop 0', ('st', j + PRE)) for _ in range(5)]
            gaps = GAPS[wv] if NVAR == 4 else [1, 3, 7, 9, 11]
            if j + PRE >= 20: gaps = {5: [1, 3, 7, 9, 11], 6: [1, 3, 5, 7, 9, 11], 7: [1, 3, 5, 7, 8, 9, 11][:7], 8: [1, 2, 3, 5, 7, 8, 9, 11]}[WDL]
            dmC = {g: d[q] for q, g in enumerate(gaps) if g < 6}
            dmE = {g - 6: d[q] for q, g in enumerate(gaps) if g >= 6}
            if j == 3:
                job(f's_add_u32 s76, s4, {WS_PQ}\ns_addc_u32 s77, s5, 0\ns_mov_b32 s78, 122880\ns_mov_b32 s79, {SRD3:#x}')
                job('s_mul_i32 s80, s21, 6*256\nv_min_u32 v17, 191, v0\nv_lshlrev_b32 v17, 3, v17\nv_add_u32 v17, s80, v17')
                for dq in range(5):
                    jobvm(f's_mov_b32 s80, {dq*96*256}\nbuffer_load_dwordx2 v[{224+2*dq}:{225+2*dq}], v17, s[76:79], s80 offen', 'pq')
                job(f's_add_u32 s76, s4, {WS_MODP}\ns_addc_u32 s77, s5, 0\ns_mov_b32 s78, 61440')
                job('s_mul_i32 s80, s27, 320\nv_min_u32 v18, 79, v0\nv_lshlrev_b32 v18, 2, v18\nv_add_u32 v17, s80, v18')
                for kq in range(4):
                    jobvm(f's_mov_b32 s80, {kq*15360 + 5*2560}\nbuffer_load_dword v{234+kq}, v17, s[76:79], s80 offen', 'pq')
            if j == 5:
                job('v_lshrrev_b32 v17, 3, v1\nv_and_b32 v18, 7, v1\nv_lshlrev_b32 v17, 12, v17\nv_lshl_add_u32 v17, v18, 4, v17')
                job('s_mul_i32 s76, s27, 80*4096\ns_lshl_b32 s81, s3, 7\ns_add_u32 s76, s76, s81')
                job('s_lshl_b32 s77, s22, 15\ns_add_u32 s77, s77, s76')
                job(f's_lshl_b32 s78, s22, 10\ns_add_u32 s78, s78, {X2OFF}')
                side.append(('call', lambda: (k('s_mov_b32 m0, s78\ns_nop 0'), vm.issue('buffer_load_dwordx4 v17, s[8:11], s77 offen lds', 'x2r'))))
                job(f's_add_u32 s77, s77, {32*4096}\ns_add_u32 s78, s78, 4096')
                side.append(('call', lambda: (k('s_mov_b32 m0, s78\ns_nop 0'), vm.issue('buffer_load_dwordx4 v17, s[8:11], s77 offen lds', 'x2r'))))
                job(f's_and_b32 s81, s22, 1\ns_add_u32 s81, s81, 8\ns_lshl_b32 s78, s81, 10\ns_add_u32 s78, s78, {X2OFF}\ns_lshl_b32 s81, s81, 15\ns_add_u32 s77, s76, s81')
                side.append(('call', lambda: (k('s_mov_b32 m0, s78\ns_nop 0'), vm.issue('buffer_load_dwordx4 v17, s[8:11], s77 offen lds', 'x2r'))))
            if j == 10:
                side.append(('wvm', 'pq'))
                for dq in range(1, 5): job(f'v_pk_add_f32 v[224:225], v[224:225], v[{224+2*dq}:{225+2*dq}]')
                job('v_add_f32 v234, v234, v235\nv_add_f32 v236, v236, v237\nv_add_f32 v234, v234, v236')
                job('v_cvt_pk_bf16_f32 v234, v234, v234\nv_lshlrev_b32 v234, 16, v234')
                job(f'v_lshlrev_b32 v17, 2, v0\nv_add_u32 v18, {GBOFF}, v17\nv_add_u32 v17, {TBL}, v17\nv_mov_b32 v19, {DUMMY}')
                job('v_cmp_gt_u32 vcc, 192, v0\nv_cndmask_b32 v17, v19, v17, vcc\nv_cmp_gt_u32 vcc, 80, v0\nv_cndmask_b32 v18, v19, v18, vcc')
                joblg('ds_write_b32 v17, v224', 'tbl'); joblg('ds_write_b32 v17, v225 offset:768', 'tbl'); joblg('ds_write_b32 v18, v234', 'tbl')
            if j > 0:
                if j - 1 < 2: with_side(stat_ops(S1, False))
                phase(S1, j - 1, 1, False, reads(S0, j, 0), dmC)
                if j - 1 < 2 or j == 5: flush()
            else:
                [vm.issue(*dmC[g]) for g in sorted(dmC)]
            if j == 2:
                job('v_add_f32 v84, v84, v85\nv_add_f32 v86, v86, v87\nv_mov_b32 v88, v84\nv_mov_b32 v89, v86')
                job(f's_mul_i32 s80, s20, {NSP}\ns_add_u32 s80, s80, s21\ns_lshl_b32 s80, s80, 11')
                job('v_permlane32_swap_b32 v84, v88\nv_permlane32_swap_b32 v86, v89')
                job(f's_lshl_b32 s81, s25, 9\ns_add_u32 s80, s80, s81\ns_add_u32 s80, s80, {WS_SP - WS_FLAGS}')
                job('v_add_f32 v84, v84, v88\nv_add_f32 v85, v86, v89\nv_mov_b32 v86, 1\nv_mov_b32 v87, 0')
                job(f's_cmp_lt_u32 s21, {NSP}\ns_cselect_b32 s81, 32, 0')
                job('v_lshlrev_b32 v88, 4, v1\nv_cmp_gt_u32 vcc, s81, v1\nv_cndmask_b32 v88, v29, v88, vcc')
                jobvm('buffer_store_dwordx4 v[84:87], v88, s[28:31], s80 offen sc0 sc1', 'spst')
            if j == 14:
                job('v_and_b32 v88, 31, v1\nv_lshlrev_b32 v88, 4, v88')
                job('s_lshl_b32 s80, s25, 9\ns_lshl_b32 s81, s26, 9\nv_mov_b32 v89, s80\nv_mov_b32 v91, s81')
                job('v_cmp_gt_u32 vcc, 32, v1\nv_cndmask_b32 v89, v91, v89, vcc\nv_add_u32 v28, v88, v89')
                job(f's_mul_i32 s79, s20, {NSP*2048}\ns_add_u32 s79, s79, {WS_SP - WS_FLAGS}\ns_mov_b32 s80, s79')
                for p in range(NSP):
                    jobvm(f'buffer_load_dwordx4 v[{192+4*p}:{195+4*p}], v28, s[28:31], s80 offen offset:{(p%2)*2048} sc0 sc1', 'spld')
                    if p % 2 == 1: job('s_add_u32 s80, s80, 4096')
            if j == 18:
                flush()
                vmwait_tag('spld')
                k('s_mov_b32 s78, 0')
                k.label(f'L_k5_st_chk{wv}')
                k('v_and_b32 v88, v194, v198')
                for p in range(2, NSP): k(f'v_and_b32 v88, v88, v{194+4*p}')
                k('v_cmp_ne_u32 vcc, 1, v88')
                k(f's_nop 4\ns_cbranch_vccz L_k5_st_ok{wv}')
                k('s_add_u32 s78, s78, 1')
                k(f's_cmp_gt_u32 s78, {SPIN_MAX}\ns_cbranch_scc1 L_k5_st_ok{wv}')
                k('s_mov_b32 s80, s79')
                for p in range(NSP):
                    k(f'buffer_load_dwordx4 v[{192+4*p}:{195+4*p}], v28, s[28:31], s80 offen offset:{(p%2)*2048} sc0 sc1')
                    if p % 2 == 1: k('s_add_u32 s80, s80, 4096')
                k(f's_waitcnt vmcnt(0)\ns_branch L_k5_st_chk{wv}')
                k.label(f'L_k5_st_ok{wv}')
                for p in range(1, NSP):
                    job(f'v_add_f32 v192, v192, v{192+4*p}\nv_add_f32 v193, v193, v{193+4*p}')
                job('v_mul_f32 v88, 0x3acccccd, v192\nv_mul_f32 v89, 0x3acccccd, v193')
                job('v_fma_f32 v89, -v88, v88, v89\nv_max_f32 v89, 0, v89')
                job('v_cvt_pk_bf16_f32 v88, v88, v89\nv_and_b32 v89, 0xffff0000, v88\nv_lshlrev_b32 v88, 16, v88')
                job('v_add_f32 v89, 0x3727c5ac, v89\nv_cvt_pk_bf16_f32 v89, v89, v89\nv_lshlrev_b32 v89, 16, v89')
                job('v_sqrt_f32 v89, v89\ns_lshl_b32 s80, s20, 2\ns_add_u32 s81, s80, s26\ns_add_u32 s80, s80, s25')
                job('v_cvt_pk_bf16_f32 v89, v89, v89\nv_lshlrev_b32 v89, 16, v89')
                job('v_rcp_f32 v84, v89\ns_mul_i32 s76, s21, 6\ns_mul_i32 s77, s24, 3\ns_add_u32 s76, s76, s77')
                job('v_mul_f32 v85, v88, v84\nv_sub_f32 v85, 0, v85')
                job('v_mov_b32 v86, v84\nv_mov_b32 v87, v85')
                job('s_mul_i32 s80, s80, 96\ns_add_u32 s80, s80, s76\ns_lshl_b32 s80, s80, 10')
                job('v_permlane32_swap_b32 v84, v86\nv_permlane32_swap_b32 v85, v87')
                job('s_mul_i32 s81, s81, 96\ns_add_u32 s81, s81, s76\ns_lshl_b32 s81, s81, 10')
                job(f'v_mov_b32 v72, {f2h(GK1)}\nv_mov_b32 v73, {f2h(GK1)}\nv_mov_b32 v74, {f2h(GK2)}\nv_mov_b32 v75, {f2h(GK2)}')
                job(f'v_lshrrev_b32 v27, 5, v1\nv_lshlrev_b32 v27, 4, v27\ns_mul_i32 s77, s24, 384\ns_add_u32 s77, s77, {TBL}\nv_add_u32 v27, s77, v27')
            if j < 2: with_side(stat_ops(S0, j == 0))
            phase(S0, j, 0, j == 0, reads(S1, j, 1), dmE)
            if j < 2: flush()
            if j < 19:
                vmwait_stage(j + 1)
                if DEEP:
                    k('s_waitcnt lgkmcnt(0)'); lg.done = len(lg.ops)
                if not os.environ.get('EXP_NOBAR'): k('s_barrier')
                if j in (2, 7, 12, 17): stamp(3, (2, 7, 12, 17).index(j))
        flush()
        extra = [wd_load() for _ in range(3)]
        phase(S1, 19, 1, False, None, {0: extra[0], 2: extra[1], 4: extra[2]})

    state0 = (list(vm.ops), vm.done, list(lg.ops), lg.done, k_wd['n'])
    ends = []
    if NVAR == 4:
        k('s_cmp_eq_u32 s22, 1\ns_cbranch_scc1 L_k5_var1\ns_cmp_eq_u32 s22, 2\ns_cbranch_scc1 L_k5_var2\ns_cmp_eq_u32 s22, 3\ns_cbranch_scc1 L_k5_var3')
    for wv in range(NVAR):
        vm.ops, vm.done, lg.ops, lg.done, k_wd['n'] = list(state0[0]), state0[1], list(state0[2]), state0[3], state0[4]
        if wv: k.label(f'L_k5_var{wv}')
        mainloop(wv)
        ends.append((list(vm.ops), vm.done, list(lg.ops), lg.done, k_wd['n']))
        if wv < NVAR - 1: k('s_branch L_k5_join')
    if NVAR > 1: k.label('L_k5_join')
    assert all(e[4] == ends[0][4] for e in ends)
    vm.ops = []; vm.done = 0
    lg.ops = []; lg.done = 0
    stamp(1, 1)
    WD0 = k_wd['n']
    def pq_reads(t, PB):
        for j in range(4):
            k(f'ds_read_b128 v[{PB+4*j}:{PB+4*j+3}], v27 offset:{128*t + 32*j}')
            k(f'ds_read_b128 v[{PB+16+4*j}:{PB+16+4*j+3}], v27 offset:{768 + 128*t + 32*j}')
    pq_reads(0, 40)
    grp = 0
    for t in range(3):
        PB = 40 if t != 1 else 224 - 12
        if t == 0: pass
        k('s_waitcnt lgkmcnt(0)')
        if t < 2:
            pq_reads(t + 1, 212 if t == 0 else 40)
        for lt2 in range(2):
            R = 84 if lt2 == 0 else 86
            a = acc(lt2, t)
            O = 76 + 4 * lt2
            for half in range(2):
                T = 84 if False else (192 if PB == 40 else 84)
                T = 192
                ag, au = a + 8 * half, a + 8 * half + 4
                pg, pu = PB + 8 * half, PB + 8 * half + 4
                qg, qu = pg + 16, pu + 16
                G = [T, T + 8]; U = [T + 2, T + 10]; T1 = [T + 4, T + 12]
                for p in range(2):
                    k(f'v_pk_fma_f32 v[{G[p]}:{G[p]+1}], v[{pg+2*p}:{pg+2*p+1}], v[{R}:{R+1}], v[{qg+2*p}:{qg+2*p+1}] op_sel:[0,1,0] op_sel_hi:[1,1,1]')
                    k(f'v_pk_fma_f32 v[{U[p]}:{U[p]+1}], v[{pu+2*p}:{pu+2*p+1}], v[{R}:{R+1}], v[{qu+2*p}:{qu+2*p+1}] op_sel:[0,1,0] op_sel_hi:[1,1,1]')
                for p in range(2):
                    k(f'v_pk_fma_f32 v[{G[p]}:{G[p]+1}], v[{ag+2*p}:{ag+2*p+1}], v[{R}:{R+1}], v[{G[p]}:{G[p]+1}] op_sel:[0,0,0] op_sel_hi:[1,0,1]')
                    k(f'v_pk_fma_f32 v[{U[p]}:{U[p]+1}], v[{au+2*p}:{au+2*p+1}], v[{R}:{R+1}], v[{U[p]}:{U[p]+1}] op_sel:[0,0,0] op_sel_hi:[1,0,1]')
                if k_wd['n'] < WD0 + WDN: vm.issue(*wd_load())
                for p in range(2): k(f'v_pk_mul_f32 v[{T1[p]}:{T1[p]+1}], v[{G[p]}:{G[p]+1}], v[{G[p]}:{G[p]+1}]')
                for p in range(2): k(f'v_pk_fma_f32 v[{T1[p]}:{T1[p]+1}], v[{T1[p]}:{T1[p]+1}], v[74:75], v[72:73]')
                for p in range(2): k(f'v_pk_mul_f32 v[{T1[p]}:{T1[p]+1}], v[{T1[p]}:{T1[p]+1}], v[{G[p]}:{G[p]+1}]')
                for p in range(2): k(f'v_exp_f32 v{T1[p]}, v{T1[p]}\nv_exp_f32 v{T1[p]+1}, v{T1[p]+1}')
                if WDEPI and k_wd['n'] < 60: vm.issue(*wd_load())
                for p in range(2): k(f'v_pk_mul_f32 v[{U[p]}:{U[p]+1}], v[{U[p]}:{U[p]+1}], v[{G[p]}:{G[p]+1}]')
                for p in range(2): k(f'v_pk_add_f32 v[{T1[p]}:{T1[p]+1}], v[{T1[p]}:{T1[p]+1}], 1.0 op_sel_hi:[1,0]')
                for p in range(2): k(f'v_rcp_f32 v{T1[p]}, v{T1[p]}\nv_rcp_f32 v{T1[p]+1}, v{T1[p]+1}')
                if WDEPI and k_wd['n'] < 60: vm.issue(*wd_load())
                for p in range(2): k(f'v_pk_mul_f32 v[{U[p]}:{U[p]+1}], v[{U[p]}:{U[p]+1}], v[{T1[p]}:{T1[p]+1}]')
                for p in range(2): k(f'v_cvt_pk_bf16_f32 v{O + 2*half + p}, v{U[p]}, v{U[p]+1}')
            so = 's80' if lt2 == 0 else 's81'
            vm.issue(f'buffer_store_dwordx4 v[{O}:{O+3}], v7, s[16:19], {so} offen offset:{1024*t} sc0 sc1', 'actst')
    if WDEPI:
        while k_wd['n'] < 60: vm.issue(*wd_load())
    stamp(1, 2); stamp(2, 0)
    k('v_lshrrev_b32 v10, 1, v3\nv_lshlrev_b32 v10, 10, v10')
    k('v_and_b32 v11, 1, v3\nv_lshlrev_b32 v11, 5, v11\nv_add_u32 v11, v11, v4\nv_lshl_add_u32 v10, v11, 4, v10     ; u=0')
    k(f'v_add_u32 v11, {96*1024}, v10                ; u=2')
    k('s_lshl_b32 s80, s20, 7\ns_add_u32 s80, s80, 2048')
    k('v_mov_b32 v88, 0\nv_mov_b32 v89, 1\nv_cmp_gt_u32 vcc, 1, v0\nv_cndmask_b32 v88, v29, v88, vcc')
    k('s_mul_i32 s84, s27, 48\ns_add_u32 s84, s84, s22\ns_mul_i32 s84, s84, 5120')
    n0 = k_wd['n']
    def rest_wd():
        k_wd['n'] = n0
        if k_wd['n'] % 5:
            i_, dt_ = wd_list[k_wd['n']]
            k(f's_add_u32 s85, s84, {i_*4*5120}')
        while k_wd['n'] < 60: k(wd_load()[0])
    k('s_waitcnt vmcnt(0)')
    k('s_barrier')
    stamp(2, 1)
    k('s_cmp_lg_u32 s22, 0\ns_cbranch_scc1 L_k5_noatom')
    k('buffer_atomic_add v89, v88, s[28:31], s80 offen sc1')
    k.label('L_k5_noatom')
    rest_wd()
    k('s_cmp_lg_u32 s22, 0\ns_cbranch_scc1 L_k5_a_ok')
    if os.environ.get('PIPOLL', '0') == '1':
        k('s_mov_b32 s76, 0\nv_mov_b32 v88, 0')
        k('s_waitcnt vmcnt(0)')
        for q in range(3): k(f'buffer_load_dword v{90+q}, v88, s[28:31], s80 offen sc0 sc1')
        k.label('L_k5_a_spin')
        for q in range(4):
            k(f'buffer_load_dword v{90+(q+3)%4}, v88, s[28:31], s80 offen sc0 sc1\ns_waitcnt vmcnt(3)')
            k(f'v_readfirstlane_b32 s81, v{90+q}')
            k('s_cmp_eq_u32 s81, 16\ns_cbranch_scc1 L_k5_a_ok')
        k('s_add_u32 s76, s76, 1')
        k(f's_cmp_lt_u32 s76, {SPIN_MAX}\ns_cbranch_scc1 L_k5_a_spin')
    else:
        k('s_mov_b32 s76, 0\nv_mov_b32 v88, 0')
        k.label('L_k5_a_spin')
        k('buffer_load_dword v90, v88, s[28:31], s80 offen sc0 sc1\ns_waitcnt vmcnt(0)')
        k('v_readfirstlane_b32 s81, v90\ns_add_u32 s76, s76, 1')
        k('s_cmp_eq_u32 s81, 16\ns_cbranch_scc1 L_k5_a_ok')
        k(f's_cmp_lt_u32 s76, {SPIN_MAX}\ns_cbranch_scc1 L_k5_a_spin')
    k.label('L_k5_a_ok')
    k('s_mul_i32 s84, s3, 2*96\ns_lshl_b32 s85, s22, 1\ns_add_u32 s84, s84, s85\ns_lshl_b32 s84, s84, 10')
    k('s_barrier')
    stamp(2, 2)
    vm.ops = []; vm.done = 0
    D = 6
    ACT = 16; ACC2 = 128
    def act_issue(i):
        r = ACT + 16 * (i % D)
        ops = [f'buffer_load_dwordx4 v[{r}:{r+3}], v10, s[16:19], s84 offen sc0 sc1',
               f'buffer_load_dwordx4 v[{r+4}:{r+7}], v10, s[16:19], s84 offen offset:256 sc0 sc1',
               f'buffer_load_dwordx4 v[{r+8}:{r+11}], v11, s[16:19], s84 offen sc0 sc1',
               f'buffer_load_dwordx4 v[{r+12}:{r+15}], v11, s[16:19], s84 offen offset:256 sc0 sc1\ns_add_u32 s84, s84, {8*1024}']
        return [(o, ('a', i, u)) for u, o in enumerate(ops)]
    for i in range(D):
        for o in act_issue(i): vm.issue(*o)
    k('s_mul_i32 s80, s22, 20480\nv_add_u32 v124, s80, v7')
    k(f's_mov_b32 s76, s82\ns_mov_b32 s77, s83\ns_mov_b32 s78, {SZ["out"]}\ns_mov_b32 s79, {SRD3:#x}')
    k('s_lshl_b32 s80, s22, 10\nv_add_u32 v125, s80, v7\nv_add_u32 v126, 40960, v125')
    k('v_lshrrev_b32 v120, 2, v4\nv_and_b32 v121, 3, v4')
    k('v_lshl_add_u32 v120, v3, 2, v120\nv_lshlrev_b32 v120, 7, v120\nv_lshl_add_u32 v120, v121, 3, v120')
    k(f's_lshl_b32 s80, s22, 5\ns_add_u32 s80, s80, {X2OFF}\nv_add_u32 v120, s80, v120')
    k(f'v_lshlrev_b32 v121, 4, v3\nv_add_u32 v121, {GBOFF}, v121')
    k('s_lshl_b32 s80, s3, 6\ns_lshl_b32 s81, s22, 4\ns_add_u32 s80, s80, s81\nv_add_u32 v122, s80, v4\nv_mul_u32_u24 v122, 1280, v122')
    k('s_mul_i32 s80, s27, 160\nv_lshl_add_u32 v122, v3, 3, v122\nv_add_u32 v122, s80, v122')
    for dt in range(5):
        k(f'ds_read_b64_tr_b16 v[{228+2*dt}:{229+2*dt}], v120 offset:{2048*dt}')
    for dt in range(5):
        k(f'ds_read_b128 v[{208+4*dt}:{211+4*dt}], v121 offset:{64*dt}')
    def mf(i, u, dt):
        r = ACT + 16 * (i % D)
        a = ACC2 + 4 * (4 * dt + u)
        c = '0' if i == 0 else f'v[{a}:{a+3}]'
        k(f'v_mfma_f32_16x16x32_bf16 v[{a}:{a+3}], a[{20*i+4*dt}:{20*i+4*dt+3}], v[{r+4*u}:{r+4*u+3}], {c}')
    def await_(i, u):
        idx = max(q for q, t in enumerate(vm.ops) if t == ('a', i, u))
        if idx >= vm.done:
            n = len(vm.ops) - 1 - idx
            k(f's_waitcnt vmcnt({n})'); vm.done = len(vm.ops) - n
    for i in range(10):
        nxt = act_issue(i + D) if i + D < 12 else []
        for u in range(4):
            await_(i, u)
            for dt in range(5): mf(i, u, dt)
            if nxt: vm.issue(*nxt[u])
    def wr(u, dt):
        a = ACC2 + 4 * (4 * dt + u)
        k(f'ds_write_b128 v124, v[{a}:{a+3}] offset:{1024*(4*dt+u)}')
    for u in range(4):
        await_(10, u); await_(11, u)
        seq = [(10, dt) for dt in range(5)] + [(11, dt) for dt in range(5)]
        for n_, (i, dt) in enumerate(seq):
            mf(i, u, dt)
            if u > 0 and 4 <= n_ < 9: wr(u - 1, n_ - 4)
    stamp(2, 3); stamp(4, 0)
    for dt in range(5): wr(3, dt)
    stamp(4, 1)
    k('s_waitcnt lgkmcnt(0)\ns_barrier')
    stamp(4, 2)
    for dt in range(5):
        for wp in range(4):
            base = 'v125' if wp < 2 else 'v126'
            k(f'ds_read_b128 v[{16+16*dt+4*wp}:{19+16*dt+4*wp}], {base} offset:{(wp&1)*20480 + 4096*dt}')
    for dt in range(5):
        x = 228 + 2 * dt
        k(f'v_lshlrev_b32 v{128+4*dt}, 16, v{x}\nv_and_b32 v{129+4*dt}, 0xffff0000, v{x}\nv_lshlrev_b32 v{130+4*dt}, 16, v{x+1}\nv_and_b32 v{131+4*dt}, 0xffff0000, v{x+1}')
    for dt in range(5):
        b = 16 + 16 * dt
        k(f's_waitcnt lgkmcnt({min(15, 4*(4-dt))})')
        k(f'v_pk_add_f32 v[{b}:{b+1}], v[{b}:{b+1}], v[{b+4}:{b+5}]\nv_pk_add_f32 v[{b+2}:{b+3}], v[{b+2}:{b+3}], v[{b+6}:{b+7}]')
        k(f'v_pk_add_f32 v[{b+8}:{b+9}], v[{b+8}:{b+9}], v[{b+12}:{b+13}]\nv_pk_add_f32 v[{b+10}:{b+11}], v[{b+10}:{b+11}], v[{b+14}:{b+15}]')
        k(f'v_pk_add_f32 v[{b}:{b+1}], v[{b}:{b+1}], v[{b+8}:{b+9}]\nv_pk_add_f32 v[{b+2}:{b+3}], v[{b+2}:{b+3}], v[{b+10}:{b+11}]')
        g = 208 + 4 * dt; xr = 128 + 4 * dt
        k(f'v_pk_fma_f32 v[{b}:{b+1}], v[{b}:{b+1}], v[{g}:{g+1}], v[{xr}:{xr+1}]')
        k(f'v_pk_fma_f32 v[{b+2}:{b+3}], v[{b+2}:{b+3}], v[{g+2}:{g+3}], v[{xr+2}:{xr+3}]')
        k(f'v_cvt_pk_bf16_f32 v{b}, v{b}, v{b+1}\nv_cvt_pk_bf16_f32 v{b+1}, v{b+2}, v{b+3}')
        k(f'buffer_store_dwordx2 v[{b}:{b+1}], v122, s[76:79], 0 offen offset:{32*dt}{OUTWT}')
    stamp(4, 3)
    if STAMPS: k('s_waitcnt vmcnt(0)')
    stamp_end(k, 2)
    k.label('L_k5_exit')
    k('s_endpgm')
    return k
```

```python
from asmlib import K
from common import *

import os
FUSEK = os.environ.get('FUSEK', '0') == '1'
N_LN, N_MOD, N_KG, N_WD = 64, 120, (0 if FUSEK else 640), 48
N_PF = 16
K1_GRID = N_LN + N_MOD + N_KG + N_WD + N_PF
K1_LDS = 40960
import os
KGFIRST = os.environ.get('KGFIRST', '1') == '1'
CODEPF = os.environ.get('CODEPF', '1') == '1'
SELFPF = os.environ.get('SELFPF', '0') == '1'
B_KG = 0 if KGFIRST else N_LN + N_MOD
B_LN = N_KG if KGFIRST else 0
B_MOD = N_KG + N_LN if KGFIRST else N_LN

import os as _os
def cmul(k, dst, x, y, tmp):
    if _os.environ.get('PKCMUL', '1') == '1':
        k(f'v_pk_mul_f32 v[{tmp}:{tmp+1}], v[{x}:{x+1}], v[{y}:{y+1}] op_sel:[0,0] op_sel_hi:[0,1]')
        k(f'v_pk_fma_f32 v[{dst}:{dst+1}], v[{x}:{x+1}], v[{y}:{y+1}], v[{tmp}:{tmp+1}] op_sel:[1,1,0] op_sel_hi:[1,0,1] neg_lo:[1,0,0]')
    else:
        assert dst != y or x == y and False or dst != y
        k(f'v_mul_f32 v{tmp}, v{x}, v{y}\nv_mul_f32 v{tmp+1}, v{x}, v{y+1}')
        k(f'v_fma_f32 v{dst}, -v{x+1}, v{y+1}, v{tmp}\nv_fma_f32 v{dst+1}, v{x+1}, v{y}, v{tmp+1}')

def build_k1():
    k = K('prep_kernel')
    stamp_begin(k)
    if SELFPF:
        k('s_cmp_ge_u32 s2, 32\ns_cbranch_scc1 L_k1_nopf')
        k('s_getpc_b64 s[28:29]')
        k.label('L_k1_pc0')
        k('s_mov_b32 s30, conv_kernel-L_k1_pc0\ns_mov_b32 s31, 0x20000')
        k('v_lshlrev_b32 v60, 4, v0')
        k('buffer_load_dwordx4 v[100:103], v60, s[28:31], 0 offen')
        k('s_mov_b32 s27, 4096')
        k('buffer_load_dwordx4 v[104:107], v60, s[28:31], s27 offen')
        k.label('L_k1_nopf')
    if KGFIRST:
        k(f's_cmp_lt_u32 s2, {N_KG}\ns_cbranch_scc1 L_k1_kg')
        k(f's_cmp_lt_u32 s2, {N_KG+N_LN}\ns_cbranch_scc1 L_k1_ln')
        k(f's_cmp_lt_u32 s2, {N_KG+N_LN+N_MOD}\ns_cbranch_scc1 L_k1_mod')
    else:
        k(f's_cmp_lt_u32 s2, {N_LN}\ns_cbranch_scc1 L_k1_ln')
        k(f's_cmp_lt_u32 s2, {N_LN+N_MOD}\ns_cbranch_scc1 L_k1_mod')
        k(f's_cmp_lt_u32 s2, {N_LN+N_MOD+N_KG}\ns_cbranch_scc1 L_k1_kg')
    k(f's_cmp_lt_u32 s2, {K1_GRID - N_PF}\ns_cbranch_scc1 L_k1_wd')
    k(f's_cmp_lt_u32 s2, {K1_GRID}\ns_cbranch_scc1 L_k1_pf')
    k('s_endpgm')

    k.label('L_k1_kg')
    if os.environ.get('KGPRIO') == '1': k('s_setprio 1')
    k(f's_sub_u32 s3, s2, {B_KG}      ; d')
    load_ptr(k, 4, 'lar'); load_ptr(k, 8, 'aim'); load_ptr(k, 12, 'cr'); load_ptr(k, 16, 'ci'); load_ptr(k, 20, 'ldt'); load_ptr(k, 24, 'ws')
    k('s_getpc_b64 s[28:29]')
    k.label('L_k1_pc')
    k('s_add_u32 s28, s28, ktable-L_k1_pc\ns_addc_u32 s29, s29, 0')
    k('v_lshrrev_b32 v1, 6, v0')
    k('v_and_b32 v2, 63, v0            ; lane')
    k('v_readfirstlane_b32 s30, v1     ; wave')
    k('v_lshlrev_b32 v3, 4, v0         ; t*16')
    k('global_load_dwordx4 v[60:63], v3, s[28:29]')
    k('s_mul_i32 s31, s3, 384')
    k('v_lshlrev_b32 v4, 1, v0')
    k('v_add_u32 v4, s31, v4           ; d*384 + n*2')
    k('s_lshl_b32 s32, s3, 1')
    k('v_mov_b32 v5, s32')
    k('s_waitcnt lgkmcnt(0)')
    for s, n in ((4, 'lar'), (8, 'aim'), (12, 'cr'), (16, 'ci'), (20, 'ldt')):
        srd_fin(k, s, SZ[n])
    srd_fin(k, 24, 640 * 4096, WS_R)
    k('s_cmp_ge_u32 s30, 3\ns_cbranch_scc1 L_k1_kg_sync1')
    k('buffer_load_ushort v6, v5, s[20:23], 0 offen')
    k('buffer_load_ushort v7, v4, s[4:7], 0 offen')
    k('buffer_load_ushort v8, v4, s[8:11], 0 offen')
    k('buffer_load_ushort v9, v4, s[12:15], 0 offen')
    k('buffer_load_ushort v10, v4, s[16:19], 0 offen')
    k('s_mul_i32 s33, s30, 13568')
    k('v_lshlrev_b32 v11, 2, v2')
    for kk in range(16):
        k(f'v_xor_b32 v{64+kk}, {16*kk}, v11')
    for kk in range(16):
        k(f'v_add_u32 v{64+kk}, s33, v{64+kk}')
    k('v_and_b32 v12, 31, v2           ; m')
    k('v_lshrrev_b32 v13, 5, v2        ; g')
    k('v_and_b32 v14, 15, v12')
    k('v_xor_b32 v14, v14, v13')
    k('v_lshlrev_b32 v14, 4, v14       ; 16*(g ^ (m&15))')
    k('v_lshl_add_u32 v14, v12, 8, v14')
    k('v_add_u32 v14, s33, v14')
    k('s_waitcnt vmcnt(0)')
    stamp_mid(k, 0)
    k('v_lshlrev_b32 v6, 16, v6\nv_lshlrev_b32 v7, 16, v7\nv_lshlrev_b32 v8, 16, v8\nv_lshlrev_b32 v9, 16, v9\nv_lshlrev_b32 v10, 16, v10')
    k(f'v_mul_f32 v6, {LOG2E:#x}, v6\nv_mul_f32 v7, {LOG2E:#x}, v7')
    k('v_exp_f32 v6, v6\nv_exp_f32 v7, v7')
    k('v_cvt_pk_bf16_f32 v6, v6, v7')
    k('v_and_b32 v7, 0xffff0000, v6\nv_lshlrev_b32 v6, 16, v6')
    k('v_mul_f32 v7, v7, v6            ; are*dt')
    k(f'v_mul_f32 v7, {NLOG2E:#x}, v7    ; a2')
    k('v_mul_f32 v8, v8, v6            ; theta')
    k(f'v_mul_f32 v8, {INV2PI:#x}, v8    ; theta_r')
    k('v_add_f32 v6, v6, v6            ; 2dt')
    k('v_mul_f32 v16, v9, v6           ; Cbar.re')
    k('v_mul_f32 v17, v10, v6')
    k('v_sub_f32 v17, 0, v17')
    def direct(dst, p, sign, t0):
        k(f'v_mul_f32 v{t0}, {float(p)}, v7' if p in (1, 2, 4) else f'v_mul_f32 v{t0}, {hexf(p)}, v7')
        k(f'v_mul_f32 v{t0+1}, {hexf(sign*p)}, v8')
        k(f'v_exp_f32 v{t0}, v{t0}')
        k(f'v_fract_f32 v{t0+1}, v{t0+1}')
        k(f'v_cos_f32 v{dst}, v{t0+1}')
        k(f'v_sin_f32 v{dst+1}, v{t0+1}')
        k(f'v_mul_f32 v{dst}, v{dst}, v{t0}')
        k(f'v_mul_f32 v{dst+1}, v{dst+1}, v{t0}')
    if os.environ.get('GENILP', '1') == '1':
        evs = [(18, 1, -1, 96), (20, 256, -1, 98), (22, 8, +1, 100), (26, 64, +1, 102), (28, 128, +1, 104), (30, 192, +1, 106)]
        for d_, p_, sg, t0 in evs: k(f'v_mul_f32 v{t0}, {hexf(p_)}, v7\nv_mul_f32 v{t0+1}, {hexf(sg*p_)}, v8')
        for d_, p_, sg, t0 in evs: k(f'v_exp_f32 v{t0}, v{t0}')
        for d_, p_, sg, t0 in evs: k(f'v_fract_f32 v{t0+1}, v{t0+1}')
        for d_, p_, sg, t0 in evs: k(f'v_cos_f32 v{d_}, v{t0+1}')
        for d_, p_, sg, t0 in evs: k(f'v_sin_f32 v{d_+1}, v{t0+1}')
        for d_, p_, sg, t0 in evs: k(f'v_mul_f32 v{d_}, v{d_}, v{t0}')
        for d_, p_, sg, t0 in evs: k(f'v_mul_f32 v{d_+1}, v{d_+1}, v{t0}')
        k('v_mov_b32 v24, 1.0\nv_mov_b32 v25, 0')
        CB, ZB1, ZB256, W = 16, 18, 20, 22
        L = [24, 26, 28, 30]; HA, Z2, Z4, B8, B12, B14, BC, T, T13, T15 = 32, 34, 36, 38, 40, 42, 44, 46, 48, 50
        rounds = []
        rounds.append(([(Z2, ZB1, ZB1), (B8, CB, ZB256), (HA, CB, ZB1)] + [(L[q], L[q], W) for q in range(4)],
                       [(L[q], 8*q, True) for q in range(4)] + [(CB, 0, False)]))
        rounds.append(([(Z4, Z2, Z2), (B12, B8, ZB256), (T, B8, Z2), (HA, HA, ZB1)] + [(L[q], L[q], W) for q in range(4)],
                       [(L[q], 8*q+1, True) for q in range(4)] + [(HA, 1, False), (B8, 8, False)]))
        rounds.append(([(B14, B12, ZB256), (T13, B12, Z4), (T, T, Z2), (HA, HA, ZB1)] + [(L[q], L[q], W) for q in range(4)],
                       [(L[q], 8*q+2, True) for q in range(4)] + [(HA, 2, False), (B12, 12, False), (T, 9, False)]))
        rounds.append(([(BC, B14, ZB256), (T15, B14, Z4), (T, T, Z2), (HA, HA, ZB1)] + [(L[q], L[q], W) for q in range(4)],
                       [(L[q], 8*q+3, True) for q in range(4)] + [(HA, 3, False), (B14, 14, False), (T, 10, False), (T13, 13, False)]))
        rounds.append(([(BC, BC, ZB256), (HA, HA, ZB1)] + [(L[q], L[q], W) for q in range(4)],
                       [(L[q], 8*q+4, True) for q in range(4)] + [(HA, 4, False), (BC, 16, False), (T, 11, False), (T15, 15, False)]))
        for r_ in (5, 6):
            rounds.append(([(BC, BC, ZB256), (HA, HA, ZB1)] + [(L[q], L[q], W) for q in range(4)],
                           [(L[q], 8*q+r_, True) for q in range(4)] + [(HA, r_, False), (BC, 12 + r_, False)]))
        rounds.append(([(BC, BC, ZB256)], [(L[q], 8*q+7, True) for q in range(4)] + [(HA, 7, False), (BC, 19, False)]))
        rounds.append(([], [(BC, 20, False)]))
        for cm, pu in rounds:
            for n_, (src, row, lo) in enumerate(pu): k(f'v_cvt_pk_bf16_f32 v{52+n_}, v{src}, v{src+1}')
            for n_, (d_, x_, y_) in enumerate(cm):
                t = 80 + 2 * n_
                k(f'v_pk_mul_f32 v[{t}:{t+1}], v[{x_}:{x_+1}], v[{y_}:{y_+1}] op_sel:[0,0] op_sel_hi:[0,1]')
            for n_, (src, row, lo) in enumerate(pu): k(f'ds_write_b32 v{64 + (row & 15)}, v{52+n_} offset:{row*256 + (5376 if lo else 0)}')
            for n_, (d_, x_, y_) in enumerate(cm):
                t = 80 + 2 * n_
                k(f'v_pk_fma_f32 v[{d_}:{d_+1}], v[{x_}:{x_+1}], v[{y_}:{y_+1}], v[{t}:{t+1}] op_sel:[1,1,0] op_sel_hi:[1,0,1] neg_lo:[1,0,0]')
        rows_hi = sorted(r for cm, pu in rounds for s_, r, lo in pu if not lo); rows_lo = sorted(r for cm, pu in rounds for s_, r, lo in pu if lo)
        assert rows_hi == list(range(21)) and rows_lo == list(range(32)), (rows_hi, rows_lo)
    else:
        direct(18, 1, -1, 24)
        direct(20, 256, -1, 26)
        direct(22, 8, +1, 28)
        ZB1, ZB256, W8 = 18, 20, 22
        ZB2, ZB4 = 30, 32
        A, B, T, L = 34, 36, 38, 40
        TA, TL = 42, 44
        C0 = 46
        rot = [0]
        def put(src, row, lo):
            t = C0 + (rot[0] % 8); rot[0] += 1
            k(f'v_cvt_pk_bf16_f32 v{t}, v{src}, v{src+1}')
            k(f'ds_write_b32 v{64 + (row & 15)}, v{t} offset:{row*256 + (5376 if lo else 0)}')
        hi = []
        hi.append(lambda: put(16, 0, False))
        hi.append(lambda: (cmul(k, A, 16, ZB1, TA), put(A, 1, False)))
        for m in range(2, 8):
            hi.append(lambda m=m: (cmul(k, A, A, ZB1, TA), put(A, m, False)))
        hi.append(lambda: cmul(k, ZB2, ZB1, ZB1, TA))
        hi.append(lambda: (cmul(k, B, 16, ZB256, TA), put(B, 8, False)))
        hi.append(lambda: cmul(k, ZB4, ZB2, ZB2, TA))
        hi.append(lambda: (cmul(k, T, B, ZB2, TA), put(T, 9, False)))
        hi.append(lambda: (cmul(k, T, T, ZB2, TA), put(T, 10, False)))
        hi.append(lambda: (cmul(k, T, T, ZB2, TA), put(T, 11, False)))
        hi.append(lambda: (cmul(k, B, B, ZB256, TA), put(B, 12, False)))
        hi.append(lambda: (cmul(k, T, B, ZB4, TA), put(T, 13, False)))
        hi.append(lambda: (cmul(k, B, B, ZB256, TA), put(B, 14, False)))
        hi.append(lambda: (cmul(k, T, B, ZB4, TA), put(T, 15, False)))
        for m in range(16, 21):
            hi.append(lambda m=m: (cmul(k, B, B, ZB256, TA), put(B, m, False)))
        lo = []
        lo.append(lambda: (k(f'v_mov_b32 v{L}, 1.0\nv_mov_b32 v{L+1}, 0'), put(L, 0, True)))
        lo.append(lambda: put(W8, 1, True))
        lo.append(lambda: (cmul(k, L, W8, W8, TL), put(L, 2, True)))
        for u in range(3, 32):
            lo.append(lambda u=u: (cmul(k, L, L, W8, TL), put(L, u, True)))
        i = j = 0
        while i < len(hi) or j < len(lo):
            if j < len(lo): lo[j](); j += 1
            if i < len(hi) and (i * len(lo) <= j * len(hi) or j >= len(lo)): hi[i](); i += 1
    k('s_waitcnt lgkmcnt(0)')
    stamp_mid(k, 1)
    for ks in range(8):
        k(f'v_xor_b32 v15, {32*ks}, v14')
        k(f'ds_read_b128 v[{24+8*(ks%4)}:{27+8*(ks%4)}], v15')
        k(f'ds_read_b128 v[{28+8*(ks%4)}:{31+8*(ks%4)}], v15 offset:5376')
        if ks >= 1:
            p = ks - 1
            k('s_waitcnt lgkmcnt(2)')
            k(f'v_mfma_f32_32x32x16_bf16 v[96:111], v[{24+8*(p%4)}:{27+8*(p%4)}], v[{28+8*(p%4)}:{31+8*(p%4)}], ' + ('0' if p == 0 else 'v[96:111]'))
    k('s_waitcnt lgkmcnt(0)')
    k('v_mfma_f32_32x32x16_bf16 v[96:111], v[48:51], v[52:55], v[96:111]')
    k('v_and_b32 v12, 31, v2\nv_lshrrev_b32 v13, 5, v2')
    k('v_lshlrev_b32 v12, 2, v12')
    k('v_lshl_add_u32 v12, v13, 9, v12')
    k('v_add_u32 v12, s33, v12')
    for j in range(3):
        for i in range(4):
            k(f'ds_write_b32 v12, v{96+4*j+i} offset:{(8*j+i)*128}')
    k.label('L_k1_kg_sync1')
    k('s_waitcnt lgkmcnt(0)\ns_barrier')
    stamp_mid(k, 2)
    k('v_cmp_gt_u32 vcc, 168, v0')
    k('s_and_saveexec_b64 s[34:35], vcc')
    k('s_cbranch_execz L_k1_kg_skip')
    k('ds_read_b128 v[24:27], v3\nds_read_b128 v[28:31], v3 offset:13568\nds_read_b128 v[32:35], v3 offset:27136')
    k('s_waitcnt lgkmcnt(0)')
    k('v_pk_add_f32 v[24:25], v[24:25], v[28:29]\nv_pk_add_f32 v[26:27], v[26:27], v[30:31]')
    k('v_pk_add_f32 v[24:25], v[24:25], v[32:33]\nv_pk_add_f32 v[26:27], v[26:27], v[34:35]')
    k('v_cvt_pk_bf16_f32 v24, v24, v25\nv_cvt_pk_bf16_f32 v25, v26, v27')
    k('v_lshlrev_b32 v12, 3, v0')
    k('ds_write_b64 v12, v[24:25] offset:4096')
    k.label('L_k1_kg_skip')
    k('s_mov_b64 exec, s[34:35]')
    k('s_waitcnt vmcnt(0) lgkmcnt(0)\ns_barrier')
    for q in range(4):
        k(f'v_and_b32 v{24+2*q}, 0xffff, v{60+q}\nv_lshrrev_b32 v{25+2*q}, 16, v{60+q}')
    for q in range(4):
        k(f'ds_read_u16 v{36+q}, v{24+2*q} offset:4096')
        k(f'ds_read_u16 v{40+q}, v{25+2*q} offset:4096')
    k('s_lshl_b32 s33, s3, 12')
    k('s_waitcnt lgkmcnt(0)')
    for q in range(4):
        k(f'v_lshl_or_b32 v{36+q}, v{40+q}, 16, v{36+q}')
    k(f'buffer_store_dwordx4 v[36:39], v3, s[24:27], s33 offen{WT}')
    if STAMPS: k('s_waitcnt vmcnt(0)')
    stamp_end(k, 0)
    k('s_endpgm')

    k.label('L_k1_ln')
    load_ptr(k, 4, 'u'); load_ptr(k, 8, 'ws'); load_ptr(k, 12, 'ws')
    k('v_lshrrev_b32 v1, 4, v0       ; rg')
    k('v_and_b32 v2, 15, v0          ; c')
    k(f's_sub_u32 s3, s2, {B_LN}\ns_lshl_b32 s3, s3, 5          ; l0')
    k('v_add_u32 v3, s3, v1')
    k('v_mul_u32_u24 v4, 1280, v3')
    k('v_lshl_add_u32 v4, v2, 4, v4')
    k('s_mov_b32 s16, 20480')
    k('s_mov_b32 s17, 0x3f803f80')
    k('s_waitcnt lgkmcnt(0)')
    srd_fin(k, 4, SZ['u']); srd_fin(k, 8, 8192, WS_STATS); srd_fin(k, 12, 2621440, WS_XT)
    for p in range(2):
        for q in range(5):
            r = 16 + 4 * (5 * p + q)
            k(f'buffer_load_dwordx4 v[{r}:{r+3}], v4, s[4:7], {"s16" if p else "0"} offen offset:{256*q}{NT}')
    k('v_and_b32 v5, 3, v1\nv_lshrrev_b32 v6, 3, v1\nv_lshl_or_b32 v5, v6, 2, v5     ; f0')
    k('v_xor_b32 v5, v5, v2          ; c ^ f0')
    k('v_mul_u32_u24 v6, 1280, v1')
    k('v_xor_b32 v7, 8, v5')
    k('v_lshl_add_u32 v5, v5, 4, v6          ; p=0 addr')
    k('v_lshl_add_u32 v6, v7, 4, v6          ; p=1 addr - 20480')
    for p in range(2):
        k(f's_waitcnt vmcnt({5 if p == 0 else 0})')
        for q in range(5):
            r = 16 + 4 * (5 * p + q)
            k(f'ds_write_b128 v{5+p}, v[{r}:{r+3}] offset:{256*q + 20480*p}')
        for q in range(5):
            r = 16 + 4 * (5 * p + q)
            for i in range(4):
                first = (q == 0 and i == 0)
                k(f'v_dot2_f32_bf16 v{8+2*p}, v{r+i}, s17, ' + ('0' if first else f'v{8+2*p}'))
                k(f'v_dot2_f32_bf16 v{9+2*p}, v{r+i}, v{r+i}, ' + ('0' if first else f'v{9+2*p}'))
    for sh in (8, 4, 2, 1):
        for v in (8, 9, 10, 11):
            k(f'v_add_f32_dpp v{v}, v{v}, v{v} row_ror:{sh} row_mask:0xf bank_mask:0xf')
    for p in range(2):
        a, b = 8 + 2 * p, 9 + 2 * p
        k(f'v_mul_f32 v{a}, 0x3acccccd, v{a}          ; mean')
        k(f'v_mul_f32 v{b}, 0x3acccccd, v{b}')
        k(f'v_fma_f32 v{b}, -v{a}, v{a}, v{b}         ; var')
        k(f'v_max_f32 v{b}, 0, v{b}')
        k(f'v_cvt_pk_bf16_f32 v{b}, v{b}, v{b}\nv_lshlrev_b32 v{b}, 16, v{b}')
        k(f'v_add_f32 v{b}, 0x3727c5ac, v{b}')
        k(f'v_cvt_pk_bf16_f32 v{b}, v{b}, v{b}\nv_lshlrev_b32 v{b}, 16, v{b}')
        k(f'v_sqrt_f32 v{b}, v{b}')
        k(f'v_cvt_pk_bf16_f32 v{a}, v{a}, v{b}')
    k('v_lshlrev_b32 v7, 2, v3')
    k('v_cmp_eq_u32 vcc, 0, v2')
    k('s_and_saveexec_b64 s[18:19], vcc')
    k('s_cbranch_execz L_k1_ln_nost')
    k(f'buffer_store_dword v8, v7, s[8:11], 0 offen{WT}')
    k(f'buffer_store_dword v10, v7, s[8:11], 0 offen offset:64{WT}')
    k.label('L_k1_ln_nost')
    k('s_mov_b64 exec, s[18:19]')
    k('v_and_b32 v1, 63, v0          ; lane')
    k('v_lshrrev_b32 v2, 6, v0       ; w')
    k('v_lshrrev_b32 v3, 4, v1       ; grp')
    k('v_and_b32 v4, 15, v1          ; idx')
    k('v_lshrrev_b32 v5, 2, v4')
    k('v_and_b32 v6, 3, v4')
    k('v_lshl_add_u32 v7, v6, 3, v5  ; row = 8c + r')
    k('v_lshl_or_b32 v8, v6, 2, v5   ; f = r | c<<2')
    k('v_mul_u32_u24 v7, 1280, v7')
    k('v_and_b32 v9, 1, v3')
    k('v_lshl_add_u32 v7, v9, 3, v7')
    k('v_lshrrev_b32 v9, 1, v3')
    k('v_mul_u32_u24 v10, 20, v2')
    k('v_add_u32 v9, v9, v10         ; ch0')
    k('v_mul_u32_u24 v10, 40, v2\nv_add_u32 v10, v10, v3\nv_lshlrev_b32 v10, 14, v10')
    k('v_lshl_add_u32 v10, v5, 6, v10\nv_lshl_add_u32 v10, v6, 4, v10')
    k('s_lshl_b32 s16, s3, 3\nv_add_u32 v10, s16, v10')
    k('s_waitcnt lgkmcnt(0)\ns_barrier')
    for it in range(10):
        k(f'v_add_u32 v11, {2*it}, v9\nv_xor_b32 v11, v11, v8\nv_lshl_add_u32 v11, v11, 4, v7')
        r = 16 + 4 * it
        k(f'ds_read_b64_tr_b16 v[{r}:{r+1}], v11\nds_read_b64_tr_b16 v[{r+2}:{r+3}], v11 offset:5120')
    for it in range(10):
        r = 16 + 4 * it
        k(f's_mov_b32 s16, {it*65536}')
        k(f's_waitcnt lgkmcnt({min(15, 2*(9-it))})')
        k(f'buffer_store_dwordx4 v[{r}:{r+3}], v10, s[12:15], s16 offen{WT}')
    if STAMPS: k('s_waitcnt vmcnt(0)')
    stamp_end(k, 0)
    k('s_endpgm')

    k.label('L_k1_mod')
    load_ptr(k, 4, 'wmod'); load_ptr(k, 8, 'c'); load_ptr(k, 12, 'ws')
    k(f's_sub_u32 s3, s2, {B_MOD}')
    k('s_lshr_b32 s16, s3, 2          ; cb\ns_and_b32 s17, s3, 3     ; kq')
    k('v_lshrrev_b32 v1, 4, v0       ; rg\nv_and_b32 v2, 15, v0    ; c')
    k('v_mul_u32_u24 v4, 7680, v1\nv_lshl_add_u32 v4, v2, 4, v4')
    k(f's_mul_i32 s18, s17, {160*7680}\ns_lshl_b32 s19, s16, 8\ns_add_u32 s18, s18, s19')
    k('s_mul_i32 s19, s17, 320\nv_lshlrev_b32 v5, 1, v1\nv_add_u32 v5, s19, v5')
    k('s_waitcnt lgkmcnt(0)')
    srd_fin(k, 4, SZ['wmod']); srd_fin(k, 8, SZ['c']); srd_fin(k, 12, 4 * 3840 * 4, WS_MODP)
    for p in range(10):
        k(f'buffer_load_ushort v{56+p}, v5, s[8:11], 0 offen offset:{32*p}')
    for p in range(10):
        k(f'buffer_load_dwordx4 v[{16+4*p}:{19+4*p}], v4, s[4:7], s18 offen{NT}')
        if p < 9: k('s_add_u32 s18, s18, 122880')
    k('s_waitcnt vmcnt(10)')
    for p in range(10):
        k(f'v_lshlrev_b32 v{56+p}, 16, v{56+p}')
    for p in range(10):
        k(f'v_mul_f32 v{66+p}, {NLOG2E:#x}, v{56+p}')
    for p in range(10):
        k(f'v_exp_f32 v{66+p}, v{66+p}')
    for p in range(10):
        k(f'v_add_f32 v{66+p}, 1.0, v{66+p}')
    for p in range(10):
        k(f'v_rcp_f32 v{66+p}, v{66+p}')
    for p in range(10):
        k(f'v_mul_f32 v{56+p}, v{56+p}, v{66+p}')
    for p in range(10):
        k(f'v_cvt_pk_bf16_f32 v{56+p}, v{56+p}, 0        ; (s,0)')
    for p in range(10):
        k(f'v_lshlrev_b32 v{66+p}, 16, v{56+p}           ; (0,s)')
    for p in range(10):
        k(f's_waitcnt vmcnt({9-p})')
        for i in range(4):
            k(f'v_dot2_f32_bf16 v{76+2*i}, v{16+4*p+i}, v{56+p}, ' + ('0' if p == 0 else f'v{76+2*i}'))
            k(f'v_dot2_f32_bf16 v{77+2*i}, v{16+4*p+i}, v{66+p}, ' + ('0' if p == 0 else f'v{77+2*i}'))
    k('v_lshlrev_b32 v6, 5, v0')
    k('ds_write_b128 v6, v[76:79]\nds_write_b128 v6, v[80:83] offset:16')
    k('s_waitcnt lgkmcnt(0)\ns_barrier')
    k('v_cmp_gt_u32 vcc, 128, v0')
    k('s_and_saveexec_b64 s[20:21], vcc')
    k('s_cbranch_execz L_k1_mod_end')
    k('v_lshlrev_b32 v6, 2, v0')
    for rg in range(16):
        k(f'ds_read_b32 v{16+rg}, v6 offset:{rg*512}')
    k('s_waitcnt lgkmcnt(0)')
    for st in (8, 4, 2, 1):
        for i in range(st):
            k(f'v_add_f32 v{16+i}, v{16+i}, v{16+i+st}')
    k('s_mul_i32 s19, s17, 15360\ns_lshl_b32 s22, s16, 9\ns_add_u32 s19, s19, s22')
    k(f'buffer_store_dword v16, v6, s[12:15], s19 offen{WT}')
    k.label('L_k1_mod_end')
    k('s_mov_b64 exec, s[20:21]')
    if STAMPS: k('s_waitcnt vmcnt(0)')
    stamp_end(k, 0)
    k('s_endpgm')
    k.label('L_k1_wd')
    load_ptr(k, 4, 'wd'); load_ptr(k, 8, 'ws')
    k(f's_sub_u32 s3, s2, {N_LN+N_MOD+N_KG}      ; kappa')
    k('v_and_b32 v1, 63, v0\nv_lshrrev_b32 v2, 6, v0\nv_lshlrev_b32 v3, 4, v1\nv_readfirstlane_b32 s16, v2')
    k('s_mul_i32 s17, s3, 40960')
    k('s_mul_i32 s18, s16, 10240\ns_add_u32 s17, s17, s18')
    k('s_waitcnt lgkmcnt(0)')
    srd_fin(k, 4, SZ['wd'])
    k(f's_add_u32 s12, s8, {WS_WD}\ns_addc_u32 s13, s9, 0\ns_mov_b32 s14, 1966080\ns_mov_b32 s15, {SRD3:#x}')
    for q in range(10):
        k(f's_add_u32 m0, s18, {q*1024}')
        k(f's_add_u32 s19, s17, {q*1024}')
        k(f'buffer_load_dwordx4 v3, s[4:7], s19 offen{NT} lds')
    k('v_lshrrev_b32 v5, 4, v1\nv_and_b32 v6, 15, v1\nv_lshrrev_b32 v7, 2, v6\nv_and_b32 v6, 3, v6')
    k('v_lshrrev_b32 v12, 1, v5\nv_lshlrev_b32 v12, 4, v12\nv_and_b32 v13, 1, v5\nv_lshl_add_u32 v12, v13, 2, v12\nv_add_u32 v12, v12, v7')
    k('v_mul_u32_u24 v12, 1280, v12\nv_lshl_add_u32 v12, v6, 3, v12')
    k('s_mul_i32 s24, s16, 320\nv_add_u32 v12, s24, v12')
    k('s_mul_i32 s24, s16, 96\ns_add_u32 s24, s24, s3\ns_mul_i32 s24, s24, 5120')
    k('s_waitcnt vmcnt(0)\ns_barrier')
    for b in range(2):
        for dt in range(5):
            r = 16 + 4 * (5 * b + dt)
            o = 160 * b + 32 * dt
            k(f'ds_read_b64_tr_b16 v[{r}:{r+1}], v12 offset:{o}\nds_read_b64_tr_b16 v[{r+2}:{r+3}], v12 offset:{o + 8*1280}')
    for b in range(2):
        for dt in range(5):
            r = 16 + 4 * (5 * b + dt)
            k(f's_waitcnt lgkmcnt({min(15, 2*(9 - 5*b - dt))})')
            k(f's_add_u32 s25, s24, {b*48*5120 + dt*1024}')
            k(f'buffer_store_dwordx4 v[{r}:{r+3}], v3, s[12:15], s25 offen{WT}')
    if STAMPS: k('s_waitcnt vmcnt(0)')
    stamp_end(k, 0)
    k('s_endpgm')
    k.label('L_k1_pf')
    load_ptr(k, 8, 'ws')
    k(f's_sub_u32 s3, s2, {N_LN+N_MOD+N_KG+N_WD}')
    k('s_getpc_b64 s[28:29]')
    k.label('L_k1_pc2')
    k('s_add_u32 s28, s28, conv_kernel-L_k1_pc2\ns_addc_u32 s29, s29, 0')
    k('s_mov_b32 s30, code_end-conv_kernel\ns_mov_b32 s31, 0x20000')
    k('v_lshlrev_b32 v4, 4, v0')
    if CODEPF:
        for q in range(11):
            k(f's_mov_b32 s27, {q*4096}')
            k(f'buffer_load_dwordx4 v[{64+4*q}:{67+4*q}], v4, s[28:31], s27 offen')
    k('v_mov_b32 v8, 0\nv_mov_b32 v9, 0\nv_mov_b32 v10, 0\nv_mov_b32 v11, 0')
    k('s_waitcnt lgkmcnt(0)')
    k(f's_add_u32 s20, s8, {WS_FLAGS}\ns_addc_u32 s21, s9, 0\ns_mov_b32 s22, {WS_SP - WS_FLAGS + 327680}\ns_mov_b32 s23, {SRD3:#x}')
    k('s_cmp_lg_u32 s3, 0\ns_cbranch_scc1 L_k1_pf_nz')
    k(f'buffer_store_dwordx4 v[8:11], v4, s[20:23], 0 offen{WT}')
    k.label('L_k1_pf_nz')
    k(f's_mul_i32 s26, s3, 20480\ns_add_u32 s26, s26, {WS_SP - WS_FLAGS}')
    for q in range(5):
        k(f'buffer_store_dwordx4 v[8:11], v4, s[20:23], s26 offen{WT}')
        if q < 4: k('s_add_u32 s26, s26, 4096')
    if STAMPS: k('s_waitcnt vmcnt(0)')
    stamp_end(k, 0)
    k('s_endpgm')
    return k

def hexf(x):
    import struct
    return hex(struct.unpack('<I', struct.pack('<f', float(x)))[0])

def ktable_data():
    t = ktable() + [1344] * 16
    s = 'code_end:\n.p2align 8\n.type ktable,@object\nktable:\n'
    for i in range(0, 2064, 16):
        s += '.short ' + ', '.join(str(x) for x in t[i:i + 16]) + '\n'
    s += '.size ktable, 4128\n'
    return s
```

```python
from asmlib import K
from common import *

import os
FUSEK = os.environ.get('FUSEK', '0') == '1'
WDK2 = os.environ.get('WDK2', '0') == '1'
N_LN, N_MOD, N_KG, N_WD = 64, 120, (0 if FUSEK else 640), (0 if WDK2 else 48)
N_PF = 16
K1_GRID = N_LN + N_MOD + N_KG + N_WD + N_PF
K1_LDS = 40960
import os
KGFIRST = os.environ.get('KGFIRST', '1') == '1'
CODEPF = os.environ.get('CODEPF', '1') == '1'
SELFPF = os.environ.get('SELFPF', '0') == '1'
B_KG = 0 if KGFIRST else N_LN + N_MOD
B_LN = N_KG if KGFIRST else 0
B_MOD = N_KG + N_LN if KGFIRST else N_LN

import os as _os
def cmul(k, dst, x, y, tmp):
    if _os.environ.get('PKCMUL', '1') == '1':
        k(f'v_pk_mul_f32 v[{tmp}:{tmp+1}], v[{x}:{x+1}], v[{y}:{y+1}] op_sel:[0,0] op_sel_hi:[0,1]')
        k(f'v_pk_fma_f32 v[{dst}:{dst+1}], v[{x}:{x+1}], v[{y}:{y+1}], v[{tmp}:{tmp+1}] op_sel:[1,1,0] op_sel_hi:[1,0,1] neg_lo:[1,0,0]')
    else:
        assert dst != y or x == y and False or dst != y
        k(f'v_mul_f32 v{tmp}, v{x}, v{y}\nv_mul_f32 v{tmp+1}, v{x}, v{y+1}')
        k(f'v_fma_f32 v{dst}, -v{x+1}, v{y+1}, v{tmp}\nv_fma_f32 v{dst+1}, v{x+1}, v{y}, v{tmp+1}')

def emit_wd(k, base_id, stamp_idx, label):
    k.label(label)
    load_ptr(k, 4, 'wd'); load_ptr(k, 8, 'ws')
    k(f's_sub_u32 s3, s2, {base_id}      ; kappa')
    k('v_and_b32 v1, 63, v0\nv_lshrrev_b32 v2, 6, v0\nv_lshlrev_b32 v3, 4, v1\nv_readfirstlane_b32 s16, v2')
    k('s_mul_i32 s17, s3, 40960')
    k('s_mul_i32 s18, s16, 10240\ns_add_u32 s17, s17, s18')
    k('s_waitcnt lgkmcnt(0)')
    srd_fin(k, 4, SZ['wd'])
    k(f's_add_u32 s12, s8, {WS_WD}\ns_addc_u32 s13, s9, 0\ns_mov_b32 s14, 1966080\ns_mov_b32 s15, {SRD3:#x}')
    for q in range(10):
        k(f's_add_u32 m0, s18, {q*1024}')
        k(f's_add_u32 s19, s17, {q*1024}')
        k(f'buffer_load_dwordx4 v3, s[4:7], s19 offen{NT} lds')
    k('v_lshrrev_b32 v5, 4, v1\nv_and_b32 v6, 15, v1\nv_lshrrev_b32 v7, 2, v6\nv_and_b32 v6, 3, v6')
    k('v_lshrrev_b32 v12, 1, v5\nv_lshlrev_b32 v12, 4, v12\nv_and_b32 v13, 1, v5\nv_lshl_add_u32 v12, v13, 2, v12\nv_add_u32 v12, v12, v7')
    k('v_mul_u32_u24 v12, 1280, v12\nv_lshl_add_u32 v12, v6, 3, v12')
    k('s_mul_i32 s24, s16, 320\nv_add_u32 v12, s24, v12')
    k('s_mul_i32 s24, s16, 96\ns_add_u32 s24, s24, s3\ns_mul_i32 s24, s24, 5120')
    k('s_waitcnt vmcnt(0)\ns_barrier')
    for b in range(2):
        for dt in range(5):
            r = 16 + 4 * (5 * b + dt)
            o = 160 * b + 32 * dt
            k(f'ds_read_b64_tr_b16 v[{r}:{r+1}], v12 offset:{o}\nds_read_b64_tr_b16 v[{r+2}:{r+3}], v12 offset:{o + 8*1280}')
    for b in range(2):
        for dt in range(5):
            r = 16 + 4 * (5 * b + dt)
            k(f's_waitcnt lgkmcnt({min(15, 2*(9 - 5*b - dt))})')
            k(f's_add_u32 s25, s24, {b*48*5120 + dt*1024}')
            k(f'buffer_store_dwordx4 v[{r}:{r+3}], v3, s[12:15], s25 offen{WT}')
    if STAMPS: k('s_waitcnt vmcnt(0)')
    stamp_end(k, stamp_idx)
    k('s_endpgm')

def build_k1():
    k = K('prep_kernel')
    stamp_begin(k)
    if SELFPF:
        k('s_cmp_ge_u32 s2, 32\ns_cbranch_scc1 L_k1_nopf')
        k('s_getpc_b64 s[28:29]')
        k.label('L_k1_pc0')
        k('s_mov_b32 s30, conv_kernel-L_k1_pc0\ns_mov_b32 s31, 0x20000')
        k('v_lshlrev_b32 v60, 4, v0')
        k('buffer_load_dwordx4 v[100:103], v60, s[28:31], 0 offen')
        k('s_mov_b32 s27, 4096')
        k('buffer_load_dwordx4 v[104:107], v60, s[28:31], s27 offen')
        k.label('L_k1_nopf')
    if KGFIRST:
        k(f's_cmp_lt_u32 s2, {N_KG}\ns_cbranch_scc1 L_k1_kg')
        k(f's_cmp_lt_u32 s2, {N_KG+N_LN}\ns_cbranch_scc1 L_k1_ln')
        k(f's_cmp_lt_u32 s2, {N_KG+N_LN+N_MOD}\ns_cbranch_scc1 L_k1_mod')
    else:
        k(f's_cmp_lt_u32 s2, {N_LN}\ns_cbranch_scc1 L_k1_ln')
        k(f's_cmp_lt_u32 s2, {N_LN+N_MOD}\ns_cbranch_scc1 L_k1_mod')
        k(f's_cmp_lt_u32 s2, {N_LN+N_MOD+N_KG}\ns_cbranch_scc1 L_k1_kg')
    if not WDK2: k(f's_cmp_lt_u32 s2, {K1_GRID - N_PF}\ns_cbranch_scc1 L_k1_wd')
    k(f's_cmp_lt_u32 s2, {K1_GRID}\ns_cbranch_scc1 L_k1_pf')
    k('s_endpgm')

    k.label('L_k1_kg')
    if os.environ.get('KGPRIO') == '1': k('s_setprio 1')
    k(f's_sub_u32 s3, s2, {B_KG}      ; d')
    load_ptr(k, 4, 'lar'); load_ptr(k, 8, 'aim'); load_ptr(k, 12, 'cr'); load_ptr(k, 16, 'ci'); load_ptr(k, 20, 'ldt'); load_ptr(k, 24, 'ws')
    k('s_getpc_b64 s[28:29]')
    k.label('L_k1_pc')
    k('s_add_u32 s28, s28, ktable-L_k1_pc\ns_addc_u32 s29, s29, 0')
    k('v_lshrrev_b32 v1, 6, v0')
    k('v_and_b32 v2, 63, v0            ; lane')
    k('v_readfirstlane_b32 s30, v1     ; wave')
    k('v_lshlrev_b32 v3, 4, v0         ; t*16')
    k('global_load_dwordx4 v[60:63], v3, s[28:29]')
    k('s_mul_i32 s31, s3, 384')
    k('v_lshlrev_b32 v4, 1, v0')
    k('v_add_u32 v4, s31, v4           ; d*384 + n*2')
    k('s_lshl_b32 s32, s3, 1')
    k('v_mov_b32 v5, s32')
    k('s_waitcnt lgkmcnt(0)')
    for s, n in ((4, 'lar'), (8, 'aim'), (12, 'cr'), (16, 'ci'), (20, 'ldt')):
        srd_fin(k, s, SZ[n])
    srd_fin(k, 24, 640 * 4096, WS_R)
    if os.environ.get('WPF2', '0') == '1':
        k('s_cmp_lt_u32 s30, 3\ns_cbranch_scc1 L_k1_kg_gen')
        load_ptr(k, 36, 'wg'); load_ptr(k, 40, 'wu')
        k('s_mul_i32 s33, s3, 24\nv_min_u32 v6, 23, v2\nv_add_u32 v6, s33, v6\nv_lshlrev_b32 v6, 7, v6')
        k('s_waitcnt lgkmcnt(0)')
        srd_fin(k, 36, SZ['wg']); srd_fin(k, 40, SZ['wu'])
        k('buffer_load_dword v7, v6, s[36:39], 0 offen\nbuffer_load_dword v8, v6, s[40:43], 0 offen')
        k('s_branch L_k1_kg_sync1')
        k.label('L_k1_kg_gen')
    else:
        k('s_cmp_ge_u32 s30, 3\ns_cbranch_scc1 L_k1_kg_sync1')
    k('buffer_load_ushort v6, v5, s[20:23], 0 offen')
    k('buffer_load_ushort v7, v4, s[4:7], 0 offen')
    k('buffer_load_ushort v8, v4, s[8:11], 0 offen')
    k('buffer_load_ushort v9, v4, s[12:15], 0 offen')
    k('buffer_load_ushort v10, v4, s[16:19], 0 offen')
    k('s_mul_i32 s33, s30, 13568')
    k('v_lshlrev_b32 v11, 2, v2')
    for kk in range(16):
        k(f'v_xor_b32 v{64+kk}, {16*kk}, v11')
    for kk in range(16):
        k(f'v_add_u32 v{64+kk}, s33, v{64+kk}')
    k('v_and_b32 v12, 31, v2           ; m')
    k('v_lshrrev_b32 v13, 5, v2        ; g')
    k('v_and_b32 v14, 15, v12')
    k('v_xor_b32 v14, v14, v13')
    k('v_lshlrev_b32 v14, 4, v14       ; 16*(g ^ (m&15))')
    k('v_lshl_add_u32 v14, v12, 8, v14')
    k('v_add_u32 v14, s33, v14')
    k('s_waitcnt vmcnt(0)')
    stamp_mid(k, 0)
    k('v_lshlrev_b32 v6, 16, v6\nv_lshlrev_b32 v7, 16, v7\nv_lshlrev_b32 v8, 16, v8\nv_lshlrev_b32 v9, 16, v9\nv_lshlrev_b32 v10, 16, v10')
    k(f'v_mul_f32 v6, {LOG2E:#x}, v6\nv_mul_f32 v7, {LOG2E:#x}, v7')
    k('v_exp_f32 v6, v6\nv_exp_f32 v7, v7')
    k('v_cvt_pk_bf16_f32 v6, v6, v7')
    k('v_and_b32 v7, 0xffff0000, v6\nv_lshlrev_b32 v6, 16, v6')
    k('v_mul_f32 v7, v7, v6            ; are*dt')
    k(f'v_mul_f32 v7, {NLOG2E:#x}, v7    ; a2')
    k('v_mul_f32 v8, v8, v6            ; theta')
    k(f'v_mul_f32 v8, {INV2PI:#x}, v8    ; theta_r')
    k('v_add_f32 v6, v6, v6            ; 2dt')
    k('v_mul_f32 v16, v9, v6           ; Cbar.re')
    k('v_mul_f32 v17, v10, v6')
    k('v_sub_f32 v17, 0, v17')
    def direct(dst, p, sign, t0):
        k(f'v_mul_f32 v{t0}, {float(p)}, v7' if p in (1, 2, 4) else f'v_mul_f32 v{t0}, {hexf(p)}, v7')
        k(f'v_mul_f32 v{t0+1}, {hexf(sign*p)}, v8')
        k(f'v_exp_f32 v{t0}, v{t0}')
        k(f'v_fract_f32 v{t0+1}, v{t0+1}')
        k(f'v_cos_f32 v{dst}, v{t0+1}')
        k(f'v_sin_f32 v{dst+1}, v{t0+1}')
        k(f'v_mul_f32 v{dst}, v{dst}, v{t0}')
        k(f'v_mul_f32 v{dst+1}, v{dst+1}, v{t0}')
    if os.environ.get('GENILP', '1') == '1':
        evs = [(18, 1, -1, 96), (20, 256, -1, 98), (22, 8, +1, 100), (26, 64, +1, 102), (28, 128, +1, 104), (30, 192, +1, 106)]
        for d_, p_, sg, t0 in evs: k(f'v_mul_f32 v{t0}, {hexf(p_)}, v7\nv_mul_f32 v{t0+1}, {hexf(sg*p_)}, v8')
        for d_, p_, sg, t0 in evs: k(f'v_exp_f32 v{t0}, v{t0}')
        for d_, p_, sg, t0 in evs: k(f'v_fract_f32 v{t0+1}, v{t0+1}')
        for d_, p_, sg, t0 in evs: k(f'v_cos_f32 v{d_}, v{t0+1}')
        for d_, p_, sg, t0 in evs: k(f'v_sin_f32 v{d_+1}, v{t0+1}')
        for d_, p_, sg, t0 in evs: k(f'v_mul_f32 v{d_}, v{d_}, v{t0}')
        for d_, p_, sg, t0 in evs: k(f'v_mul_f32 v{d_+1}, v{d_+1}, v{t0}')
        k('v_mov_b32 v24, 1.0\nv_mov_b32 v25, 0')
        CB, ZB1, ZB256, W = 16, 18, 20, 22
        L = [24, 26, 28, 30]; HA, Z2, Z4, B8, B12, B14, BC, T, T13, T15 = 32, 34, 36, 38, 40, 42, 44, 46, 48, 50
        rounds = []
        rounds.append(([(Z2, ZB1, ZB1), (B8, CB, ZB256), (HA, CB, ZB1)] + [(L[q], L[q], W) for q in range(4)],
                       [(L[q], 8*q, True) for q in range(4)] + [(CB, 0, False)]))
        rounds.append(([(Z4, Z2, Z2), (B12, B8, ZB256), (T, B8, Z2), (HA, HA, ZB1)] + [(L[q], L[q], W) for q in range(4)],
                       [(L[q], 8*q+1, True) for q in range(4)] + [(HA, 1, False), (B8, 8, False)]))
        rounds.append(([(B14, B12, ZB256), (T13, B12, Z4), (T, T, Z2), (HA, HA, ZB1)] + [(L[q], L[q], W) for q in range(4)],
                       [(L[q], 8*q+2, True) for q in range(4)] + [(HA, 2, False), (B12, 12, False), (T, 9, False)]))
        rounds.append(([(BC, B14, ZB256), (T15, B14, Z4), (T, T, Z2), (HA, HA, ZB1)] + [(L[q], L[q], W) for q in range(4)],
                       [(L[q], 8*q+3, True) for q in range(4)] + [(HA, 3, False), (B14, 14, False), (T, 10, False), (T13, 13, False)]))
        rounds.append(([(BC, BC, ZB256), (HA, HA, ZB1)] + [(L[q], L[q], W) for q in range(4)],
                       [(L[q], 8*q+4, True) for q in range(4)] + [(HA, 4, False), (BC, 16, False), (T, 11, False), (T15, 15, False)]))
        for r_ in (5, 6):
            rounds.append(([(BC, BC, ZB256), (HA, HA, ZB1)] + [(L[q], L[q], W) for q in range(4)],
                           [(L[q], 8*q+r_, True) for q in range(4)] + [(HA, r_, False), (BC, 12 + r_, False)]))
        rounds.append(([(BC, BC, ZB256)], [(L[q], 8*q+7, True) for q in range(4)] + [(HA, 7, False), (BC, 19, False)]))
        rounds.append(([], [(BC, 20, False)]))
        for cm, pu in rounds:
            for n_, (src, row, lo) in enumerate(pu): k(f'v_cvt_pk_bf16_f32 v{52+n_}, v{src}, v{src+1}')
            for n_, (d_, x_, y_) in enumerate(cm):
                t = 80 + 2 * n_
                k(f'v_pk_mul_f32 v[{t}:{t+1}], v[{x_}:{x_+1}], v[{y_}:{y_+1}] op_sel:[0,0] op_sel_hi:[0,1]')
            for n_, (src, row, lo) in enumerate(pu): k(f'ds_write_b32 v{64 + (row & 15)}, v{52+n_} offset:{row*256 + (5376 if lo else 0)}')
            for n_, (d_, x_, y_) in enumerate(cm):
                t = 80 + 2 * n_
                k(f'v_pk_fma_f32 v[{d_}:{d_+1}], v[{x_}:{x_+1}], v[{y_}:{y_+1}], v[{t}:{t+1}] op_sel:[1,1,0] op_sel_hi:[1,0,1] neg_lo:[1,0,0]')
        rows_hi = sorted(r for cm, pu in rounds for s_, r, lo in pu if not lo); rows_lo = sorted(r for cm, pu in rounds for s_, r, lo in pu if lo)
        assert rows_hi == list(range(21)) and rows_lo == list(range(32)), (rows_hi, rows_lo)
    else:
        direct(18, 1, -1, 24)
        direct(20, 256, -1, 26)
        direct(22, 8, +1, 28)
        ZB1, ZB256, W8 = 18, 20, 22
        ZB2, ZB4 = 30, 32
        A, B, T, L = 34, 36, 38, 40
        TA, TL = 42, 44
        C0 = 46
        rot = [0]
        def put(src, row, lo):
            t = C0 + (rot[0] % 8); rot[0] += 1
            k(f'v_cvt_pk_bf16_f32 v{t}, v{src}, v{src+1}')
            k(f'ds_write_b32 v{64 + (row & 15)}, v{t} offset:{row*256 + (5376 if lo else 0)}')
        hi = []
        hi.append(lambda: put(16, 0, False))
        hi.append(lambda: (cmul(k, A, 16, ZB1, TA), put(A, 1, False)))
        for m in range(2, 8):
            hi.append(lambda m=m: (cmul(k, A, A, ZB1, TA), put(A, m, False)))
        hi.append(lambda: cmul(k, ZB2, ZB1, ZB1, TA))
        hi.append(lambda: (cmul(k, B, 16, ZB256, TA), put(B, 8, False)))
        hi.append(lambda: cmul(k, ZB4, ZB2, ZB2, TA))
        hi.append(lambda: (cmul(k, T, B, ZB2, TA), put(T, 9, False)))
        hi.append(lambda: (cmul(k, T, T, ZB2, TA), put(T, 10, False)))
        hi.append(lambda: (cmul(k, T, T, ZB2, TA), put(T, 11, False)))
        hi.append(lambda: (cmul(k, B, B, ZB256, TA), put(B, 12, False)))
        hi.append(lambda: (cmul(k, T, B, ZB4, TA), put(T, 13, False)))
        hi.append(lambda: (cmul(k, B, B, ZB256, TA), put(B, 14, False)))
        hi.append(lambda: (cmul(k, T, B, ZB4, TA), put(T, 15, False)))
        for m in range(16, 21):
            hi.append(lambda m=m: (cmul(k, B, B, ZB256, TA), put(B, m, False)))
        lo = []
        lo.append(lambda: (k(f'v_mov_b32 v{L}, 1.0\nv_mov_b32 v{L+1}, 0'), put(L, 0, True)))
        lo.append(lambda: put(W8, 1, True))
        lo.append(lambda: (cmul(k, L, W8, W8, TL), put(L, 2, True)))
        for u in range(3, 32):
            lo.append(lambda u=u: (cmul(k, L, L, W8, TL), put(L, u, True)))
        i = j = 0
        while i < len(hi) or j < len(lo):
            if j < len(lo): lo[j](); j += 1
            if i < len(hi) and (i * len(lo) <= j * len(hi) or j >= len(lo)): hi[i](); i += 1
    k('s_waitcnt lgkmcnt(0)')
    stamp_mid(k, 1)
    for ks in range(8):
        k(f'v_xor_b32 v15, {32*ks}, v14')
        k(f'ds_read_b128 v[{24+8*(ks%4)}:{27+8*(ks%4)}], v15')
        k(f'ds_read_b128 v[{28+8*(ks%4)}:{31+8*(ks%4)}], v15 offset:5376')
        if ks >= 1:
            p = ks - 1
            k('s_waitcnt lgkmcnt(2)')
            k(f'v_mfma_f32_32x32x16_bf16 v[96:111], v[{24+8*(p%4)}:{27+8*(p%4)}], v[{28+8*(p%4)}:{31+8*(p%4)}], ' + ('0' if p == 0 else 'v[96:111]'))
    k('s_waitcnt lgkmcnt(0)')
    k('v_mfma_f32_32x32x16_bf16 v[96:111], v[48:51], v[52:55], v[96:111]')
    k('v_and_b32 v12, 31, v2\nv_lshrrev_b32 v13, 5, v2')
    k('v_lshlrev_b32 v12, 2, v12')
    k('v_lshl_add_u32 v12, v13, 9, v12')
    k('v_add_u32 v12, s33, v12')
    for j in range(3):
        for i in range(4):
            k(f'ds_write_b32 v12, v{96+4*j+i} offset:{(8*j+i)*128}')
    k.label('L_k1_kg_sync1')
    k('s_waitcnt lgkmcnt(0)\ns_barrier')
    stamp_mid(k, 2)
    k('v_cmp_gt_u32 vcc, 168, v0')
    k('s_and_saveexec_b64 s[34:35], vcc')
    k('s_cbranch_execz L_k1_kg_skip')
    k('ds_read_b128 v[24:27], v3\nds_read_b128 v[28:31], v3 offset:13568\nds_read_b128 v[32:35], v3 offset:27136')
    k('s_waitcnt lgkmcnt(0)')
    k('v_pk_add_f32 v[24:25], v[24:25], v[28:29]\nv_pk_add_f32 v[26:27], v[26:27], v[30:31]')
    k('v_pk_add_f32 v[24:25], v[24:25], v[32:33]\nv_pk_add_f32 v[26:27], v[26:27], v[34:35]')
    k('v_cvt_pk_bf16_f32 v24, v24, v25\nv_cvt_pk_bf16_f32 v25, v26, v27')
    k('v_lshlrev_b32 v12, 3, v0')
    k('ds_write_b64 v12, v[24:25] offset:4096')
    k.label('L_k1_kg_skip')
    k('s_mov_b64 exec, s[34:35]')
    k('s_waitcnt vmcnt(0) lgkmcnt(0)\ns_barrier')
    for q in range(4):
        k(f'v_and_b32 v{24+2*q}, 0xffff, v{60+q}\nv_lshrrev_b32 v{25+2*q}, 16, v{60+q}')
    for q in range(4):
        k(f'ds_read_u16 v{36+q}, v{24+2*q} offset:4096')
        k(f'ds_read_u16 v{40+q}, v{25+2*q} offset:4096')
    k('s_lshl_b32 s33, s3, 12')
    k('s_waitcnt lgkmcnt(0)')
    for q in range(4):
        k(f'v_lshl_or_b32 v{36+q}, v{40+q}, 16, v{36+q}')
    k(f'buffer_store_dwordx4 v[36:39], v3, s[24:27], s33 offen{WT}')
    if STAMPS: k('s_waitcnt vmcnt(0)')
    stamp_end(k, 0)
    k('s_endpgm')

    k.label('L_k1_ln')
    load_ptr(k, 4, 'u'); load_ptr(k, 8, 'ws'); load_ptr(k, 12, 'ws')
    k('v_lshrrev_b32 v1, 4, v0       ; rg')
    k('v_and_b32 v2, 15, v0          ; c')
    k(f's_sub_u32 s3, s2, {B_LN}\ns_lshl_b32 s3, s3, 5          ; l0')
    k('v_add_u32 v3, s3, v1')
    k('v_mul_u32_u24 v4, 1280, v3')
    k('v_lshl_add_u32 v4, v2, 4, v4')
    k('s_mov_b32 s16, 20480')
    k('s_mov_b32 s17, 0x3f803f80')
    k('s_waitcnt lgkmcnt(0)')
    srd_fin(k, 4, SZ['u']); srd_fin(k, 8, 8192, WS_STATS); srd_fin(k, 12, 2621440, WS_XT)
    for p in range(2):
        for q in range(5):
            r = 16 + 4 * (5 * p + q)
            k(f'buffer_load_dwordx4 v[{r}:{r+3}], v4, s[4:7], {"s16" if p else "0"} offen offset:{256*q}{NT}')
    k('v_and_b32 v5, 3, v1\nv_lshrrev_b32 v6, 3, v1\nv_lshl_or_b32 v5, v6, 2, v5     ; f0')
    k('v_xor_b32 v5, v5, v2          ; c ^ f0')
    k('v_mul_u32_u24 v6, 1280, v1')
    k('v_xor_b32 v7, 8, v5')
    k('v_lshl_add_u32 v5, v5, 4, v6          ; p=0 addr')
    k('v_lshl_add_u32 v6, v7, 4, v6          ; p=1 addr - 20480')
    for p in range(2):
        k(f's_waitcnt vmcnt({5 if p == 0 else 0})')
        for q in range(5):
            r = 16 + 4 * (5 * p + q)
            k(f'ds_write_b128 v{5+p}, v[{r}:{r+3}] offset:{256*q + 20480*p}')
        for q in range(5):
            r = 16 + 4 * (5 * p + q)
            for i in range(4):
                first = (q == 0 and i == 0)
                k(f'v_dot2_f32_bf16 v{8+2*p}, v{r+i}, s17, ' + ('0' if first else f'v{8+2*p}'))
                k(f'v_dot2_f32_bf16 v{9+2*p}, v{r+i}, v{r+i}, ' + ('0' if first else f'v{9+2*p}'))
    for sh in (8, 4, 2, 1):
        for v in (8, 9, 10, 11):
            k(f'v_add_f32_dpp v{v}, v{v}, v{v} row_ror:{sh} row_mask:0xf bank_mask:0xf')
    for p in range(2):
        a, b = 8 + 2 * p, 9 + 2 * p
        k(f'v_mul_f32 v{a}, 0x3acccccd, v{a}          ; mean')
        k(f'v_mul_f32 v{b}, 0x3acccccd, v{b}')
        k(f'v_fma_f32 v{b}, -v{a}, v{a}, v{b}         ; var')
        k(f'v_max_f32 v{b}, 0, v{b}')
        k(f'v_cvt_pk_bf16_f32 v{b}, v{b}, v{b}\nv_lshlrev_b32 v{b}, 16, v{b}')
        k(f'v_add_f32 v{b}, 0x3727c5ac, v{b}')
        k(f'v_cvt_pk_bf16_f32 v{b}, v{b}, v{b}\nv_lshlrev_b32 v{b}, 16, v{b}')
        k(f'v_sqrt_f32 v{b}, v{b}')
        k(f'v_cvt_pk_bf16_f32 v{a}, v{a}, v{b}')
    k('v_lshlrev_b32 v7, 2, v3')
    k('v_cmp_eq_u32 vcc, 0, v2')
    k('s_and_saveexec_b64 s[18:19], vcc')
    k('s_cbranch_execz L_k1_ln_nost')
    k(f'buffer_store_dword v8, v7, s[8:11], 0 offen{WT}')
    k(f'buffer_store_dword v10, v7, s[8:11], 0 offen offset:64{WT}')
    k.label('L_k1_ln_nost')
    k('s_mov_b64 exec, s[18:19]')
    k('v_and_b32 v1, 63, v0          ; lane')
    k('v_lshrrev_b32 v2, 6, v0       ; w')
    k('v_lshrrev_b32 v3, 4, v1       ; grp')
    k('v_and_b32 v4, 15, v1          ; idx')
    k('v_lshrrev_b32 v5, 2, v4')
    k('v_and_b32 v6, 3, v4')
    k('v_lshl_add_u32 v7, v6, 3, v5  ; row = 8c + r')
    k('v_lshl_or_b32 v8, v6, 2, v5   ; f = r | c<<2')
    k('v_mul_u32_u24 v7, 1280, v7')
    k('v_and_b32 v9, 1, v3')
    k('v_lshl_add_u32 v7, v9, 3, v7')
    k('v_lshrrev_b32 v9, 1, v3')
    k('v_mul_u32_u24 v10, 20, v2')
    k('v_add_u32 v9, v9, v10         ; ch0')
    k('v_mul_u32_u24 v10, 40, v2\nv_add_u32 v10, v10, v3\nv_lshlrev_b32 v10, 14, v10')
    k('v_lshl_add_u32 v10, v5, 6, v10\nv_lshl_add_u32 v10, v6, 4, v10')
    k('s_lshl_b32 s16, s3, 3\nv_add_u32 v10, s16, v10')
    k('s_waitcnt lgkmcnt(0)\ns_barrier')
    for it in range(10):
        k(f'v_add_u32 v11, {2*it}, v9\nv_xor_b32 v11, v11, v8\nv_lshl_add_u32 v11, v11, 4, v7')
        r = 16 + 4 * it
        k(f'ds_read_b64_tr_b16 v[{r}:{r+1}], v11\nds_read_b64_tr_b16 v[{r+2}:{r+3}], v11 offset:5120')
    for it in range(10):
        r = 16 + 4 * it
        k(f's_mov_b32 s16, {it*65536}')
        k(f's_waitcnt lgkmcnt({min(15, 2*(9-it))})')
        k(f'buffer_store_dwordx4 v[{r}:{r+3}], v10, s[12:15], s16 offen{WT}')
    if STAMPS: k('s_waitcnt vmcnt(0)')
    stamp_end(k, 0)
    k('s_endpgm')

    k.label('L_k1_mod')
    load_ptr(k, 4, 'wmod'); load_ptr(k, 8, 'c'); load_ptr(k, 12, 'ws')
    k(f's_sub_u32 s3, s2, {B_MOD}')
    k('s_lshr_b32 s16, s3, 2          ; cb\ns_and_b32 s17, s3, 3     ; kq')
    k('v_lshrrev_b32 v1, 4, v0       ; rg\nv_and_b32 v2, 15, v0    ; c')
    k('v_mul_u32_u24 v4, 7680, v1\nv_lshl_add_u32 v4, v2, 4, v4')
    k(f's_mul_i32 s18, s17, {160*7680}\ns_lshl_b32 s19, s16, 8\ns_add_u32 s18, s18, s19')
    k('s_mul_i32 s19, s17, 320\nv_lshlrev_b32 v5, 1, v1\nv_add_u32 v5, s19, v5')
    k('s_waitcnt lgkmcnt(0)')
    srd_fin(k, 4, SZ['wmod']); srd_fin(k, 8, SZ['c']); srd_fin(k, 12, 4 * 3840 * 4, WS_MODP)
    for p in range(10):
        k(f'buffer_load_ushort v{56+p}, v5, s[8:11], 0 offen offset:{32*p}')
    for p in range(10):
        k(f'buffer_load_dwordx4 v[{16+4*p}:{19+4*p}], v4, s[4:7], s18 offen{NT}')
        if p < 9: k('s_add_u32 s18, s18, 122880')
    k('s_waitcnt vmcnt(10)')
    for p in range(10):
        k(f'v_lshlrev_b32 v{56+p}, 16, v{56+p}')
    for p in range(10):
        k(f'v_mul_f32 v{66+p}, {NLOG2E:#x}, v{56+p}')
    for p in range(10):
        k(f'v_exp_f32 v{66+p}, v{66+p}')
    for p in range(10):
        k(f'v_add_f32 v{66+p}, 1.0, v{66+p}')
    for p in range(10):
        k(f'v_rcp_f32 v{66+p}, v{66+p}')
    for p in range(10):
        k(f'v_mul_f32 v{56+p}, v{56+p}, v{66+p}')
    for p in range(10):
        k(f'v_cvt_pk_bf16_f32 v{56+p}, v{56+p}, 0        ; (s,0)')
    for p in range(10):
        k(f'v_lshlrev_b32 v{66+p}, 16, v{56+p}           ; (0,s)')
    for p in range(10):
        k(f's_waitcnt vmcnt({9-p})')
        for i in range(4):
            k(f'v_dot2_f32_bf16 v{76+2*i}, v{16+4*p+i}, v{56+p}, ' + ('0' if p == 0 else f'v{76+2*i}'))
            k(f'v_dot2_f32_bf16 v{77+2*i}, v{16+4*p+i}, v{66+p}, ' + ('0' if p == 0 else f'v{77+2*i}'))
    k('v_lshlrev_b32 v6, 5, v0')
    k('ds_write_b128 v6, v[76:79]\nds_write_b128 v6, v[80:83] offset:16')
    k('s_waitcnt lgkmcnt(0)\ns_barrier')
    k('v_cmp_gt_u32 vcc, 128, v0')
    k('s_and_saveexec_b64 s[20:21], vcc')
    k('s_cbranch_execz L_k1_mod_end')
    k('v_lshlrev_b32 v6, 2, v0')
    for rg in range(16):
        k(f'ds_read_b32 v{16+rg}, v6 offset:{rg*512}')
    k('s_waitcnt lgkmcnt(0)')
    for st in (8, 4, 2, 1):
        for i in range(st):
            k(f'v_add_f32 v{16+i}, v{16+i}, v{16+i+st}')
    k('s_mul_i32 s19, s17, 15360\ns_lshl_b32 s22, s16, 9\ns_add_u32 s19, s19, s22')
    k(f'buffer_store_dword v16, v6, s[12:15], s19 offen{WT}')
    k.label('L_k1_mod_end')
    k('s_mov_b64 exec, s[20:21]')
    if STAMPS: k('s_waitcnt vmcnt(0)')
    stamp_end(k, 0)
    k('s_endpgm')
    if not WDK2: emit_wd(k, N_LN+N_MOD+N_KG, 0, 'L_k1_wd')
    k.label('L_k1_pf')
    load_ptr(k, 8, 'ws')
    k(f's_sub_u32 s3, s2, {N_LN+N_MOD+N_KG+N_WD}')
    k('s_getpc_b64 s[28:29]')
    k.label('L_k1_pc2')
    k('s_add_u32 s28, s28, conv_kernel-L_k1_pc2\ns_addc_u32 s29, s29, 0')
    k('s_mov_b32 s30, code_end-conv_kernel\ns_mov_b32 s31, 0x20000')
    k('v_lshlrev_b32 v4, 4, v0')
    if CODEPF:
        for q in range(11):
            k(f's_mov_b32 s27, {q*4096}')
            k(f'buffer_load_dwordx4 v[{64+4*q}:{67+4*q}], v4, s[28:31], s27 offen')
    k('v_mov_b32 v8, 0\nv_mov_b32 v9, 0\nv_mov_b32 v10, 0\nv_mov_b32 v11, 0')
    if os.environ.get('WPF', '0') == '1':
        load_ptr(k, 12, 'wg'); load_ptr(k, 16, 'wu')
        k('s_lshl_b32 s26, s3, 8\nv_add_u32 v5, s26, v0\nv_lshlrev_b32 v5, 7, v5')
        k('s_waitcnt lgkmcnt(0)')
        srd_fin(k, 12, SZ['wg']); srd_fin(k, 16, SZ['wu'])
        for q in range(4):
            k(f'v_add_u32 v{30+q}, {q*16*256*128}, v5')
            k(f'buffer_load_dword v{20+2*q}, v{30+q}, s[12:15], 0 offen\nbuffer_load_dword v{21+2*q}, v{30+q}, s[16:19], 0 offen')
    k('s_waitcnt lgkmcnt(0)')
    k(f's_add_u32 s20, s8, {WS_FLAGS}\ns_addc_u32 s21, s9, 0\ns_mov_b32 s22, {WS_SP - WS_FLAGS + 327680}\ns_mov_b32 s23, {SRD3:#x}')
    k('s_cmp_lg_u32 s3, 0\ns_cbranch_scc1 L_k1_pf_nz')
    k(f'buffer_store_dwordx4 v[8:11], v4, s[20:23], 0 offen{WT}')
    k.label('L_k1_pf_nz')
    k(f's_mul_i32 s26, s3, 20480\ns_add_u32 s26, s26, {WS_SP - WS_FLAGS}')
    for q in range(5):
        k(f'buffer_store_dwordx4 v[8:11], v4, s[20:23], s26 offen{WT}')
        if q < 4: k('s_add_u32 s26, s26, 4096')
    if STAMPS: k('s_waitcnt vmcnt(0)')
    stamp_end(k, 0)
    k('s_endpgm')
    return k

def hexf(x):
    import struct
    return hex(struct.unpack('<I', struct.pack('<f', float(x)))[0])

def ktable_data():
    t = ktable() + [1344] * 16
    s = 'code_end:\n.p2align 8\n.type ktable,@object\nktable:\n'
    for i in range(0, 2064, 16):
        s += '.short ' + ', '.join(str(x) for x in t[i:i + 16]) + '\n'
    s += '.size ktable, 4128\n'
    return s
```

```python
from asmlib import K, Q
from common import *
import os

import os
N_WP, N_CV = 120, int(os.environ.get('EXP_NCV', 640))
import k1 as _k1
N_WD2 = 48 if _k1.WDK2 else 0
K2_GRID = N_WP + N_CV + N_WD2
K2_LDS = 40960
CVFIRST = os.environ.get('CVFIRST', '1') == '1'
CV16 = os.environ.get('CV16', '1') == '1'
HP = 96 if CV16 else 80

def build_k2():
    k = K('conv_kernel')
    stamp_begin(k)
    if CVFIRST:
        k(f's_cmp_lt_u32 s2, {N_CV}\ns_cbranch_scc1 L_k2_cv')
        k(f's_cmp_lt_u32 s2, {N_CV + N_WP}\ns_cbranch_scc1 L_k2_wp')
        if N_WD2: k(f's_cmp_lt_u32 s2, {K2_GRID}\ns_cbranch_scc1 L_k2_wd')
    else:
        k(f's_cmp_lt_u32 s2, {N_WP}\ns_cbranch_scc1 L_k2_wp')
        k(f's_cmp_lt_u32 s2, {K2_GRID}\ns_cbranch_scc1 L_k2_cv')
    k('s_endpgm')

    k.label('L_k2_cv')
    load_ptr(k, 4, 'ws'); load_ptr(k, 20, 'dsk')
    k(f's_sub_u32 s3, s2, {0 if CVFIRST else N_WP}')
    k('s_and_b32 s24, s3, 0xffffffe0\ns_and_b32 s25, s3, 7\ns_lshl_b32 s25, s25, 2\ns_or_b32 s24, s24, s25')
    k('s_lshr_b32 s25, s3, 3\ns_and_b32 s25, s25, 3\ns_or_b32 s3, s24, s25          ; d')
    k('v_lshlrev_b32 v1, 6, v0            ; t*64')
    k('s_and_b32 s24, s3, 3\ns_lshl_b32 s24, s24, 4')
    k('v_add_u32 v1, s24, v1')
    if os.environ.get('EXP_XT'): k('v_lshlrev_b32 v1, 4, v0')
    k('v_lshlrev_b32 v2, 5, v0')
    k('v_lshlrev_b32 v3, 4, v0            ; t*16')
    k('s_lshr_b32 s25, s3, 2\ns_lshl_b32 s25, s25, 14')
    if os.environ.get('EXP_XT'): k('s_lshl_b32 s25, s3, 12')
    k('s_lshl_b32 s26, s3, 12             ; d*4096')
    k('s_lshl_b32 s27, s3, 2              ; d*4')
    k('s_lshr_b32 s28, s3, 1\ns_lshl_b32 s28, s28, 2')
    k('s_waitcnt lgkmcnt(0)')
    stamp_mid(k, 3)
    k('s_add_u32 s30, s4, s27\ns_addc_u32 s31, s5, 0')
    for kq in range(4):
        for i in range(3):
            k(f's_load_dword s{40+4*i+kq}, s[30:31], {WS_MODP + kq*15360 + i*2560}')
    k('s_add_u32 s20, s20, s28\ns_addc_u32 s21, s21, 0')
    k('s_load_dword s52, s[20:21], 0')
    k(f's_add_u32 s8, s4, {WS_XT}\ns_addc_u32 s9, s5, 0\ns_mov_b32 s10, 2621440\ns_mov_b32 s11, {SRD3:#x}')
    k(f's_add_u32 s12, s4, {WS_STATS}\ns_addc_u32 s13, s5, 0\ns_mov_b32 s14, 8192\ns_mov_b32 s15, {SRD3:#x}')
    k(f's_add_u32 s16, s4, {WS_R}\ns_addc_u32 s17, s5, 0\ns_add_u32 s16, s16, s26\ns_addc_u32 s17, s17, 0\ns_mov_b32 s18, 4096\ns_mov_b32 s19, {SRD3:#x}')
    k('buffer_load_dwordx4 v[8:11], v3, s[16:19], 0 offen')
    k('buffer_load_dwordx4 v[12:15], v3, s[16:19], 0 offen offset:4')
    k('buffer_load_dwordx4 v[16:19], v3, s[16:19], 0 offen offset:8')
    k('buffer_load_dwordx4 v[20:23], v1, s[8:11], s25 offen        ; x')
    k('buffer_load_dwordx4 v[24:27], v2, s[12:15], 0 offen')
    k('buffer_load_dwordx4 v[28:31], v2, s[12:15], 0 offen offset:16')
    k(f's_add_u32 s32, s4, {WS_X2T}\ns_addc_u32 s33, s5, 0\ns_mov_b32 s34, 2621440\ns_mov_b32 s35, {SRD3:#x}')
    HB = 16640
    k('v_mov_b32 v32, 0\nv_mov_b32 v33, 0\nv_mov_b32 v34, 0\nv_mov_b32 v35, 0')
    k('v_lshrrev_b32 v4, 2, v0\nv_and_b32 v5, 3, v0')
    k(f'v_mul_u32_u24 v6, {HP}, v4\nv_lshl_add_u32 v6, v5, 4, v6        ; (t>>2)*pitch + (t&3)*16')
    k('v_mul_u32_u24 v7, 4160, v4\nv_lshl_add_u32 v7, v5, 4, v7')
    k('v_cmp_gt_u32 vcc, 128, v0')
    k('s_and_saveexec_b64 s[36:37], vcc')
    k(f'ds_write_b128 v6, v[32:35] offset:{HB}')
    k('v_cmp_gt_u32 vcc, 16, v0')
    k('s_and_b64 exec, exec, vcc')
    k('ds_write_b128 v7, v[32:35] offset:4096')
    k('s_mov_b64 exec, s[36:37]')
    k('v_and_b32 v36, 63, v0            ; lane')
    k('v_lshrrev_b32 v37, 6, v0         ; w')
    k('v_and_b32 v38, 31, v36           ; b / n')
    k('v_lshrrev_b32 v39, 5, v36        ; g')
    k('v_sub_u32 v40, 3, v38\nv_and_b32 v40, 3, v40       ; s_b')
    k('v_mul_u32_u24 v41, 4160, v40')
    k('v_sub_u32 v42, 2047, v38\nv_lshl_add_u32 v42, v39, 3, v42\nv_sub_u32 v42, v42, v40')
    k('v_lshl_add_u32 v41, v42, 1, v41')
    k('v_lshlrev_b32 v42, 9, v37        ; w*512 = 64*8w')
    k(f'v_sub_u32 v41, v41, v42\nv_subrev_u32 v41, {64*39}, v41      ; baseA')
    k('v_lshlrev_b32 v42, 3, v37\nv_sub_u32 v42, v38, v42\nv_add_u32 v42, 25, v42      ; 32 + n - 8w - 7')
    k('v_mul_u32_u24 v42, 80, v42\nv_lshl_add_u32 v42, v39, 4, v42')
    k(f'v_add_u32 v42, {HB}, v42           ; baseB')
    k('v_mul_u32_u24 v43, 9216, v37\nv_mul_u32_u24 v44, 144, v38\nv_add_u32 v43, v43, v44\nv_lshl_add_u32 v43, v39, 4, v43')
    k('v_mul_u32_u24 v44, 144, v4\nv_lshl_add_u32 v44, v5, 5, v44')
    k('s_waitcnt lgkmcnt(0)')
    for i, dst in enumerate((45, 46, 47)):
        k(f'v_mov_b32 v{dst}, s{40+4*i}')
        for kq in range(1, 4):
            k(f'v_add_f32 v{dst}, s{40+4*i+kq}, v{dst}')
    k('v_cvt_pk_bf16_f32 v45, v45, v46')
    k('v_cvt_pk_bf16_f32 v47, v47, v47')
    k('v_and_b32 v46, 0xffff0000, v45\nv_lshlrev_b32 v45, 16, v45\nv_lshlrev_b32 v47, 16, v47')
    k('v_add_f32 v46, 1.0, v46\nv_cvt_pk_bf16_f32 v46, v46, v46\nv_lshlrev_b32 v46, 16, v46')
    k('s_and_b32 s53, s3, 1\ns_lshl_b32 s53, s53, 4\ns_lshr_b32 s52, s52, s53\ns_lshl_b32 s52, s52, 16')
    k('s_waitcnt vmcnt(3)')
    k('ds_write_b128 v3, v[8:11]')
    k('ds_write_b128 v3, v[12:15] offset:8320')
    for i in range(4):
        k(f'v_alignbit_b32 v{48+i}, v{12+i}, v{8+i}, 16')
    for i in range(4):
        k(f'v_alignbit_b32 v{52+i}, v{16+i}, v{12+i}, 16')
    k('ds_write_b128 v3, v[48:51] offset:4160')
    k('ds_write_b128 v3, v[52:55] offset:12480')
    stamp_mid(k, 0)
    k('s_waitcnt vmcnt(0)')
    for i in range(8):
        st = 24 + i
        k(f'v_and_b32 v{56+i}, 0xffff0000, v{st}      ; sd')
    for i in range(8):
        k(f'v_rcp_f32 v{56+i}, v{56+i}')
    for i in range(8):
        k(f'v_lshlrev_b32 v{24+i}, 16, v{24+i}        ; mean')
    for i in range(4):
        k(f'v_lshlrev_b32 v{64+2*i}, 16, v{20+i}\nv_and_b32 v{65+2*i}, 0xffff0000, v{20+i}')
    for i in range(8): k(f'v_sub_f32 v{64+i}, v{64+i}, v{24+i}')
    for i in range(8): k(f'v_mul_f32 v{64+i}, v{64+i}, v{56+i}')
    for i in range(8):
        k(f'v_fma_f32 v{64+i}, v{64+i}, v46, v45')
    for i in range(4):
        k(f'v_cvt_pk_bf16_f32 v{8+i}, v{64+2*i}, v{65+2*i}       ; h packed v8..11')
    k(f'ds_write_b128 v6, v[8:11] offset:{HB + 32*HP}')
    k('s_waitcnt lgkmcnt(0)\ns_barrier')
    stamp_mid(k, 1)
    if CV16:
        RANGES = [(0, 7), (7, 14), (14, 22), (22, 32)]
        lg = Q(k, 'lgkmcnt', 15)
        k('v_and_b32 v38, 15, v36\nv_lshrrev_b32 v39, 4, v36')
        k('v_sub_u32 v40, 3, v38\nv_and_b32 v40, 3, v40\nv_mul_u32_u24 v41, 4160, v40')
        k('v_sub_u32 v42, 2047, v38\nv_lshl_add_u32 v42, v39, 3, v42\nv_sub_u32 v42, v42, v40\nv_lshl_add_u32 v41, v42, 1, v41        ; A0')
        k('v_readfirstlane_b32 s54, v37')
        k('s_mov_b32 s55, 6\ns_cmp_eq_u32 s54, 1\ns_cselect_b32 s55, 13, s55\ns_cmp_eq_u32 s54, 2\ns_cselect_b32 s55, 21, s55\ns_cmp_eq_u32 s54, 3\ns_cselect_b32 s55, 31, s55      ; hi-1')
        k('s_add_u32 s56, s55, 32\ns_lshl_b32 s56, s56, 6\ns_add_u32 s56, s56, 32\nv_subrev_u32 v12, s56, v41       ; baseA')
        k(f'v_add_u32 v42, 32, v38\nv_subrev_u32 v42, s55, v42\nv_mul_u32_u24 v42, {HP}, v42\nv_lshl_add_u32 v42, v39, 4, v42\nv_add_u32 v13, {HB}, v42       ; baseB')
        k('v_mul_u32_u24 v14, 9216, v37\nv_mul_u32_u24 v42, 144, v38\nv_add_u32 v14, v14, v42\nv_lshl_add_u32 v14, v39, 4, v14')
        k('v_mov_b32 v15, v44\nv_mov_b32 v16, v47')
        ACC = 96
        def acc(rt, ct): return ACC + 4 * (4 * rt + ct)
        def step_reads(S, dp, hi):
            oa = lambda dl, rt: 64 * (hi - 1 + 32 - dl) + 32 * (1 - rt)
            ob = lambda ct: HP * (hi - 1 - dp + 16 * ct)
            out = []
            def A(slot, dl, rt):
                out.append((f'ds_read_b64 v[{S+4*slot}:{S+4*slot+1}], v12 offset:{oa(dl, rt)}', ('A', slot, dp)))
                out.append((f'ds_read_b64 v[{S+4*slot+2}:{S+4*slot+3}], v12 offset:{oa(dl, rt)+8}', ('A', slot, dp)))
            def B(ct): out.append((f'ds_read_b128 v[{S+16+4*ct}:{S+19+4*ct}], v13 offset:{ob(ct)}', ('B', ct, dp)))
            A(0, dp, 0); B(2); B(3); A(1, dp, 1); B(1)
            if dp < 16: B(0)
            A(2, dp + 32, 0); A(3, dp + 32, 1)
            return out
        def step_mfmas(dp):
            m = [(0, 2, 0, 2), (0, 3, 0, 3), (1, 2, 1, 2), (1, 3, 1, 3), (0, 1, 0, 1), (1, 1, 1, 1)]
            if dp < 16: m += [(0, 0, 0, 0), (1, 0, 1, 0)]
            m += [(2, 1, 0, 3), (3, 1, 1, 3)]
            if dp < 16: m += [(2, 0, 0, 2), (3, 0, 1, 2)]
            return m
        def lgw(tag):
            idx = max(i for i, t in enumerate(lg.ops) if t == tag)
            if idx < lg.done: return
            n = min(15, len(lg.ops) - 1 - idx)
            k(f's_waitcnt lgkmcnt({n})'); lg.done = max(lg.done, len(lg.ops) - n)
        for wv, (lo_, hi_) in enumerate(RANGES):
            if wv: k.label(f'L_cv16_w{wv}')
            if wv < 3: k(f's_cmp_lg_u32 s54, {wv}\ns_cbranch_scc1 L_cv16_w{wv+1}')
            lg.ops = []; lg.done = 0
            touched = set()
            dps = list(range(lo_, hi_))
            for r_ in step_reads(32, dps[0], hi_): lg.issue(*r_)
            for si, dp in enumerate(dps):
                S = 32 + 32 * (si & 1)
                nx = step_reads(32 + 32 * ((si + 1) & 1), dps[si + 1], hi_) if si + 1 < len(dps) else []
                ms = step_mfmas(dp)
                for mi, (sl, ct, rt, ac) in enumerate(ms):
                    lgw(('A', sl, dp)); lgw(('B', ct, dp))
                    a = acc(rt, ac)
                    c = f'v[{a}:{a+3}]' if (rt, ac) in touched else '0'
                    touched.add((rt, ac))
                    k(f'v_mfma_f32_16x16x32_bf16 v[{a}:{a+3}], v[{S+4*sl}:{S+4*sl+3}], v[{S+16+4*ct}:{S+19+4*ct}], {c}')
                    lo_i = mi * len(nx) // len(ms); hi_i = (mi + 1) * len(nx) // len(ms)
                    for r_ in nx[lo_i:hi_i]: lg.issue(*r_)
            for rt in range(2):
                for ct in range(4):
                    if (rt, ct) not in touched:
                        a = acc(rt, ct)
                        k(f'v_mov_b32 v{a}, 0\nv_mov_b32 v{a+1}, 0\nv_mov_b32 v{a+2}, 0\nv_mov_b32 v{a+3}, 0')
            if wv < 3: k('s_branch L_cv16_done')
        k.label('L_cv16_done')
        k('s_nop 7')
        stamp_mid(k, 2)
        k('s_barrier')
        for rt in range(2):
            for ct in range(4):
                a = acc(rt, ct)
                k(f'ds_write_b128 v14, v[{a}:{a+3}] offset:{ct*2304 + rt*64}')
        k('v_mov_b32 v44, v15\nv_mov_b32 v47, v16')
    else:
        steps = [(e, ks) for e in range(8) for ks in range(2)]
        def loads(si):
            e, ks = steps[si]
            r = 64 + 16 * (si & 1)
            oa = 64 * e + 32 * ks
            ob = 80 * e + 32 * ks
            k(f'ds_read_b64 v[{r}:{r+1}], v41 offset:{oa+2048}')
            k(f'ds_read_b64 v[{r+2}:{r+3}], v41 offset:{oa+2048+8}')
            k(f'ds_read_b128 v[{r+12}:{r+15}], v42 offset:{ob+2560}')
            k(f'ds_read_b128 v[{r+8}:{r+11}], v42 offset:{ob}')
            k(f'ds_read_b64 v[{r+4}:{r+5}], v41 offset:{oa}')
            k(f'ds_read_b64 v[{r+6}:{r+7}], v41 offset:{oa+8}')
        def rd_list(si):
            e, ks = steps[si]
            r = 64 + 16 * (si & 1)
            oa = 64 * e + 32 * ks
            ob = 80 * e + 32 * ks
            return [f'ds_read_b64 v[{r}:{r+1}], v41 offset:{oa+2048}', f'ds_read_b64 v[{r+2}:{r+3}], v41 offset:{oa+2048+8}',
                    f'ds_read_b128 v[{r+12}:{r+15}], v42 offset:{ob+2560}', f'ds_read_b128 v[{r+8}:{r+11}], v42 offset:{ob}',
                    f'ds_read_b64 v[{r+4}:{r+5}], v41 offset:{oa}', f'ds_read_b64 v[{r+6}:{r+7}], v41 offset:{oa+8}']
        if os.environ.get('CVSCHED', '1') == '1':
            for x in rd_list(0): k(x)
            for si in range(16):
                r = 64 + 16 * (si & 1)
                nx = rd_list(si + 1) if si + 1 < 16 else []
                c1 = '0' if si == 0 else 'v[112:127]'
                c0 = '0' if si == 0 else 'v[96:111]'
                k('s_waitcnt lgkmcnt(3)')
                k(f'v_mfma_f32_32x32x16_bf16 v[112:127], v[{r}:{r+3}], v[{r+12}:{r+15}], {c1}')
                for x in nx[0:2]: k(x)
                k(f's_waitcnt lgkmcnt({2 + len(nx[0:2])})')
                k(f'v_mfma_f32_32x32x16_bf16 v[96:111], v[{r}:{r+3}], v[{r+8}:{r+11}], {c0}')
                for x in nx[2:4]: k(x)
                k(f's_waitcnt lgkmcnt({len(nx[0:4])})')
                k(f'v_mfma_f32_32x32x16_bf16 v[112:127], v[{r+4}:{r+7}], v[{r+8}:{r+11}], v[112:127]')
                for x in nx[4:6]: k(x)
        else:
            loads(0)
            for si in range(16):
                r = 64 + 16 * (si & 1)
                if si + 1 < 16:
                    loads(si + 1)
                    k('s_waitcnt lgkmcnt(6)')
                else:
                    k('s_waitcnt lgkmcnt(0)')
                c1 = '0' if si == 0 else 'v[112:127]'
                c0 = '0' if si == 0 else 'v[96:111]'
                k(f'v_mfma_f32_32x32x16_bf16 v[112:127], v[{r}:{r+3}], v[{r+12}:{r+15}], {c1}')
                k(f'v_mfma_f32_32x32x16_bf16 v[96:111], v[{r}:{r+3}], v[{r+8}:{r+11}], {c0}')
                k(f'v_mfma_f32_32x32x16_bf16 v[112:127], v[{r+4}:{r+7}], v[{r+8}:{r+11}], v[112:127]')
        stamp_mid(k, 2)
        k('s_barrier')
        for j in range(4):
            k(f'ds_write_b128 v43, v[{96+4*j}:{99+4*j}] offset:{32*j}')
        for j in range(4):
            k(f'ds_write_b128 v43, v[{112+4*j}:{115+4*j}] offset:{32*j+4608}')
    k('s_waitcnt lgkmcnt(0)\ns_barrier')
    for w in range(4):
        k(f'ds_read_b128 v[{64+8*w}:{67+8*w}], v44 offset:{9216*w}')
        k(f'ds_read_b128 v[{68+8*w}:{71+8*w}], v44 offset:{9216*w+16}')
    for i in range(4):
        k(f'v_lshlrev_b32 v{24+2*i}, 16, v{8+i}\nv_and_b32 v{25+2*i}, 0xffff0000, v{8+i}')
    for i in range(4):
        k(f'v_lshlrev_b32 v{48+2*i}, 16, v{20+i}\nv_and_b32 v{49+2*i}, 0xffff0000, v{20+i}')
    k('s_waitcnt lgkmcnt(0)')
    for i in range(8): k(f'v_add_f32 v{64+i}, v{64+i}, v{72+i}')
    for i in range(8): k(f'v_add_f32 v{80+i}, v{80+i}, v{88+i}')
    for i in range(8): k(f'v_add_f32 v{64+i}, v{64+i}, v{80+i}')
    for i in range(8):
        k(f'v_fma_f32 v{64+i}, v{24+i}, s52, v{64+i}        ; y + h*D')
    for i in range(8):
        k(f'v_fma_f32 v{64+i}, v{64+i}, v47, v{48+i}        ; x + ga*(.)')
    for i in range(4):
        k(f'v_cvt_pk_bf16_f32 v{64+i}, v{64+2*i}, v{65+2*i}')
    k(f'buffer_store_dwordx4 v[64:67], v3, s[32:35], s26 offen{WT}')
    if STAMPS: k('s_waitcnt vmcnt(0)')
    stamp_end(k, 1)
    k('s_endpgm')

    emit_wprep(k, N_CV if CVFIRST else 0)
    if N_WD2: _k1.emit_wd(k, N_CV + N_WP, 1, 'L_k2_wd')
    return k

def emit_wprep(k, base_id):
    k.label('L_k2_wp')
    if os.environ.get('WPPRIO', '0') != '0': k(f"s_setprio {os.environ.get('WPPRIO')}")
    if os.environ.get('EXP_NOWP'): k('s_endpgm')
    load_ptr(k, 4, 'wg'); load_ptr(k, 8, 'wu'); load_ptr(k, 12, 'ws')
    k(f's_sub_u32 s3, s2, {base_id}')
    k('s_mul_hi_u32 s16, s3, 0x33333334')
    k('s_mul_i32 s17, s16, 5\ns_sub_u32 s17, s3, s17       ; dq')
    k('v_and_b32 v1, 63, v0            ; lane')
    k('v_lshrrev_b32 v2, 6, v0\nv_readfirstlane_b32 s18, v2     ; w')
    k('v_lshrrev_b32 v3, 3, v1\nv_and_b32 v4, 7, v1')
    k('v_lshrrev_b32 v5, 4, v1\nv_and_b32 v5, 1, v5\nv_lshlrev_b32 v5, 1, v5\nv_xor_b32 v4, v4, v5')
    k('v_xor_b32 v5, 4, v4')
    k('v_mul_u32_u24 v3, 3072, v3')
    k('v_lshl_add_u32 v4, v4, 4, v3')
    k('v_lshl_add_u32 v5, v5, 4, v3')
    k('s_mul_i32 s19, s17, 128*3072\ns_lshl_b32 s20, s16, 7\ns_add_u32 s19, s19, s20')
    k('s_mul_i32 s20, s18, 4*24576\ns_add_u32 s19, s19, s20')
    k('s_lshl_b32 s21, s18, 12')
    k('s_lshl_b32 s22, s17, 9\nv_lshlrev_b32 v6, 2, v0\nv_add_u32 v6, s22, v6     ; d*4')
    k('s_waitcnt lgkmcnt(0)')
    srd_fin(k, 4, SZ['wg']); srd_fin(k, 8, SZ['wu'])
    k(f's_add_u32 s24, s12, {WS_MODP}\ns_addc_u32 s25, s13, 0\ns_mov_b32 s26, 61440\ns_mov_b32 s27, {SRD3:#x}')
    for kq in range(4):
        k(f's_mov_b32 s23, {kq*15360 + 3*2560}')
        k(f'buffer_load_dword v{8+kq}, v6, s[24:27], s23 offen')
        k(f'buffer_load_dword v{12+kq}, v6, s[24:27], s23 offen offset:2560')
    for q in range(4):
        k(f's_add_u32 m0, s21, {q*1024}')
        k(f's_add_u32 s23, s19, {q*24576}')
        k(f'buffer_load_dwordx4 v4, s[4:7], s23 offen{NT} lds')
        k(f's_add_u32 m0, s21, {q*1024 + 16384}')
        k('s_nop 0')
        k(f'buffer_load_dwordx4 v5, s[8:11], s23 offen{NT} lds')
    k(f's_add_u32 s28, s12, {WS_WP}\ns_addc_u32 s29, s13, 0\ns_mov_b32 s30, 3932160\ns_mov_b32 s31, {SRD3:#x}')
    k(f's_add_u32 s32, s12, {WS_PQ}\ns_addc_u32 s33, s13, 0\ns_mov_b32 s34, 122880\ns_mov_b32 s35, {SRD3:#x}')
    k('s_waitcnt vmcnt(8)')
    k('v_add_f32 v8, v8, v9\nv_add_f32 v10, v10, v11\nv_add_f32 v12, v12, v13\nv_add_f32 v14, v14, v15')
    k('v_add_f32 v8, v8, v10\nv_add_f32 v12, v12, v14')
    k('v_cvt_pk_bf16_f32 v8, v8, v12')
    k('v_and_b32 v12, 0xffff0000, v8\nv_add_f32 v12, 1.0, v12\nv_cvt_pk_bf16_f32 v12, v12, v12\nv_lshlrev_b32 v12, 16, v12')
    k('v_lshlrev_b32 v9, 2, v0\nv_lshlrev_b32 v10, 1, v0')
    k('v_cmp_gt_u32 vcc, 128, v0')
    k('s_and_saveexec_b64 s[36:37], vcc')
    k('ds_write_b32 v9, v12 offset:32768')
    k('ds_write_b16 v10, v8 offset:33280')
    k('s_mov_b64 exec, s[36:37]')
    k('v_lshrrev_b32 v3, 4, v1          ; grp')
    k('v_and_b32 v7, 15, v1\nv_lshrrev_b32 v8, 2, v7      ; r\nv_and_b32 v7, 3, v7       ; c')
    k('v_lshrrev_b32 v9, 1, v3          ; g')
    k('v_and_b32 v10, 1, v3             ; grp&1')
    k('v_lshrrev_b32 v11, 1, v7         ; mat')
    k('v_lshrrev_b32 v12, 1, v8\nv_lshlrev_b32 v12, 1, v12      ; 2*((r>>1)&1)')
    k('v_xor_b32 v10, v10, v12\nv_lshlrev_b32 v12, 2, v11\nv_xor_b32 v10, v10, v12     ; X')
    k('v_lshlrev_b32 v10, 4, v10')
    k('v_lshl_add_u32 v10, v11, 14, v10         ; + mat*16384')
    k('v_lshl_add_u32 v12, v9, 3, v8            ; 8g + r')
    k('v_lshl_add_u32 v10, v12, 7, v10          ; + row*128')
    k('v_and_b32 v12, 1, v7\nv_lshl_add_u32 v10, v12, 3, v10')
    k('s_lshl_b32 s23, s18, 5\nv_xor_b32 v10, s23, v10      ; ^ 32*tl')
    k('v_lshlrev_b32 v11, 5, v9\nv_lshlrev_b32 v12, 4, v9')
    k('s_lshl_b32 s23, s16, 2\ns_add_u32 s23, s23, s18        ; T')
    k('s_mul_i32 s38, s17, 8*96\ns_add_u32 s38, s38, s23\ns_lshl_b32 s38, s38, 10')
    k('v_lshlrev_b32 v13, 4, v1')
    k('s_mov_b32 s39, 0x3f803f80')
    k('v_mov_b32 v14, 0\nv_mov_b32 v15, 0\nv_mov_b32 v98, 0\nv_mov_b32 v99, 0')
    k('s_waitcnt vmcnt(0) lgkmcnt(0)\ns_barrier')
    for ksl in range(8):
        b = 16 + 32 * (ksl & 1)
        k(f'ds_read_b64_tr_b16 v[{b}:{b+1}], v10 offset:{ksl*2048}')
        k(f'ds_read_b64_tr_b16 v[{b+2}:{b+3}], v10 offset:{ksl*2048+512}')
        k(f'ds_read_b128 v[{b+4}:{b+7}], v11 offset:{32768 + ksl*64}')
        k(f'ds_read_b128 v[{b+8}:{b+11}], v11 offset:{32768 + ksl*64 + 16}')
        k(f'ds_read_b128 v[{b+12}:{b+15}], v12 offset:{33280 + ksl*32}')
        k('s_waitcnt lgkmcnt(0)')
        for j in range(4):
            k(f'v_lshlrev_b32 v{b+16+2*j}, 16, v{b+j}\nv_and_b32 v{b+17+2*j}, 0xffff0000, v{b+j}')
        for j in range(4):
            k(f'v_lshlrev_b32 v{96}, 16, v{b+12+j}\nv_and_b32 v{97}, 0xffff0000, v{b+12+j}')
            k(f'v_fma_f32 v15, v{b+16+2*j}, v96, v15\nv_fma_f32 v98, v{b+17+2*j}, v97, v98')
        for j in range(8):
            k(f'v_mul_f32 v{b+16+j}, v{b+16+j}, v{b+4+j}')
        for j in range(4):
            k(f'v_cvt_pk_bf16_f32 v{b+24+j}, v{b+16+2*j}, v{b+17+2*j}')
        for j in range(4):
            k(f'v_lshlrev_b32 v96, 16, v{b+24+j}\nv_and_b32 v97, 0xffff0000, v{b+24+j}')
            k(f'v_add_f32 v14, v14, v96\nv_add_f32 v99, v99, v97')
        k(f'buffer_store_dwordx4 v[{b+24}:{b+27}], v13, s[28:31], s38 offen{WT}')
        k(f's_add_u32 s38, s38, {96*1024}')
    k('v_add_f32 v14, v14, v99\nv_add_f32 v15, v15, v98')
    k('v_mov_b32 v16, v14\nv_mov_b32 v17, v15')
    k('v_permlane32_swap_b32 v14, v16\nv_permlane32_swap_b32 v15, v17')
    k('v_add_f32 v14, v14, v16\nv_add_f32 v15, v15, v17')
    k('s_mul_i32 s38, s17, 96\ns_add_u32 s38, s38, s23\ns_lshl_b32 s38, s38, 8       ; (dq*96+T)*256')
    k('v_lshlrev_b32 v13, 3, v1')
    k('v_cmp_gt_u32 vcc, 32, v1')
    k('s_and_saveexec_b64 s[36:37], vcc')
    k(f'buffer_store_dwordx2 v[14:15], v13, s[32:35], s38 offen{WT}')
    k('s_mov_b64 exec, s[36:37]')
    if STAMPS: k('s_waitcnt vmcnt(0)')
    stamp_end(k, 1)
    k('s_endpgm')
```

```python
from asmlib import K
from common import *

import os
FUSEK = os.environ.get('FUSEK', '0') == '1'
WDK2 = os.environ.get('WDK2', '1') == '1'
N_LN, N_MOD, N_KG, N_WD = 64, 120, (0 if FUSEK else 640), (0 if WDK2 else 48)
N_PF = 16
K1_GRID = N_LN + N_MOD + N_KG + N_WD + N_PF
K1_LDS = 40960
import os
KGFIRST = os.environ.get('KGFIRST', '1') == '1'
CODEPF = os.environ.get('CODEPF', '1') == '1'
SELFPF = os.environ.get('SELFPF', '0') == '1'
MIX = int(os.environ.get('MIX', '0'))
B_KG = 0 if KGFIRST else N_LN + N_MOD
B_LN = (MIX if MIX else N_KG) if KGFIRST else 0
B_MOD = (MIX + N_LN if MIX else N_KG + N_LN) if KGFIRST else N_LN

import os as _os
def cmul(k, dst, x, y, tmp):
    if _os.environ.get('PKCMUL', '1') == '1':
        k(f'v_pk_mul_f32 v[{tmp}:{tmp+1}], v[{x}:{x+1}], v[{y}:{y+1}] op_sel:[0,0] op_sel_hi:[0,1]')
        k(f'v_pk_fma_f32 v[{dst}:{dst+1}], v[{x}:{x+1}], v[{y}:{y+1}], v[{tmp}:{tmp+1}] op_sel:[1,1,0] op_sel_hi:[1,0,1] neg_lo:[1,0,0]')
    else:
        assert dst != y or x == y and False or dst != y
        k(f'v_mul_f32 v{tmp}, v{x}, v{y}\nv_mul_f32 v{tmp+1}, v{x}, v{y+1}')
        k(f'v_fma_f32 v{dst}, -v{x+1}, v{y+1}, v{tmp}\nv_fma_f32 v{dst+1}, v{x+1}, v{y}, v{tmp+1}')

def emit_wd(k, base_id, stamp_idx, label):
    k.label(label)
    load_ptr(k, 4, 'wd'); load_ptr(k, 8, 'ws')
    k(f's_sub_u32 s3, s2, {base_id}      ; kappa')
    k('v_and_b32 v1, 63, v0\nv_lshrrev_b32 v2, 6, v0\nv_lshlrev_b32 v3, 4, v1\nv_readfirstlane_b32 s16, v2')
    k('s_mul_i32 s17, s3, 40960')
    k('s_mul_i32 s18, s16, 10240\ns_add_u32 s17, s17, s18')
    k('s_waitcnt lgkmcnt(0)')
    srd_fin(k, 4, SZ['wd'])
    k(f's_add_u32 s12, s8, {WS_WD}\ns_addc_u32 s13, s9, 0\ns_mov_b32 s14, 1966080\ns_mov_b32 s15, {SRD3:#x}')
    for q in range(10):
        k(f's_add_u32 m0, s18, {q*1024}')
        k(f's_add_u32 s19, s17, {q*1024}')
        k(f'buffer_load_dwordx4 v3, s[4:7], s19 offen{NT} lds')
    k('v_lshrrev_b32 v5, 4, v1\nv_and_b32 v6, 15, v1\nv_lshrrev_b32 v7, 2, v6\nv_and_b32 v6, 3, v6')
    k('v_lshrrev_b32 v12, 1, v5\nv_lshlrev_b32 v12, 4, v12\nv_and_b32 v13, 1, v5\nv_lshl_add_u32 v12, v13, 2, v12\nv_add_u32 v12, v12, v7')
    k('v_mul_u32_u24 v12, 1280, v12\nv_lshl_add_u32 v12, v6, 3, v12')
    k('s_mul_i32 s24, s16, 320\nv_add_u32 v12, s24, v12')
    k('s_mul_i32 s24, s16, 96\ns_add_u32 s24, s24, s3\ns_mul_i32 s24, s24, 5120')
    k('s_waitcnt vmcnt(0)\ns_barrier')
    for b in range(2):
        for dt in range(5):
            r = 16 + 4 * (5 * b + dt)
            o = 160 * b + 32 * dt
            k(f'ds_read_b64_tr_b16 v[{r}:{r+1}], v12 offset:{o}\nds_read_b64_tr_b16 v[{r+2}:{r+3}], v12 offset:{o + 8*1280}')
    for b in range(2):
        for dt in range(5):
            r = 16 + 4 * (5 * b + dt)
            k(f's_waitcnt lgkmcnt({min(15, 2*(9 - 5*b - dt))})')
            k(f's_add_u32 s25, s24, {b*48*5120 + dt*1024}')
            k(f'buffer_store_dwordx4 v[{r}:{r+3}], v3, s[12:15], s25 offen{WT}')
    if STAMPS: k('s_waitcnt vmcnt(0)')
    stamp_end(k, stamp_idx)
    k('s_endpgm')

def build_k1():
    k = K('prep_kernel')
    stamp_begin(k)
    if SELFPF:
        k('s_cmp_ge_u32 s2, 32\ns_cbranch_scc1 L_k1_nopf')
        k('s_getpc_b64 s[28:29]')
        k.label('L_k1_pc0')
        k('s_mov_b32 s30, conv_kernel-L_k1_pc0\ns_mov_b32 s31, 0x20000')
        k('v_lshlrev_b32 v60, 4, v0')
        k('buffer_load_dwordx4 v[100:103], v60, s[28:31], 0 offen')
        k('s_mov_b32 s27, 4096')
        k('buffer_load_dwordx4 v[104:107], v60, s[28:31], s27 offen')
        k.label('L_k1_nopf')
    if MIX:
        k(f's_cmp_lt_u32 s2, {MIX}\ns_cbranch_scc1 L_k1_kg')
        k(f's_cmp_lt_u32 s2, {MIX+N_LN}\ns_cbranch_scc1 L_k1_ln')
        k(f's_cmp_lt_u32 s2, {MIX+N_LN+N_MOD}\ns_cbranch_scc1 L_k1_mod')
        k(f's_cmp_lt_u32 s2, {N_KG+N_LN+N_MOD}\ns_cbranch_scc1 L_k1_kg2')
    elif KGFIRST:
        k(f's_cmp_lt_u32 s2, {N_KG}\ns_cbranch_scc1 L_k1_kg')
        k(f's_cmp_lt_u32 s2, {N_KG+N_LN}\ns_cbranch_scc1 L_k1_ln')
        k(f's_cmp_lt_u32 s2, {N_KG+N_LN+N_MOD}\ns_cbranch_scc1 L_k1_mod')
    else:
        k(f's_cmp_lt_u32 s2, {N_LN}\ns_cbranch_scc1 L_k1_ln')
        k(f's_cmp_lt_u32 s2, {N_LN+N_MOD}\ns_cbranch_scc1 L_k1_mod')
        k(f's_cmp_lt_u32 s2, {N_LN+N_MOD+N_KG}\ns_cbranch_scc1 L_k1_kg')
    if not WDK2: k(f's_cmp_lt_u32 s2, {K1_GRID - N_PF}\ns_cbranch_scc1 L_k1_wd')
    k(f's_cmp_lt_u32 s2, {K1_GRID}\ns_cbranch_scc1 L_k1_pf')
    k('s_endpgm')

    if MIX:
        k.label('L_k1_kg2')
        k(f's_sub_u32 s3, s2, {N_LN+N_MOD}')
        k('s_branch L_k1_kg3')
    k.label('L_k1_kg')
    k(f's_sub_u32 s3, s2, {B_KG}      ; d')
    if MIX: k.label('L_k1_kg3')
    load_ptr(k, 4, 'lar'); load_ptr(k, 8, 'aim'); load_ptr(k, 12, 'cr'); load_ptr(k, 16, 'ci'); load_ptr(k, 20, 'ldt'); load_ptr(k, 24, 'ws')
    k('s_getpc_b64 s[28:29]')
    k.label('L_k1_pc')
    k('s_add_u32 s28, s28, ktable-L_k1_pc\ns_addc_u32 s29, s29, 0')
    k('v_lshrrev_b32 v1, 6, v0')
    k('v_and_b32 v2, 63, v0            ; lane')
    k('v_readfirstlane_b32 s30, v1     ; wave')
    k('v_lshlrev_b32 v3, 4, v0         ; t*16')
    k('global_load_dwordx4 v[60:63], v3, s[28:29]')
    k('s_mul_i32 s31, s3, 384')
    k('v_lshlrev_b32 v4, 1, v0')
    k('v_add_u32 v4, s31, v4           ; d*384 + n*2')
    k('s_lshl_b32 s32, s3, 1')
    k('v_mov_b32 v5, s32')
    k('s_waitcnt lgkmcnt(0)')
    for s, n in ((4, 'lar'), (8, 'aim'), (12, 'cr'), (16, 'ci'), (20, 'ldt')):
        srd_fin(k, s, SZ[n])
    srd_fin(k, 24, 640 * 4096, WS_R)
    if os.environ.get('WPF2', '0') == '1':
        k('s_cmp_lt_u32 s30, 3\ns_cbranch_scc1 L_k1_kg_gen')
        load_ptr(k, 36, 'wg'); load_ptr(k, 40, 'wu')
        k('s_mul_i32 s33, s3, 24\nv_min_u32 v6, 23, v2\nv_add_u32 v6, s33, v6\nv_lshlrev_b32 v6, 7, v6')
        k('s_waitcnt lgkmcnt(0)')
        srd_fin(k, 36, SZ['wg']); srd_fin(k, 40, SZ['wu'])
        k('buffer_load_dword v7, v6, s[36:39], 0 offen\nbuffer_load_dword v8, v6, s[40:43], 0 offen')
        k('s_branch L_k1_kg_sync1')
        k.label('L_k1_kg_gen')
    else:
        k('s_cmp_ge_u32 s30, 3\ns_cbranch_scc1 L_k1_kg_sync1')
    k('buffer_load_ushort v6, v5, s[20:23], 0 offen')
    k('buffer_load_ushort v7, v4, s[4:7], 0 offen')
    k('buffer_load_ushort v8, v4, s[8:11], 0 offen')
    k('buffer_load_ushort v9, v4, s[12:15], 0 offen')
    k('buffer_load_ushort v10, v4, s[16:19], 0 offen')
    k('s_mul_i32 s33, s30, 13568')
    k('v_lshlrev_b32 v11, 2, v2')
    for kk in range(16):
        k(f'v_xor_b32 v{64+kk}, {16*kk}, v11')
    for kk in range(16):
        k(f'v_add_u32 v{64+kk}, s33, v{64+kk}')
    k('v_and_b32 v12, 31, v2           ; m')
    k('v_lshrrev_b32 v13, 5, v2        ; g')
    k('v_and_b32 v14, 15, v12')
    k('v_xor_b32 v14, v14, v13')
    k('v_lshlrev_b32 v14, 4, v14       ; 16*(g ^ (m&15))')
    k('v_lshl_add_u32 v14, v12, 8, v14')
    k('v_add_u32 v14, s33, v14')
    k('s_waitcnt vmcnt(0)')
    stamp_mid(k, 0)
    k('v_lshlrev_b32 v6, 16, v6\nv_lshlrev_b32 v7, 16, v7\nv_lshlrev_b32 v8, 16, v8\nv_lshlrev_b32 v9, 16, v9\nv_lshlrev_b32 v10, 16, v10')
    k(f'v_mul_f32 v6, {LOG2E:#x}, v6\nv_mul_f32 v7, {LOG2E:#x}, v7')
    k('v_exp_f32 v6, v6\nv_exp_f32 v7, v7')
    k('v_cvt_pk_bf16_f32 v6, v6, v7')
    k('v_and_b32 v7, 0xffff0000, v6\nv_lshlrev_b32 v6, 16, v6')
    k('v_mul_f32 v7, v7, v6            ; are*dt')
    k(f'v_mul_f32 v7, {NLOG2E:#x}, v7    ; a2')
    k('v_mul_f32 v8, v8, v6            ; theta')
    k(f'v_mul_f32 v8, {INV2PI:#x}, v8    ; theta_r')
    k('v_add_f32 v6, v6, v6            ; 2dt')
    k('v_mul_f32 v16, v9, v6           ; Cbar.re')
    k('v_mul_f32 v17, v10, v6')
    k('v_sub_f32 v17, 0, v17')
    def direct(dst, p, sign, t0):
        k(f'v_mul_f32 v{t0}, {float(p)}, v7' if p in (1, 2, 4) else f'v_mul_f32 v{t0}, {hexf(p)}, v7')
        k(f'v_mul_f32 v{t0+1}, {hexf(sign*p)}, v8')
        k(f'v_exp_f32 v{t0}, v{t0}')
        k(f'v_fract_f32 v{t0+1}, v{t0+1}')
        k(f'v_cos_f32 v{dst}, v{t0+1}')
        k(f'v_sin_f32 v{dst+1}, v{t0+1}')
        k(f'v_mul_f32 v{dst}, v{dst}, v{t0}')
        k(f'v_mul_f32 v{dst+1}, v{dst+1}, v{t0}')
    if os.environ.get('GENILP', '1') == '1':
        evs = [(18, 1, -1, 96), (20, 256, -1, 98), (22, 8, +1, 100), (26, 64, +1, 102), (28, 128, +1, 104), (30, 192, +1, 106)]
        for d_, p_, sg, t0 in evs: k(f'v_mul_f32 v{t0}, {hexf(p_)}, v7\nv_mul_f32 v{t0+1}, {hexf(sg*p_)}, v8')
        for d_, p_, sg, t0 in evs: k(f'v_exp_f32 v{t0}, v{t0}')
        for d_, p_, sg, t0 in evs: k(f'v_fract_f32 v{t0+1}, v{t0+1}')
        for d_, p_, sg, t0 in evs: k(f'v_cos_f32 v{d_}, v{t0+1}')
        for d_, p_, sg, t0 in evs: k(f'v_sin_f32 v{d_+1}, v{t0+1}')
        for d_, p_, sg, t0 in evs: k(f'v_mul_f32 v{d_}, v{d_}, v{t0}')
        for d_, p_, sg, t0 in evs: k(f'v_mul_f32 v{d_+1}, v{d_+1}, v{t0}')
        k('v_mov_b32 v24, 1.0\nv_mov_b32 v25, 0')
        CB, ZB1, ZB256, W = 16, 18, 20, 22
        L = [24, 26, 28, 30]; HA, Z2, Z4, B8, B12, B14, BC, T, T13, T15 = 32, 34, 36, 38, 40, 42, 44, 46, 48, 50
        rounds = []
        rounds.append(([(Z2, ZB1, ZB1), (B8, CB, ZB256), (HA, CB, ZB1)] + [(L[q], L[q], W) for q in range(4)],
                       [(L[q], 8*q, True) for q in range(4)] + [(CB, 0, False)]))
        rounds.append(([(Z4, Z2, Z2), (B12, B8, ZB256), (T, B8, Z2), (HA, HA, ZB1)] + [(L[q], L[q], W) for q in range(4)],
                       [(L[q], 8*q+1, True) for q in range(4)] + [(HA, 1, False), (B8, 8, False)]))
        rounds.append(([(B14, B12, ZB256), (T13, B12, Z4), (T, T, Z2), (HA, HA, ZB1)] + [(L[q], L[q], W) for q in range(4)],
                       [(L[q], 8*q+2, True) for q in range(4)] + [(HA, 2, False), (B12, 12, False), (T, 9, False)]))
        rounds.append(([(BC, B14, ZB256), (T15, B14, Z4), (T, T, Z2), (HA, HA, ZB1)] + [(L[q], L[q], W) for q in range(4)],
                       [(L[q], 8*q+3, True) for q in range(4)] + [(HA, 3, False), (B14, 14, False), (T, 10, False), (T13, 13, False)]))
        rounds.append(([(BC, BC, ZB256), (HA, HA, ZB1)] + [(L[q], L[q], W) for q in range(4)],
                       [(L[q], 8*q+4, True) for q in range(4)] + [(HA, 4, False), (BC, 16, False), (T, 11, False), (T15, 15, False)]))
        for r_ in (5, 6):
            rounds.append(([(BC, BC, ZB256), (HA, HA, ZB1)] + [(L[q], L[q], W) for q in range(4)],
                           [(L[q], 8*q+r_, True) for q in range(4)] + [(HA, r_, False), (BC, 12 + r_, False)]))
        rounds.append(([(BC, BC, ZB256)], [(L[q], 8*q+7, True) for q in range(4)] + [(HA, 7, False), (BC, 19, False)]))
        rounds.append(([], [(BC, 20, False)]))
        for cm, pu in rounds:
            for n_, (src, row, lo) in enumerate(pu): k(f'v_cvt_pk_bf16_f32 v{52+n_}, v{src}, v{src+1}')
            for n_, (d_, x_, y_) in enumerate(cm):
                t = 80 + 2 * n_
                k(f'v_pk_mul_f32 v[{t}:{t+1}], v[{x_}:{x_+1}], v[{y_}:{y_+1}] op_sel:[0,0] op_sel_hi:[0,1]')
            for n_, (src, row, lo) in enumerate(pu): k(f'ds_write_b32 v{64 + (row & 15)}, v{52+n_} offset:{row*256 + (5376 if lo else 0)}')
            for n_, (d_, x_, y_) in enumerate(cm):
                t = 80 + 2 * n_
                k(f'v_pk_fma_f32 v[{d_}:{d_+1}], v[{x_}:{x_+1}], v[{y_}:{y_+1}], v[{t}:{t+1}] op_sel:[1,1,0] op_sel_hi:[1,0,1] neg_lo:[1,0,0]')
        rows_hi = sorted(r for cm, pu in rounds for s_, r, lo in pu if not lo); rows_lo = sorted(r for cm, pu in rounds for s_, r, lo in pu if lo)
        assert rows_hi == list(range(21)) and rows_lo == list(range(32)), (rows_hi, rows_lo)
    else:
        direct(18, 1, -1, 24)
        direct(20, 256, -1, 26)
        direct(22, 8, +1, 28)
        ZB1, ZB256, W8 = 18, 20, 22
        ZB2, ZB4 = 30, 32
        A, B, T, L = 34, 36, 38, 40
        TA, TL = 42, 44
        C0 = 46
        rot = [0]
        def put(src, row, lo):
            t = C0 + (rot[0] % 8); rot[0] += 1
            k(f'v_cvt_pk_bf16_f32 v{t}, v{src}, v{src+1}')
            k(f'ds_write_b32 v{64 + (row & 15)}, v{t} offset:{row*256 + (5376 if lo else 0)}')
        hi = []
        hi.append(lambda: put(16, 0, False))
        hi.append(lambda: (cmul(k, A, 16, ZB1, TA), put(A, 1, False)))
        for m in range(2, 8):
            hi.append(lambda m=m: (cmul(k, A, A, ZB1, TA), put(A, m, False)))
        hi.append(lambda: cmul(k, ZB2, ZB1, ZB1, TA))
        hi.append(lambda: (cmul(k, B, 16, ZB256, TA), put(B, 8, False)))
        hi.append(lambda: cmul(k, ZB4, ZB2, ZB2, TA))
        hi.append(lambda: (cmul(k, T, B, ZB2, TA), put(T, 9, False)))
        hi.append(lambda: (cmul(k, T, T, ZB2, TA), put(T, 10, False)))
        hi.append(lambda: (cmul(k, T, T, ZB2, TA), put(T, 11, False)))
        hi.append(lambda: (cmul(k, B, B, ZB256, TA), put(B, 12, False)))
        hi.append(lambda: (cmul(k, T, B, ZB4, TA), put(T, 13, False)))
        hi.append(lambda: (cmul(k, B, B, ZB256, TA), put(B, 14, False)))
        hi.append(lambda: (cmul(k, T, B, ZB4, TA), put(T, 15, False)))
        for m in range(16, 21):
            hi.append(lambda m=m: (cmul(k, B, B, ZB256, TA), put(B, m, False)))
        lo = []
        lo.append(lambda: (k(f'v_mov_b32 v{L}, 1.0\nv_mov_b32 v{L+1}, 0'), put(L, 0, True)))
        lo.append(lambda: put(W8, 1, True))
        lo.append(lambda: (cmul(k, L, W8, W8, TL), put(L, 2, True)))
        for u in range(3, 32):
            lo.append(lambda u=u: (cmul(k, L, L, W8, TL), put(L, u, True)))
        i = j = 0
        while i < len(hi) or j < len(lo):
            if j < len(lo): lo[j](); j += 1
            if i < len(hi) and (i * len(lo) <= j * len(hi) or j >= len(lo)): hi[i](); i += 1
    k('s_waitcnt lgkmcnt(0)')
    stamp_mid(k, 1)
    for ks in range(8):
        k(f'v_xor_b32 v15, {32*ks}, v14')
        k(f'ds_read_b128 v[{24+8*(ks%4)}:{27+8*(ks%4)}], v15')
        k(f'ds_read_b128 v[{28+8*(ks%4)}:{31+8*(ks%4)}], v15 offset:5376')
        if ks >= 1:
            p = ks - 1
            k('s_waitcnt lgkmcnt(2)')
            k(f'v_mfma_f32_32x32x16_bf16 v[96:111], v[{24+8*(p%4)}:{27+8*(p%4)}], v[{28+8*(p%4)}:{31+8*(p%4)}], ' + ('0' if p == 0 else 'v[96:111]'))
    k('s_waitcnt lgkmcnt(0)')
    k('v_mfma_f32_32x32x16_bf16 v[96:111], v[48:51], v[52:55], v[96:111]')
    k('v_and_b32 v12, 31, v2\nv_lshrrev_b32 v13, 5, v2')
    k('v_lshlrev_b32 v12, 2, v12')
    k('v_lshl_add_u32 v12, v13, 9, v12')
    k('v_add_u32 v12, s33, v12')
    for j in range(3):
        for i in range(4):
            k(f'ds_write_b32 v12, v{96+4*j+i} offset:{(8*j+i)*128}')
    k.label('L_k1_kg_sync1')
    k('s_waitcnt lgkmcnt(0)\ns_barrier')
    stamp_mid(k, 2)
    k('v_cmp_gt_u32 vcc, 168, v0')
    k('s_and_saveexec_b64 s[34:35], vcc')
    k('s_cbranch_execz L_k1_kg_skip')
    k('ds_read_b128 v[24:27], v3\nds_read_b128 v[28:31], v3 offset:13568\nds_read_b128 v[32:35], v3 offset:27136')
    k('s_waitcnt lgkmcnt(0)')
    k('v_pk_add_f32 v[24:25], v[24:25], v[28:29]\nv_pk_add_f32 v[26:27], v[26:27], v[30:31]')
    k('v_pk_add_f32 v[24:25], v[24:25], v[32:33]\nv_pk_add_f32 v[26:27], v[26:27], v[34:35]')
    k('v_cvt_pk_bf16_f32 v24, v24, v25\nv_cvt_pk_bf16_f32 v25, v26, v27')
    k('v_lshlrev_b32 v12, 3, v0')
    k('ds_write_b64 v12, v[24:25] offset:4096')
    k.label('L_k1_kg_skip')
    k('s_mov_b64 exec, s[34:35]')
    k('s_waitcnt vmcnt(0) lgkmcnt(0)\ns_barrier')
    for q in range(4):
        k(f'v_and_b32 v{24+2*q}, 0xffff, v{60+q}\nv_lshrrev_b32 v{25+2*q}, 16, v{60+q}')
    for q in range(4):
        k(f'ds_read_u16 v{36+q}, v{24+2*q} offset:4096')
        k(f'ds_read_u16 v{40+q}, v{25+2*q} offset:4096')
    k('s_lshl_b32 s33, s3, 12')
    k('s_waitcnt lgkmcnt(0)')
    for q in range(4):
        k(f'v_lshl_or_b32 v{36+q}, v{40+q}, 16, v{36+q}')
    k(f'buffer_store_dwordx4 v[36:39], v3, s[24:27], s33 offen{WT}')
    if STAMPS: k('s_waitcnt vmcnt(0)')
    stamp_end(k, 0)
    k('s_endpgm')

    k.label('L_k1_ln')
    load_ptr(k, 4, 'u'); load_ptr(k, 8, 'ws'); load_ptr(k, 12, 'ws')
    k('v_lshrrev_b32 v1, 4, v0       ; rg')
    k('v_and_b32 v2, 15, v0          ; c')
    k(f's_sub_u32 s3, s2, {B_LN}\ns_lshl_b32 s3, s3, 5          ; l0')
    k('v_add_u32 v3, s3, v1')
    k('v_mul_u32_u24 v4, 1280, v3')
    k('v_lshl_add_u32 v4, v2, 4, v4')
    k('s_mov_b32 s16, 20480')
    k('s_mov_b32 s17, 0x3f803f80')
    k('s_waitcnt lgkmcnt(0)')
    srd_fin(k, 4, SZ['u']); srd_fin(k, 8, 8192, WS_STATS); srd_fin(k, 12, 2621440, WS_XT)
    for p in range(2):
        for q in range(5):
            r = 16 + 4 * (5 * p + q)
            k(f'buffer_load_dwordx4 v[{r}:{r+3}], v4, s[4:7], {"s16" if p else "0"} offen offset:{256*q}{NT}')
    k('v_and_b32 v5, 3, v1\nv_lshrrev_b32 v6, 3, v1\nv_lshl_or_b32 v5, v6, 2, v5     ; f0')
    k('v_xor_b32 v5, v5, v2          ; c ^ f0')
    k('v_mul_u32_u24 v6, 1280, v1')
    k('v_xor_b32 v7, 8, v5')
    k('v_lshl_add_u32 v5, v5, 4, v6          ; p=0 addr')
    k('v_lshl_add_u32 v6, v7, 4, v6          ; p=1 addr - 20480')
    for p in range(2):
        k(f's_waitcnt vmcnt({5 if p == 0 else 0})')
        for q in range(5):
            r = 16 + 4 * (5 * p + q)
            k(f'ds_write_b128 v{5+p}, v[{r}:{r+3}] offset:{256*q + 20480*p}')
        for q in range(5):
            r = 16 + 4 * (5 * p + q)
            for i in range(4):
                first = (q == 0 and i == 0)
                k(f'v_dot2_f32_bf16 v{8+2*p}, v{r+i}, s17, ' + ('0' if first else f'v{8+2*p}'))
                k(f'v_dot2_f32_bf16 v{9+2*p}, v{r+i}, v{r+i}, ' + ('0' if first else f'v{9+2*p}'))
    for sh in (8, 4, 2, 1):
        for v in (8, 9, 10, 11):
            k(f'v_add_f32_dpp v{v}, v{v}, v{v} row_ror:{sh} row_mask:0xf bank_mask:0xf')
    for p in range(2):
        a, b = 8 + 2 * p, 9 + 2 * p
        k(f'v_mul_f32 v{a}, 0x3acccccd, v{a}          ; mean')
        k(f'v_mul_f32 v{b}, 0x3acccccd, v{b}')
        k(f'v_fma_f32 v{b}, -v{a}, v{a}, v{b}         ; var')
        k(f'v_max_f32 v{b}, 0, v{b}')
        k(f'v_cvt_pk_bf16_f32 v{b}, v{b}, v{b}\nv_lshlrev_b32 v{b}, 16, v{b}')
        k(f'v_add_f32 v{b}, 0x3727c5ac, v{b}')
        k(f'v_cvt_pk_bf16_f32 v{b}, v{b}, v{b}\nv_lshlrev_b32 v{b}, 16, v{b}')
        k(f'v_sqrt_f32 v{b}, v{b}')
        k(f'v_cvt_pk_bf16_f32 v{a}, v{a}, v{b}')
    k('v_lshlrev_b32 v7, 2, v3')
    k('v_cmp_eq_u32 vcc, 0, v2')
    k('s_and_saveexec_b64 s[18:19], vcc')
    k('s_cbranch_execz L_k1_ln_nost')
    k(f'buffer_store_dword v8, v7, s[8:11], 0 offen{WT}')
    k(f'buffer_store_dword v10, v7, s[8:11], 0 offen offset:64{WT}')
    k.label('L_k1_ln_nost')
    k('s_mov_b64 exec, s[18:19]')
    k('v_and_b32 v1, 63, v0          ; lane')
    k('v_lshrrev_b32 v2, 6, v0       ; w')
    k('v_lshrrev_b32 v3, 4, v1       ; grp')
    k('v_and_b32 v4, 15, v1          ; idx')
    k('v_lshrrev_b32 v5, 2, v4')
    k('v_and_b32 v6, 3, v4')
    k('v_lshl_add_u32 v7, v6, 3, v5  ; row = 8c + r')
    k('v_lshl_or_b32 v8, v6, 2, v5   ; f = r | c<<2')
    k('v_mul_u32_u24 v7, 1280, v7')
    k('v_and_b32 v9, 1, v3')
    k('v_lshl_add_u32 v7, v9, 3, v7')
    k('v_lshrrev_b32 v9, 1, v3')
    k('v_mul_u32_u24 v10, 20, v2')
    k('v_add_u32 v9, v9, v10         ; ch0')
    k('v_mul_u32_u24 v10, 40, v2\nv_add_u32 v10, v10, v3\nv_lshlrev_b32 v10, 14, v10')
    k('v_lshl_add_u32 v10, v5, 6, v10\nv_lshl_add_u32 v10, v6, 4, v10')
    k('s_lshl_b32 s16, s3, 3\nv_add_u32 v10, s16, v10')
    k('s_waitcnt lgkmcnt(0)\ns_barrier')
    for it in range(10):
        k(f'v_add_u32 v11, {2*it}, v9\nv_xor_b32 v11, v11, v8\nv_lshl_add_u32 v11, v11, 4, v7')
        r = 16 + 4 * it
        k(f'ds_read_b64_tr_b16 v[{r}:{r+1}], v11\nds_read_b64_tr_b16 v[{r+2}:{r+3}], v11 offset:5120')
    for it in range(10):
        r = 16 + 4 * it
        k(f's_mov_b32 s16, {it*65536}')
        k(f's_waitcnt lgkmcnt({min(15, 2*(9-it))})')
        k(f'buffer_store_dwordx4 v[{r}:{r+3}], v10, s[12:15], s16 offen{WT}')
    if STAMPS: k('s_waitcnt vmcnt(0)')
    stamp_end(k, 0)
    k('s_endpgm')

    k.label('L_k1_mod')
    load_ptr(k, 4, 'wmod'); load_ptr(k, 8, 'c'); load_ptr(k, 12, 'ws')
    k(f's_sub_u32 s3, s2, {B_MOD}')
    k('s_lshr_b32 s16, s3, 2          ; cb\ns_and_b32 s17, s3, 3     ; kq')
    k('v_lshrrev_b32 v1, 4, v0       ; rg\nv_and_b32 v2, 15, v0    ; c')
    k('v_mul_u32_u24 v4, 7680, v1\nv_lshl_add_u32 v4, v2, 4, v4')
    k(f's_mul_i32 s18, s17, {160*7680}\ns_lshl_b32 s19, s16, 8\ns_add_u32 s18, s18, s19')
    k('s_mul_i32 s19, s17, 320\nv_lshlrev_b32 v5, 1, v1\nv_add_u32 v5, s19, v5')
    k('s_waitcnt lgkmcnt(0)')
    srd_fin(k, 4, SZ['wmod']); srd_fin(k, 8, SZ['c']); srd_fin(k, 12, 4 * 3840 * 4, WS_MODP)
    for p in range(10):
        k(f'buffer_load_ushort v{56+p}, v5, s[8:11], 0 offen offset:{32*p}')
    for p in range(10):
        k(f'buffer_load_dwordx4 v[{16+4*p}:{19+4*p}], v4, s[4:7], s18 offen{NT}')
        if p < 9: k('s_add_u32 s18, s18, 122880')
    k('s_waitcnt vmcnt(10)')
    for p in range(10):
        k(f'v_lshlrev_b32 v{56+p}, 16, v{56+p}')
    for p in range(10):
        k(f'v_mul_f32 v{66+p}, {NLOG2E:#x}, v{56+p}')
    for p in range(10):
        k(f'v_exp_f32 v{66+p}, v{66+p}')
    for p in range(10):
        k(f'v_add_f32 v{66+p}, 1.0, v{66+p}')
    for p in range(10):
        k(f'v_rcp_f32 v{66+p}, v{66+p}')
    for p in range(10):
        k(f'v_mul_f32 v{56+p}, v{56+p}, v{66+p}')
    for p in range(10):
        k(f'v_cvt_pk_bf16_f32 v{56+p}, v{56+p}, 0        ; (s,0)')
    for p in range(10):
        k(f'v_lshlrev_b32 v{66+p}, 16, v{56+p}           ; (0,s)')
    for p in range(10):
        k(f's_waitcnt vmcnt({9-p})')
        for i in range(4):
            k(f'v_dot2_f32_bf16 v{76+2*i}, v{16+4*p+i}, v{56+p}, ' + ('0' if p == 0 else f'v{76+2*i}'))
            k(f'v_dot2_f32_bf16 v{77+2*i}, v{16+4*p+i}, v{66+p}, ' + ('0' if p == 0 else f'v{77+2*i}'))
    k('v_lshlrev_b32 v6, 5, v0')
    k('ds_write_b128 v6, v[76:79]\nds_write_b128 v6, v[80:83] offset:16')
    k('s_waitcnt lgkmcnt(0)\ns_barrier')
    k('v_cmp_gt_u32 vcc, 128, v0')
    k('s_and_saveexec_b64 s[20:21], vcc')
    k('s_cbranch_execz L_k1_mod_end')
    k('v_lshlrev_b32 v6, 2, v0')
    for rg in range(16):
        k(f'ds_read_b32 v{16+rg}, v6 offset:{rg*512}')
    k('s_waitcnt lgkmcnt(0)')
    for st in (8, 4, 2, 1):
        for i in range(st):
            k(f'v_add_f32 v{16+i}, v{16+i}, v{16+i+st}')
    k('s_mul_i32 s19, s17, 15360\ns_lshl_b32 s22, s16, 9\ns_add_u32 s19, s19, s22')
    k(f'buffer_store_dword v16, v6, s[12:15], s19 offen{WT}')
    k.label('L_k1_mod_end')
    k('s_mov_b64 exec, s[20:21]')
    if STAMPS: k('s_waitcnt vmcnt(0)')
    stamp_end(k, 0)
    k('s_endpgm')
    if not WDK2: emit_wd(k, N_LN+N_MOD+N_KG, 0, 'L_k1_wd')
    k.label('L_k1_pf')
    load_ptr(k, 8, 'ws')
    k(f's_sub_u32 s3, s2, {N_LN+N_MOD+N_KG+N_WD}')
    k('s_getpc_b64 s[28:29]')
    k.label('L_k1_pc2')
    k('s_add_u32 s28, s28, conv_kernel-L_k1_pc2\ns_addc_u32 s29, s29, 0')
    k('s_mov_b32 s30, code_end-conv_kernel\ns_mov_b32 s31, 0x20000')
    k('v_lshlrev_b32 v4, 4, v0')
    if CODEPF:
        for q in range(11):
            k(f's_mov_b32 s27, {q*4096}')
            k(f'buffer_load_dwordx4 v[{64+4*q}:{67+4*q}], v4, s[28:31], s27 offen')
    k('v_mov_b32 v8, 0\nv_mov_b32 v9, 0\nv_mov_b32 v10, 0\nv_mov_b32 v11, 0')
    if os.environ.get('WPF', '0') == '1':
        load_ptr(k, 12, 'wg'); load_ptr(k, 16, 'wu')
        k('s_lshl_b32 s26, s3, 8\nv_add_u32 v5, s26, v0\nv_lshlrev_b32 v5, 7, v5')
        k('s_waitcnt lgkmcnt(0)')
        srd_fin(k, 12, SZ['wg']); srd_fin(k, 16, SZ['wu'])
        for q in range(4):
            k(f'v_add_u32 v{30+q}, {q*16*256*128}, v5')
            k(f'buffer_load_dword v{20+2*q}, v{30+q}, s[12:15], 0 offen\nbuffer_load_dword v{21+2*q}, v{30+q}, s[16:19], 0 offen')
    k('s_waitcnt lgkmcnt(0)')
    k(f's_add_u32 s20, s8, {WS_FLAGS}\ns_addc_u32 s21, s9, 0\ns_mov_b32 s22, {WS_SP - WS_FLAGS + 327680}\ns_mov_b32 s23, {SRD3:#x}')
    k('s_cmp_lg_u32 s3, 0\ns_cbranch_scc1 L_k1_pf_nz')
    k(f'buffer_store_dwordx4 v[8:11], v4, s[20:23], 0 offen{WT}')
    k.label('L_k1_pf_nz')
    k(f's_mul_i32 s26, s3, 20480\ns_add_u32 s26, s26, {WS_SP - WS_FLAGS}')
    for q in range(5):
        k(f'buffer_store_dwordx4 v[8:11], v4, s[20:23], s26 offen{WT}')
        if q < 4: k('s_add_u32 s26, s26, 4096')
    if STAMPS: k('s_waitcnt vmcnt(0)')
    stamp_end(k, 0)
    k('s_endpgm')
    return k

def hexf(x):
    import struct
    return hex(struct.unpack('<I', struct.pack('<f', float(x)))[0])

def ktable_data():
    t = ktable() + [1344] * 16
    s = 'code_end:\n.p2align 8\n.type ktable,@object\nktable:\n'
    for i in range(0, 2064, 16):
        s += '.short ' + ', '.join(str(x) for x in t[i:i + 16]) + '\n'
    s += '.size ktable, 4128\n'
    return s
```

```python
from asmlib import K, Q
from common import *
import os

import os
N_WP, N_CV = 120, int(os.environ.get('EXP_NCV', 640))
import k1 as _k1
N_WD2 = 48 if _k1.WDK2 else 0
K2_GRID = N_WP + N_CV + N_WD2
K2_LDS = 40960
CVFIRST = os.environ.get('CVFIRST', '1') == '1'
CV16 = os.environ.get('CV16', '1') == '1'
HP = 96 if CV16 else 80

def build_k2():
    k = K('conv_kernel')
    stamp_begin(k)
    if CVFIRST:
        k(f's_cmp_lt_u32 s2, {N_CV}\ns_cbranch_scc1 L_k2_cv')
        k(f's_cmp_lt_u32 s2, {N_CV + N_WP}\ns_cbranch_scc1 L_k2_wp')
        if N_WD2: k(f's_cmp_lt_u32 s2, {K2_GRID}\ns_cbranch_scc1 L_k2_wd')
    else:
        k(f's_cmp_lt_u32 s2, {N_WP}\ns_cbranch_scc1 L_k2_wp')
        k(f's_cmp_lt_u32 s2, {K2_GRID}\ns_cbranch_scc1 L_k2_cv')
    k('s_endpgm')

    k.label('L_k2_cv')
    load_ptr(k, 4, 'ws'); load_ptr(k, 20, 'dsk')
    k(f's_sub_u32 s3, s2, {0 if CVFIRST else N_WP}')
    k('s_and_b32 s24, s3, 0xffffffe0\ns_and_b32 s25, s3, 7\ns_lshl_b32 s25, s25, 2\ns_or_b32 s24, s24, s25')
    k('s_lshr_b32 s25, s3, 3\ns_and_b32 s25, s25, 3\ns_or_b32 s3, s24, s25          ; d')
    k('v_lshlrev_b32 v1, 6, v0            ; t*64')
    k('s_and_b32 s24, s3, 3\ns_lshl_b32 s24, s24, 4')
    k('v_add_u32 v1, s24, v1')
    if os.environ.get('EXP_XT'): k('v_lshlrev_b32 v1, 4, v0')
    k('v_lshlrev_b32 v2, 5, v0')
    k('v_lshlrev_b32 v3, 4, v0            ; t*16')
    k('s_lshr_b32 s25, s3, 2\ns_lshl_b32 s25, s25, 14')
    if os.environ.get('EXP_XT'): k('s_lshl_b32 s25, s3, 12')
    k('s_lshl_b32 s26, s3, 12             ; d*4096')
    k('s_lshl_b32 s27, s3, 2              ; d*4')
    k('s_lshr_b32 s28, s3, 1\ns_lshl_b32 s28, s28, 2')
    k('s_waitcnt lgkmcnt(0)')
    stamp_mid(k, 3)
    k('s_add_u32 s30, s4, s27\ns_addc_u32 s31, s5, 0')
    for kq in range(4):
        for i in range(3):
            k(f's_load_dword s{40+4*i+kq}, s[30:31], {WS_MODP + kq*15360 + i*2560}')
    k('s_add_u32 s20, s20, s28\ns_addc_u32 s21, s21, 0')
    k('s_load_dword s52, s[20:21], 0')
    k(f's_add_u32 s8, s4, {WS_XT}\ns_addc_u32 s9, s5, 0\ns_mov_b32 s10, 2621440\ns_mov_b32 s11, {SRD3:#x}')
    k(f's_add_u32 s12, s4, {WS_STATS}\ns_addc_u32 s13, s5, 0\ns_mov_b32 s14, 8192\ns_mov_b32 s15, {SRD3:#x}')
    k(f's_add_u32 s16, s4, {WS_R}\ns_addc_u32 s17, s5, 0\ns_add_u32 s16, s16, s26\ns_addc_u32 s17, s17, 0\ns_mov_b32 s18, 4096\ns_mov_b32 s19, {SRD3:#x}')
    k('buffer_load_dwordx4 v[8:11], v3, s[16:19], 0 offen')
    k('buffer_load_dwordx4 v[12:15], v3, s[16:19], 0 offen offset:4')
    k('buffer_load_dwordx4 v[16:19], v3, s[16:19], 0 offen offset:8')
    k('buffer_load_dwordx4 v[20:23], v1, s[8:11], s25 offen        ; x')
    k('buffer_load_dwordx4 v[24:27], v2, s[12:15], 0 offen')
    k('buffer_load_dwordx4 v[28:31], v2, s[12:15], 0 offen offset:16')
    k(f's_add_u32 s32, s4, {WS_X2T}\ns_addc_u32 s33, s5, 0\ns_mov_b32 s34, 2621440\ns_mov_b32 s35, {SRD3:#x}')
    HB = 16640
    k('v_mov_b32 v32, 0\nv_mov_b32 v33, 0\nv_mov_b32 v34, 0\nv_mov_b32 v35, 0')
    k('v_lshrrev_b32 v4, 2, v0\nv_and_b32 v5, 3, v0')
    k(f'v_mul_u32_u24 v6, {HP}, v4\nv_lshl_add_u32 v6, v5, 4, v6        ; (t>>2)*pitch + (t&3)*16')
    k('v_mul_u32_u24 v7, 4160, v4\nv_lshl_add_u32 v7, v5, 4, v7')
    k('v_cmp_gt_u32 vcc, 128, v0')
    k('s_and_saveexec_b64 s[36:37], vcc')
    k(f'ds_write_b128 v6, v[32:35] offset:{HB}')
    k('v_cmp_gt_u32 vcc, 16, v0')
    k('s_and_b64 exec, exec, vcc')
    k('ds_write_b128 v7, v[32:35] offset:4096')
    k('s_mov_b64 exec, s[36:37]')
    k('v_and_b32 v36, 63, v0            ; lane')
    k('v_lshrrev_b32 v37, 6, v0         ; w')
    k('v_and_b32 v38, 31, v36           ; b / n')
    k('v_lshrrev_b32 v39, 5, v36        ; g')
    k('v_sub_u32 v40, 3, v38\nv_and_b32 v40, 3, v40       ; s_b')
    k('v_mul_u32_u24 v41, 4160, v40')
    k('v_sub_u32 v42, 2047, v38\nv_lshl_add_u32 v42, v39, 3, v42\nv_sub_u32 v42, v42, v40')
    k('v_lshl_add_u32 v41, v42, 1, v41')
    k('v_lshlrev_b32 v42, 9, v37        ; w*512 = 64*8w')
    k(f'v_sub_u32 v41, v41, v42\nv_subrev_u32 v41, {64*39}, v41      ; baseA')
    k('v_lshlrev_b32 v42, 3, v37\nv_sub_u32 v42, v38, v42\nv_add_u32 v42, 25, v42      ; 32 + n - 8w - 7')
    k('v_mul_u32_u24 v42, 80, v42\nv_lshl_add_u32 v42, v39, 4, v42')
    k(f'v_add_u32 v42, {HB}, v42           ; baseB')
    k('v_mul_u32_u24 v43, 9216, v37\nv_mul_u32_u24 v44, 144, v38\nv_add_u32 v43, v43, v44\nv_lshl_add_u32 v43, v39, 4, v43')
    k('v_mul_u32_u24 v44, 144, v4\nv_lshl_add_u32 v44, v5, 5, v44')
    k('s_waitcnt lgkmcnt(0)')
    for i, dst in enumerate((45, 46, 47)):
        k(f'v_mov_b32 v{dst}, s{40+4*i}')
        for kq in range(1, 4):
            k(f'v_add_f32 v{dst}, s{40+4*i+kq}, v{dst}')
    k('v_cvt_pk_bf16_f32 v45, v45, v46')
    k('v_cvt_pk_bf16_f32 v47, v47, v47')
    k('v_and_b32 v46, 0xffff0000, v45\nv_lshlrev_b32 v45, 16, v45\nv_lshlrev_b32 v47, 16, v47')
    k('v_add_f32 v46, 1.0, v46\nv_cvt_pk_bf16_f32 v46, v46, v46\nv_lshlrev_b32 v46, 16, v46')
    k('s_and_b32 s53, s3, 1\ns_lshl_b32 s53, s53, 4\ns_lshr_b32 s52, s52, s53\ns_lshl_b32 s52, s52, 16')
    k('s_waitcnt vmcnt(3)')
    k('ds_write_b128 v3, v[8:11]')
    k('ds_write_b128 v3, v[12:15] offset:8320')
    for i in range(4):
        k(f'v_alignbit_b32 v{48+i}, v{12+i}, v{8+i}, 16')
    for i in range(4):
        k(f'v_alignbit_b32 v{52+i}, v{16+i}, v{12+i}, 16')
    k('ds_write_b128 v3, v[48:51] offset:4160')
    k('ds_write_b128 v3, v[52:55] offset:12480')
    stamp_mid(k, 0)
    k('s_waitcnt vmcnt(0)')
    for i in range(8):
        st = 24 + i
        k(f'v_and_b32 v{56+i}, 0xffff0000, v{st}      ; sd')
    for i in range(8):
        k(f'v_rcp_f32 v{56+i}, v{56+i}')
    for i in range(8):
        k(f'v_lshlrev_b32 v{24+i}, 16, v{24+i}        ; mean')
    for i in range(4):
        k(f'v_lshlrev_b32 v{64+2*i}, 16, v{20+i}\nv_and_b32 v{65+2*i}, 0xffff0000, v{20+i}')
    for i in range(8): k(f'v_sub_f32 v{64+i}, v{64+i}, v{24+i}')
    for i in range(8): k(f'v_mul_f32 v{64+i}, v{64+i}, v{56+i}')
    for i in range(8):
        k(f'v_fma_f32 v{64+i}, v{64+i}, v46, v45')
    for i in range(4):
        k(f'v_cvt_pk_bf16_f32 v{8+i}, v{64+2*i}, v{65+2*i}       ; h packed v8..11')
    k(f'ds_write_b128 v6, v[8:11] offset:{HB + 32*HP}')
    k('s_waitcnt lgkmcnt(0)\ns_barrier')
    stamp_mid(k, 1)
    if CV16:
        RANGES = [(0, 7), (7, 14), (14, 22), (22, 32)]
        lg = Q(k, 'lgkmcnt', 15)
        k('v_and_b32 v38, 15, v36\nv_lshrrev_b32 v39, 4, v36')
        k('v_sub_u32 v40, 3, v38\nv_and_b32 v40, 3, v40\nv_mul_u32_u24 v41, 4160, v40')
        k('v_sub_u32 v42, 2047, v38\nv_lshl_add_u32 v42, v39, 3, v42\nv_sub_u32 v42, v42, v40\nv_lshl_add_u32 v41, v42, 1, v41        ; A0')
        k('v_readfirstlane_b32 s54, v37')
        k('s_mov_b32 s55, 6\ns_cmp_eq_u32 s54, 1\ns_cselect_b32 s55, 13, s55\ns_cmp_eq_u32 s54, 2\ns_cselect_b32 s55, 21, s55\ns_cmp_eq_u32 s54, 3\ns_cselect_b32 s55, 31, s55      ; hi-1')
        k('s_add_u32 s56, s55, 32\ns_lshl_b32 s56, s56, 6\ns_add_u32 s56, s56, 32\nv_subrev_u32 v12, s56, v41       ; baseA')
        k(f'v_add_u32 v42, 32, v38\nv_subrev_u32 v42, s55, v42\nv_mul_u32_u24 v42, {HP}, v42\nv_lshl_add_u32 v42, v39, 4, v42\nv_add_u32 v13, {HB}, v42       ; baseB')
        k('v_mul_u32_u24 v14, 9216, v37\nv_mul_u32_u24 v42, 144, v38\nv_add_u32 v14, v14, v42\nv_lshl_add_u32 v14, v39, 4, v14')
        k('v_mov_b32 v15, v44\nv_mov_b32 v16, v47')
        ACC = 96
        def acc(rt, ct): return ACC + 4 * (4 * rt + ct)
        def step_reads(S, dp, hi):
            oa = lambda dl, rt: 64 * (hi - 1 + 32 - dl) + 32 * (1 - rt)
            ob = lambda ct: HP * (hi - 1 - dp + 16 * ct)
            out = []
            def A(slot, dl, rt):
                out.append((f'ds_read_b64 v[{S+4*slot}:{S+4*slot+1}], v12 offset:{oa(dl, rt)}', ('A', slot, dp)))
                out.append((f'ds_read_b64 v[{S+4*slot+2}:{S+4*slot+3}], v12 offset:{oa(dl, rt)+8}', ('A', slot, dp)))
            def B(ct): out.append((f'ds_read_b128 v[{S+16+4*ct}:{S+19+4*ct}], v13 offset:{ob(ct)}', ('B', ct, dp)))
            A(0, dp, 0); B(2); B(3); A(1, dp, 1); B(1)
            if dp < 16: B(0)
            A(2, dp + 32, 0); A(3, dp + 32, 1)
            return out
        def step_mfmas(dp):
            m = [(0, 2, 0, 2), (0, 3, 0, 3), (1, 2, 1, 2), (1, 3, 1, 3), (0, 1, 0, 1), (1, 1, 1, 1)]
            if dp < 16: m += [(0, 0, 0, 0), (1, 0, 1, 0)]
            m += [(2, 1, 0, 3), (3, 1, 1, 3)]
            if dp < 16: m += [(2, 0, 0, 2), (3, 0, 1, 2)]
            return m
        def lgw(tag):
            idx = max(i for i, t in enumerate(lg.ops) if t == tag)
            if idx < lg.done: return
            n = min(15, len(lg.ops) - 1 - idx)
            k(f's_waitcnt lgkmcnt({n})'); lg.done = max(lg.done, len(lg.ops) - n)
        for wv, (lo_, hi_) in enumerate(RANGES):
            if wv: k.label(f'L_cv16_w{wv}')
            if wv < 3: k(f's_cmp_lg_u32 s54, {wv}\ns_cbranch_scc1 L_cv16_w{wv+1}')
            lg.ops = []; lg.done = 0
            touched = set()
            dps = list(range(lo_, hi_))
            for r_ in step_reads(32, dps[0], hi_): lg.issue(*r_)
            for si, dp in enumerate(dps):
                S = 32 + 32 * (si & 1)
                nx = step_reads(32 + 32 * ((si + 1) & 1), dps[si + 1], hi_) if si + 1 < len(dps) else []
                ms = step_mfmas(dp)
                for mi, (sl, ct, rt, ac) in enumerate(ms):
                    lgw(('A', sl, dp)); lgw(('B', ct, dp))
                    a = acc(rt, ac)
                    c = f'v[{a}:{a+3}]' if (rt, ac) in touched else '0'
                    touched.add((rt, ac))
                    k(f'v_mfma_f32_16x16x32_bf16 v[{a}:{a+3}], v[{S+4*sl}:{S+4*sl+3}], v[{S+16+4*ct}:{S+19+4*ct}], {c}')
                    lo_i = mi * len(nx) // len(ms); hi_i = (mi + 1) * len(nx) // len(ms)
                    for r_ in nx[lo_i:hi_i]: lg.issue(*r_)
            for rt in range(2):
                for ct in range(4):
                    if (rt, ct) not in touched:
                        a = acc(rt, ct)
                        k(f'v_mov_b32 v{a}, 0\nv_mov_b32 v{a+1}, 0\nv_mov_b32 v{a+2}, 0\nv_mov_b32 v{a+3}, 0')
            if wv < 3: k('s_branch L_cv16_done')
        k.label('L_cv16_done')
        k('s_nop 7')
        stamp_mid(k, 2)
        k('s_barrier')
        for rt in range(2):
            for ct in range(4):
                a = acc(rt, ct)
                k(f'ds_write_b128 v14, v[{a}:{a+3}] offset:{ct*2304 + rt*64}')
        k('v_mov_b32 v44, v15\nv_mov_b32 v47, v16')
    else:
        steps = [(e, ks) for e in range(8) for ks in range(2)]
        def loads(si):
            e, ks = steps[si]
            r = 64 + 16 * (si & 1)
            oa = 64 * e + 32 * ks
            ob = 80 * e + 32 * ks
            k(f'ds_read_b64 v[{r}:{r+1}], v41 offset:{oa+2048}')
            k(f'ds_read_b64 v[{r+2}:{r+3}], v41 offset:{oa+2048+8}')
            k(f'ds_read_b128 v[{r+12}:{r+15}], v42 offset:{ob+2560}')
            k(f'ds_read_b128 v[{r+8}:{r+11}], v42 offset:{ob}')
            k(f'ds_read_b64 v[{r+4}:{r+5}], v41 offset:{oa}')
            k(f'ds_read_b64 v[{r+6}:{r+7}], v41 offset:{oa+8}')
        def rd_list(si):
            e, ks = steps[si]
            r = 64 + 16 * (si & 1)
            oa = 64 * e + 32 * ks
            ob = 80 * e + 32 * ks
            return [f'ds_read_b64 v[{r}:{r+1}], v41 offset:{oa+2048}', f'ds_read_b64 v[{r+2}:{r+3}], v41 offset:{oa+2048+8}',
                    f'ds_read_b128 v[{r+12}:{r+15}], v42 offset:{ob+2560}', f'ds_read_b128 v[{r+8}:{r+11}], v42 offset:{ob}',
                    f'ds_read_b64 v[{r+4}:{r+5}], v41 offset:{oa}', f'ds_read_b64 v[{r+6}:{r+7}], v41 offset:{oa+8}']
        if os.environ.get('CVSCHED', '1') == '1':
            for x in rd_list(0): k(x)
            for si in range(16):
                r = 64 + 16 * (si & 1)
                nx = rd_list(si + 1) if si + 1 < 16 else []
                c1 = '0' if si == 0 else 'v[112:127]'
                c0 = '0' if si == 0 else 'v[96:111]'
                k('s_waitcnt lgkmcnt(3)')
                k(f'v_mfma_f32_32x32x16_bf16 v[112:127], v[{r}:{r+3}], v[{r+12}:{r+15}], {c1}')
                for x in nx[0:2]: k(x)
                k(f's_waitcnt lgkmcnt({2 + len(nx[0:2])})')
                k(f'v_mfma_f32_32x32x16_bf16 v[96:111], v[{r}:{r+3}], v[{r+8}:{r+11}], {c0}')
                for x in nx[2:4]: k(x)
                k(f's_waitcnt lgkmcnt({len(nx[0:4])})')
                k(f'v_mfma_f32_32x32x16_bf16 v[112:127], v[{r+4}:{r+7}], v[{r+8}:{r+11}], v[112:127]')
                for x in nx[4:6]: k(x)
        else:
            loads(0)
            for si in range(16):
                r = 64 + 16 * (si & 1)
                if si + 1 < 16:
                    loads(si + 1)
                    k('s_waitcnt lgkmcnt(6)')
                else:
                    k('s_waitcnt lgkmcnt(0)')
                c1 = '0' if si == 0 else 'v[112:127]'
                c0 = '0' if si == 0 else 'v[96:111]'
                k(f'v_mfma_f32_32x32x16_bf16 v[112:127], v[{r}:{r+3}], v[{r+12}:{r+15}], {c1}')
                k(f'v_mfma_f32_32x32x16_bf16 v[96:111], v[{r}:{r+3}], v[{r+8}:{r+11}], {c0}')
                k(f'v_mfma_f32_32x32x16_bf16 v[112:127], v[{r+4}:{r+7}], v[{r+8}:{r+11}], v[112:127]')
        stamp_mid(k, 2)
        k('s_barrier')
        for j in range(4):
            k(f'ds_write_b128 v43, v[{96+4*j}:{99+4*j}] offset:{32*j}')
        for j in range(4):
            k(f'ds_write_b128 v43, v[{112+4*j}:{115+4*j}] offset:{32*j+4608}')
    k('s_waitcnt lgkmcnt(0)\ns_barrier')
    for w in range(4):
        k(f'ds_read_b128 v[{64+8*w}:{67+8*w}], v44 offset:{9216*w}')
        k(f'ds_read_b128 v[{68+8*w}:{71+8*w}], v44 offset:{9216*w+16}')
    for i in range(4):
        k(f'v_lshlrev_b32 v{24+2*i}, 16, v{8+i}\nv_and_b32 v{25+2*i}, 0xffff0000, v{8+i}')
    for i in range(4):
        k(f'v_lshlrev_b32 v{48+2*i}, 16, v{20+i}\nv_and_b32 v{49+2*i}, 0xffff0000, v{20+i}')
    k('s_waitcnt lgkmcnt(0)')
    for i in range(8): k(f'v_add_f32 v{64+i}, v{64+i}, v{72+i}')
    for i in range(8): k(f'v_add_f32 v{80+i}, v{80+i}, v{88+i}')
    for i in range(8): k(f'v_add_f32 v{64+i}, v{64+i}, v{80+i}')
    for i in range(8):
        k(f'v_fma_f32 v{64+i}, v{24+i}, s52, v{64+i}        ; y + h*D')
    for i in range(8):
        k(f'v_fma_f32 v{64+i}, v{64+i}, v47, v{48+i}        ; x + ga*(.)')
    for i in range(4):
        k(f'v_cvt_pk_bf16_f32 v{64+i}, v{64+2*i}, v{65+2*i}')
    k(f'buffer_store_dwordx4 v[64:67], v3, s[32:35], s26 offen{WT}')
    if STAMPS: k('s_waitcnt vmcnt(0)')
    stamp_end(k, 1)
    k('s_endpgm')

    emit_wprep(k, N_CV if CVFIRST else 0)
    if N_WD2: _k1.emit_wd(k, N_CV + N_WP, 1, 'L_k2_wd')
    return k

def emit_wprep(k, base_id):
    k.label('L_k2_wp')
    if os.environ.get('WPPRIO', '0') != '0': k(f"s_setprio {os.environ.get('WPPRIO')}")
    if os.environ.get('EXP_NOWP'): k('s_endpgm')
    load_ptr(k, 4, 'wg'); load_ptr(k, 8, 'wu'); load_ptr(k, 12, 'ws')
    k(f's_sub_u32 s3, s2, {base_id}')
    k('s_mul_hi_u32 s16, s3, 0x33333334')
    k('s_mul_i32 s17, s16, 5\ns_sub_u32 s17, s3, s17       ; dq')
    k('v_and_b32 v1, 63, v0            ; lane')
    k('v_lshrrev_b32 v2, 6, v0\nv_readfirstlane_b32 s18, v2     ; w')
    k('v_lshrrev_b32 v3, 3, v1\nv_and_b32 v4, 7, v1')
    k('v_lshrrev_b32 v5, 4, v1\nv_and_b32 v5, 1, v5\nv_lshlrev_b32 v5, 1, v5\nv_xor_b32 v4, v4, v5')
    k('v_xor_b32 v5, 4, v4')
    k('v_mul_u32_u24 v3, 3072, v3')
    k('v_lshl_add_u32 v4, v4, 4, v3')
    k('v_lshl_add_u32 v5, v5, 4, v3')
    k('s_mul_i32 s19, s17, 128*3072\ns_lshl_b32 s20, s16, 7\ns_add_u32 s19, s19, s20')
    k('s_mul_i32 s20, s18, 4*24576\ns_add_u32 s19, s19, s20')
    k('s_lshl_b32 s21, s18, 12')
    k('s_lshl_b32 s22, s17, 9\nv_lshlrev_b32 v6, 2, v0\nv_add_u32 v6, s22, v6     ; d*4')
    k('s_waitcnt lgkmcnt(0)')
    srd_fin(k, 4, SZ['wg']); srd_fin(k, 8, SZ['wu'])
    k(f's_add_u32 s24, s12, {WS_MODP}\ns_addc_u32 s25, s13, 0\ns_mov_b32 s26, 61440\ns_mov_b32 s27, {SRD3:#x}')
    for kq in range(4):
        k(f's_mov_b32 s23, {kq*15360 + 3*2560}')
        k(f'buffer_load_dword v{8+kq}, v6, s[24:27], s23 offen')
        k(f'buffer_load_dword v{12+kq}, v6, s[24:27], s23 offen offset:2560')
    for q in range(4):
        k(f's_add_u32 m0, s21, {q*1024}')
        k(f's_add_u32 s23, s19, {q*24576}')
        k(f'buffer_load_dwordx4 v4, s[4:7], s23 offen{NT} lds')
        k(f's_add_u32 m0, s21, {q*1024 + 16384}')
        k('s_nop 0')
        k(f'buffer_load_dwordx4 v5, s[8:11], s23 offen{NT} lds')
    k(f's_add_u32 s28, s12, {WS_WP}\ns_addc_u32 s29, s13, 0\ns_mov_b32 s30, 3932160\ns_mov_b32 s31, {SRD3:#x}')
    k(f's_add_u32 s32, s12, {WS_PQ}\ns_addc_u32 s33, s13, 0\ns_mov_b32 s34, 122880\ns_mov_b32 s35, {SRD3:#x}')
    k('s_waitcnt vmcnt(8)')
    k('v_add_f32 v8, v8, v9\nv_add_f32 v10, v10, v11\nv_add_f32 v12, v12, v13\nv_add_f32 v14, v14, v15')
    k('v_add_f32 v8, v8, v10\nv_add_f32 v12, v12, v14')
    k('v_cvt_pk_bf16_f32 v8, v8, v12')
    k('v_and_b32 v12, 0xffff0000, v8\nv_add_f32 v12, 1.0, v12\nv_cvt_pk_bf16_f32 v12, v12, v12\nv_lshlrev_b32 v12, 16, v12')
    k('v_lshlrev_b32 v9, 2, v0\nv_lshlrev_b32 v10, 1, v0')
    k('v_cmp_gt_u32 vcc, 128, v0')
    k('s_and_saveexec_b64 s[36:37], vcc')
    k('v_lshlrev_b32 v8, 16, v8')
    k('ds_write_b32 v9, v12 offset:32768')
    k('ds_write_b32 v9, v8 offset:33280')
    k('s_mov_b64 exec, s[36:37]')
    k('v_lshrrev_b32 v3, 4, v1          ; grp')
    k('v_and_b32 v7, 15, v1\nv_lshrrev_b32 v8, 2, v7      ; r\nv_and_b32 v7, 3, v7       ; c')
    k('v_lshrrev_b32 v9, 1, v3          ; g')
    k('v_and_b32 v10, 1, v3             ; grp&1')
    k('v_lshrrev_b32 v11, 1, v7         ; mat')
    k('v_lshrrev_b32 v12, 1, v8\nv_lshlrev_b32 v12, 1, v12      ; 2*((r>>1)&1)')
    k('v_xor_b32 v10, v10, v12\nv_lshlrev_b32 v12, 2, v11\nv_xor_b32 v10, v10, v12     ; X')
    k('v_lshlrev_b32 v10, 4, v10')
    k('v_lshl_add_u32 v10, v11, 14, v10         ; + mat*16384')
    k('v_lshl_add_u32 v12, v9, 3, v8            ; 8g + r')
    k('v_lshl_add_u32 v10, v12, 7, v10          ; + row*128')
    k('v_and_b32 v12, 1, v7\nv_lshl_add_u32 v10, v12, 3, v10')
    k('s_lshl_b32 s23, s18, 5\nv_xor_b32 v10, s23, v10      ; ^ 32*tl')
    k('v_lshlrev_b32 v11, 5, v9\nv_lshlrev_b32 v12, 4, v9')
    k('s_lshl_b32 s23, s16, 2\ns_add_u32 s23, s23, s18        ; T')
    k('s_mul_i32 s38, s17, 8*96\ns_add_u32 s38, s38, s23\ns_lshl_b32 s38, s38, 10')
    k('v_lshlrev_b32 v13, 4, v1')
    k('s_mov_b32 s39, 0x3f803f80')
    k('v_mov_b32 v14, 0\nv_mov_b32 v15, 0\nv_mov_b32 v98, 0\nv_mov_b32 v99, 0')
    k('s_waitcnt vmcnt(0) lgkmcnt(0)\ns_barrier')
    def wp_reads(ksl):
        b = 16 + 36 * (ksl & 1)
        k(f'ds_read_b64_tr_b16 v[{b}:{b+1}], v10 offset:{ksl*2048}')
        k(f'ds_read_b64_tr_b16 v[{b+2}:{b+3}], v10 offset:{ksl*2048+512}')
        k(f'ds_read_b128 v[{b+4}:{b+7}], v11 offset:{32768 + ksl*64}')
        k(f'ds_read_b128 v[{b+8}:{b+11}], v11 offset:{32768 + ksl*64 + 16}')
        k(f'ds_read_b128 v[{b+12}:{b+15}], v11 offset:{33280 + ksl*64}')
        k(f'ds_read_b128 v[{b+16}:{b+19}], v11 offset:{33280 + ksl*64 + 16}')
    wp_reads(0)
    for ksl in range(8):
        b = 16 + 36 * (ksl & 1)
        if ksl < 7:
            wp_reads(ksl + 1)
            k('s_waitcnt lgkmcnt(6)')
        else:
            k('s_waitcnt lgkmcnt(0)')
        U = b + 20
        for j in range(4):
            k(f'v_lshlrev_b32 v{U+2*j}, 16, v{b+j}\nv_and_b32 v{U+1+2*j}, 0xffff0000, v{b+j}')
        for j in range(8):
            k(f'v_fma_f32 v{15 if j % 2 == 0 else 98}, v{U+j}, v{b+12+j}, v{15 if j % 2 == 0 else 98}')
        for j in range(8):
            k(f'v_mul_f32 v{U+j}, v{U+j}, v{b+4+j}')
        for j in range(4):
            k(f'v_cvt_pk_bf16_f32 v{b+28+j}, v{U+2*j}, v{U+1+2*j}')
        for j in range(8):
            k(f'v_add_f32 v{14 if j % 2 == 0 else 99}, v{14 if j % 2 == 0 else 99}, v{U+j}')
        k(f'buffer_store_dwordx4 v[{b+28}:{b+31}], v13, s[28:31], s38 offen{WT}')
        k(f's_add_u32 s38, s38, {96*1024}')
    k('v_add_f32 v14, v14, v99\nv_add_f32 v15, v15, v98')
    k('v_mov_b32 v16, v14\nv_mov_b32 v17, v15')
    k('v_permlane32_swap_b32 v14, v16\nv_permlane32_swap_b32 v15, v17')
    k('v_add_f32 v14, v14, v16\nv_add_f32 v15, v15, v17')
    k('s_mul_i32 s38, s17, 96\ns_add_u32 s38, s38, s23\ns_lshl_b32 s38, s38, 8       ; (dq*96+T)*256')
    k('v_lshlrev_b32 v13, 3, v1')
    k('v_cmp_gt_u32 vcc, 32, v1')
    k('s_and_saveexec_b64 s[36:37], vcc')
    k(f'buffer_store_dwordx2 v[14:15], v13, s[32:35], s38 offen{WT}')
    k('s_mov_b64 exec, s[36:37]')
    if STAMPS: k('s_waitcnt vmcnt(0)')
    stamp_end(k, 1)
    k('s_endpgm')
```

```python
from asmlib import K, Q
from common import *
import os

import os
N_WP, N_CV = 120, int(os.environ.get('EXP_NCV', 640))
import k1 as _k1
N_WD2 = 48 if _k1.WDK2 else 0
K2_GRID = N_WP + N_CV + N_WD2
K2_LDS = 40960
CVFIRST = os.environ.get('CVFIRST', '1') == '1'
CV16 = os.environ.get('CV16', '1') == '1'
HP = 96 if CV16 else 80

def build_k2():
    k = K('conv_kernel')
    stamp_begin(k)
    if CVFIRST:
        k(f's_cmp_lt_u32 s2, {N_CV}\ns_cbranch_scc1 L_k2_cv')
        k(f's_cmp_lt_u32 s2, {N_CV + N_WP}\ns_cbranch_scc1 L_k2_wp')
        if N_WD2: k(f's_cmp_lt_u32 s2, {K2_GRID}\ns_cbranch_scc1 L_k2_wd')
    else:
        k(f's_cmp_lt_u32 s2, {N_WP}\ns_cbranch_scc1 L_k2_wp')
        k(f's_cmp_lt_u32 s2, {K2_GRID}\ns_cbranch_scc1 L_k2_cv')
    k('s_endpgm')

    k.label('L_k2_cv')
    load_ptr(k, 4, 'ws'); load_ptr(k, 20, 'dsk')
    k(f's_sub_u32 s3, s2, {0 if CVFIRST else N_WP}')
    k('s_and_b32 s24, s3, 0xffffffe0\ns_and_b32 s25, s3, 7\ns_lshl_b32 s25, s25, 2\ns_or_b32 s24, s24, s25')
    k('s_lshr_b32 s25, s3, 3\ns_and_b32 s25, s25, 3\ns_or_b32 s3, s24, s25          ; d')
    k('v_lshlrev_b32 v1, 6, v0            ; t*64')
    k('s_and_b32 s24, s3, 3\ns_lshl_b32 s24, s24, 4')
    k('v_add_u32 v1, s24, v1')
    if os.environ.get('EXP_XT'): k('v_lshlrev_b32 v1, 4, v0')
    k('v_lshlrev_b32 v2, 5, v0')
    k('v_lshlrev_b32 v3, 4, v0            ; t*16')
    k('s_lshr_b32 s25, s3, 2\ns_lshl_b32 s25, s25, 14')
    if os.environ.get('EXP_XT'): k('s_lshl_b32 s25, s3, 12')
    k('s_lshl_b32 s26, s3, 12             ; d*4096')
    k('s_lshl_b32 s27, s3, 2              ; d*4')
    k('s_lshr_b32 s28, s3, 1\ns_lshl_b32 s28, s28, 2')
    k('s_waitcnt lgkmcnt(0)')
    stamp_mid(k, 3)
    k('s_add_u32 s30, s4, s27\ns_addc_u32 s31, s5, 0')
    for kq in range(4):
        for i in range(3):
            k(f's_load_dword s{40+4*i+kq}, s[30:31], {WS_MODP + kq*15360 + i*2560}')
    k('s_add_u32 s20, s20, s28\ns_addc_u32 s21, s21, 0')
    k('s_load_dword s52, s[20:21], 0')
    k(f's_add_u32 s8, s4, {WS_XT}\ns_addc_u32 s9, s5, 0\ns_mov_b32 s10, 2621440\ns_mov_b32 s11, {SRD3:#x}')
    k(f's_add_u32 s12, s4, {WS_STATS}\ns_addc_u32 s13, s5, 0\ns_mov_b32 s14, 8192\ns_mov_b32 s15, {SRD3:#x}')
    k(f's_add_u32 s16, s4, {WS_R}\ns_addc_u32 s17, s5, 0\ns_add_u32 s16, s16, s26\ns_addc_u32 s17, s17, 0\ns_mov_b32 s18, 4096\ns_mov_b32 s19, {SRD3:#x}')
    k('buffer_load_dwordx4 v[8:11], v3, s[16:19], 0 offen')
    k('buffer_load_dwordx4 v[12:15], v3, s[16:19], 0 offen offset:4')
    k('buffer_load_dwordx4 v[16:19], v3, s[16:19], 0 offen offset:8')
    k('buffer_load_dwordx4 v[20:23], v1, s[8:11], s25 offen        ; x')
    k('buffer_load_dwordx4 v[24:27], v2, s[12:15], 0 offen')
    k('buffer_load_dwordx4 v[28:31], v2, s[12:15], 0 offen offset:16')
    k(f's_add_u32 s32, s4, {WS_X2T}\ns_addc_u32 s33, s5, 0\ns_mov_b32 s34, 2621440\ns_mov_b32 s35, {SRD3:#x}')
    HB = 16640
    k('v_mov_b32 v32, 0\nv_mov_b32 v33, 0\nv_mov_b32 v34, 0\nv_mov_b32 v35, 0')
    k('v_lshrrev_b32 v4, 2, v0\nv_and_b32 v5, 3, v0')
    k(f'v_mul_u32_u24 v6, {HP}, v4\nv_lshl_add_u32 v6, v5, 4, v6        ; (t>>2)*pitch + (t&3)*16')
    k('v_mul_u32_u24 v7, 4160, v4\nv_lshl_add_u32 v7, v5, 4, v7')
    k('v_cmp_gt_u32 vcc, 128, v0')
    k('s_and_saveexec_b64 s[36:37], vcc')
    k(f'ds_write_b128 v6, v[32:35] offset:{HB}')
    k('v_cmp_gt_u32 vcc, 16, v0')
    k('s_and_b64 exec, exec, vcc')
    k('ds_write_b128 v7, v[32:35] offset:4096')
    k('s_mov_b64 exec, s[36:37]')
    k('v_and_b32 v36, 63, v0            ; lane')
    k('v_lshrrev_b32 v37, 6, v0         ; w')
    k('v_and_b32 v38, 31, v36           ; b / n')
    k('v_lshrrev_b32 v39, 5, v36        ; g')
    k('v_sub_u32 v40, 3, v38\nv_and_b32 v40, 3, v40       ; s_b')
    k('v_mul_u32_u24 v41, 4160, v40')
    k('v_sub_u32 v42, 2047, v38\nv_lshl_add_u32 v42, v39, 3, v42\nv_sub_u32 v42, v42, v40')
    k('v_lshl_add_u32 v41, v42, 1, v41')
    k('v_lshlrev_b32 v42, 9, v37        ; w*512 = 64*8w')
    k(f'v_sub_u32 v41, v41, v42\nv_subrev_u32 v41, {64*39}, v41      ; baseA')
    k('v_lshlrev_b32 v42, 3, v37\nv_sub_u32 v42, v38, v42\nv_add_u32 v42, 25, v42      ; 32 + n - 8w - 7')
    k('v_mul_u32_u24 v42, 80, v42\nv_lshl_add_u32 v42, v39, 4, v42')
    k(f'v_add_u32 v42, {HB}, v42           ; baseB')
    k('v_mul_u32_u24 v43, 9216, v37\nv_mul_u32_u24 v44, 144, v38\nv_add_u32 v43, v43, v44\nv_lshl_add_u32 v43, v39, 4, v43')
    k('v_mul_u32_u24 v44, 144, v4\nv_lshl_add_u32 v44, v5, 5, v44')
    if CV16:
        k('v_and_b32 v38, 15, v36\nv_lshrrev_b32 v39, 4, v36')
        k('v_readfirstlane_b32 s54, v37')
        k('v_sub_u32 v40, 3, v38\nv_and_b32 v40, 3, v40\nv_mul_u32_u24 v41, 4160, v40')
        k('v_sub_u32 v42, 2047, v38\nv_lshl_add_u32 v42, v39, 3, v42\nv_sub_u32 v42, v42, v40\nv_lshl_add_u32 v41, v42, 1, v41        ; A0')
        k('s_mov_b32 s55, 6\ns_cmp_eq_u32 s54, 1\ns_cselect_b32 s55, 13, s55\ns_cmp_eq_u32 s54, 2\ns_cselect_b32 s55, 21, s55\ns_cmp_eq_u32 s54, 3\ns_cselect_b32 s55, 31, s55      ; hi-1')
        k('s_add_u32 s56, s55, 32\ns_lshl_b32 s56, s56, 6\ns_add_u32 s56, s56, 32\nv_subrev_u32 v1, s56, v41       ; baseA')
        k(f'v_add_u32 v42, 32, v38\nv_subrev_u32 v42, s55, v42\nv_mul_u32_u24 v42, {HP}, v42\nv_lshl_add_u32 v42, v39, 4, v42\nv_add_u32 v2, {HB}, v42       ; baseB')
        k('v_mul_u32_u24 v4, 9216, v37\nv_mul_u32_u24 v42, 144, v38\nv_add_u32 v4, v4, v42\nv_lshl_add_u32 v4, v39, 4, v4')
        k('v_mov_b32 v5, v44')
    k('s_waitcnt lgkmcnt(0)')
    for i, dst in enumerate((45, 46, 47)):
        k(f'v_mov_b32 v{dst}, s{40+4*i}')
        for kq in range(1, 4):
            k(f'v_add_f32 v{dst}, s{40+4*i+kq}, v{dst}')
    k('v_cvt_pk_bf16_f32 v45, v45, v46')
    k('v_cvt_pk_bf16_f32 v47, v47, v47')
    k('v_and_b32 v46, 0xffff0000, v45\nv_lshlrev_b32 v45, 16, v45\nv_lshlrev_b32 v47, 16, v47')
    k('v_add_f32 v46, 1.0, v46\nv_cvt_pk_bf16_f32 v46, v46, v46\nv_lshlrev_b32 v46, 16, v46')
    k('s_and_b32 s53, s3, 1\ns_lshl_b32 s53, s53, 4\ns_lshr_b32 s52, s52, s53\ns_lshl_b32 s52, s52, 16')
    k('s_waitcnt vmcnt(3)')
    k('ds_write_b128 v3, v[8:11]')
    k('ds_write_b128 v3, v[12:15] offset:8320')
    for i in range(4):
        k(f'v_alignbit_b32 v{48+i}, v{12+i}, v{8+i}, 16')
    for i in range(4):
        k(f'v_alignbit_b32 v{52+i}, v{16+i}, v{12+i}, 16')
    k('ds_write_b128 v3, v[48:51] offset:4160')
    k('ds_write_b128 v3, v[52:55] offset:12480')
    stamp_mid(k, 0)
    k('s_waitcnt vmcnt(0)')
    for i in range(8):
        st = 24 + i
        k(f'v_and_b32 v{56+i}, 0xffff0000, v{st}      ; sd')
    for i in range(8):
        k(f'v_rcp_f32 v{56+i}, v{56+i}')
    for i in range(8):
        k(f'v_lshlrev_b32 v{24+i}, 16, v{24+i}        ; mean')
    for i in range(4):
        k(f'v_lshlrev_b32 v{64+2*i}, 16, v{20+i}\nv_and_b32 v{65+2*i}, 0xffff0000, v{20+i}')
    for i in range(8): k(f'v_sub_f32 v{64+i}, v{64+i}, v{24+i}')
    for i in range(8): k(f'v_mul_f32 v{64+i}, v{64+i}, v{56+i}')
    for i in range(8):
        k(f'v_fma_f32 v{64+i}, v{64+i}, v46, v45')
    for i in range(4):
        k(f'v_cvt_pk_bf16_f32 v{8+i}, v{64+2*i}, v{65+2*i}       ; h packed v8..11')
    k(f'ds_write_b128 v6, v[8:11] offset:{HB + 32*HP}')
    if CV16: k('v_mov_b32 v16, v47')
    k('s_waitcnt lgkmcnt(0)\ns_barrier')
    stamp_mid(k, 1)
    if CV16:
        RANGES = [(0, 7), (7, 14), (14, 22), (22, 32)]
        lg = Q(k, 'lgkmcnt', 15)
        ACC = 96
        def acc(rt, ct): return ACC + 4 * (4 * rt + ct)
        def step_reads(S, dp, hi):
            oa = lambda dl, rt: 64 * (hi - 1 + 32 - dl) + 32 * (1 - rt)
            ob = lambda ct: HP * (hi - 1 - dp + 16 * ct)
            out = []
            def A(slot, dl, rt):
                out.append((f'ds_read_b64 v[{S+4*slot}:{S+4*slot+1}], v1 offset:{oa(dl, rt)}', ('A', slot, dp)))
                out.append((f'ds_read_b64 v[{S+4*slot+2}:{S+4*slot+3}], v1 offset:{oa(dl, rt)+8}', ('A', slot, dp)))
            def B(ct): out.append((f'ds_read_b128 v[{S+16+4*ct}:{S+19+4*ct}], v2 offset:{ob(ct)}', ('B', ct, dp)))
            A(0, dp, 0); B(2); B(3); A(1, dp, 1); B(1)
            if dp < 16: B(0)
            A(2, dp + 32, 0); A(3, dp + 32, 1)
            return out
        def step_mfmas(dp):
            m = [(0, 2, 0, 2), (0, 3, 0, 3), (1, 2, 1, 2), (1, 3, 1, 3), (0, 1, 0, 1), (1, 1, 1, 1)]
            if dp < 16: m += [(0, 0, 0, 0), (1, 0, 1, 0)]
            m += [(2, 1, 0, 3), (3, 1, 1, 3)]
            if dp < 16: m += [(2, 0, 0, 2), (3, 0, 1, 2)]
            return m
        def lgw(tag):
            idx = max(i for i, t in enumerate(lg.ops) if t == tag)
            if idx < lg.done: return
            n = min(15, len(lg.ops) - 1 - idx)
            k(f's_waitcnt lgkmcnt({n})'); lg.done = max(lg.done, len(lg.ops) - n)
        for wv, (lo_, hi_) in enumerate(RANGES):
            if wv: k.label(f'L_cv16_w{wv}')
            if wv < 3: k(f's_cmp_lg_u32 s54, {wv}\ns_cbranch_scc1 L_cv16_w{wv+1}')
            lg.ops = []; lg.done = 0
            touched = set()
            dps = list(range(lo_, hi_))
            for r_ in step_reads(32, dps[0], hi_): lg.issue(*r_)
            for si, dp in enumerate(dps):
                S = 32 + 32 * (si & 1)
                nx = step_reads(32 + 32 * ((si + 1) & 1), dps[si + 1], hi_) if si + 1 < len(dps) else []
                ms = step_mfmas(dp)
                for mi, (sl, ct, rt, ac) in enumerate(ms):
                    lgw(('A', sl, dp)); lgw(('B', ct, dp))
                    a = acc(rt, ac)
                    c = f'v[{a}:{a+3}]' if (rt, ac) in touched else '0'
                    touched.add((rt, ac))
                    k(f'v_mfma_f32_16x16x32_bf16 v[{a}:{a+3}], v[{S+4*sl}:{S+4*sl+3}], v[{S+16+4*ct}:{S+19+4*ct}], {c}')
                    lo_i = mi * len(nx) // len(ms); hi_i = (mi + 1) * len(nx) // len(ms)
                    for r_ in nx[lo_i:hi_i]: lg.issue(*r_)
            for rt in range(2):
                for ct in range(4):
                    if (rt, ct) not in touched:
                        a = acc(rt, ct)
                        k(f'v_mov_b32 v{a}, 0\nv_mov_b32 v{a+1}, 0\nv_mov_b32 v{a+2}, 0\nv_mov_b32 v{a+3}, 0')
            if wv < 3: k('s_branch L_cv16_done')
        k.label('L_cv16_done')
        k('s_nop 7')
        stamp_mid(k, 2)
        k('s_barrier')
        for rt in range(2):
            for ct in range(4):
                a = acc(rt, ct)
                k(f'ds_write_b128 v4, v[{a}:{a+3}] offset:{ct*2304 + rt*64}')
        k('v_mov_b32 v44, v5\nv_mov_b32 v47, v16')
    else:
        steps = [(e, ks) for e in range(8) for ks in range(2)]
        def loads(si):
            e, ks = steps[si]
            r = 64 + 16 * (si & 1)
            oa = 64 * e + 32 * ks
            ob = 80 * e + 32 * ks
            k(f'ds_read_b64 v[{r}:{r+1}], v41 offset:{oa+2048}')
            k(f'ds_read_b64 v[{r+2}:{r+3}], v41 offset:{oa+2048+8}')
            k(f'ds_read_b128 v[{r+12}:{r+15}], v42 offset:{ob+2560}')
            k(f'ds_read_b128 v[{r+8}:{r+11}], v42 offset:{ob}')
            k(f'ds_read_b64 v[{r+4}:{r+5}], v41 offset:{oa}')
            k(f'ds_read_b64 v[{r+6}:{r+7}], v41 offset:{oa+8}')
        def rd_list(si):
            e, ks = steps[si]
            r = 64 + 16 * (si & 1)
            oa = 64 * e + 32 * ks
            ob = 80 * e + 32 * ks
            return [f'ds_read_b64 v[{r}:{r+1}], v41 offset:{oa+2048}', f'ds_read_b64 v[{r+2}:{r+3}], v41 offset:{oa+2048+8}',
                    f'ds_read_b128 v[{r+12}:{r+15}], v42 offset:{ob+2560}', f'ds_read_b128 v[{r+8}:{r+11}], v42 offset:{ob}',
                    f'ds_read_b64 v[{r+4}:{r+5}], v41 offset:{oa}', f'ds_read_b64 v[{r+6}:{r+7}], v41 offset:{oa+8}']
        if os.environ.get('CVSCHED', '1') == '1':
            for x in rd_list(0): k(x)
            for si in range(16):
                r = 64 + 16 * (si & 1)
                nx = rd_list(si + 1) if si + 1 < 16 else []
                c1 = '0' if si == 0 else 'v[112:127]'
                c0 = '0' if si == 0 else 'v[96:111]'
                k('s_waitcnt lgkmcnt(3)')
                k(f'v_mfma_f32_32x32x16_bf16 v[112:127], v[{r}:{r+3}], v[{r+12}:{r+15}], {c1}')
                for x in nx[0:2]: k(x)
                k(f's_waitcnt lgkmcnt({2 + len(nx[0:2])})')
                k(f'v_mfma_f32_32x32x16_bf16 v[96:111], v[{r}:{r+3}], v[{r+8}:{r+11}], {c0}')
                for x in nx[2:4]: k(x)
                k(f's_waitcnt lgkmcnt({len(nx[0:4])})')
                k(f'v_mfma_f32_32x32x16_bf16 v[112:127], v[{r+4}:{r+7}], v[{r+8}:{r+11}], v[112:127]')
                for x in nx[4:6]: k(x)
        else:
            loads(0)
            for si in range(16):
                r = 64 + 16 * (si & 1)
                if si + 1 < 16:
                    loads(si + 1)
                    k('s_waitcnt lgkmcnt(6)')
                else:
                    k('s_waitcnt lgkmcnt(0)')
                c1 = '0' if si == 0 else 'v[112:127]'
                c0 = '0' if si == 0 else 'v[96:111]'
                k(f'v_mfma_f32_32x32x16_bf16 v[112:127], v[{r}:{r+3}], v[{r+12}:{r+15}], {c1}')
                k(f'v_mfma_f32_32x32x16_bf16 v[96:111], v[{r}:{r+3}], v[{r+8}:{r+11}], {c0}')
                k(f'v_mfma_f32_32x32x16_bf16 v[112:127], v[{r+4}:{r+7}], v[{r+8}:{r+11}], v[112:127]')
        stamp_mid(k, 2)
        k('s_barrier')
        for j in range(4):
            k(f'ds_write_b128 v43, v[{96+4*j}:{99+4*j}] offset:{32*j}')
        for j in range(4):
            k(f'ds_write_b128 v43, v[{112+4*j}:{115+4*j}] offset:{32*j+4608}')
    k('s_waitcnt lgkmcnt(0)\ns_barrier')
    for w in range(4):
        k(f'ds_read_b128 v[{64+8*w}:{67+8*w}], v44 offset:{9216*w}')
        k(f'ds_read_b128 v[{68+8*w}:{71+8*w}], v44 offset:{9216*w+16}')
    for i in range(4):
        k(f'v_lshlrev_b32 v{24+2*i}, 16, v{8+i}\nv_and_b32 v{25+2*i}, 0xffff0000, v{8+i}')
    for i in range(4):
        k(f'v_lshlrev_b32 v{48+2*i}, 16, v{20+i}\nv_and_b32 v{49+2*i}, 0xffff0000, v{20+i}')
    k('s_waitcnt lgkmcnt(0)')
    for i in range(8): k(f'v_add_f32 v{64+i}, v{64+i}, v{72+i}')
    for i in range(8): k(f'v_add_f32 v{80+i}, v{80+i}, v{88+i}')
    for i in range(8): k(f'v_add_f32 v{64+i}, v{64+i}, v{80+i}')
    for i in range(8):
        k(f'v_fma_f32 v{64+i}, v{24+i}, s52, v{64+i}        ; y + h*D')
    for i in range(8):
        k(f'v_fma_f32 v{64+i}, v{64+i}, v47, v{48+i}        ; x + ga*(.)')
    for i in range(4):
        k(f'v_cvt_pk_bf16_f32 v{64+i}, v{64+2*i}, v{65+2*i}')
    k(f'buffer_store_dwordx4 v[64:67], v3, s[32:35], s26 offen{WT}')
    if STAMPS: k('s_waitcnt vmcnt(0)')
    stamp_end(k, 1)
    k('s_endpgm')

    emit_wprep(k, N_CV if CVFIRST else 0)
    if N_WD2: _k1.emit_wd(k, N_CV + N_WP, 1, 'L_k2_wd')
    return k

def emit_wprep(k, base_id):
    k.label('L_k2_wp')
    if os.environ.get('WPPRIO', '0') != '0': k(f"s_setprio {os.environ.get('WPPRIO')}")
    if os.environ.get('EXP_NOWP'): k('s_endpgm')
    load_ptr(k, 4, 'wg'); load_ptr(k, 8, 'wu'); load_ptr(k, 12, 'ws')
    k(f's_sub_u32 s3, s2, {base_id}')
    k('s_mul_hi_u32 s16, s3, 0x33333334')
    k('s_mul_i32 s17, s16, 5\ns_sub_u32 s17, s3, s17       ; dq')
    k('v_and_b32 v1, 63, v0            ; lane')
    k('v_lshrrev_b32 v2, 6, v0\nv_readfirstlane_b32 s18, v2     ; w')
    k('v_lshrrev_b32 v3, 3, v1\nv_and_b32 v4, 7, v1')
    k('v_lshrrev_b32 v5, 4, v1\nv_and_b32 v5, 1, v5\nv_lshlrev_b32 v5, 1, v5\nv_xor_b32 v4, v4, v5')
    k('v_xor_b32 v5, 4, v4')
    k('v_mul_u32_u24 v3, 3072, v3')
    k('v_lshl_add_u32 v4, v4, 4, v3')
    k('v_lshl_add_u32 v5, v5, 4, v3')
    k('s_mul_i32 s19, s17, 128*3072\ns_lshl_b32 s20, s16, 7\ns_add_u32 s19, s19, s20')
    k('s_mul_i32 s20, s18, 4*24576\ns_add_u32 s19, s19, s20')
    k('s_lshl_b32 s21, s18, 12')
    k('s_lshl_b32 s22, s17, 9\nv_lshlrev_b32 v6, 2, v0\nv_add_u32 v6, s22, v6     ; d*4')
    k('s_waitcnt lgkmcnt(0)')
    srd_fin(k, 4, SZ['wg']); srd_fin(k, 8, SZ['wu'])
    k(f's_add_u32 s24, s12, {WS_MODP}\ns_addc_u32 s25, s13, 0\ns_mov_b32 s26, 61440\ns_mov_b32 s27, {SRD3:#x}')
    for kq in range(4):
        k(f's_mov_b32 s23, {kq*15360 + 3*2560}')
        k(f'buffer_load_dword v{8+kq}, v6, s[24:27], s23 offen')
        k(f'buffer_load_dword v{12+kq}, v6, s[24:27], s23 offen offset:2560')
    for q in range(4):
        k(f's_add_u32 m0, s21, {q*1024}')
        k(f's_add_u32 s23, s19, {q*24576}')
        k(f'buffer_load_dwordx4 v4, s[4:7], s23 offen{NT} lds')
        k(f's_add_u32 m0, s21, {q*1024 + 16384}')
        k('s_nop 0')
        k(f'buffer_load_dwordx4 v5, s[8:11], s23 offen{NT} lds')
    k(f's_add_u32 s28, s12, {WS_WP}\ns_addc_u32 s29, s13, 0\ns_mov_b32 s30, 3932160\ns_mov_b32 s31, {SRD3:#x}')
    k(f's_add_u32 s32, s12, {WS_PQ}\ns_addc_u32 s33, s13, 0\ns_mov_b32 s34, 122880\ns_mov_b32 s35, {SRD3:#x}')
    k('s_waitcnt vmcnt(8)')
    k('v_add_f32 v8, v8, v9\nv_add_f32 v10, v10, v11\nv_add_f32 v12, v12, v13\nv_add_f32 v14, v14, v15')
    k('v_add_f32 v8, v8, v10\nv_add_f32 v12, v12, v14')
    k('v_cvt_pk_bf16_f32 v8, v8, v12')
    k('v_and_b32 v12, 0xffff0000, v8\nv_add_f32 v12, 1.0, v12\nv_cvt_pk_bf16_f32 v12, v12, v12\nv_lshlrev_b32 v12, 16, v12')
    k('v_lshlrev_b32 v9, 2, v0\nv_lshlrev_b32 v10, 1, v0')
    k('v_cmp_gt_u32 vcc, 128, v0')
    k('s_and_saveexec_b64 s[36:37], vcc')
    k('v_lshlrev_b32 v8, 16, v8')
    k('ds_write_b32 v9, v12 offset:32768')
    k('ds_write_b32 v9, v8 offset:33280')
    k('s_mov_b64 exec, s[36:37]')
    k('v_lshrrev_b32 v3, 4, v1          ; grp')
    k('v_and_b32 v7, 15, v1\nv_lshrrev_b32 v8, 2, v7      ; r\nv_and_b32 v7, 3, v7       ; c')
    k('v_lshrrev_b32 v9, 1, v3          ; g')
    k('v_and_b32 v10, 1, v3             ; grp&1')
    k('v_lshrrev_b32 v11, 1, v7         ; mat')
    k('v_lshrrev_b32 v12, 1, v8\nv_lshlrev_b32 v12, 1, v12      ; 2*((r>>1)&1)')
    k('v_xor_b32 v10, v10, v12\nv_lshlrev_b32 v12, 2, v11\nv_xor_b32 v10, v10, v12     ; X')
    k('v_lshlrev_b32 v10, 4, v10')
    k('v_lshl_add_u32 v10, v11, 14, v10         ; + mat*16384')
    k('v_lshl_add_u32 v12, v9, 3, v8            ; 8g + r')
    k('v_lshl_add_u32 v10, v12, 7, v10          ; + row*128')
    k('v_and_b32 v12, 1, v7\nv_lshl_add_u32 v10, v12, 3, v10')
    k('s_lshl_b32 s23, s18, 5\nv_xor_b32 v10, s23, v10      ; ^ 32*tl')
    k('v_lshlrev_b32 v11, 5, v9\nv_lshlrev_b32 v12, 4, v9')
    k('s_lshl_b32 s23, s16, 2\ns_add_u32 s23, s23, s18        ; T')
    k('s_mul_i32 s38, s17, 8*96\ns_add_u32 s38, s38, s23\ns_lshl_b32 s38, s38, 10')
    k('v_lshlrev_b32 v13, 4, v1')
    k('s_mov_b32 s39, 0x3f803f80')
    k('v_mov_b32 v14, 0\nv_mov_b32 v15, 0\nv_mov_b32 v98, 0\nv_mov_b32 v99, 0')
    k('s_waitcnt vmcnt(0) lgkmcnt(0)\ns_barrier')
    def wp_reads(ksl):
        b = 16 + 36 * (ksl & 1)
        k(f'ds_read_b64_tr_b16 v[{b}:{b+1}], v10 offset:{ksl*2048}')
        k(f'ds_read_b64_tr_b16 v[{b+2}:{b+3}], v10 offset:{ksl*2048+512}')
        k(f'ds_read_b128 v[{b+4}:{b+7}], v11 offset:{32768 + ksl*64}')
        k(f'ds_read_b128 v[{b+8}:{b+11}], v11 offset:{32768 + ksl*64 + 16}')
        k(f'ds_read_b128 v[{b+12}:{b+15}], v11 offset:{33280 + ksl*64}')
        k(f'ds_read_b128 v[{b+16}:{b+19}], v11 offset:{33280 + ksl*64 + 16}')
    wp_reads(0)
    for ksl in range(8):
        b = 16 + 36 * (ksl & 1)
        if ksl < 7:
            wp_reads(ksl + 1)
            k('s_waitcnt lgkmcnt(6)')
        else:
            k('s_waitcnt lgkmcnt(0)')
        U = b + 20
        for j in range(4):
            k(f'v_lshlrev_b32 v{U+2*j}, 16, v{b+j}\nv_and_b32 v{U+1+2*j}, 0xffff0000, v{b+j}')
        for j in range(8):
            k(f'v_fma_f32 v{15 if j % 2 == 0 else 98}, v{U+j}, v{b+12+j}, v{15 if j % 2 == 0 else 98}')
        for j in range(8):
            k(f'v_mul_f32 v{U+j}, v{U+j}, v{b+4+j}')
        for j in range(4):
            k(f'v_cvt_pk_bf16_f32 v{b+28+j}, v{U+2*j}, v{U+1+2*j}')
        for j in range(8):
            k(f'v_add_f32 v{14 if j % 2 == 0 else 99}, v{14 if j % 2 == 0 else 99}, v{U+j}')
        k(f'buffer_store_dwordx4 v[{b+28}:{b+31}], v13, s[28:31], s38 offen{WT}')
        k(f's_add_u32 s38, s38, {96*1024}')
    k('v_add_f32 v14, v14, v99\nv_add_f32 v15, v15, v98')
    k('v_mov_b32 v16, v14\nv_mov_b32 v17, v15')
    k('v_permlane32_swap_b32 v14, v16\nv_permlane32_swap_b32 v15, v17')
    k('v_add_f32 v14, v14, v16\nv_add_f32 v15, v15, v17')
    k('s_mul_i32 s38, s17, 96\ns_add_u32 s38, s38, s23\ns_lshl_b32 s38, s38, 8       ; (dq*96+T)*256')
    k('v_lshlrev_b32 v13, 3, v1')
    k('v_cmp_gt_u32 vcc, 32, v1')
    k('s_and_saveexec_b64 s[36:37], vcc')
    k(f'buffer_store_dwordx2 v[14:15], v13, s[32:35], s38 offen{WT}')
    k('s_mov_b64 exec, s[36:37]')
    if STAMPS: k('s_waitcnt vmcnt(0)')
    stamp_end(k, 1)
    k('s_endpgm')
```

```python
from asmlib import K, Q
from common import *
import os, struct
from collections import deque

K5_GRID = 256
NS = 7
STG = 20480
TBL = NS * STG
X2OFF = TBL + 1536
GBOFF = X2OFF + 10240
DUMMY = GBOFF + 320
K5_LDS = DUMMY + 1024 + 16
def f2h(x): return hex(struct.unpack('<I', struct.pack('<f', x))[0])
GK1 = -2.302208198144325
GK2 = GK1 * 0.044715
NSP = 10
SPIN_MAX = 400000
SS = int(os.environ.get('STAMPSET', '1'))
BUDGET = int(os.environ.get('BUDGET', '5'))
WDEPI = os.environ.get('WDEPI', '0') == '1'
WDN = int(os.environ.get('WDN', '12'))
WDL = int(os.environ.get('WDL', '5'))
EPI4 = os.environ.get('EPI4', '0') == '1'
SNAKE = os.environ.get('SNAKE', '0') == '1'

def lines(s): return [l.strip() for l in s.split('\n') if l.strip()]

def build_k5():
    k = K('ffn_kernel')
    def stamp(setno, i):
        if SS == setno: stamp_mid(k, i)
    vm = Q(k, 'vmcnt', 63); lg = Q(k, 'lgkmcnt', 15)
    side = deque()
    def job(text):
        for l in lines(text): side.append(('i', l))
    def jobvm(text, tag):
        ls = lines(text)
        for l in ls[:-1]: side.append(('i', l))
        side.append(('vm', ls[-1], tag))
    def joblg(text, tag): side.append(('lg', text, tag))
    def pull(n):
        while n > 0 and side:
            it = side.popleft()
            if it[0] == 'i':
                k(it[1]); n -= 1
                while side and side[0][0] == 'i' and side[0][1].split()[0] in ('s_addc_u32', 's_subb_u32', 's_cselect_b32', 's_cselect_b64'):
                    k(side.popleft()[1]); n -= 1
            elif it[0] == 'vm': vm.issue(it[1], it[2]); n -= 2
            elif it[0] == 'lg': lg.issue(it[1], it[2]); n -= 1
            elif it[0] == 'wvm': vmwait_tag(it[1])
            elif it[0] == 'call': it[1]()
    def flush(): pull(1 << 30)

    stamp_begin(k)
    k(f's_cmp_ge_u32 s2, {K5_GRID}\ns_cbranch_scc1 L_k5_exit')
    k('s_load_dwordx2 s[4:5], s[0:1], 120')
    k('s_load_dwordx2 s[82:83], s[0:1], 104       ; out')
    k('v_lshrrev_b32 v2, 6, v0\nv_and_b32 v1, 63, v0\nv_readfirstlane_b32 s22, v2     ; w')
    k('s_and_b32 s80, s2, 7\ns_lshr_b32 s81, s2, 3')
    k('s_and_b32 s20, s80, 1\ns_lshl_b32 s20, s20, 3\ns_and_b32 s21, s81, 7\ns_add_u32 s20, s20, s21      ; rb')
    k('s_lshr_b32 s21, s80, 1\ns_lshl_b32 s21, s21, 2\ns_lshr_b32 s27, s81, 3\ns_add_u32 s21, s21, s27    ; fb')
    k('s_lshr_b32 s3, s80, 1\ns_and_b32 s3, s3, 1\ns_lshl_b32 s6, s20, 1\ns_add_u32 s3, s3, s6')
    k('s_lshr_b32 s6, s80, 2\ns_lshl_b32 s6, s6, 2\ns_add_u32 s27, s27, s6                               ; db')
    k('v_lshrrev_b32 v3, 4, v1\nv_and_b32 v4, 15, v1')
    k('v_lshlrev_b32 v5, 2, v3\nv_xor_b32 v5, v5, v4\nv_lshlrev_b32 v5, 4, v5\nv_lshl_add_u32 v5, v3, 12, v5')
    k('s_lshl_b32 s6, s20, 8\nv_add_u32 v5, s6, v5\nv_add_u32 v6, 16384, v5\nv_lshlrev_b32 v7, 4, v1')
    k('s_lshr_b32 s23, s22, 1          ; wi\ns_and_b32 s24, s22, 1      ; wj')
    k(f's_mul_i32 s80, s20, {int(os.environ.get("ROT", "0"))}\ns_add_u32 s80, s80, s21\ns_lshl_b32 s80, s80, 1\ns_cmp_lt_u32 s21, {NSP}\ns_cselect_b32 s81, 0, 1\ns_add_u32 s80, s80, s81')
    k('s_mul_hi_u32 s81, s80, 0x0CCCCCCD\ns_mul_i32 s81, s81, 20\ns_sub_u32 s80, s80, s81          ; st = s0')
    k('s_lshl_b32 s84, s22, 15         ; x2 const = w*32768')
    k('s_mul_i32 s85, s23, 96\ns_mul_i32 s81, s21, 6\ns_add_u32 s85, s85, s81\ns_mul_i32 s81, s24, 3\ns_add_u32 s85, s85, s81\ns_lshl_b32 s85, s85, 10    ; W const')
    def soff(j):
        return (f's_mul_i32 s{36+j}, s80, 131072\ns_mul_i32 s{56+j}, s80, 196608\n'
                f's_add_u32 s{36+j}, s{36+j}, s84\ns_add_u32 s{56+j}, s{56+j}, s85\n'
                's_add_u32 s80, s80, 1\ns_cmp_eq_u32 s80, 20\ns_cselect_b32 s80, 0, s80')
    DEEP = os.environ.get('DEEP', '0') == '1'
    PRE = NS - 1 if DEEP else NS - 2
    k(soff(0))
    k('s_lshl_b32 s6, s22, 11\ns_mul_i32 s7, s22, 3072\ns_add_u32 s7, s7, 8192')
    k(soff(1))
    k('s_waitcnt lgkmcnt(0)')
    k(f's_add_u32 s8, s4, {WS_X2T}\ns_addc_u32 s9, s5, 0\ns_mov_b32 s10, 2621440\ns_mov_b32 s11, {SRD3:#x}')
    k(f's_add_u32 s12, s4, {WS_WP}\ns_addc_u32 s13, s5, 0\ns_mov_b32 s14, 3932160\ns_mov_b32 s15, {SRD3:#x}')
    def dma_ops(j):
        sl = (j % NS) * STG
        if os.environ.get('EXP_HOT'):
            return [f's_add_u32 m0, s6, {sl}\ns_nop 0\nbuffer_load_dwordx4 v5, s[8:11], s36 offen lds',
                f's_add_u32 m0, s6, {sl+1024}\ns_nop 0\nbuffer_load_dwordx4 v6, s[8:11], s36 offen lds',
                f's_add_u32 m0, s7, {sl}\ns_nop 0\nbuffer_load_dwordx4 v7, s[12:15], s56 offen lds',
                f'buffer_load_dwordx4 v7, s[12:15], s56 offen offset:1024 lds',
                f'buffer_load_dwordx4 v7, s[12:15], s56 offen offset:2048 lds']
        return [f's_add_u32 m0, s6, {sl}\ns_nop 0\nbuffer_load_dwordx4 v5, s[8:11], s{36+j} offen lds',
                f's_add_u32 m0, s6, {sl+1024}\ns_nop 0\nbuffer_load_dwordx4 v6, s[8:11], s{36+j} offen lds',
                f's_add_u32 m0, s7, {sl}\ns_nop 0\nbuffer_load_dwordx4 v7, s[12:15], s{56+j} offen lds',
                f'buffer_load_dwordx4 v7, s[12:15], s{56+j} offen offset:1024 lds',
                f'buffer_load_dwordx4 v7, s[12:15], s{56+j} offen offset:2048 lds']
    for j in range(2, 20): job(soff(j))
    job('v_mov_b32 v29, 0x80000000')
    job('v_lshrrev_b32 v18, 2, v4\nv_and_b32 v19, 3, v4\nv_lshrrev_b32 v20, 1, v3\nv_and_b32 v21, 1, v3')
    job('v_lshl_add_u32 v22, v20, 3, v18\nv_lshlrev_b32 v22, 8, v22')
    job('v_lshrrev_b32 v23, 1, v19\nv_lshl_add_u32 v23, v21, 1, v23\nv_lshl_add_u32 v22, v23, 4, v22')
    job('v_and_b32 v23, 1, v19\nv_lshl_add_u32 v22, v23, 3, v22')
    job('s_lshl_b32 s25, s23, 1\ns_add_u32 s25, s25, s24\ns_xor_b32 s26, s25, 1')
    job('v_xor_b32 v23, s25, v18\nv_lshl_add_u32 v8, v23, 6, v22')
    job('v_xor_b32 v23, s26, v18\nv_lshl_add_u32 v9, v23, 6, v22')
    job('s_mul_i32 s81, s24, 3072\ns_add_u32 s81, s81, 8192\nv_add_u32 v10, s81, v7')
    for st_ in (1, 2):
        for i in range(3): job(f'v_add_u32 v{8+3*st_+i}, {61440*st_}, v{8+i}')
    job(f's_add_u32 s16, s4, {WS_ACT}\ns_addc_u32 s17, s5, 0\ns_mov_b32 s18, 6291456\ns_mov_b32 s19, {SRD3:#x}')
    job(f's_add_u32 s28, s4, {WS_FLAGS}\ns_addc_u32 s29, s5, 0\ns_mov_b32 s30, {WS_SP - WS_FLAGS + 327680}\ns_mov_b32 s31, {SRD3:#x}')
    job(f's_add_u32 s32, s4, {WS_WD}\ns_addc_u32 s33, s5, 0\ns_mov_b32 s34, 1966080\ns_mov_b32 s35, {SRD3:#x}')
    nd = 0
    for j in range(PRE):
        for o in dma_ops(j):
            vm.issue(o, ('st', j)); nd += 1
            pull(7 if j == 0 or nd < 20 else 7)
    flush()
    k('s_mul_i32 s84, s27, 48\ns_add_u32 s84, s84, s22\ns_mul_i32 s84, s84, 5120')
    stamp(1, 3)
    n = len(vm.ops) - 1 - max(i for i, t in enumerate(vm.ops) if t == ('st', 0))
    k(f's_waitcnt vmcnt({n})'); vm.done = max(vm.done, len(vm.ops) - n)
    k('s_barrier')
    stamp(1, 0)
    NOCOUNT = ('spst',)
    def vmwait_tag(tag):
        idx = max(i for i, t in enumerate(vm.ops) if t == tag)
        if idx < vm.done: return
        n = min(63, sum(1 for t in vm.ops[idx+1:] if t not in NOCOUNT))
        k(f's_waitcnt vmcnt({n})'); vm.done = max(vm.done, idx + 1)
    def vmwait_stage(j): vmwait_tag(('st', j))
    S0, S1 = 32, 52
    ACC = 96
    def acc(lt2, t): return ACC + 48 * lt2 + 16 * t
    def reads(s, j, ksl):
        sl = j % NS; base = 8 + 3 * (sl // 3); o = (sl % 3) * STG
        xo = o + ksl * 4096; wo = o + ksl * 6144
        tg = lambda n: (n, j, ksl)
        return [(f'ds_read_b64_tr_b16 v[{s}:{s+1}], v{base} offset:{xo}', tg('X0')),
                (f'ds_read_b64_tr_b16 v[{s+2}:{s+3}], v{base} offset:{xo+1024}', tg('X0')),
                (f'ds_read_b128 v[{s+8}:{s+11}], v{base+2} offset:{wo}', tg('W0')),
                (f'ds_read_b64_tr_b16 v[{s+4}:{s+5}], v{base+1} offset:{xo}', tg('X1')),
                (f'ds_read_b64_tr_b16 v[{s+6}:{s+7}], v{base+1} offset:{xo+1024}', tg('X1')),
                (f'ds_read_b128 v[{s+12}:{s+15}], v{base+2} offset:{wo+1024}', tg('W1')),
                (f'ds_read_b128 v[{s+16}:{s+19}], v{base+2} offset:{wo+2048}', tg('W2'))]
    def lgwait(tag):
        idx = max(i for i, t in enumerate(lg.ops) if t == tag)
        if idx < lg.done: return 0
        n = min(15, len(lg.ops) - 1 - idx)
        k(f's_waitcnt lgkmcnt({n})'); lg.done = max(lg.done, len(lg.ops) - n)
        return 1
    RD = os.environ.get('RD', 'C')
    def phase(s, j, ksl, first, nxt_reads, dm):
        order = [(0, 0), (0, 1), (1, 0), (1, 1), (2, 0), (2, 1)] if not SNAKE else [(0, 0), (0, 1), (1, 1), (1, 0), (2, 0), (2, 1)]
        rd_after = {'A': [[0, 1], [2, 3], [4, 5, 6], [], [], []], 'B': [[0, 1, 2], [3, 4], [5, 6], [], [], []], 'C': [[0, 1], [2], [3, 4], [5], [6], []]}[RD]
        pre = {}
        for g, (txt, tag) in dm.items():
            ls = [l for l in lines(txt) if l != 's_nop 0']
            pre[g] = (ls[:-1] if not ls[-1].startswith('s_') else None, ls)
        for i, (t, lt2) in enumerate(order):
            lgwait((f'W{t}', j, ksl)); lgwait((f'X{lt2}', j, ksl))
            a = acc(lt2, t)
            c = '0' if first else f'v[{a}:{a+15}]'
            k(f'v_mfma_f32_32x32x16_bf16 v[{a}:{a+15}], v[{s+8+4*t}:{s+11+4*t}], v[{s+4*lt2}:{s+3+4*lt2}], {c}')
            used = 0
            if i in dm:
                ls = [l for l in lines(dm[i][0]) if l != 's_nop 0']
                vi = max(q for q, l in enumerate(ls) if l.startswith('buffer_'))
                if i == 0 or not os.environ.get('PREM0', '1') == '1':
                    for l in ls[:vi]: k(l)
                    if vi: k('s_nop 0')
                vm.issue(ls[vi], dm[i][1])
                for l in ls[vi+1:]: k(l)
                used += 4
            if nxt_reads:
                for ri in rd_after[i]:
                    lg.issue(*nxt_reads[ri]); used += 1
            if (i + 1) in dm and os.environ.get('PREM0', '1') == '1':
                ls = [l for l in lines(dm[i + 1][0]) if l != 's_nop 0']
                vi = max(q for q, l in enumerate(ls) if l.startswith('buffer_'))
                pull(max(0, BUDGET - used - vi))
                for l in ls[:vi]: k(l); used += 1
            else:
                pull(max(0, BUDGET - used))
    def stat_ops(s, first):
        ops = []
        for i in range(4):
            a, b = 88 + 2 * (i & 1), 89 + 2 * (i & 1)
            ops.append(f'v_lshlrev_b32 v{a}, 16, v{s+i}')
            ops.append(f'v_and_b32 v{b}, 0xffff0000, v{s+i}')
            if first and i == 0:
                ops += [f'v_mov_b32 v84, v{a}', f'v_mov_b32 v85, v{b}', f'v_mul_f32 v86, v{a}, v{a}', f'v_mul_f32 v87, v{b}, v{b}']
            else:
                ops += [f'v_add_f32 v84, v84, v{a}', f'v_add_f32 v85, v85, v{b}', f'v_fma_f32 v86, v{a}, v{a}, v86', f'v_fma_f32 v87, v{b}, v{b}, v87']
        return ops
    wd_list = [(i, dt) for i in range(12) for dt in range(5)]
    k_wd = {'n': 0}
    def wd_load():
        i, dt = wd_list[k_wd['n']]; k_wd['n'] += 1
        pre = f's_add_u32 s85, s84, {i*4*5120}\n' if dt == 0 else ''
        if dt < 4:
            return (pre + f'buffer_load_dwordx4 a[{20*i+4*dt}:{20*i+4*dt+3}], v7, s[32:35], s85 offen offset:{1024*dt}', 'wd')
        return (f's_add_u32 s85, s85, 4096\nbuffer_load_dwordx4 a[{20*i+4*dt}:{20*i+4*dt+3}], v7, s[32:35], s85 offen', 'wd')
    def with_side(ops):
        for o in ops: side.append(('i', o))
    NVAR = int(os.environ.get('NVAR', '1'))
    GAPS = {0: [0, 2, 4, 7, 9], 1: [0, 3, 5, 7, 10], 2: [1, 3, 6, 8, 10], 3: [1, 4, 6, 9, 11]}
    import copy
    def mainloop(wv):
        for r in reads(S0, 0, 0): lg.issue(*r)
        for j in range(20):
            d = [(o, ('st', j + PRE)) for o in dma_ops(j + PRE)] if j + PRE < 20 else [wd_load() for _ in range(WDL)]
            if os.environ.get('EXP_NODMA') and j + PRE < 20: d = [('s_nop 0', ('st', j + PRE)) for _ in range(5)]
            gaps = GAPS[wv] if NVAR == 4 else [1, 3, 7, 9, 11]
            if j + PRE >= 20: gaps = {5: [1, 3, 7, 9, 11], 6: [1, 3, 5, 7, 9, 11], 7: [1, 3, 5, 7, 8, 9, 11][:7], 8: [1, 2, 3, 5, 7, 8, 9, 11]}[WDL]
            dmC = {g: d[q] for q, g in enumerate(gaps) if g < 6}
            dmE = {g - 6: d[q] for q, g in enumerate(gaps) if g >= 6}
            if j == 3:
                job(f's_add_u32 s76, s4, {WS_PQ}\ns_addc_u32 s77, s5, 0\ns_mov_b32 s78, 122880\ns_mov_b32 s79, {SRD3:#x}')
                job('s_mul_i32 s80, s21, 6*256\nv_min_u32 v17, 191, v0\nv_lshlrev_b32 v17, 3, v17\nv_add_u32 v17, s80, v17')
                for dq in range(5):
                    jobvm(f's_mov_b32 s80, {dq*96*256}\nbuffer_load_dwordx2 v[{224+2*dq}:{225+2*dq}], v17, s[76:79], s80 offen', 'pq')
                job(f's_add_u32 s76, s4, {WS_MODP}\ns_addc_u32 s77, s5, 0\ns_mov_b32 s78, 61440')
                job('s_mul_i32 s80, s27, 320\nv_min_u32 v18, 79, v0\nv_lshlrev_b32 v18, 2, v18\nv_add_u32 v17, s80, v18')
                for kq in range(4):
                    jobvm(f's_mov_b32 s80, {kq*15360 + 5*2560}\nbuffer_load_dword v{234+kq}, v17, s[76:79], s80 offen', 'pq')
            if j == 5:
                job('v_lshrrev_b32 v17, 3, v1\nv_and_b32 v18, 7, v1\nv_lshlrev_b32 v17, 12, v17\nv_lshl_add_u32 v17, v18, 4, v17')
                job('s_mul_i32 s76, s27, 80*4096\ns_lshl_b32 s81, s3, 7\ns_add_u32 s76, s76, s81')
                job('s_lshl_b32 s77, s22, 15\ns_add_u32 s77, s77, s76')
                job(f's_lshl_b32 s78, s22, 10\ns_add_u32 s78, s78, {X2OFF}')
                side.append(('call', lambda: (k('s_mov_b32 m0, s78\ns_nop 0'), vm.issue('buffer_load_dwordx4 v17, s[8:11], s77 offen lds', 'x2r'))))
                job(f's_add_u32 s77, s77, {32*4096}\ns_add_u32 s78, s78, 4096')
                side.append(('call', lambda: (k('s_mov_b32 m0, s78\ns_nop 0'), vm.issue('buffer_load_dwordx4 v17, s[8:11], s77 offen lds', 'x2r'))))
                job(f's_and_b32 s81, s22, 1\ns_add_u32 s81, s81, 8\ns_lshl_b32 s78, s81, 10\ns_add_u32 s78, s78, {X2OFF}\ns_lshl_b32 s81, s81, 15\ns_add_u32 s77, s76, s81')
                side.append(('call', lambda: (k('s_mov_b32 m0, s78\ns_nop 0'), vm.issue('buffer_load_dwordx4 v17, s[8:11], s77 offen lds', 'x2r'))))
            if j == 10:
                side.append(('wvm', 'pq'))
                for dq in range(1, 5): job(f'v_add_f32 v224, v224, v{224+2*dq}\nv_add_f32 v225, v225, v{225+2*dq}')
                job('v_add_f32 v234, v234, v235\nv_add_f32 v236, v236, v237\nv_add_f32 v234, v234, v236')
                job('v_cvt_pk_bf16_f32 v234, v234, v234\nv_lshlrev_b32 v234, 16, v234')
                job(f'v_lshlrev_b32 v17, 2, v0\nv_add_u32 v18, {GBOFF}, v17\nv_add_u32 v17, {TBL}, v17\nv_mov_b32 v19, {DUMMY}')
                job('v_cmp_gt_u32 vcc, 192, v0\nv_cndmask_b32 v17, v19, v17, vcc\nv_cmp_gt_u32 vcc, 80, v0\nv_cndmask_b32 v18, v19, v18, vcc')
                joblg('ds_write_b32 v17, v224', 'tbl'); joblg('ds_write_b32 v17, v225 offset:768', 'tbl'); joblg('ds_write_b32 v18, v234', 'tbl')
            if j > 0:
                if j - 1 < 2: with_side(stat_ops(S1, False))
                phase(S1, j - 1, 1, False, reads(S0, j, 0), dmC)
                if j - 1 < 2 or j == 5: flush()
            else:
                [vm.issue(*dmC[g]) for g in sorted(dmC)]
            if j == 2:
                job('v_add_f32 v84, v84, v85\nv_add_f32 v86, v86, v87\nv_mov_b32 v88, v84\nv_mov_b32 v89, v86')
                job(f's_mul_i32 s80, s20, {NSP}\ns_add_u32 s80, s80, s21\ns_lshl_b32 s80, s80, 11')
                job('v_permlane32_swap_b32 v84, v88\nv_permlane32_swap_b32 v86, v89')
                job(f's_lshl_b32 s81, s25, 9\ns_add_u32 s80, s80, s81\ns_add_u32 s80, s80, {WS_SP - WS_FLAGS}')
                job('v_add_f32 v84, v84, v88\nv_add_f32 v85, v86, v89\nv_mov_b32 v86, 1\nv_mov_b32 v87, 0')
                job(f's_cmp_lt_u32 s21, {NSP}\ns_cselect_b32 s81, 32, 0')
                job('v_lshlrev_b32 v88, 4, v1\nv_cmp_gt_u32 vcc, s81, v1\nv_cndmask_b32 v88, v29, v88, vcc')
                jobvm('buffer_store_dwordx4 v[84:87], v88, s[28:31], s80 offen sc0 sc1', 'spst')
            if j == 14:
                job('v_and_b32 v88, 31, v1\nv_lshlrev_b32 v88, 4, v88')
                job('s_lshl_b32 s80, s25, 9\ns_lshl_b32 s81, s26, 9\nv_mov_b32 v89, s80\nv_mov_b32 v91, s81')
                job('v_cmp_gt_u32 vcc, 32, v1\nv_cndmask_b32 v89, v91, v89, vcc\nv_add_u32 v28, v88, v89')
                job(f's_mul_i32 s79, s20, {NSP*2048}\ns_add_u32 s79, s79, {WS_SP - WS_FLAGS}\ns_mov_b32 s80, s79')
                for p in range(NSP):
                    jobvm(f'buffer_load_dwordx4 v[{192+4*p}:{195+4*p}], v28, s[28:31], s80 offen offset:{(p%2)*2048} sc0 sc1', 'spld')
                    if p % 2 == 1: job('s_add_u32 s80, s80, 4096')
            if j == 18:
                flush()
                vmwait_tag('spld')
                k('s_mov_b32 s78, 0')
                k.label(f'L_k5_st_chk{wv}')
                k('v_and_b32 v88, v194, v198')
                for p in range(2, NSP): k(f'v_and_b32 v88, v88, v{194+4*p}')
                k('v_cmp_ne_u32 vcc, 1, v88')
                k(f's_nop 4\ns_cbranch_vccz L_k5_st_ok{wv}')
                k('s_add_u32 s78, s78, 1')
                k(f's_cmp_gt_u32 s78, {SPIN_MAX}\ns_cbranch_scc1 L_k5_st_ok{wv}')
                k('s_mov_b32 s80, s79')
                for p in range(NSP):
                    k(f'buffer_load_dwordx4 v[{192+4*p}:{195+4*p}], v28, s[28:31], s80 offen offset:{(p%2)*2048} sc0 sc1')
                    if p % 2 == 1: k('s_add_u32 s80, s80, 4096')
                k(f's_waitcnt vmcnt(0)\ns_branch L_k5_st_chk{wv}')
                k.label(f'L_k5_st_ok{wv}')
                for p in range(1, NSP):
                    job(f'v_add_f32 v192, v192, v{192+4*p}\nv_add_f32 v193, v193, v{193+4*p}')
                job('v_mul_f32 v88, 0x3acccccd, v192\nv_mul_f32 v89, 0x3acccccd, v193')
                job('v_fma_f32 v89, -v88, v88, v89\nv_max_f32 v89, 0, v89')
                job('v_cvt_pk_bf16_f32 v88, v88, v89\nv_and_b32 v89, 0xffff0000, v88\nv_lshlrev_b32 v88, 16, v88')
                job('v_add_f32 v89, 0x3727c5ac, v89\nv_cvt_pk_bf16_f32 v89, v89, v89\nv_lshlrev_b32 v89, 16, v89')
                job('v_sqrt_f32 v89, v89\ns_lshl_b32 s80, s20, 2\ns_add_u32 s81, s80, s26\ns_add_u32 s80, s80, s25')
                job('v_cvt_pk_bf16_f32 v89, v89, v89\nv_lshlrev_b32 v89, 16, v89')
                job('v_rcp_f32 v84, v89\ns_mul_i32 s76, s21, 6\ns_mul_i32 s77, s24, 3\ns_add_u32 s76, s76, s77')
                job('v_mul_f32 v85, v88, v84\nv_sub_f32 v85, 0, v85')
                job('v_mov_b32 v86, v84\nv_mov_b32 v87, v85')
                job('s_mul_i32 s80, s80, 96\ns_add_u32 s80, s80, s76\ns_lshl_b32 s80, s80, 10')
                job('v_permlane32_swap_b32 v84, v86\nv_permlane32_swap_b32 v85, v87')
                job('s_mul_i32 s81, s81, 96\ns_add_u32 s81, s81, s76\ns_lshl_b32 s81, s81, 10')
                job(f'v_mov_b32 v72, {f2h(GK1)}\nv_mov_b32 v73, {f2h(GK1)}\nv_mov_b32 v74, {f2h(GK2)}\nv_mov_b32 v75, {f2h(GK2)}')
                job(f'v_lshrrev_b32 v27, 5, v1\nv_lshlrev_b32 v27, 4, v27\ns_mul_i32 s77, s24, 384\ns_add_u32 s77, s77, {TBL}\nv_add_u32 v27, s77, v27')
            if j < 2: with_side(stat_ops(S0, j == 0))
            phase(S0, j, 0, j == 0, reads(S1, j, 1), dmE)
            if j < 2: flush()
            if j < 19:
                vmwait_stage(j + 1)
                if DEEP:
                    k('s_waitcnt lgkmcnt(0)'); lg.done = len(lg.ops)
                if not os.environ.get('EXP_NOBAR'): k('s_barrier')
                if j in (2, 7, 12, 17): stamp(3, (2, 7, 12, 17).index(j))
        flush()
        extra = [wd_load() for _ in range(3)]
        phase(S1, 19, 1, False, None, {0: extra[0], 2: extra[1], 4: extra[2]})

    state0 = (list(vm.ops), vm.done, list(lg.ops), lg.done, k_wd['n'])
    ends = []
    if NVAR == 4:
        k('s_cmp_eq_u32 s22, 1\ns_cbranch_scc1 L_k5_var1\ns_cmp_eq_u32 s22, 2\ns_cbranch_scc1 L_k5_var2\ns_cmp_eq_u32 s22, 3\ns_cbranch_scc1 L_k5_var3')
    for wv in range(NVAR):
        vm.ops, vm.done, lg.ops, lg.done, k_wd['n'] = list(state0[0]), state0[1], list(state0[2]), state0[3], state0[4]
        if wv: k.label(f'L_k5_var{wv}')
        mainloop(wv)
        ends.append((list(vm.ops), vm.done, list(lg.ops), lg.done, k_wd['n']))
        if wv < NVAR - 1: k('s_branch L_k5_join')
    if NVAR > 1: k.label('L_k5_join')
    assert all(e[4] == ends[0][4] for e in ends)
    vm.ops = []; vm.done = 0
    lg.ops = []; lg.done = 0
    stamp(1, 1)
    WD0 = k_wd['n']
    def pq_reads(t, PB):
        for j in range(4):
            k(f'ds_read_b128 v[{PB+4*j}:{PB+4*j+3}], v27 offset:{128*t + 32*j}')
            k(f'ds_read_b128 v[{PB+16+4*j}:{PB+16+4*j+3}], v27 offset:{768 + 128*t + 32*j}')
    pq_reads(0, 40)
    grp = 0
    for t in range(3):
        PB = 40 if t != 1 else 224 - 12
        if t == 0: pass
        k('s_waitcnt lgkmcnt(0)')
        if t < 2:
            pq_reads(t + 1, 212 if t == 0 else 40)
        if EPI4:
            for half in range(2):
                ch = []
                for lt2 in range(2):
                    for p in range(2):
                        base = [192, 198, 204, 88][2 * lt2 + p]
                        a = acc(lt2, t)
                        ch.append(dict(G=base, U=base + 2, T=base + 4, R=84 if lt2 == 0 else 86, ag=a + 8 * half + 2 * p, au=a + 8 * half + 4 + 2 * p,
                                       pg=PB + 8 * half + 2 * p, pu=PB + 8 * half + 4 + 2 * p, O=76 + 4 * lt2 + 2 * half + p))
                P_ = lambda r: f'v[{r}:{r+1}]'
                for c in ch: k(f"v_pk_fma_f32 {P_(c['G'])}, {P_(c['pg'])}, {P_(c['R'])}, {P_(c['pg']+16)} op_sel:[0,1,0] op_sel_hi:[1,1,1]")
                for c in ch: k(f"v_pk_fma_f32 {P_(c['U'])}, {P_(c['pu'])}, {P_(c['R'])}, {P_(c['pu']+16)} op_sel:[0,1,0] op_sel_hi:[1,1,1]")
                for c in ch: k(f"v_pk_fma_f32 {P_(c['G'])}, {P_(c['ag'])}, {P_(c['R'])}, {P_(c['G'])} op_sel:[0,0,0] op_sel_hi:[1,0,1]")
                for c in ch: k(f"v_pk_fma_f32 {P_(c['U'])}, {P_(c['au'])}, {P_(c['R'])}, {P_(c['U'])} op_sel:[0,0,0] op_sel_hi:[1,0,1]")
                if k_wd['n'] < WD0 + WDN: vm.issue(*wd_load())
                for c in ch: k(f"v_pk_mul_f32 {P_(c['T'])}, {P_(c['G'])}, {P_(c['G'])}")
                for c in ch: k(f"v_pk_fma_f32 {P_(c['T'])}, {P_(c['T'])}, v[74:75], v[72:73]")
                for c in ch: k(f"v_pk_mul_f32 {P_(c['T'])}, {P_(c['T'])}, {P_(c['G'])}")
                for c in ch: k(f"v_exp_f32 v{c['T']}, v{c['T']}\nv_exp_f32 v{c['T']+1}, v{c['T']+1}")
                if k_wd['n'] < WD0 + WDN: vm.issue(*wd_load())
                for c in ch: k(f"v_pk_mul_f32 {P_(c['U'])}, {P_(c['U'])}, {P_(c['G'])}")
                for c in ch: k(f"v_pk_add_f32 {P_(c['T'])}, {P_(c['T'])}, 1.0 op_sel_hi:[1,0]")
                for c in ch: k(f"v_rcp_f32 v{c['T']}, v{c['T']}\nv_rcp_f32 v{c['T']+1}, v{c['T']+1}")
                for c in ch: k(f"v_pk_mul_f32 {P_(c['U'])}, {P_(c['U'])}, {P_(c['T'])}")
                for c in ch: k(f"v_cvt_pk_bf16_f32 v{c['O']}, v{c['U']}, v{c['U']+1}")
            for lt2 in range(2):
                O = 76 + 4 * lt2
                so = 's80' if lt2 == 0 else 's81'
                vm.issue(f'buffer_store_dwordx4 v[{O}:{O+3}], v7, s[16:19], {so} offen offset:{1024*t} sc0 sc1', 'actst')
            continue
        for lt2 in range(2):
            R = 84 if lt2 == 0 else 86
            a = acc(lt2, t)
            O = 76 + 4 * lt2
            for half in range(2):
                T = 84 if False else (192 if PB == 40 else 84)
                T = 192
                ag, au = a + 8 * half, a + 8 * half + 4
                pg, pu = PB + 8 * half, PB + 8 * half + 4
                qg, qu = pg + 16, pu + 16
                G = [T, T + 8]; U = [T + 2, T + 10]; T1 = [T + 4, T + 12]
                for p in range(2):
                    k(f'v_pk_fma_f32 v[{G[p]}:{G[p]+1}], v[{pg+2*p}:{pg+2*p+1}], v[{R}:{R+1}], v[{qg+2*p}:{qg+2*p+1}] op_sel:[0,1,0] op_sel_hi:[1,1,1]')
                    k(f'v_pk_fma_f32 v[{U[p]}:{U[p]+1}], v[{pu+2*p}:{pu+2*p+1}], v[{R}:{R+1}], v[{qu+2*p}:{qu+2*p+1}] op_sel:[0,1,0] op_sel_hi:[1,1,1]')
                for p in range(2):
                    k(f'v_pk_fma_f32 v[{G[p]}:{G[p]+1}], v[{ag+2*p}:{ag+2*p+1}], v[{R}:{R+1}], v[{G[p]}:{G[p]+1}] op_sel:[0,0,0] op_sel_hi:[1,0,1]')
                    k(f'v_pk_fma_f32 v[{U[p]}:{U[p]+1}], v[{au+2*p}:{au+2*p+1}], v[{R}:{R+1}], v[{U[p]}:{U[p]+1}] op_sel:[0,0,0] op_sel_hi:[1,0,1]')
                if k_wd['n'] < WD0 + WDN: vm.issue(*wd_load())
                for p in range(2): k(f'v_pk_mul_f32 v[{T1[p]}:{T1[p]+1}], v[{G[p]}:{G[p]+1}], v[{G[p]}:{G[p]+1}]')
                for p in range(2): k(f'v_pk_fma_f32 v[{T1[p]}:{T1[p]+1}], v[{T1[p]}:{T1[p]+1}], v[74:75], v[72:73]')
                for p in range(2): k(f'v_pk_mul_f32 v[{T1[p]}:{T1[p]+1}], v[{T1[p]}:{T1[p]+1}], v[{G[p]}:{G[p]+1}]')
                for p in range(2): k(f'v_exp_f32 v{T1[p]}, v{T1[p]}\nv_exp_f32 v{T1[p]+1}, v{T1[p]+1}')
                if WDEPI and k_wd['n'] < 60: vm.issue(*wd_load())
                for p in range(2): k(f'v_pk_mul_f32 v[{U[p]}:{U[p]+1}], v[{U[p]}:{U[p]+1}], v[{G[p]}:{G[p]+1}]')
                for p in range(2): k(f'v_pk_add_f32 v[{T1[p]}:{T1[p]+1}], v[{T1[p]}:{T1[p]+1}], 1.0 op_sel_hi:[1,0]')
                for p in range(2): k(f'v_rcp_f32 v{T1[p]}, v{T1[p]}\nv_rcp_f32 v{T1[p]+1}, v{T1[p]+1}')
                if WDEPI and k_wd['n'] < 60: vm.issue(*wd_load())
                for p in range(2): k(f'v_pk_mul_f32 v[{U[p]}:{U[p]+1}], v[{U[p]}:{U[p]+1}], v[{T1[p]}:{T1[p]+1}]')
                for p in range(2): k(f'v_cvt_pk_bf16_f32 v{O + 2*half + p}, v{U[p]}, v{U[p]+1}')
            so = 's80' if lt2 == 0 else 's81'
            vm.issue(f'buffer_store_dwordx4 v[{O}:{O+3}], v7, s[16:19], {so} offen offset:{1024*t} sc0 sc1', 'actst')
    if WDEPI:
        while k_wd['n'] < 60: vm.issue(*wd_load())
    stamp(1, 2); stamp(2, 0)
    k('v_lshrrev_b32 v10, 1, v3\nv_lshlrev_b32 v10, 10, v10')
    k('v_and_b32 v11, 1, v3\nv_lshlrev_b32 v11, 5, v11\nv_add_u32 v11, v11, v4\nv_lshl_add_u32 v10, v11, 4, v10     ; u=0')
    k(f'v_add_u32 v11, {96*1024}, v10                ; u=2')
    k('s_lshl_b32 s80, s20, 7\ns_add_u32 s80, s80, 2048')
    k('v_mov_b32 v88, 0\nv_mov_b32 v89, 1\nv_cmp_gt_u32 vcc, 1, v0\nv_cndmask_b32 v88, v29, v88, vcc')
    k('s_mul_i32 s84, s27, 48\ns_add_u32 s84, s84, s22\ns_mul_i32 s84, s84, 5120')
    n0 = k_wd['n']
    def rest_wd():
        k_wd['n'] = n0
        if k_wd['n'] % 5:
            i_, dt_ = wd_list[k_wd['n']]
            k(f's_add_u32 s85, s84, {i_*4*5120}')
        while k_wd['n'] < 60: k(wd_load()[0])
    k('s_waitcnt vmcnt(0)')
    k('s_barrier')
    stamp(2, 1)
    k('s_cmp_lg_u32 s22, 0\ns_cbranch_scc1 L_k5_noatom')
    k('buffer_atomic_add v89, v88, s[28:31], s80 offen sc1')
    k.label('L_k5_noatom')
    rest_wd()
    k('s_cmp_lg_u32 s22, 0\ns_cbranch_scc1 L_k5_a_ok')
    if os.environ.get('PIPOLL', '0') == '1':
        k('s_mov_b32 s76, 0\nv_mov_b32 v88, 0')
        k('s_waitcnt vmcnt(0)')
        for q in range(3): k(f'buffer_load_dword v{90+q}, v88, s[28:31], s80 offen sc0 sc1')
        k.label('L_k5_a_spin')
        for q in range(4):
            k(f'buffer_load_dword v{90+(q+3)%4}, v88, s[28:31], s80 offen sc0 sc1\ns_waitcnt vmcnt(3)')
            k(f'v_readfirstlane_b32 s81, v{90+q}')
            k('s_cmp_eq_u32 s81, 16\ns_cbranch_scc1 L_k5_a_ok')
        k('s_add_u32 s76, s76, 1')
        k(f's_cmp_lt_u32 s76, {SPIN_MAX}\ns_cbranch_scc1 L_k5_a_spin')
    else:
        k('s_mov_b32 s76, 0\nv_mov_b32 v88, 0')
        k.label('L_k5_a_spin')
        k('buffer_load_dword v90, v88, s[28:31], s80 offen sc0 sc1\ns_waitcnt vmcnt(0)')
        k('v_readfirstlane_b32 s81, v90\ns_add_u32 s76, s76, 1')
        k('s_cmp_eq_u32 s81, 16\ns_cbranch_scc1 L_k5_a_ok')
        k(f's_cmp_lt_u32 s76, {SPIN_MAX}\ns_cbranch_scc1 L_k5_a_spin')
    k.label('L_k5_a_ok')
    k('s_mul_i32 s84, s3, 2*96\ns_lshl_b32 s85, s22, 1\ns_add_u32 s84, s84, s85\ns_lshl_b32 s84, s84, 10')
    k('s_barrier')
    stamp(2, 2)
    vm.ops = []; vm.done = 0
    D = 6
    ACT = 16; ACC2 = 128
    def act_issue(i):
        r = ACT + 16 * (i % D)
        ops = [f'buffer_load_dwordx4 v[{r}:{r+3}], v10, s[16:19], s84 offen sc0 sc1',
               f'buffer_load_dwordx4 v[{r+4}:{r+7}], v10, s[16:19], s84 offen offset:256 sc0 sc1',
               f'buffer_load_dwordx4 v[{r+8}:{r+11}], v11, s[16:19], s84 offen sc0 sc1',
               f'buffer_load_dwordx4 v[{r+12}:{r+15}], v11, s[16:19], s84 offen offset:256 sc0 sc1\ns_add_u32 s84, s84, {8*1024}']
        return [(o, ('a', i, u)) for u, o in enumerate(ops)]
    for i in range(D):
        for o in act_issue(i): vm.issue(*o)
    k('s_mul_i32 s80, s22, 20480\nv_add_u32 v124, s80, v7')
    k(f's_mov_b32 s76, s82\ns_mov_b32 s77, s83\ns_mov_b32 s78, {SZ["out"]}\ns_mov_b32 s79, {SRD3:#x}')
    k('s_lshl_b32 s80, s22, 10\nv_add_u32 v125, s80, v7\nv_add_u32 v126, 40960, v125')
    k('v_lshrrev_b32 v120, 2, v4\nv_and_b32 v121, 3, v4')
    k('v_lshl_add_u32 v120, v3, 2, v120\nv_lshlrev_b32 v120, 7, v120\nv_lshl_add_u32 v120, v121, 3, v120')
    k(f's_lshl_b32 s80, s22, 5\ns_add_u32 s80, s80, {X2OFF}\nv_add_u32 v120, s80, v120')
    k(f'v_lshlrev_b32 v121, 4, v3\nv_add_u32 v121, {GBOFF}, v121')
    k('s_lshl_b32 s80, s3, 6\ns_lshl_b32 s81, s22, 4\ns_add_u32 s80, s80, s81\nv_add_u32 v122, s80, v4\nv_mul_u32_u24 v122, 1280, v122')
    k('s_mul_i32 s80, s27, 160\nv_lshl_add_u32 v122, v3, 3, v122\nv_add_u32 v122, s80, v122')
    for dt in range(5):
        k(f'ds_read_b64_tr_b16 v[{228+2*dt}:{229+2*dt}], v120 offset:{2048*dt}')
    for dt in range(5):
        k(f'ds_read_b128 v[{208+4*dt}:{211+4*dt}], v121 offset:{64*dt}')
    def mf(i, u, dt):
        r = ACT + 16 * (i % D)
        a = ACC2 + 4 * (4 * dt + u)
        c = '0' if i == 0 else f'v[{a}:{a+3}]'
        k(f'v_mfma_f32_16x16x32_bf16 v[{a}:{a+3}], a[{20*i+4*dt}:{20*i+4*dt+3}], v[{r+4*u}:{r+4*u+3}], {c}')
    def await_(i, u):
        idx = max(q for q, t in enumerate(vm.ops) if t == ('a', i, u))
        if idx >= vm.done:
            n = len(vm.ops) - 1 - idx
            k(f's_waitcnt vmcnt({n})'); vm.done = len(vm.ops) - n
    for i in range(10):
        nxt = act_issue(i + D) if i + D < 12 else []
        for u in range(4):
            await_(i, u)
            for dt in (range(5) if not (SNAKE and (u & 1)) else range(4, -1, -1)): mf(i, u, dt)
            if nxt: vm.issue(*nxt[u])
    def wr(u, dt):
        a = ACC2 + 4 * (4 * dt + u)
        k(f'ds_write_b128 v124, v[{a}:{a+3}] offset:{1024*(4*dt+u)}')
    for u in range(4):
        await_(10, u); await_(11, u)
        seq = [(10, dt) for dt in range(5)] + [(11, dt) for dt in range(5)]
        for n_, (i, dt) in enumerate(seq):
            mf(i, u, dt)
            if u > 0 and 4 <= n_ < 9: wr(u - 1, n_ - 4)
    stamp(2, 3); stamp(4, 0)
    for dt in range(5): wr(3, dt)
    stamp(4, 1)
    k('s_waitcnt lgkmcnt(0)\ns_barrier')
    stamp(4, 2)
    for dt in range(5):
        for wp in range(4):
            base = 'v125' if wp < 2 else 'v126'
            k(f'ds_read_b128 v[{16+16*dt+4*wp}:{19+16*dt+4*wp}], {base} offset:{(wp&1)*20480 + 4096*dt}')
    for dt in range(5):
        x = 228 + 2 * dt
        k(f'v_lshlrev_b32 v{128+4*dt}, 16, v{x}\nv_and_b32 v{129+4*dt}, 0xffff0000, v{x}\nv_lshlrev_b32 v{130+4*dt}, 16, v{x+1}\nv_and_b32 v{131+4*dt}, 0xffff0000, v{x+1}')
    for dt in range(5):
        b = 16 + 16 * dt
        k(f's_waitcnt lgkmcnt({min(15, 4*(4-dt))})')
        k(f'v_pk_add_f32 v[{b}:{b+1}], v[{b}:{b+1}], v[{b+4}:{b+5}]\nv_pk_add_f32 v[{b+2}:{b+3}], v[{b+2}:{b+3}], v[{b+6}:{b+7}]')
        k(f'v_pk_add_f32 v[{b+8}:{b+9}], v[{b+8}:{b+9}], v[{b+12}:{b+13}]\nv_pk_add_f32 v[{b+10}:{b+11}], v[{b+10}:{b+11}], v[{b+14}:{b+15}]')
        k(f'v_pk_add_f32 v[{b}:{b+1}], v[{b}:{b+1}], v[{b+8}:{b+9}]\nv_pk_add_f32 v[{b+2}:{b+3}], v[{b+2}:{b+3}], v[{b+10}:{b+11}]')
        g = 208 + 4 * dt; xr = 128 + 4 * dt
        k(f'v_pk_fma_f32 v[{b}:{b+1}], v[{b}:{b+1}], v[{g}:{g+1}], v[{xr}:{xr+1}]')
        k(f'v_pk_fma_f32 v[{b+2}:{b+3}], v[{b+2}:{b+3}], v[{g+2}:{g+3}], v[{xr+2}:{xr+3}]')
        k(f'v_cvt_pk_bf16_f32 v{b}, v{b}, v{b+1}\nv_cvt_pk_bf16_f32 v{b+1}, v{b+2}, v{b+3}')
        k(f'buffer_store_dwordx2 v[{b}:{b+1}], v122, s[76:79], 0 offen offset:{32*dt}{OUTWT}')
    stamp(4, 3)
    if STAMPS: k('s_waitcnt vmcnt(0)')
    stamp_end(k, 2)
    k.label('L_k5_exit')
    k('s_endpgm')
    return k
```

```python
from asmlib import K, Q
from common import *
import os

import os
N_WP, N_CV = 120, int(os.environ.get('EXP_NCV', 640))
import k1 as _k1
N_WD2 = 48 if _k1.WDK2 else 0
K2_GRID = N_WP + N_CV + N_WD2
K2_LDS = 40960
CVFIRST = os.environ.get('CVFIRST', '1') == '1'
CV16 = os.environ.get('CV16', '1') == '1'
CVPRIO = int(os.environ.get('CVPRIO', '1'))
CVBF = os.environ.get('CVBF', '0') == '1'
HP = 96 if CV16 else 80

def build_k2():
    k = K('conv_kernel')
    stamp_begin(k)
    if CVFIRST:
        k(f's_cmp_lt_u32 s2, {N_CV}\ns_cbranch_scc1 L_k2_cv')
        k(f's_cmp_lt_u32 s2, {N_CV + N_WP}\ns_cbranch_scc1 L_k2_wp')
        if N_WD2: k(f's_cmp_lt_u32 s2, {K2_GRID}\ns_cbranch_scc1 L_k2_wd')
    else:
        k(f's_cmp_lt_u32 s2, {N_WP}\ns_cbranch_scc1 L_k2_wp')
        k(f's_cmp_lt_u32 s2, {K2_GRID}\ns_cbranch_scc1 L_k2_cv')
    k('s_endpgm')

    k.label('L_k2_cv')
    if CVPRIO: k(f's_setprio {CVPRIO}')
    load_ptr(k, 4, 'ws'); load_ptr(k, 20, 'dsk')
    k(f's_sub_u32 s3, s2, {0 if CVFIRST else N_WP}')
    k('s_and_b32 s24, s3, 0xffffffe0\ns_and_b32 s25, s3, 7\ns_lshl_b32 s25, s25, 2\ns_or_b32 s24, s24, s25')
    k('s_lshr_b32 s25, s3, 3\ns_and_b32 s25, s25, 3\ns_or_b32 s3, s24, s25          ; d')
    k('v_lshlrev_b32 v1, 6, v0            ; t*64')
    k('s_and_b32 s24, s3, 3\ns_lshl_b32 s24, s24, 4')
    k('v_add_u32 v1, s24, v1')
    if os.environ.get('EXP_XT'): k('v_lshlrev_b32 v1, 4, v0')
    k('v_lshlrev_b32 v2, 5, v0')
    k('v_lshlrev_b32 v3, 4, v0            ; t*16')
    k('s_lshr_b32 s25, s3, 2\ns_lshl_b32 s25, s25, 14')
    if os.environ.get('EXP_XT'): k('s_lshl_b32 s25, s3, 12')
    k('s_lshl_b32 s26, s3, 12             ; d*4096')
    k('s_lshl_b32 s27, s3, 2              ; d*4')
    k('s_lshr_b32 s28, s3, 1\ns_lshl_b32 s28, s28, 2')
    k('s_waitcnt lgkmcnt(0)')
    stamp_mid(k, 3)
    k('s_add_u32 s30, s4, s27\ns_addc_u32 s31, s5, 0')
    for kq in range(4):
        for i in range(3):
            k(f's_load_dword s{40+4*i+kq}, s[30:31], {WS_MODP + kq*15360 + i*2560}')
    k('s_add_u32 s20, s20, s28\ns_addc_u32 s21, s21, 0')
    k('s_load_dword s52, s[20:21], 0')
    k(f's_add_u32 s8, s4, {WS_XT}\ns_addc_u32 s9, s5, 0\ns_mov_b32 s10, 2621440\ns_mov_b32 s11, {SRD3:#x}')
    k(f's_add_u32 s12, s4, {WS_STATS}\ns_addc_u32 s13, s5, 0\ns_mov_b32 s14, 8192\ns_mov_b32 s15, {SRD3:#x}')
    k(f's_add_u32 s16, s4, {WS_R}\ns_addc_u32 s17, s5, 0\ns_add_u32 s16, s16, s26\ns_addc_u32 s17, s17, 0\ns_mov_b32 s18, 4096\ns_mov_b32 s19, {SRD3:#x}')
    k('buffer_load_dwordx4 v[8:11], v3, s[16:19], 0 offen')
    k('buffer_load_dwordx4 v[12:15], v3, s[16:19], 0 offen offset:4')
    k('buffer_load_dwordx4 v[16:19], v3, s[16:19], 0 offen offset:8')
    k('buffer_load_dwordx4 v[20:23], v1, s[8:11], s25 offen        ; x')
    k('buffer_load_dwordx4 v[24:27], v2, s[12:15], 0 offen')
    k('buffer_load_dwordx4 v[28:31], v2, s[12:15], 0 offen offset:16')
    k(f's_add_u32 s32, s4, {WS_X2T}\ns_addc_u32 s33, s5, 0\ns_mov_b32 s34, 2621440\ns_mov_b32 s35, {SRD3:#x}')
    HB = 16640
    k('v_mov_b32 v32, 0\nv_mov_b32 v33, 0\nv_mov_b32 v34, 0\nv_mov_b32 v35, 0')
    k('v_lshrrev_b32 v4, 2, v0\nv_and_b32 v5, 3, v0')
    k(f'v_mul_u32_u24 v6, {HP}, v4\nv_lshl_add_u32 v6, v5, 4, v6        ; (t>>2)*pitch + (t&3)*16')
    k('v_mul_u32_u24 v7, 4160, v4\nv_lshl_add_u32 v7, v5, 4, v7')
    k('v_cmp_gt_u32 vcc, 128, v0')
    k('s_and_saveexec_b64 s[36:37], vcc')
    k(f'ds_write_b128 v6, v[32:35] offset:{HB}')
    k('v_cmp_gt_u32 vcc, 16, v0')
    k('s_and_b64 exec, exec, vcc')
    k('ds_write_b128 v7, v[32:35] offset:4096')
    k('s_mov_b64 exec, s[36:37]')
    k('v_and_b32 v36, 63, v0            ; lane')
    k('v_lshrrev_b32 v37, 6, v0         ; w')
    k('v_and_b32 v38, 31, v36           ; b / n')
    k('v_lshrrev_b32 v39, 5, v36        ; g')
    k('v_sub_u32 v40, 3, v38\nv_and_b32 v40, 3, v40       ; s_b')
    k('v_mul_u32_u24 v41, 4160, v40')
    k('v_sub_u32 v42, 2047, v38\nv_lshl_add_u32 v42, v39, 3, v42\nv_sub_u32 v42, v42, v40')
    k('v_lshl_add_u32 v41, v42, 1, v41')
    k('v_lshlrev_b32 v42, 9, v37        ; w*512 = 64*8w')
    k(f'v_sub_u32 v41, v41, v42\nv_subrev_u32 v41, {64*39}, v41      ; baseA')
    k('v_lshlrev_b32 v42, 3, v37\nv_sub_u32 v42, v38, v42\nv_add_u32 v42, 25, v42      ; 32 + n - 8w - 7')
    k('v_mul_u32_u24 v42, 80, v42\nv_lshl_add_u32 v42, v39, 4, v42')
    k(f'v_add_u32 v42, {HB}, v42           ; baseB')
    k('v_mul_u32_u24 v43, 9216, v37\nv_mul_u32_u24 v44, 144, v38\nv_add_u32 v43, v43, v44\nv_lshl_add_u32 v43, v39, 4, v43')
    k('v_mul_u32_u24 v44, 144, v4\nv_lshl_add_u32 v44, v5, 5, v44')
    if CV16:
        k('v_and_b32 v38, 15, v36\nv_lshrrev_b32 v39, 4, v36')
        k('v_readfirstlane_b32 s54, v37')
        k('v_sub_u32 v40, 3, v38\nv_and_b32 v40, 3, v40\nv_mul_u32_u24 v41, 4160, v40')
        k('v_sub_u32 v42, 2047, v38\nv_lshl_add_u32 v42, v39, 3, v42\nv_sub_u32 v42, v42, v40\nv_lshl_add_u32 v41, v42, 1, v41        ; A0')
        k('s_mov_b32 s55, 6\ns_cmp_eq_u32 s54, 1\ns_cselect_b32 s55, 13, s55\ns_cmp_eq_u32 s54, 2\ns_cselect_b32 s55, 21, s55\ns_cmp_eq_u32 s54, 3\ns_cselect_b32 s55, 31, s55      ; hi-1')
        k('s_add_u32 s56, s55, 32\ns_lshl_b32 s56, s56, 6\ns_add_u32 s56, s56, 32\nv_subrev_u32 v1, s56, v41       ; baseA')
        k(f'v_add_u32 v42, 32, v38\nv_subrev_u32 v42, s55, v42\nv_mul_u32_u24 v42, {HP}, v42\nv_lshl_add_u32 v42, v39, 4, v42\nv_add_u32 v2, {HB}, v42       ; baseB')
        if CVBF:
            k('v_lshrrev_b32 v42, 2, v0\nv_mul_u32_u24 v42, 80, v42\nv_and_b32 v5, 3, v0\nv_lshl_add_u32 v5, v5, 4, v42')
            k('v_mul_u32_u24 v4, 5120, v37\nv_mul_u32_u24 v42, 80, v38\nv_add_u32 v4, v4, v42\nv_lshl_add_u32 v4, v39, 3, v4')
        else:
            k('v_mul_u32_u24 v4, 9216, v37\nv_mul_u32_u24 v42, 144, v38\nv_add_u32 v4, v4, v42\nv_lshl_add_u32 v4, v39, 4, v4')
            k('v_mov_b32 v5, v44')
    k('s_waitcnt lgkmcnt(0)')
    for i, dst in enumerate((45, 46, 47)):
        k(f'v_mov_b32 v{dst}, s{40+4*i}')
        for kq in range(1, 4):
            k(f'v_add_f32 v{dst}, s{40+4*i+kq}, v{dst}')
    k('v_cvt_pk_bf16_f32 v45, v45, v46')
    k('v_cvt_pk_bf16_f32 v47, v47, v47')
    k('v_and_b32 v46, 0xffff0000, v45\nv_lshlrev_b32 v45, 16, v45\nv_lshlrev_b32 v47, 16, v47')
    k('v_add_f32 v46, 1.0, v46\nv_cvt_pk_bf16_f32 v46, v46, v46\nv_lshlrev_b32 v46, 16, v46')
    k('s_and_b32 s53, s3, 1\ns_lshl_b32 s53, s53, 4\ns_lshr_b32 s52, s52, s53\ns_lshl_b32 s52, s52, 16')
    k('s_waitcnt vmcnt(3)')
    k('ds_write_b128 v3, v[8:11]')
    k('ds_write_b128 v3, v[12:15] offset:8320')
    for i in range(4):
        k(f'v_alignbit_b32 v{48+i}, v{12+i}, v{8+i}, 16')
    for i in range(4):
        k(f'v_alignbit_b32 v{52+i}, v{16+i}, v{12+i}, 16')
    k('ds_write_b128 v3, v[48:51] offset:4160')
    k('ds_write_b128 v3, v[52:55] offset:12480')
    stamp_mid(k, 0)
    k('s_waitcnt vmcnt(0)')
    for i in range(8):
        st = 24 + i
        k(f'v_and_b32 v{56+i}, 0xffff0000, v{st}      ; sd')
    for i in range(8):
        k(f'v_rcp_f32 v{56+i}, v{56+i}')
    for i in range(8):
        k(f'v_lshlrev_b32 v{24+i}, 16, v{24+i}        ; mean')
    for i in range(4):
        k(f'v_lshlrev_b32 v{64+2*i}, 16, v{20+i}\nv_and_b32 v{65+2*i}, 0xffff0000, v{20+i}')
    for i in range(8): k(f'v_sub_f32 v{64+i}, v{64+i}, v{24+i}')
    for i in range(8): k(f'v_mul_f32 v{64+i}, v{64+i}, v{56+i}')
    for i in range(8):
        k(f'v_fma_f32 v{64+i}, v{64+i}, v46, v45')
    for i in range(4):
        k(f'v_cvt_pk_bf16_f32 v{8+i}, v{64+2*i}, v{65+2*i}       ; h packed v8..11')
    k(f'ds_write_b128 v6, v[8:11] offset:{HB + 32*HP}')
    if CV16: k('v_mov_b32 v16, v47')
    k('s_waitcnt lgkmcnt(0)\ns_barrier')
    stamp_mid(k, 1)
    if CVPRIO: k('s_setprio 0')
    if CV16:
        RANGES = [(0, 7), (7, 14), (14, 22), (22, 32)]
        lg = Q(k, 'lgkmcnt', 15)
        ACC = 96
        def acc(rt, ct): return ACC + 4 * (4 * rt + ct)
        def step_reads(S, dp, hi):
            oa = lambda dl, rt: 64 * (hi - 1 + 32 - dl) + 32 * (1 - rt)
            ob = lambda ct: HP * (hi - 1 - dp + 16 * ct)
            out = []
            def A(slot, dl, rt):
                out.append((f'ds_read_b64 v[{S+4*slot}:{S+4*slot+1}], v1 offset:{oa(dl, rt)}', ('A', slot, dp)))
                out.append((f'ds_read_b64 v[{S+4*slot+2}:{S+4*slot+3}], v1 offset:{oa(dl, rt)+8}', ('A', slot, dp)))
            def B(ct): out.append((f'ds_read_b128 v[{S+16+4*ct}:{S+19+4*ct}], v2 offset:{ob(ct)}', ('B', ct, dp)))
            A(0, dp, 0); B(2); B(3); A(1, dp, 1); B(1)
            if dp < 16: B(0)
            A(2, dp + 32, 0); A(3, dp + 32, 1)
            return out
        def step_mfmas(dp):
            m = [(0, 2, 0, 2), (0, 3, 0, 3), (1, 2, 1, 2), (1, 3, 1, 3), (0, 1, 0, 1), (1, 1, 1, 1)]
            if dp < 16: m += [(0, 0, 0, 0), (1, 0, 1, 0)]
            m += [(2, 1, 0, 3), (3, 1, 1, 3)]
            if dp < 16: m += [(2, 0, 0, 2), (3, 0, 1, 2)]
            return m
        def lgw(tag):
            idx = max(i for i, t in enumerate(lg.ops) if t == tag)
            if idx < lg.done: return
            n = min(15, len(lg.ops) - 1 - idx)
            k(f's_waitcnt lgkmcnt({n})'); lg.done = max(lg.done, len(lg.ops) - n)
        for wv, (lo_, hi_) in enumerate(RANGES):
            if wv: k.label(f'L_cv16_w{wv}')
            if wv < 3: k(f's_cmp_lg_u32 s54, {wv}\ns_cbranch_scc1 L_cv16_w{wv+1}')
            lg.ops = []; lg.done = 0
            touched = set()
            dps = list(range(lo_, hi_))
            for r_ in step_reads(32, dps[0], hi_): lg.issue(*r_)
            for si, dp in enumerate(dps):
                S = 32 + 32 * (si & 1)
                nx = step_reads(32 + 32 * ((si + 1) & 1), dps[si + 1], hi_) if si + 1 < len(dps) else []
                ms = step_mfmas(dp)
                for mi, (sl, ct, rt, ac) in enumerate(ms):
                    lgw(('A', sl, dp)); lgw(('B', ct, dp))
                    a = acc(rt, ac)
                    c = f'v[{a}:{a+3}]' if (rt, ac) in touched else '0'
                    touched.add((rt, ac))
                    k(f'v_mfma_f32_16x16x32_bf16 v[{a}:{a+3}], v[{S+4*sl}:{S+4*sl+3}], v[{S+16+4*ct}:{S+19+4*ct}], {c}')
                    lo_i = mi * len(nx) // len(ms); hi_i = (mi + 1) * len(nx) // len(ms)
                    for r_ in nx[lo_i:hi_i]: lg.issue(*r_)
            for rt in range(2):
                for ct in range(4):
                    if (rt, ct) not in touched:
                        a = acc(rt, ct)
                        k(f'v_mov_b32 v{a}, 0\nv_mov_b32 v{a+1}, 0\nv_mov_b32 v{a+2}, 0\nv_mov_b32 v{a+3}, 0')
            if wv < 3: k('s_branch L_cv16_done')
        k.label('L_cv16_done')
        if CVPRIO: k(f's_setprio {CVPRIO}')
        k('s_nop 7')
        stamp_mid(k, 2)
        k('s_barrier')
        if CVBF:
            for rt in range(2):
                for ct in range(4):
                    a = acc(rt, ct); o = 32 + 2 * (4 * rt + ct)
                    k(f'v_cvt_pk_bf16_f32 v{o}, v{a}, v{a+1}\nv_cvt_pk_bf16_f32 v{o+1}, v{a+2}, v{a+3}')
            for rt in range(2):
                for ct in range(4):
                    o = 32 + 2 * (4 * rt + ct)
                    k(f'ds_write_b64 v4, v[{o}:{o+1}] offset:{ct*1280 + rt*32}')
        else:
            for rt in range(2):
                for ct in range(4):
                    a = acc(rt, ct)
                    k(f'ds_write_b128 v4, v[{a}:{a+3}] offset:{ct*2304 + rt*64}')
        k('v_mov_b32 v44, v5\nv_mov_b32 v47, v16')
    else:
        steps = [(e, ks) for e in range(8) for ks in range(2)]
        def loads(si):
            e, ks = steps[si]
            r = 64 + 16 * (si & 1)
            oa = 64 * e + 32 * ks
            ob = 80 * e + 32 * ks
            k(f'ds_read_b64 v[{r}:{r+1}], v41 offset:{oa+2048}')
            k(f'ds_read_b64 v[{r+2}:{r+3}], v41 offset:{oa+2048+8}')
            k(f'ds_read_b128 v[{r+12}:{r+15}], v42 offset:{ob+2560}')
            k(f'ds_read_b128 v[{r+8}:{r+11}], v42 offset:{ob}')
            k(f'ds_read_b64 v[{r+4}:{r+5}], v41 offset:{oa}')
            k(f'ds_read_b64 v[{r+6}:{r+7}], v41 offset:{oa+8}')
        def rd_list(si):
            e, ks = steps[si]
            r = 64 + 16 * (si & 1)
            oa = 64 * e + 32 * ks
            ob = 80 * e + 32 * ks
            return [f'ds_read_b64 v[{r}:{r+1}], v41 offset:{oa+2048}', f'ds_read_b64 v[{r+2}:{r+3}], v41 offset:{oa+2048+8}',
                    f'ds_read_b128 v[{r+12}:{r+15}], v42 offset:{ob+2560}', f'ds_read_b128 v[{r+8}:{r+11}], v42 offset:{ob}',
                    f'ds_read_b64 v[{r+4}:{r+5}], v41 offset:{oa}', f'ds_read_b64 v[{r+6}:{r+7}], v41 offset:{oa+8}']
        if os.environ.get('CVSCHED', '1') == '1':
            for x in rd_list(0): k(x)
            for si in range(16):
                r = 64 + 16 * (si & 1)
                nx = rd_list(si + 1) if si + 1 < 16 else []
                c1 = '0' if si == 0 else 'v[112:127]'
                c0 = '0' if si == 0 else 'v[96:111]'
                k('s_waitcnt lgkmcnt(3)')
                k(f'v_mfma_f32_32x32x16_bf16 v[112:127], v[{r}:{r+3}], v[{r+12}:{r+15}], {c1}')
                for x in nx[0:2]: k(x)
                k(f's_waitcnt lgkmcnt({2 + len(nx[0:2])})')
                k(f'v_mfma_f32_32x32x16_bf16 v[96:111], v[{r}:{r+3}], v[{r+8}:{r+11}], {c0}')
                for x in nx[2:4]: k(x)
                k(f's_waitcnt lgkmcnt({len(nx[0:4])})')
                k(f'v_mfma_f32_32x32x16_bf16 v[112:127], v[{r+4}:{r+7}], v[{r+8}:{r+11}], v[112:127]')
                for x in nx[4:6]: k(x)
        else:
            loads(0)
            for si in range(16):
                r = 64 + 16 * (si & 1)
                if si + 1 < 16:
                    loads(si + 1)
                    k('s_waitcnt lgkmcnt(6)')
                else:
                    k('s_waitcnt lgkmcnt(0)')
                c1 = '0' if si == 0 else 'v[112:127]'
                c0 = '0' if si == 0 else 'v[96:111]'
                k(f'v_mfma_f32_32x32x16_bf16 v[112:127], v[{r}:{r+3}], v[{r+12}:{r+15}], {c1}')
                k(f'v_mfma_f32_32x32x16_bf16 v[96:111], v[{r}:{r+3}], v[{r+8}:{r+11}], {c0}')
                k(f'v_mfma_f32_32x32x16_bf16 v[112:127], v[{r+4}:{r+7}], v[{r+8}:{r+11}], v[112:127]')
        stamp_mid(k, 2)
        k('s_barrier')
        for j in range(4):
            k(f'ds_write_b128 v43, v[{96+4*j}:{99+4*j}] offset:{32*j}')
        for j in range(4):
            k(f'ds_write_b128 v43, v[{112+4*j}:{115+4*j}] offset:{32*j+4608}')
    k('s_waitcnt lgkmcnt(0)\ns_barrier')
    if CV16 and CVBF:
        for w in range(4): k(f'ds_read_b128 v[{96+4*w}:{99+4*w}], v44 offset:{5120*w}')
    else:
        for w in range(4):
            k(f'ds_read_b128 v[{64+8*w}:{67+8*w}], v44 offset:{9216*w}')
            k(f'ds_read_b128 v[{68+8*w}:{71+8*w}], v44 offset:{9216*w+16}')
    for i in range(4):
        k(f'v_lshlrev_b32 v{24+2*i}, 16, v{8+i}\nv_and_b32 v{25+2*i}, 0xffff0000, v{8+i}')
    for i in range(4):
        k(f'v_lshlrev_b32 v{48+2*i}, 16, v{20+i}\nv_and_b32 v{49+2*i}, 0xffff0000, v{20+i}')
    k('s_waitcnt lgkmcnt(0)')
    if CV16 and CVBF:
        for w in range(4):
            for i in range(4): k(f'v_lshlrev_b32 v{64+8*w+2*i}, 16, v{96+4*w+i}\nv_and_b32 v{65+8*w+2*i}, 0xffff0000, v{96+4*w+i}')
    for i in range(8): k(f'v_add_f32 v{64+i}, v{64+i}, v{72+i}')
    for i in range(8): k(f'v_add_f32 v{80+i}, v{80+i}, v{88+i}')
    for i in range(8): k(f'v_add_f32 v{64+i}, v{64+i}, v{80+i}')
    for i in range(8):
        k(f'v_fma_f32 v{64+i}, v{24+i}, s52, v{64+i}        ; y + h*D')
    for i in range(8):
        k(f'v_fma_f32 v{64+i}, v{64+i}, v47, v{48+i}        ; x + ga*(.)')
    for i in range(4):
        k(f'v_cvt_pk_bf16_f32 v{64+i}, v{64+2*i}, v{65+2*i}')
    k(f'buffer_store_dwordx4 v[64:67], v3, s[32:35], s26 offen{WT}')
    if STAMPS: k('s_waitcnt vmcnt(0)')
    stamp_end(k, 1)
    k('s_endpgm')

    emit_wprep(k, N_CV if CVFIRST else 0)
    if N_WD2: _k1.emit_wd(k, N_CV + N_WP, 1, 'L_k2_wd')
    return k

def emit_wprep(k, base_id):
    k.label('L_k2_wp')
    if os.environ.get('WPPRIO', '0') != '0': k(f"s_setprio {os.environ.get('WPPRIO')}")
    if os.environ.get('EXP_NOWP'): k('s_endpgm')
    load_ptr(k, 4, 'wg'); load_ptr(k, 8, 'wu'); load_ptr(k, 12, 'ws')
    k(f's_sub_u32 s3, s2, {base_id}')
    k('s_mul_hi_u32 s16, s3, 0x33333334')
    k('s_mul_i32 s17, s16, 5\ns_sub_u32 s17, s3, s17       ; dq')
    k('v_and_b32 v1, 63, v0            ; lane')
    k('v_lshrrev_b32 v2, 6, v0\nv_readfirstlane_b32 s18, v2     ; w')
    k('v_lshrrev_b32 v3, 3, v1\nv_and_b32 v4, 7, v1')
    k('v_lshrrev_b32 v5, 4, v1\nv_and_b32 v5, 1, v5\nv_lshlrev_b32 v5, 1, v5\nv_xor_b32 v4, v4, v5')
    k('v_xor_b32 v5, 4, v4')
    k('v_mul_u32_u24 v3, 3072, v3')
    k('v_lshl_add_u32 v4, v4, 4, v3')
    k('v_lshl_add_u32 v5, v5, 4, v3')
    k('s_mul_i32 s19, s17, 128*3072\ns_lshl_b32 s20, s16, 7\ns_add_u32 s19, s19, s20')
    k('s_mul_i32 s20, s18, 4*24576\ns_add_u32 s19, s19, s20')
    k('s_lshl_b32 s21, s18, 12')
    k('s_lshl_b32 s22, s17, 9\nv_lshlrev_b32 v6, 2, v0\nv_add_u32 v6, s22, v6     ; d*4')
    k('s_waitcnt lgkmcnt(0)')
    srd_fin(k, 4, SZ['wg']); srd_fin(k, 8, SZ['wu'])
    k(f's_add_u32 s24, s12, {WS_MODP}\ns_addc_u32 s25, s13, 0\ns_mov_b32 s26, 61440\ns_mov_b32 s27, {SRD3:#x}')
    for kq in range(4):
        k(f's_mov_b32 s23, {kq*15360 + 3*2560}')
        k(f'buffer_load_dword v{8+kq}, v6, s[24:27], s23 offen')
        k(f'buffer_load_dword v{12+kq}, v6, s[24:27], s23 offen offset:2560')
    for q in range(4):
        k(f's_add_u32 m0, s21, {q*1024}')
        k(f's_add_u32 s23, s19, {q*24576}')
        k(f'buffer_load_dwordx4 v4, s[4:7], s23 offen{NT} lds')
        k(f's_add_u32 m0, s21, {q*1024 + 16384}')
        k('s_nop 0')
        k(f'buffer_load_dwordx4 v5, s[8:11], s23 offen{NT} lds')
    k(f's_add_u32 s28, s12, {WS_WP}\ns_addc_u32 s29, s13, 0\ns_mov_b32 s30, 3932160\ns_mov_b32 s31, {SRD3:#x}')
    k(f's_add_u32 s32, s12, {WS_PQ}\ns_addc_u32 s33, s13, 0\ns_mov_b32 s34, 122880\ns_mov_b32 s35, {SRD3:#x}')
    k('s_waitcnt vmcnt(8)')
    k('v_add_f32 v8, v8, v9\nv_add_f32 v10, v10, v11\nv_add_f32 v12, v12, v13\nv_add_f32 v14, v14, v15')
    k('v_add_f32 v8, v8, v10\nv_add_f32 v12, v12, v14')
    k('v_cvt_pk_bf16_f32 v8, v8, v12')
    k('v_and_b32 v12, 0xffff0000, v8\nv_add_f32 v12, 1.0, v12\nv_cvt_pk_bf16_f32 v12, v12, v12\nv_lshlrev_b32 v12, 16, v12')
    k('v_lshlrev_b32 v9, 2, v0\nv_lshlrev_b32 v10, 1, v0')
    k('v_cmp_gt_u32 vcc, 128, v0')
    k('s_and_saveexec_b64 s[36:37], vcc')
    k('v_lshlrev_b32 v8, 16, v8')
    k('ds_write_b32 v9, v12 offset:32768')
    k('ds_write_b32 v9, v8 offset:33280')
    k('s_mov_b64 exec, s[36:37]')
    k('v_lshrrev_b32 v3, 4, v1          ; grp')
    k('v_and_b32 v7, 15, v1\nv_lshrrev_b32 v8, 2, v7      ; r\nv_and_b32 v7, 3, v7       ; c')
    k('v_lshrrev_b32 v9, 1, v3          ; g')
    k('v_and_b32 v10, 1, v3             ; grp&1')
    k('v_lshrrev_b32 v11, 1, v7         ; mat')
    k('v_lshrrev_b32 v12, 1, v8\nv_lshlrev_b32 v12, 1, v12      ; 2*((r>>1)&1)')
    k('v_xor_b32 v10, v10, v12\nv_lshlrev_b32 v12, 2, v11\nv_xor_b32 v10, v10, v12     ; X')
    k('v_lshlrev_b32 v10, 4, v10')
    k('v_lshl_add_u32 v10, v11, 14, v10         ; + mat*16384')
    k('v_lshl_add_u32 v12, v9, 3, v8            ; 8g + r')
    k('v_lshl_add_u32 v10, v12, 7, v10          ; + row*128')
    k('v_and_b32 v12, 1, v7\nv_lshl_add_u32 v10, v12, 3, v10')
    k('s_lshl_b32 s23, s18, 5\nv_xor_b32 v10, s23, v10      ; ^ 32*tl')
    k('v_lshlrev_b32 v11, 5, v9\nv_lshlrev_b32 v12, 4, v9')
    k('s_lshl_b32 s23, s16, 2\ns_add_u32 s23, s23, s18        ; T')
    k('s_mul_i32 s38, s17, 8*96\ns_add_u32 s38, s38, s23\ns_lshl_b32 s38, s38, 10')
    k('v_lshlrev_b32 v13, 4, v1')
    k('s_mov_b32 s39, 0x3f803f80')
    k('v_mov_b32 v14, 0\nv_mov_b32 v15, 0\nv_mov_b32 v98, 0\nv_mov_b32 v99, 0')
    k('s_waitcnt vmcnt(0) lgkmcnt(0)\ns_barrier')
    def wp_reads(ksl):
        b = 16 + 36 * (ksl & 1)
        k(f'ds_read_b64_tr_b16 v[{b}:{b+1}], v10 offset:{ksl*2048}')
        k(f'ds_read_b64_tr_b16 v[{b+2}:{b+3}], v10 offset:{ksl*2048+512}')
        k(f'ds_read_b128 v[{b+4}:{b+7}], v11 offset:{32768 + ksl*64}')
        k(f'ds_read_b128 v[{b+8}:{b+11}], v11 offset:{32768 + ksl*64 + 16}')
        k(f'ds_read_b128 v[{b+12}:{b+15}], v11 offset:{33280 + ksl*64}')
        k(f'ds_read_b128 v[{b+16}:{b+19}], v11 offset:{33280 + ksl*64 + 16}')
    wp_reads(0)
    for ksl in range(8):
        b = 16 + 36 * (ksl & 1)
        if ksl < 7:
            wp_reads(ksl + 1)
            k('s_waitcnt lgkmcnt(6)')
        else:
            k('s_waitcnt lgkmcnt(0)')
        U = b + 20
        for j in range(4):
            k(f'v_lshlrev_b32 v{U+2*j}, 16, v{b+j}\nv_and_b32 v{U+1+2*j}, 0xffff0000, v{b+j}')
        for j in range(8):
            k(f'v_fma_f32 v{15 if j % 2 == 0 else 98}, v{U+j}, v{b+12+j}, v{15 if j % 2 == 0 else 98}')
        for j in range(8):
            k(f'v_mul_f32 v{U+j}, v{U+j}, v{b+4+j}')
        for j in range(4):
            k(f'v_cvt_pk_bf16_f32 v{b+28+j}, v{U+2*j}, v{U+1+2*j}')
        for j in range(8):
            k(f'v_add_f32 v{14 if j % 2 == 0 else 99}, v{14 if j % 2 == 0 else 99}, v{U+j}')
        k(f'buffer_store_dwordx4 v[{b+28}:{b+31}], v13, s[28:31], s38 offen{WT}')
        k(f's_add_u32 s38, s38, {96*1024}')
    k('v_add_f32 v14, v14, v99\nv_add_f32 v15, v15, v98')
    k('v_mov_b32 v16, v14\nv_mov_b32 v17, v15')
    k('v_permlane32_swap_b32 v14, v16\nv_permlane32_swap_b32 v15, v17')
    k('v_add_f32 v14, v14, v16\nv_add_f32 v15, v15, v17')
    k('s_mul_i32 s38, s17, 96\ns_add_u32 s38, s38, s23\ns_lshl_b32 s38, s38, 8       ; (dq*96+T)*256')
    k('v_lshlrev_b32 v13, 3, v1')
    k('v_cmp_gt_u32 vcc, 32, v1')
    k('s_and_saveexec_b64 s[36:37], vcc')
    k(f'buffer_store_dwordx2 v[14:15], v13, s[32:35], s38 offen{WT}')
    k('s_mov_b64 exec, s[36:37]')
    if STAMPS: k('s_waitcnt vmcnt(0)')
    stamp_end(k, 1)
    k('s_endpgm')
```

```python
from asmlib import K
from common import *

import os
FUSEK = os.environ.get('FUSEK', '0') == '1'
WDK2 = os.environ.get('WDK2', '1') == '1'
N_LN, N_MOD, N_KG, N_WD = 64, 120, (0 if FUSEK else 640), (0 if WDK2 else 48)
N_PF = 16
K1_GRID = N_LN + N_MOD + N_KG + N_WD + N_PF
K1_LDS = 40960
import os
KGFIRST = os.environ.get('KGFIRST', '1') == '1'
CODEPF = os.environ.get('CODEPF', '1') == '1'
SELFPF = os.environ.get('SELFPF', '0') == '1'
MIX = int(os.environ.get('MIX', '0'))
B_KG = 0 if KGFIRST else N_LN + N_MOD
B_LN = (MIX if MIX else N_KG) if KGFIRST else 0
B_MOD = (MIX + N_LN if MIX else N_KG + N_LN) if KGFIRST else N_LN

import os as _os
def cmul(k, dst, x, y, tmp):
    if _os.environ.get('PKCMUL', '1') == '1':
        k(f'v_pk_mul_f32 v[{tmp}:{tmp+1}], v[{x}:{x+1}], v[{y}:{y+1}] op_sel:[0,0] op_sel_hi:[0,1]')
        k(f'v_pk_fma_f32 v[{dst}:{dst+1}], v[{x}:{x+1}], v[{y}:{y+1}], v[{tmp}:{tmp+1}] op_sel:[1,1,0] op_sel_hi:[1,0,1] neg_lo:[1,0,0]')
    else:
        assert dst != y or x == y and False or dst != y
        k(f'v_mul_f32 v{tmp}, v{x}, v{y}\nv_mul_f32 v{tmp+1}, v{x}, v{y+1}')
        k(f'v_fma_f32 v{dst}, -v{x+1}, v{y+1}, v{tmp}\nv_fma_f32 v{dst+1}, v{x+1}, v{y}, v{tmp+1}')

def emit_wd(k, base_id, stamp_idx, label):
    k.label(label)
    load_ptr(k, 4, 'wd'); load_ptr(k, 8, 'ws')
    k(f's_sub_u32 s3, s2, {base_id}      ; kappa')
    k('v_and_b32 v1, 63, v0\nv_lshrrev_b32 v2, 6, v0\nv_lshlrev_b32 v3, 4, v1\nv_readfirstlane_b32 s16, v2')
    k('s_mul_i32 s17, s3, 40960')
    k('s_mul_i32 s18, s16, 10240\ns_add_u32 s17, s17, s18')
    k('s_waitcnt lgkmcnt(0)')
    srd_fin(k, 4, SZ['wd'])
    k(f's_add_u32 s12, s8, {WS_WD}\ns_addc_u32 s13, s9, 0\ns_mov_b32 s14, 1966080\ns_mov_b32 s15, {SRD3:#x}')
    for q in range(10):
        k(f's_add_u32 m0, s18, {q*1024}')
        k(f's_add_u32 s19, s17, {q*1024}')
        k(f'buffer_load_dwordx4 v3, s[4:7], s19 offen{NT} lds')
    k('v_lshrrev_b32 v5, 4, v1\nv_and_b32 v6, 15, v1\nv_lshrrev_b32 v7, 2, v6\nv_and_b32 v6, 3, v6')
    k('v_lshrrev_b32 v12, 1, v5\nv_lshlrev_b32 v12, 4, v12\nv_and_b32 v13, 1, v5\nv_lshl_add_u32 v12, v13, 2, v12\nv_add_u32 v12, v12, v7')
    k('v_mul_u32_u24 v12, 1280, v12\nv_lshl_add_u32 v12, v6, 3, v12')
    k('s_mul_i32 s24, s16, 320\nv_add_u32 v12, s24, v12')
    k('s_mul_i32 s24, s16, 96\ns_add_u32 s24, s24, s3\ns_mul_i32 s24, s24, 5120')
    k('s_waitcnt vmcnt(0)\ns_barrier')
    for b in range(2):
        for dt in range(5):
            r = 16 + 4 * (5 * b + dt)
            o = 160 * b + 32 * dt
            k(f'ds_read_b64_tr_b16 v[{r}:{r+1}], v12 offset:{o}\nds_read_b64_tr_b16 v[{r+2}:{r+3}], v12 offset:{o + 8*1280}')
    for b in range(2):
        for dt in range(5):
            r = 16 + 4 * (5 * b + dt)
            k(f's_waitcnt lgkmcnt({min(15, 2*(9 - 5*b - dt))})')
            k(f's_add_u32 s25, s24, {b*48*5120 + dt*1024}')
            k(f'buffer_store_dwordx4 v[{r}:{r+3}], v3, s[12:15], s25 offen{WT}')
    if STAMPS: k('s_waitcnt vmcnt(0)')
    stamp_end(k, stamp_idx)
    k('s_endpgm')

def emit_ln(k, base, signal=None):
    k.label('L_k1_ln')
    if os.environ.get('LNPRIO'): k(f"s_setprio {os.environ['LNPRIO']}")
    load_ptr(k, 4, 'u'); load_ptr(k, 8, 'ws'); load_ptr(k, 12, 'ws')
    k('v_lshrrev_b32 v1, 4, v0       ; rg')
    k('v_and_b32 v2, 15, v0          ; c')
    k(f's_sub_u32 s3, s2, {base}\ns_lshl_b32 s3, s3, 5          ; l0')
    k('v_add_u32 v3, s3, v1')
    k('v_mul_u32_u24 v4, 1280, v3')
    k('v_lshl_add_u32 v4, v2, 4, v4')
    k('s_mov_b32 s16, 20480')
    k('s_mov_b32 s17, 0x3f803f80')
    k('s_waitcnt lgkmcnt(0)')
    srd_fin(k, 4, SZ['u']); srd_fin(k, 8, 8192, WS_STATS); srd_fin(k, 12, 2621440, WS_XT)
    for p in range(2):
        for q in range(5):
            r = 16 + 4 * (5 * p + q)
            k(f'buffer_load_dwordx4 v[{r}:{r+3}], v4, s[4:7], {"s16" if p else "0"} offen offset:{256*q}{NT}')
    k('v_and_b32 v5, 3, v1\nv_lshrrev_b32 v6, 3, v1\nv_lshl_or_b32 v5, v6, 2, v5     ; f0')
    k('v_xor_b32 v5, v5, v2          ; c ^ f0')
    k('v_mul_u32_u24 v6, 1280, v1')
    k('v_xor_b32 v7, 8, v5')
    k('v_lshl_add_u32 v5, v5, 4, v6          ; p=0 addr')
    k('v_lshl_add_u32 v6, v7, 4, v6          ; p=1 addr - 20480')
    for p in range(2):
        k(f's_waitcnt vmcnt({5 if p == 0 else 0})')
        for q in range(5):
            r = 16 + 4 * (5 * p + q)
            k(f'ds_write_b128 v{5+p}, v[{r}:{r+3}] offset:{256*q + 20480*p}')
        for q in range(5):
            r = 16 + 4 * (5 * p + q)
            for i in range(4):
                first = (q == 0 and i == 0)
                k(f'v_dot2_f32_bf16 v{8+2*p}, v{r+i}, s17, ' + ('0' if first else f'v{8+2*p}'))
                k(f'v_dot2_f32_bf16 v{9+2*p}, v{r+i}, v{r+i}, ' + ('0' if first else f'v{9+2*p}'))
    for sh in (8, 4, 2, 1):
        for v in (8, 9, 10, 11):
            k(f'v_add_f32_dpp v{v}, v{v}, v{v} row_ror:{sh} row_mask:0xf bank_mask:0xf')
    for p in range(2):
        a, b = 8 + 2 * p, 9 + 2 * p
        k(f'v_mul_f32 v{a}, 0x3acccccd, v{a}          ; mean')
        k(f'v_mul_f32 v{b}, 0x3acccccd, v{b}')
        k(f'v_fma_f32 v{b}, -v{a}, v{a}, v{b}         ; var')
        k(f'v_max_f32 v{b}, 0, v{b}')
        k(f'v_cvt_pk_bf16_f32 v{b}, v{b}, v{b}\nv_lshlrev_b32 v{b}, 16, v{b}')
        k(f'v_add_f32 v{b}, 0x3727c5ac, v{b}')
        k(f'v_cvt_pk_bf16_f32 v{b}, v{b}, v{b}\nv_lshlrev_b32 v{b}, 16, v{b}')
        k(f'v_sqrt_f32 v{b}, v{b}')
        k(f'v_cvt_pk_bf16_f32 v{a}, v{a}, v{b}')
    k('v_lshlrev_b32 v7, 2, v3')
    k('v_cmp_eq_u32 vcc, 0, v2')
    k('s_and_saveexec_b64 s[18:19], vcc')
    k('s_cbranch_execz L_k1_ln_nost')
    k(f'buffer_store_dword v8, v7, s[8:11], 0 offen{WT}')
    k(f'buffer_store_dword v10, v7, s[8:11], 0 offen offset:64{WT}')
    k.label('L_k1_ln_nost')
    k('s_mov_b64 exec, s[18:19]')
    k('v_and_b32 v1, 63, v0          ; lane')
    k('v_lshrrev_b32 v2, 6, v0       ; w')
    k('v_lshrrev_b32 v3, 4, v1       ; grp')
    k('v_and_b32 v4, 15, v1          ; idx')
    k('v_lshrrev_b32 v5, 2, v4')
    k('v_and_b32 v6, 3, v4')
    k('v_lshl_add_u32 v7, v6, 3, v5  ; row = 8c + r')
    k('v_lshl_or_b32 v8, v6, 2, v5   ; f = r | c<<2')
    k('v_mul_u32_u24 v7, 1280, v7')
    k('v_and_b32 v9, 1, v3')
    k('v_lshl_add_u32 v7, v9, 3, v7')
    k('v_lshrrev_b32 v9, 1, v3')
    k('v_mul_u32_u24 v10, 20, v2')
    k('v_add_u32 v9, v9, v10         ; ch0')
    k('v_mul_u32_u24 v10, 40, v2\nv_add_u32 v10, v10, v3\nv_lshlrev_b32 v10, 14, v10')
    k('v_lshl_add_u32 v10, v5, 6, v10\nv_lshl_add_u32 v10, v6, 4, v10')
    k('s_lshl_b32 s16, s3, 3\nv_add_u32 v10, s16, v10')
    k('s_waitcnt lgkmcnt(0)\ns_barrier')
    for it in range(10):
        k(f'v_add_u32 v11, {2*it}, v9\nv_xor_b32 v11, v11, v8\nv_lshl_add_u32 v11, v11, 4, v7')
        r = 16 + 4 * it
        k(f'ds_read_b64_tr_b16 v[{r}:{r+1}], v11\nds_read_b64_tr_b16 v[{r+2}:{r+3}], v11 offset:5120')
    for it in range(10):
        r = 16 + 4 * it
        k(f's_mov_b32 s16, {it*65536}')
        k(f's_waitcnt lgkmcnt({min(15, 2*(9-it))})')
        k(f'buffer_store_dwordx4 v[{r}:{r+3}], v10, s[12:15], s16 offen{WT}')
    if signal: signal(k, 'ln')
    if STAMPS: k('s_waitcnt vmcnt(0)')
    stamp_end(k, 0)
    k('s_endpgm')


def emit_mod(k, base, signal=None):
    k.label('L_k1_mod')
    if os.environ.get('LNPRIO'): k(f"s_setprio {os.environ['LNPRIO']}")
    load_ptr(k, 4, 'wmod'); load_ptr(k, 8, 'c'); load_ptr(k, 12, 'ws')
    k(f's_sub_u32 s3, s2, {base}')
    k('s_lshr_b32 s16, s3, 2          ; cb\ns_and_b32 s17, s3, 3     ; kq')
    k('v_lshrrev_b32 v1, 4, v0       ; rg\nv_and_b32 v2, 15, v0    ; c')
    k('v_mul_u32_u24 v4, 7680, v1\nv_lshl_add_u32 v4, v2, 4, v4')
    k(f's_mul_i32 s18, s17, {160*7680}\ns_lshl_b32 s19, s16, 8\ns_add_u32 s18, s18, s19')
    k('s_mul_i32 s19, s17, 320\nv_lshlrev_b32 v5, 1, v1\nv_add_u32 v5, s19, v5')
    k('s_waitcnt lgkmcnt(0)')
    srd_fin(k, 4, SZ['wmod']); srd_fin(k, 8, SZ['c']); srd_fin(k, 12, 4 * 3840 * 4, WS_MODP)
    for p in range(10):
        k(f'buffer_load_ushort v{56+p}, v5, s[8:11], 0 offen offset:{32*p}')
    for p in range(10):
        k(f'buffer_load_dwordx4 v[{16+4*p}:{19+4*p}], v4, s[4:7], s18 offen{NT}')
        if p < 9: k('s_add_u32 s18, s18, 122880')
    k('s_waitcnt vmcnt(10)')
    for p in range(10):
        k(f'v_lshlrev_b32 v{56+p}, 16, v{56+p}')
    for p in range(10):
        k(f'v_mul_f32 v{66+p}, {NLOG2E:#x}, v{56+p}')
    for p in range(10):
        k(f'v_exp_f32 v{66+p}, v{66+p}')
    for p in range(10):
        k(f'v_add_f32 v{66+p}, 1.0, v{66+p}')
    for p in range(10):
        k(f'v_rcp_f32 v{66+p}, v{66+p}')
    for p in range(10):
        k(f'v_mul_f32 v{56+p}, v{56+p}, v{66+p}')
    for p in range(10):
        k(f'v_cvt_pk_bf16_f32 v{56+p}, v{56+p}, 0        ; (s,0)')
    for p in range(10):
        k(f'v_lshlrev_b32 v{66+p}, 16, v{56+p}           ; (0,s)')
    for p in range(10):
        k(f's_waitcnt vmcnt({9-p})')
        for i in range(4):
            k(f'v_dot2_f32_bf16 v{76+2*i}, v{16+4*p+i}, v{56+p}, ' + ('0' if p == 0 else f'v{76+2*i}'))
            k(f'v_dot2_f32_bf16 v{77+2*i}, v{16+4*p+i}, v{66+p}, ' + ('0' if p == 0 else f'v{77+2*i}'))
    k('v_lshlrev_b32 v6, 5, v0')
    k('ds_write_b128 v6, v[76:79]\nds_write_b128 v6, v[80:83] offset:16')
    k('s_waitcnt lgkmcnt(0)\ns_barrier')
    k('v_cmp_gt_u32 vcc, 128, v0')
    k('s_and_saveexec_b64 s[20:21], vcc')
    k('s_cbranch_execz L_k1_mod_end')
    k('v_lshlrev_b32 v6, 2, v0')
    for rg in range(16):
        k(f'ds_read_b32 v{16+rg}, v6 offset:{rg*512}')
    k('s_waitcnt lgkmcnt(0)')
    for st in (8, 4, 2, 1):
        for i in range(st):
            k(f'v_add_f32 v{16+i}, v{16+i}, v{16+i+st}')
    k('s_mul_i32 s19, s17, 15360\ns_lshl_b32 s22, s16, 9\ns_add_u32 s19, s19, s22')
    k(f'buffer_store_dword v16, v6, s[12:15], s19 offen{WT}')
    k.label('L_k1_mod_end')
    k('s_mov_b64 exec, s[20:21]')
    if signal: signal(k, 'mod')
    if STAMPS: k('s_waitcnt vmcnt(0)')
    stamp_end(k, 0)
    k('s_endpgm')

def emit_gen(k):
    k('v_lshlrev_b32 v6, 16, v6\nv_lshlrev_b32 v7, 16, v7\nv_lshlrev_b32 v8, 16, v8\nv_lshlrev_b32 v9, 16, v9\nv_lshlrev_b32 v10, 16, v10')
    k(f'v_mul_f32 v6, {LOG2E:#x}, v6\nv_mul_f32 v7, {LOG2E:#x}, v7')
    k('v_exp_f32 v6, v6\nv_exp_f32 v7, v7')
    k('v_cvt_pk_bf16_f32 v6, v6, v7')
    k('v_and_b32 v7, 0xffff0000, v6\nv_lshlrev_b32 v6, 16, v6')
    k('v_mul_f32 v7, v7, v6            ; are*dt')
    k(f'v_mul_f32 v7, {NLOG2E:#x}, v7    ; a2')
    k('v_mul_f32 v8, v8, v6            ; theta')
    k(f'v_mul_f32 v8, {INV2PI:#x}, v8    ; theta_r')
    k('v_add_f32 v6, v6, v6            ; 2dt')
    k('v_mul_f32 v16, v9, v6           ; Cbar.re')
    k('v_mul_f32 v17, v10, v6')
    k('v_sub_f32 v17, 0, v17')
    def direct(dst, p, sign, t0):
        k(f'v_mul_f32 v{t0}, {float(p)}, v7' if p in (1, 2, 4) else f'v_mul_f32 v{t0}, {hexf(p)}, v7')
        k(f'v_mul_f32 v{t0+1}, {hexf(sign*p)}, v8')
        k(f'v_exp_f32 v{t0}, v{t0}')
        k(f'v_fract_f32 v{t0+1}, v{t0+1}')
        k(f'v_cos_f32 v{dst}, v{t0+1}')
        k(f'v_sin_f32 v{dst+1}, v{t0+1}')
        k(f'v_mul_f32 v{dst}, v{dst}, v{t0}')
        k(f'v_mul_f32 v{dst+1}, v{dst+1}, v{t0}')
    if os.environ.get('GENILP', '1') == '1':
        evs = [(18, 1, -1, 96), (20, 256, -1, 98), (22, 8, +1, 100), (26, 64, +1, 102), (28, 128, +1, 104), (30, 192, +1, 106)]
        for d_, p_, sg, t0 in evs: k(f'v_mul_f32 v{t0}, {hexf(p_)}, v7\nv_mul_f32 v{t0+1}, {hexf(sg*p_)}, v8')
        for d_, p_, sg, t0 in evs: k(f'v_exp_f32 v{t0}, v{t0}')
        for d_, p_, sg, t0 in evs: k(f'v_fract_f32 v{t0+1}, v{t0+1}')
        for d_, p_, sg, t0 in evs: k(f'v_cos_f32 v{d_}, v{t0+1}')
        for d_, p_, sg, t0 in evs: k(f'v_sin_f32 v{d_+1}, v{t0+1}')
        for d_, p_, sg, t0 in evs: k(f'v_mul_f32 v{d_}, v{d_}, v{t0}')
        for d_, p_, sg, t0 in evs: k(f'v_mul_f32 v{d_+1}, v{d_+1}, v{t0}')
        k('v_mov_b32 v24, 1.0\nv_mov_b32 v25, 0')
        CB, ZB1, ZB256, W = 16, 18, 20, 22
        L = [24, 26, 28, 30]; HA, Z2, Z4, B8, B12, B14, BC, T, T13, T15 = 32, 34, 36, 38, 40, 42, 44, 46, 48, 50
        rounds = []
        rounds.append(([(Z2, ZB1, ZB1), (B8, CB, ZB256), (HA, CB, ZB1)] + [(L[q], L[q], W) for q in range(4)],
                       [(L[q], 8*q, True) for q in range(4)] + [(CB, 0, False)]))
        rounds.append(([(Z4, Z2, Z2), (B12, B8, ZB256), (T, B8, Z2), (HA, HA, ZB1)] + [(L[q], L[q], W) for q in range(4)],
                       [(L[q], 8*q+1, True) for q in range(4)] + [(HA, 1, False), (B8, 8, False)]))
        rounds.append(([(B14, B12, ZB256), (T13, B12, Z4), (T, T, Z2), (HA, HA, ZB1)] + [(L[q], L[q], W) for q in range(4)],
                       [(L[q], 8*q+2, True) for q in range(4)] + [(HA, 2, False), (B12, 12, False), (T, 9, False)]))
        rounds.append(([(BC, B14, ZB256), (T15, B14, Z4), (T, T, Z2), (HA, HA, ZB1)] + [(L[q], L[q], W) for q in range(4)],
                       [(L[q], 8*q+3, True) for q in range(4)] + [(HA, 3, False), (B14, 14, False), (T, 10, False), (T13, 13, False)]))
        rounds.append(([(BC, BC, ZB256), (HA, HA, ZB1)] + [(L[q], L[q], W) for q in range(4)],
                       [(L[q], 8*q+4, True) for q in range(4)] + [(HA, 4, False), (BC, 16, False), (T, 11, False), (T15, 15, False)]))
        for r_ in (5, 6):
            rounds.append(([(BC, BC, ZB256), (HA, HA, ZB1)] + [(L[q], L[q], W) for q in range(4)],
                           [(L[q], 8*q+r_, True) for q in range(4)] + [(HA, r_, False), (BC, 12 + r_, False)]))
        rounds.append(([(BC, BC, ZB256)], [(L[q], 8*q+7, True) for q in range(4)] + [(HA, 7, False), (BC, 19, False)]))
        rounds.append(([], [(BC, 20, False)]))
        for cm, pu in rounds:
            for n_, (src, row, lo) in enumerate(pu): k(f'v_cvt_pk_bf16_f32 v{52+n_}, v{src}, v{src+1}')
            for n_, (d_, x_, y_) in enumerate(cm):
                t = 80 + 2 * n_
                k(f'v_pk_mul_f32 v[{t}:{t+1}], v[{x_}:{x_+1}], v[{y_}:{y_+1}] op_sel:[0,0] op_sel_hi:[0,1]')
            for n_, (src, row, lo) in enumerate(pu): k(f'ds_write_b32 v{64 + (row & 15)}, v{52+n_} offset:{row*256 + (5376 if lo else 0)}')
            for n_, (d_, x_, y_) in enumerate(cm):
                t = 80 + 2 * n_
                k(f'v_pk_fma_f32 v[{d_}:{d_+1}], v[{x_}:{x_+1}], v[{y_}:{y_+1}], v[{t}:{t+1}] op_sel:[1,1,0] op_sel_hi:[1,0,1] neg_lo:[1,0,0]')
        rows_hi = sorted(r for cm, pu in rounds for s_, r, lo in pu if not lo); rows_lo = sorted(r for cm, pu in rounds for s_, r, lo in pu if lo)
        assert rows_hi == list(range(21)) and rows_lo == list(range(32)), (rows_hi, rows_lo)
    else:
        direct(18, 1, -1, 24)
        direct(20, 256, -1, 26)
        direct(22, 8, +1, 28)
        ZB1, ZB256, W8 = 18, 20, 22
        ZB2, ZB4 = 30, 32
        A, B, T, L = 34, 36, 38, 40
        TA, TL = 42, 44
        C0 = 46
        rot = [0]
        def put(src, row, lo):
            t = C0 + (rot[0] % 8); rot[0] += 1
            k(f'v_cvt_pk_bf16_f32 v{t}, v{src}, v{src+1}')
            k(f'ds_write_b32 v{64 + (row & 15)}, v{t} offset:{row*256 + (5376 if lo else 0)}')
        hi = []
        hi.append(lambda: put(16, 0, False))
        hi.append(lambda: (cmul(k, A, 16, ZB1, TA), put(A, 1, False)))
        for m in range(2, 8):
            hi.append(lambda m=m: (cmul(k, A, A, ZB1, TA), put(A, m, False)))
        hi.append(lambda: cmul(k, ZB2, ZB1, ZB1, TA))
        hi.append(lambda: (cmul(k, B, 16, ZB256, TA), put(B, 8, False)))
        hi.append(lambda: cmul(k, ZB4, ZB2, ZB2, TA))
        hi.append(lambda: (cmul(k, T, B, ZB2, TA), put(T, 9, False)))
        hi.append(lambda: (cmul(k, T, T, ZB2, TA), put(T, 10, False)))
        hi.append(lambda: (cmul(k, T, T, ZB2, TA), put(T, 11, False)))
        hi.append(lambda: (cmul(k, B, B, ZB256, TA), put(B, 12, False)))
        hi.append(lambda: (cmul(k, T, B, ZB4, TA), put(T, 13, False)))
        hi.append(lambda: (cmul(k, B, B, ZB256, TA), put(B, 14, False)))
        hi.append(lambda: (cmul(k, T, B, ZB4, TA), put(T, 15, False)))
        for m in range(16, 21):
            hi.append(lambda m=m: (cmul(k, B, B, ZB256, TA), put(B, m, False)))
        lo = []
        lo.append(lambda: (k(f'v_mov_b32 v{L}, 1.0\nv_mov_b32 v{L+1}, 0'), put(L, 0, True)))
        lo.append(lambda: put(W8, 1, True))
        lo.append(lambda: (cmul(k, L, W8, W8, TL), put(L, 2, True)))
        for u in range(3, 32):
            lo.append(lambda u=u: (cmul(k, L, L, W8, TL), put(L, u, True)))
        i = j = 0
        while i < len(hi) or j < len(lo):
            if j < len(lo): lo[j](); j += 1
            if i < len(hi) and (i * len(lo) <= j * len(hi) or j >= len(lo)): hi[i](); i += 1
    k('s_waitcnt lgkmcnt(0)')
    stamp_mid(k, 1)
    for ks in range(8):
        k(f'v_xor_b32 v15, {32*ks}, v14')
        k(f'ds_read_b128 v[{24+8*(ks%4)}:{27+8*(ks%4)}], v15')
        k(f'ds_read_b128 v[{28+8*(ks%4)}:{31+8*(ks%4)}], v15 offset:5376')
        if ks >= 1:
            p = ks - 1
            k('s_waitcnt lgkmcnt(2)')
            k(f'v_mfma_f32_32x32x16_bf16 v[96:111], v[{24+8*(p%4)}:{27+8*(p%4)}], v[{28+8*(p%4)}:{31+8*(p%4)}], ' + ('0' if p == 0 else 'v[96:111]'))
    k('s_waitcnt lgkmcnt(0)')
    k('v_mfma_f32_32x32x16_bf16 v[96:111], v[48:51], v[52:55], v[96:111]')
    k('v_and_b32 v12, 31, v2\nv_lshrrev_b32 v13, 5, v2')
    k('v_lshlrev_b32 v12, 2, v12')
    k('v_lshl_add_u32 v12, v13, 9, v12')
    k('v_add_u32 v12, s33, v12')
    for j in range(3):
        for i in range(4):
            k(f'ds_write_b32 v12, v{96+4*j+i} offset:{(8*j+i)*128}')

def build_k1():
    k = K('prep_kernel')
    stamp_begin(k)
    if SELFPF:
        k('s_cmp_ge_u32 s2, 32\ns_cbranch_scc1 L_k1_nopf')
        k('s_getpc_b64 s[28:29]')
        k.label('L_k1_pc0')
        k('s_mov_b32 s30, conv_kernel-L_k1_pc0\ns_mov_b32 s31, 0x20000')
        k('v_lshlrev_b32 v60, 4, v0')
        k('buffer_load_dwordx4 v[100:103], v60, s[28:31], 0 offen')
        k('s_mov_b32 s27, 4096')
        k('buffer_load_dwordx4 v[104:107], v60, s[28:31], s27 offen')
        k.label('L_k1_nopf')
    if MIX:
        k(f's_cmp_lt_u32 s2, {MIX}\ns_cbranch_scc1 L_k1_kg')
        k(f's_cmp_lt_u32 s2, {MIX+N_LN}\ns_cbranch_scc1 L_k1_ln')
        k(f's_cmp_lt_u32 s2, {MIX+N_LN+N_MOD}\ns_cbranch_scc1 L_k1_mod')
        k(f's_cmp_lt_u32 s2, {N_KG+N_LN+N_MOD}\ns_cbranch_scc1 L_k1_kg2')
    elif KGFIRST:
        k(f's_cmp_lt_u32 s2, {N_KG}\ns_cbranch_scc1 L_k1_kg')
        k(f's_cmp_lt_u32 s2, {N_KG+N_LN}\ns_cbranch_scc1 L_k1_ln')
        k(f's_cmp_lt_u32 s2, {N_KG+N_LN+N_MOD}\ns_cbranch_scc1 L_k1_mod')
    else:
        k(f's_cmp_lt_u32 s2, {N_LN}\ns_cbranch_scc1 L_k1_ln')
        k(f's_cmp_lt_u32 s2, {N_LN+N_MOD}\ns_cbranch_scc1 L_k1_mod')
        k(f's_cmp_lt_u32 s2, {N_LN+N_MOD+N_KG}\ns_cbranch_scc1 L_k1_kg')
    if not WDK2: k(f's_cmp_lt_u32 s2, {K1_GRID - N_PF}\ns_cbranch_scc1 L_k1_wd')
    k(f's_cmp_lt_u32 s2, {K1_GRID}\ns_cbranch_scc1 L_k1_pf')
    k('s_endpgm')

    if MIX:
        k.label('L_k1_kg2')
        k(f's_sub_u32 s3, s2, {N_LN+N_MOD}')
        k('s_branch L_k1_kg3')
    k.label('L_k1_kg')
    k(f's_sub_u32 s3, s2, {B_KG}      ; d')
    if MIX: k.label('L_k1_kg3')
    load_ptr(k, 4, 'lar'); load_ptr(k, 8, 'aim'); load_ptr(k, 12, 'cr'); load_ptr(k, 16, 'ci'); load_ptr(k, 20, 'ldt'); load_ptr(k, 24, 'ws')
    k('s_getpc_b64 s[28:29]')
    k.label('L_k1_pc')
    k('s_add_u32 s28, s28, ktable-L_k1_pc\ns_addc_u32 s29, s29, 0')
    k('v_lshrrev_b32 v1, 6, v0')
    k('v_and_b32 v2, 63, v0            ; lane')
    k('v_readfirstlane_b32 s30, v1     ; wave')
    k('v_lshlrev_b32 v3, 4, v0         ; t*16')
    k('global_load_dwordx4 v[60:63], v3, s[28:29]')
    k('s_mul_i32 s31, s3, 384')
    k('v_lshlrev_b32 v4, 1, v0')
    k('v_add_u32 v4, s31, v4           ; d*384 + n*2')
    k('s_lshl_b32 s32, s3, 1')
    k('v_mov_b32 v5, s32')
    k('s_waitcnt lgkmcnt(0)')
    for s, n in ((4, 'lar'), (8, 'aim'), (12, 'cr'), (16, 'ci'), (20, 'ldt')):
        srd_fin(k, s, SZ[n])
    srd_fin(k, 24, 640 * 4096, WS_R)
    if os.environ.get('WPF2', '0') == '1':
        k('s_cmp_lt_u32 s30, 3\ns_cbranch_scc1 L_k1_kg_gen')
        load_ptr(k, 36, 'wg'); load_ptr(k, 40, 'wu')
        k('s_mul_i32 s33, s3, 24\nv_min_u32 v6, 23, v2\nv_add_u32 v6, s33, v6\nv_lshlrev_b32 v6, 7, v6')
        k('s_waitcnt lgkmcnt(0)')
        srd_fin(k, 36, SZ['wg']); srd_fin(k, 40, SZ['wu'])
        k('buffer_load_dword v7, v6, s[36:39], 0 offen\nbuffer_load_dword v8, v6, s[40:43], 0 offen')
        k('s_branch L_k1_kg_sync1')
        k.label('L_k1_kg_gen')
    else:
        k('s_cmp_ge_u32 s30, 3\ns_cbranch_scc1 L_k1_kg_sync1')
    k('buffer_load_ushort v6, v5, s[20:23], 0 offen')
    k('buffer_load_ushort v7, v4, s[4:7], 0 offen')
    k('buffer_load_ushort v8, v4, s[8:11], 0 offen')
    k('buffer_load_ushort v9, v4, s[12:15], 0 offen')
    k('buffer_load_ushort v10, v4, s[16:19], 0 offen')
    k('s_mul_i32 s33, s30, 13568')
    k('v_lshlrev_b32 v11, 2, v2')
    for kk in range(16):
        k(f'v_xor_b32 v{64+kk}, {16*kk}, v11')
    for kk in range(16):
        k(f'v_add_u32 v{64+kk}, s33, v{64+kk}')
    k('v_and_b32 v12, 31, v2           ; m')
    k('v_lshrrev_b32 v13, 5, v2        ; g')
    k('v_and_b32 v14, 15, v12')
    k('v_xor_b32 v14, v14, v13')
    k('v_lshlrev_b32 v14, 4, v14       ; 16*(g ^ (m&15))')
    k('v_lshl_add_u32 v14, v12, 8, v14')
    k('v_add_u32 v14, s33, v14')
    k('s_waitcnt vmcnt(0)')
    stamp_mid(k, 0)
    emit_gen(k)
    k.label('L_k1_kg_sync1')
    if os.environ.get('KGTAIL', '1') != '0': k(f"s_setprio {os.environ.get('KGTAIL', '1')}")
    k('s_waitcnt lgkmcnt(0)\ns_barrier')
    stamp_mid(k, 2)
    k('v_cmp_gt_u32 vcc, 168, v0')
    k('s_and_saveexec_b64 s[34:35], vcc')
    k('s_cbranch_execz L_k1_kg_skip')
    k('ds_read_b128 v[24:27], v3\nds_read_b128 v[28:31], v3 offset:13568\nds_read_b128 v[32:35], v3 offset:27136')
    k('s_waitcnt lgkmcnt(0)')
    k('v_pk_add_f32 v[24:25], v[24:25], v[28:29]\nv_pk_add_f32 v[26:27], v[26:27], v[30:31]')
    k('v_pk_add_f32 v[24:25], v[24:25], v[32:33]\nv_pk_add_f32 v[26:27], v[26:27], v[34:35]')
    k('v_cvt_pk_bf16_f32 v24, v24, v25\nv_cvt_pk_bf16_f32 v25, v26, v27')
    k('v_lshlrev_b32 v12, 3, v0')
    k('ds_write_b64 v12, v[24:25] offset:4096')
    k.label('L_k1_kg_skip')
    k('s_mov_b64 exec, s[34:35]')
    k('s_waitcnt vmcnt(0) lgkmcnt(0)\ns_barrier')
    for q in range(4):
        k(f'v_and_b32 v{24+2*q}, 0xffff, v{60+q}\nv_lshrrev_b32 v{25+2*q}, 16, v{60+q}')
    for q in range(4):
        k(f'ds_read_u16 v{36+q}, v{24+2*q} offset:4096')
        k(f'ds_read_u16 v{40+q}, v{25+2*q} offset:4096')
    k('s_lshl_b32 s33, s3, 12')
    k('s_waitcnt lgkmcnt(0)')
    for q in range(4):
        k(f'v_lshl_or_b32 v{36+q}, v{40+q}, 16, v{36+q}')
    k(f'buffer_store_dwordx4 v[36:39], v3, s[24:27], s33 offen{WT}')
    if STAMPS: k('s_waitcnt vmcnt(0)')
    stamp_end(k, 0)
    k('s_endpgm')

    emit_ln(k, B_LN)
    emit_mod(k, B_MOD)
    if not WDK2: emit_wd(k, N_LN+N_MOD+N_KG, 0, 'L_k1_wd')
    k.label('L_k1_pf')
    load_ptr(k, 8, 'ws')
    k(f's_sub_u32 s3, s2, {N_LN+N_MOD+N_KG+N_WD}')
    k('s_getpc_b64 s[28:29]')
    k.label('L_k1_pc2')
    k('s_add_u32 s28, s28, conv_kernel-L_k1_pc2\ns_addc_u32 s29, s29, 0')
    k('s_mov_b32 s30, code_end-conv_kernel\ns_mov_b32 s31, 0x20000')
    k('v_lshlrev_b32 v4, 4, v0')
    if CODEPF:
        for q in range(11):
            k(f's_mov_b32 s27, {q*4096}')
            k(f'buffer_load_dwordx4 v[{64+4*q}:{67+4*q}], v4, s[28:31], s27 offen')
    k('v_mov_b32 v8, 0\nv_mov_b32 v9, 0\nv_mov_b32 v10, 0\nv_mov_b32 v11, 0')
    if os.environ.get('WPF', '0') == '1':
        load_ptr(k, 12, 'wg'); load_ptr(k, 16, 'wu')
        k('s_lshl_b32 s26, s3, 8\nv_add_u32 v5, s26, v0\nv_lshlrev_b32 v5, 7, v5')
        k('s_waitcnt lgkmcnt(0)')
        srd_fin(k, 12, SZ['wg']); srd_fin(k, 16, SZ['wu'])
        for q in range(4):
            k(f'v_add_u32 v{30+q}, {q*16*256*128}, v5')
            k(f'buffer_load_dword v{20+2*q}, v{30+q}, s[12:15], 0 offen\nbuffer_load_dword v{21+2*q}, v{30+q}, s[16:19], 0 offen')
    k('s_waitcnt lgkmcnt(0)')
    k(f's_add_u32 s20, s8, {WS_FLAGS}\ns_addc_u32 s21, s9, 0\ns_mov_b32 s22, {WS_SP - WS_FLAGS + 327680}\ns_mov_b32 s23, {SRD3:#x}')
    k('s_cmp_lg_u32 s3, 0\ns_cbranch_scc1 L_k1_pf_nz')
    k(f'buffer_store_dwordx4 v[8:11], v4, s[20:23], 0 offen{WT}')
    k.label('L_k1_pf_nz')
    k(f's_mul_i32 s26, s3, 20480\ns_add_u32 s26, s26, {WS_SP - WS_FLAGS}')
    for q in range(5):
        k(f'buffer_store_dwordx4 v[8:11], v4, s[20:23], s26 offen{WT}')
        if q < 4: k('s_add_u32 s26, s26, 4096')
    if STAMPS: k('s_waitcnt vmcnt(0)')
    stamp_end(k, 0)
    k('s_endpgm')
    return k

def hexf(x):
    import struct
    return hex(struct.unpack('<I', struct.pack('<f', float(x)))[0])

def ktable_data():
    t = ktable() + [1344] * 16
    s = 'code_end:\n.p2align 8\n.type ktable,@object\nktable:\n'
    for i in range(0, 2064, 16):
        s += '.short ' + ', '.join(str(x) for x in t[i:i + 16]) + '\n'
    s += '.size ktable, 4128\n'
    return s
```

```python
from asmlib import K, Q
from common import *
import os

import os
N_WP, N_CV = 120, int(os.environ.get('EXP_NCV', 640))
import k1 as _k1
N_WD2 = 48 if _k1.WDK2 else 0
K2_GRID = N_WP + N_CV + N_WD2
K2_LDS = 40960
CVFIRST = os.environ.get('CVFIRST', '1') == '1'
CV16 = os.environ.get('CV16', '1') == '1'
CVPRIO = int(os.environ.get('CVPRIO', '1'))
CVBF = os.environ.get('CVBF', '0') == '1'
HP = 96 if CV16 else 80

HB = 16640
def emit_conv_main(k):
    if CVPRIO: k('s_setprio 0')
    if CV16:
        RANGES = [(0, 7), (7, 14), (14, 22), (22, 32)]
        lg = Q(k, 'lgkmcnt', 15)
        ACC = 96
        def acc(rt, ct): return ACC + 4 * (4 * rt + ct)
        def step_reads(S, dp, hi):
            oa = lambda dl, rt: 64 * (hi - 1 + 32 - dl) + 32 * (1 - rt)
            ob = lambda ct: HP * (hi - 1 - dp + 16 * ct)
            out = []
            def A(slot, dl, rt):
                out.append((f'ds_read_b64 v[{S+4*slot}:{S+4*slot+1}], v1 offset:{oa(dl, rt)}', ('A', slot, dp)))
                out.append((f'ds_read_b64 v[{S+4*slot+2}:{S+4*slot+3}], v1 offset:{oa(dl, rt)+8}', ('A', slot, dp)))
            def B(ct): out.append((f'ds_read_b128 v[{S+16+4*ct}:{S+19+4*ct}], v2 offset:{ob(ct)}', ('B', ct, dp)))
            A(0, dp, 0); B(2); B(3); A(1, dp, 1); B(1)
            if dp < 16: B(0)
            A(2, dp + 32, 0); A(3, dp + 32, 1)
            return out
        def step_mfmas(dp):
            m = [(0, 2, 0, 2), (0, 3, 0, 3), (1, 2, 1, 2), (1, 3, 1, 3), (0, 1, 0, 1), (1, 1, 1, 1)]
            if dp < 16: m += [(0, 0, 0, 0), (1, 0, 1, 0)]
            m += [(2, 1, 0, 3), (3, 1, 1, 3)]
            if dp < 16: m += [(2, 0, 0, 2), (3, 0, 1, 2)]
            return m
        def lgw(tag):
            idx = max(i for i, t in enumerate(lg.ops) if t == tag)
            if idx < lg.done: return
            n = min(15, len(lg.ops) - 1 - idx)
            k(f's_waitcnt lgkmcnt({n})'); lg.done = max(lg.done, len(lg.ops) - n)
        for wv, (lo_, hi_) in enumerate(RANGES):
            if wv: k.label(f'L_cv16_w{wv}')
            if wv < 3: k(f's_cmp_lg_u32 s54, {wv}\ns_cbranch_scc1 L_cv16_w{wv+1}')
            lg.ops = []; lg.done = 0
            touched = set()
            dps = list(range(lo_, hi_))
            for r_ in step_reads(32, dps[0], hi_): lg.issue(*r_)
            for si, dp in enumerate(dps):
                S = 32 + 32 * (si & 1)
                nx = step_reads(32 + 32 * ((si + 1) & 1), dps[si + 1], hi_) if si + 1 < len(dps) else []
                ms = step_mfmas(dp)
                for mi, (sl, ct, rt, ac) in enumerate(ms):
                    lgw(('A', sl, dp)); lgw(('B', ct, dp))
                    a = acc(rt, ac)
                    c = f'v[{a}:{a+3}]' if (rt, ac) in touched else '0'
                    touched.add((rt, ac))
                    k(f'v_mfma_f32_16x16x32_bf16 v[{a}:{a+3}], v[{S+4*sl}:{S+4*sl+3}], v[{S+16+4*ct}:{S+19+4*ct}], {c}')
                    lo_i = mi * len(nx) // len(ms); hi_i = (mi + 1) * len(nx) // len(ms)
                    for r_ in nx[lo_i:hi_i]: lg.issue(*r_)
            for rt in range(2):
                for ct in range(4):
                    if (rt, ct) not in touched:
                        a = acc(rt, ct)
                        k(f'v_mov_b32 v{a}, 0\nv_mov_b32 v{a+1}, 0\nv_mov_b32 v{a+2}, 0\nv_mov_b32 v{a+3}, 0')
            if wv < 3: k('s_branch L_cv16_done')
        k.label('L_cv16_done')
        if CVPRIO: k(f's_setprio {CVPRIO}')
        k('s_nop 7')
        stamp_mid(k, 2)
        k('s_barrier')
        if CVBF:
            for rt in range(2):
                for ct in range(4):
                    a = acc(rt, ct); o = 32 + 2 * (4 * rt + ct)
                    k(f'v_cvt_pk_bf16_f32 v{o}, v{a}, v{a+1}\nv_cvt_pk_bf16_f32 v{o+1}, v{a+2}, v{a+3}')
            for rt in range(2):
                for ct in range(4):
                    o = 32 + 2 * (4 * rt + ct)
                    k(f'ds_write_b64 v4, v[{o}:{o+1}] offset:{ct*1280 + rt*32}')
        else:
            for rt in range(2):
                for ct in range(4):
                    a = acc(rt, ct)
                    k(f'ds_write_b128 v4, v[{a}:{a+3}] offset:{ct*2304 + rt*64}')
        k('v_mov_b32 v44, v5\nv_mov_b32 v47, v16')
    else:
        steps = [(e, ks) for e in range(8) for ks in range(2)]
        def loads(si):
            e, ks = steps[si]
            r = 64 + 16 * (si & 1)
            oa = 64 * e + 32 * ks
            ob = 80 * e + 32 * ks
            k(f'ds_read_b64 v[{r}:{r+1}], v41 offset:{oa+2048}')
            k(f'ds_read_b64 v[{r+2}:{r+3}], v41 offset:{oa+2048+8}')
            k(f'ds_read_b128 v[{r+12}:{r+15}], v42 offset:{ob+2560}')
            k(f'ds_read_b128 v[{r+8}:{r+11}], v42 offset:{ob}')
            k(f'ds_read_b64 v[{r+4}:{r+5}], v41 offset:{oa}')
            k(f'ds_read_b64 v[{r+6}:{r+7}], v41 offset:{oa+8}')
        def rd_list(si):
            e, ks = steps[si]
            r = 64 + 16 * (si & 1)
            oa = 64 * e + 32 * ks
            ob = 80 * e + 32 * ks
            return [f'ds_read_b64 v[{r}:{r+1}], v41 offset:{oa+2048}', f'ds_read_b64 v[{r+2}:{r+3}], v41 offset:{oa+2048+8}',
                    f'ds_read_b128 v[{r+12}:{r+15}], v42 offset:{ob+2560}', f'ds_read_b128 v[{r+8}:{r+11}], v42 offset:{ob}',
                    f'ds_read_b64 v[{r+4}:{r+5}], v41 offset:{oa}', f'ds_read_b64 v[{r+6}:{r+7}], v41 offset:{oa+8}']
        if os.environ.get('CVSCHED', '1') == '1':
            for x in rd_list(0): k(x)
            for si in range(16):
                r = 64 + 16 * (si & 1)
                nx = rd_list(si + 1) if si + 1 < 16 else []
                c1 = '0' if si == 0 else 'v[112:127]'
                c0 = '0' if si == 0 else 'v[96:111]'
                k('s_waitcnt lgkmcnt(3)')
                k(f'v_mfma_f32_32x32x16_bf16 v[112:127], v[{r}:{r+3}], v[{r+12}:{r+15}], {c1}')
                for x in nx[0:2]: k(x)
                k(f's_waitcnt lgkmcnt({2 + len(nx[0:2])})')
                k(f'v_mfma_f32_32x32x16_bf16 v[96:111], v[{r}:{r+3}], v[{r+8}:{r+11}], {c0}')
                for x in nx[2:4]: k(x)
                k(f's_waitcnt lgkmcnt({len(nx[0:4])})')
                k(f'v_mfma_f32_32x32x16_bf16 v[112:127], v[{r+4}:{r+7}], v[{r+8}:{r+11}], v[112:127]')
                for x in nx[4:6]: k(x)
        else:
            loads(0)
            for si in range(16):
                r = 64 + 16 * (si & 1)
                if si + 1 < 16:
                    loads(si + 1)
                    k('s_waitcnt lgkmcnt(6)')
                else:
                    k('s_waitcnt lgkmcnt(0)')
                c1 = '0' if si == 0 else 'v[112:127]'
                c0 = '0' if si == 0 else 'v[96:111]'
                k(f'v_mfma_f32_32x32x16_bf16 v[112:127], v[{r}:{r+3}], v[{r+12}:{r+15}], {c1}')
                k(f'v_mfma_f32_32x32x16_bf16 v[96:111], v[{r}:{r+3}], v[{r+8}:{r+11}], {c0}')
                k(f'v_mfma_f32_32x32x16_bf16 v[112:127], v[{r+4}:{r+7}], v[{r+8}:{r+11}], v[112:127]')
        stamp_mid(k, 2)
        k('s_barrier')
        for j in range(4):
            k(f'ds_write_b128 v43, v[{96+4*j}:{99+4*j}] offset:{32*j}')
        for j in range(4):
            k(f'ds_write_b128 v43, v[{112+4*j}:{115+4*j}] offset:{32*j+4608}')
    k('s_waitcnt lgkmcnt(0)\ns_barrier')
    if CV16 and CVBF:
        for w in range(4): k(f'ds_read_b128 v[{96+4*w}:{99+4*w}], v44 offset:{5120*w}')
    else:
        for w in range(4):
            k(f'ds_read_b128 v[{64+8*w}:{67+8*w}], v44 offset:{9216*w}')
            k(f'ds_read_b128 v[{68+8*w}:{71+8*w}], v44 offset:{9216*w+16}')
    for i in range(4):
        k(f'v_lshlrev_b32 v{24+2*i}, 16, v{8+i}\nv_and_b32 v{25+2*i}, 0xffff0000, v{8+i}')
    for i in range(4):
        k(f'v_lshlrev_b32 v{48+2*i}, 16, v{20+i}\nv_and_b32 v{49+2*i}, 0xffff0000, v{20+i}')
    k('s_waitcnt lgkmcnt(0)')
    if CV16 and CVBF:
        for w in range(4):
            for i in range(4): k(f'v_lshlrev_b32 v{64+8*w+2*i}, 16, v{96+4*w+i}\nv_and_b32 v{65+8*w+2*i}, 0xffff0000, v{96+4*w+i}')
    for i in range(8): k(f'v_add_f32 v{64+i}, v{64+i}, v{72+i}')
    for i in range(8): k(f'v_add_f32 v{80+i}, v{80+i}, v{88+i}')
    for i in range(8): k(f'v_add_f32 v{64+i}, v{64+i}, v{80+i}')
    for i in range(8):
        k(f'v_fma_f32 v{64+i}, v{24+i}, s52, v{64+i}        ; y + h*D')
    for i in range(8):
        k(f'v_fma_f32 v{64+i}, v{64+i}, v47, v{48+i}        ; x + ga*(.)')
    for i in range(4):
        k(f'v_cvt_pk_bf16_f32 v{64+i}, v{64+2*i}, v{65+2*i}')
    k(f'buffer_store_dwordx4 v[64:67], v3, s[32:35], s26 offen{WT}')

def build_k2():
    k = K('conv_kernel')
    stamp_begin(k)
    if CVFIRST:
        k(f's_cmp_lt_u32 s2, {N_CV}\ns_cbranch_scc1 L_k2_cv')
        k(f's_cmp_lt_u32 s2, {N_CV + N_WP}\ns_cbranch_scc1 L_k2_wp')
        if N_WD2: k(f's_cmp_lt_u32 s2, {K2_GRID}\ns_cbranch_scc1 L_k2_wd')
    else:
        k(f's_cmp_lt_u32 s2, {N_WP}\ns_cbranch_scc1 L_k2_wp')
        k(f's_cmp_lt_u32 s2, {K2_GRID}\ns_cbranch_scc1 L_k2_cv')
    k('s_endpgm')

    k.label('L_k2_cv')
    if CVPRIO: k(f's_setprio {CVPRIO}')
    load_ptr(k, 4, 'ws'); load_ptr(k, 20, 'dsk')
    k(f's_sub_u32 s3, s2, {0 if CVFIRST else N_WP}')
    k('s_and_b32 s24, s3, 0xffffffe0\ns_and_b32 s25, s3, 7\ns_lshl_b32 s25, s25, 2\ns_or_b32 s24, s24, s25')
    k('s_lshr_b32 s25, s3, 3\ns_and_b32 s25, s25, 3\ns_or_b32 s3, s24, s25          ; d')
    k('v_lshlrev_b32 v1, 6, v0            ; t*64')
    k('s_and_b32 s24, s3, 3\ns_lshl_b32 s24, s24, 4')
    k('v_add_u32 v1, s24, v1')
    if os.environ.get('EXP_XT'): k('v_lshlrev_b32 v1, 4, v0')
    k('v_lshlrev_b32 v2, 5, v0')
    k('v_lshlrev_b32 v3, 4, v0            ; t*16')
    k('s_lshr_b32 s25, s3, 2\ns_lshl_b32 s25, s25, 14')
    if os.environ.get('EXP_XT'): k('s_lshl_b32 s25, s3, 12')
    k('s_lshl_b32 s26, s3, 12             ; d*4096')
    k('s_lshl_b32 s27, s3, 2              ; d*4')
    k('s_lshr_b32 s28, s3, 1\ns_lshl_b32 s28, s28, 2')
    k('s_waitcnt lgkmcnt(0)')
    stamp_mid(k, 3)
    k('s_add_u32 s30, s4, s27\ns_addc_u32 s31, s5, 0')
    for kq in range(4):
        for i in range(3):
            k(f's_load_dword s{40+4*i+kq}, s[30:31], {WS_MODP + kq*15360 + i*2560}')
    k('s_add_u32 s20, s20, s28\ns_addc_u32 s21, s21, 0')
    k('s_load_dword s52, s[20:21], 0')
    k(f's_add_u32 s8, s4, {WS_XT}\ns_addc_u32 s9, s5, 0\ns_mov_b32 s10, 2621440\ns_mov_b32 s11, {SRD3:#x}')
    k(f's_add_u32 s12, s4, {WS_STATS}\ns_addc_u32 s13, s5, 0\ns_mov_b32 s14, 8192\ns_mov_b32 s15, {SRD3:#x}')
    k(f's_add_u32 s16, s4, {WS_R}\ns_addc_u32 s17, s5, 0\ns_add_u32 s16, s16, s26\ns_addc_u32 s17, s17, 0\ns_mov_b32 s18, 4096\ns_mov_b32 s19, {SRD3:#x}')
    k('buffer_load_dwordx4 v[8:11], v3, s[16:19], 0 offen')
    k('buffer_load_dwordx4 v[12:15], v3, s[16:19], 0 offen offset:4')
    k('buffer_load_dwordx4 v[16:19], v3, s[16:19], 0 offen offset:8')
    k('buffer_load_dwordx4 v[20:23], v1, s[8:11], s25 offen        ; x')
    k('buffer_load_dwordx4 v[24:27], v2, s[12:15], 0 offen')
    k('buffer_load_dwordx4 v[28:31], v2, s[12:15], 0 offen offset:16')
    k(f's_add_u32 s32, s4, {WS_X2T}\ns_addc_u32 s33, s5, 0\ns_mov_b32 s34, 2621440\ns_mov_b32 s35, {SRD3:#x}')
    HB = 16640
    k('v_mov_b32 v32, 0\nv_mov_b32 v33, 0\nv_mov_b32 v34, 0\nv_mov_b32 v35, 0')
    k('v_lshrrev_b32 v4, 2, v0\nv_and_b32 v5, 3, v0')
    k(f'v_mul_u32_u24 v6, {HP}, v4\nv_lshl_add_u32 v6, v5, 4, v6        ; (t>>2)*pitch + (t&3)*16')
    k('v_mul_u32_u24 v7, 4160, v4\nv_lshl_add_u32 v7, v5, 4, v7')
    k('v_cmp_gt_u32 vcc, 128, v0')
    k('s_and_saveexec_b64 s[36:37], vcc')
    k(f'ds_write_b128 v6, v[32:35] offset:{HB}')
    k('v_cmp_gt_u32 vcc, 16, v0')
    k('s_and_b64 exec, exec, vcc')
    k('ds_write_b128 v7, v[32:35] offset:4096')
    k('s_mov_b64 exec, s[36:37]')
    k('v_and_b32 v36, 63, v0            ; lane')
    k('v_lshrrev_b32 v37, 6, v0         ; w')
    k('v_and_b32 v38, 31, v36           ; b / n')
    k('v_lshrrev_b32 v39, 5, v36        ; g')
    k('v_sub_u32 v40, 3, v38\nv_and_b32 v40, 3, v40       ; s_b')
    k('v_mul_u32_u24 v41, 4160, v40')
    k('v_sub_u32 v42, 2047, v38\nv_lshl_add_u32 v42, v39, 3, v42\nv_sub_u32 v42, v42, v40')
    k('v_lshl_add_u32 v41, v42, 1, v41')
    k('v_lshlrev_b32 v42, 9, v37        ; w*512 = 64*8w')
    k(f'v_sub_u32 v41, v41, v42\nv_subrev_u32 v41, {64*39}, v41      ; baseA')
    k('v_lshlrev_b32 v42, 3, v37\nv_sub_u32 v42, v38, v42\nv_add_u32 v42, 25, v42      ; 32 + n - 8w - 7')
    k('v_mul_u32_u24 v42, 80, v42\nv_lshl_add_u32 v42, v39, 4, v42')
    k(f'v_add_u32 v42, {HB}, v42           ; baseB')
    k('v_mul_u32_u24 v43, 9216, v37\nv_mul_u32_u24 v44, 144, v38\nv_add_u32 v43, v43, v44\nv_lshl_add_u32 v43, v39, 4, v43')
    k('v_mul_u32_u24 v44, 144, v4\nv_lshl_add_u32 v44, v5, 5, v44')
    if CV16:
        k('v_and_b32 v38, 15, v36\nv_lshrrev_b32 v39, 4, v36')
        k('v_readfirstlane_b32 s54, v37')
        k('v_sub_u32 v40, 3, v38\nv_and_b32 v40, 3, v40\nv_mul_u32_u24 v41, 4160, v40')
        k('v_sub_u32 v42, 2047, v38\nv_lshl_add_u32 v42, v39, 3, v42\nv_sub_u32 v42, v42, v40\nv_lshl_add_u32 v41, v42, 1, v41        ; A0')
        k('s_mov_b32 s55, 6\ns_cmp_eq_u32 s54, 1\ns_cselect_b32 s55, 13, s55\ns_cmp_eq_u32 s54, 2\ns_cselect_b32 s55, 21, s55\ns_cmp_eq_u32 s54, 3\ns_cselect_b32 s55, 31, s55      ; hi-1')
        k('s_add_u32 s56, s55, 32\ns_lshl_b32 s56, s56, 6\ns_add_u32 s56, s56, 32\nv_subrev_u32 v1, s56, v41       ; baseA')
        k(f'v_add_u32 v42, 32, v38\nv_subrev_u32 v42, s55, v42\nv_mul_u32_u24 v42, {HP}, v42\nv_lshl_add_u32 v42, v39, 4, v42\nv_add_u32 v2, {HB}, v42       ; baseB')
        if CVBF:
            k('v_lshrrev_b32 v42, 2, v0\nv_mul_u32_u24 v42, 80, v42\nv_and_b32 v5, 3, v0\nv_lshl_add_u32 v5, v5, 4, v42')
            k('v_mul_u32_u24 v4, 5120, v37\nv_mul_u32_u24 v42, 80, v38\nv_add_u32 v4, v4, v42\nv_lshl_add_u32 v4, v39, 3, v4')
        else:
            k('v_mul_u32_u24 v4, 9216, v37\nv_mul_u32_u24 v42, 144, v38\nv_add_u32 v4, v4, v42\nv_lshl_add_u32 v4, v39, 4, v4')
            k('v_mov_b32 v5, v44')
    k('s_waitcnt lgkmcnt(0)')
    for i, dst in enumerate((45, 46, 47)):
        k(f'v_mov_b32 v{dst}, s{40+4*i}')
        for kq in range(1, 4):
            k(f'v_add_f32 v{dst}, s{40+4*i+kq}, v{dst}')
    k('v_cvt_pk_bf16_f32 v45, v45, v46')
    k('v_cvt_pk_bf16_f32 v47, v47, v47')
    k('v_and_b32 v46, 0xffff0000, v45\nv_lshlrev_b32 v45, 16, v45\nv_lshlrev_b32 v47, 16, v47')
    k('v_add_f32 v46, 1.0, v46\nv_cvt_pk_bf16_f32 v46, v46, v46\nv_lshlrev_b32 v46, 16, v46')
    k('s_and_b32 s53, s3, 1\ns_lshl_b32 s53, s53, 4\ns_lshr_b32 s52, s52, s53\ns_lshl_b32 s52, s52, 16')
    k('s_waitcnt vmcnt(3)')
    k('ds_write_b128 v3, v[8:11]')
    k('ds_write_b128 v3, v[12:15] offset:8320')
    for i in range(4):
        k(f'v_alignbit_b32 v{48+i}, v{12+i}, v{8+i}, 16')
    for i in range(4):
        k(f'v_alignbit_b32 v{52+i}, v{16+i}, v{12+i}, 16')
    k('ds_write_b128 v3, v[48:51] offset:4160')
    k('ds_write_b128 v3, v[52:55] offset:12480')
    stamp_mid(k, 0)
    k('s_waitcnt vmcnt(0)')
    for i in range(8):
        st = 24 + i
        k(f'v_and_b32 v{56+i}, 0xffff0000, v{st}      ; sd')
    for i in range(8):
        k(f'v_rcp_f32 v{56+i}, v{56+i}')
    for i in range(8):
        k(f'v_lshlrev_b32 v{24+i}, 16, v{24+i}        ; mean')
    for i in range(4):
        k(f'v_lshlrev_b32 v{64+2*i}, 16, v{20+i}\nv_and_b32 v{65+2*i}, 0xffff0000, v{20+i}')
    for i in range(8): k(f'v_sub_f32 v{64+i}, v{64+i}, v{24+i}')
    for i in range(8): k(f'v_mul_f32 v{64+i}, v{64+i}, v{56+i}')
    for i in range(8):
        k(f'v_fma_f32 v{64+i}, v{64+i}, v46, v45')
    for i in range(4):
        k(f'v_cvt_pk_bf16_f32 v{8+i}, v{64+2*i}, v{65+2*i}       ; h packed v8..11')
    k(f'ds_write_b128 v6, v[8:11] offset:{HB + 32*HP}')
    if CV16: k('v_mov_b32 v16, v47')
    k('s_waitcnt lgkmcnt(0)\ns_barrier')
    stamp_mid(k, 1)
    emit_conv_main(k)
    if STAMPS: k('s_waitcnt vmcnt(0)')
    stamp_end(k, 1)
    k('s_endpgm')

    emit_wprep(k, N_CV if CVFIRST else 0)
    if N_WD2: _k1.emit_wd(k, N_CV + N_WP, 1, 'L_k2_wd')
    return k

def emit_wprep(k, base_id):
    k.label('L_k2_wp')
    if os.environ.get('WPPRIO', '0') != '0': k(f"s_setprio {os.environ.get('WPPRIO')}")
    if os.environ.get('EXP_NOWP'): k('s_endpgm')
    load_ptr(k, 4, 'wg'); load_ptr(k, 8, 'wu'); load_ptr(k, 12, 'ws')
    k(f's_sub_u32 s3, s2, {base_id}')
    k('s_mul_hi_u32 s16, s3, 0x33333334')
    k('s_mul_i32 s17, s16, 5\ns_sub_u32 s17, s3, s17       ; dq')
    k('v_and_b32 v1, 63, v0            ; lane')
    k('v_lshrrev_b32 v2, 6, v0\nv_readfirstlane_b32 s18, v2     ; w')
    k('v_lshrrev_b32 v3, 3, v1\nv_and_b32 v4, 7, v1')
    k('v_lshrrev_b32 v5, 4, v1\nv_and_b32 v5, 1, v5\nv_lshlrev_b32 v5, 1, v5\nv_xor_b32 v4, v4, v5')
    k('v_xor_b32 v5, 4, v4')
    k('v_mul_u32_u24 v3, 3072, v3')
    k('v_lshl_add_u32 v4, v4, 4, v3')
    k('v_lshl_add_u32 v5, v5, 4, v3')
    k('s_mul_i32 s19, s17, 128*3072\ns_lshl_b32 s20, s16, 7\ns_add_u32 s19, s19, s20')
    k('s_mul_i32 s20, s18, 4*24576\ns_add_u32 s19, s19, s20')
    k('s_lshl_b32 s21, s18, 12')
    k('s_lshl_b32 s22, s17, 9\nv_lshlrev_b32 v6, 2, v0\nv_add_u32 v6, s22, v6     ; d*4')
    k('s_waitcnt lgkmcnt(0)')
    srd_fin(k, 4, SZ['wg']); srd_fin(k, 8, SZ['wu'])
    k(f's_add_u32 s24, s12, {WS_MODP}\ns_addc_u32 s25, s13, 0\ns_mov_b32 s26, 61440\ns_mov_b32 s27, {SRD3:#x}')
    for kq in range(4):
        k(f's_mov_b32 s23, {kq*15360 + 3*2560}')
        k(f'buffer_load_dword v{8+kq}, v6, s[24:27], s23 offen')
        k(f'buffer_load_dword v{12+kq}, v6, s[24:27], s23 offen offset:2560')
    for q in range(4):
        k(f's_add_u32 m0, s21, {q*1024}')
        k(f's_add_u32 s23, s19, {q*24576}')
        k(f'buffer_load_dwordx4 v4, s[4:7], s23 offen{NT} lds')
        k(f's_add_u32 m0, s21, {q*1024 + 16384}')
        k('s_nop 0')
        k(f'buffer_load_dwordx4 v5, s[8:11], s23 offen{NT} lds')
    k(f's_add_u32 s28, s12, {WS_WP}\ns_addc_u32 s29, s13, 0\ns_mov_b32 s30, 3932160\ns_mov_b32 s31, {SRD3:#x}')
    k(f's_add_u32 s32, s12, {WS_PQ}\ns_addc_u32 s33, s13, 0\ns_mov_b32 s34, 122880\ns_mov_b32 s35, {SRD3:#x}')
    k('s_waitcnt vmcnt(8)')
    k('v_add_f32 v8, v8, v9\nv_add_f32 v10, v10, v11\nv_add_f32 v12, v12, v13\nv_add_f32 v14, v14, v15')
    k('v_add_f32 v8, v8, v10\nv_add_f32 v12, v12, v14')
    k('v_cvt_pk_bf16_f32 v8, v8, v12')
    k('v_and_b32 v12, 0xffff0000, v8\nv_add_f32 v12, 1.0, v12\nv_cvt_pk_bf16_f32 v12, v12, v12\nv_lshlrev_b32 v12, 16, v12')
    k('v_lshlrev_b32 v9, 2, v0\nv_lshlrev_b32 v10, 1, v0')
    k('v_cmp_gt_u32 vcc, 128, v0')
    k('s_and_saveexec_b64 s[36:37], vcc')
    k('v_lshlrev_b32 v8, 16, v8')
    k('ds_write_b32 v9, v12 offset:32768')
    k('ds_write_b32 v9, v8 offset:33280')
    k('s_mov_b64 exec, s[36:37]')
    k('v_lshrrev_b32 v3, 4, v1          ; grp')
    k('v_and_b32 v7, 15, v1\nv_lshrrev_b32 v8, 2, v7      ; r\nv_and_b32 v7, 3, v7       ; c')
    k('v_lshrrev_b32 v9, 1, v3          ; g')
    k('v_and_b32 v10, 1, v3             ; grp&1')
    k('v_lshrrev_b32 v11, 1, v7         ; mat')
    k('v_lshrrev_b32 v12, 1, v8\nv_lshlrev_b32 v12, 1, v12      ; 2*((r>>1)&1)')
    k('v_xor_b32 v10, v10, v12\nv_lshlrev_b32 v12, 2, v11\nv_xor_b32 v10, v10, v12     ; X')
    k('v_lshlrev_b32 v10, 4, v10')
    k('v_lshl_add_u32 v10, v11, 14, v10         ; + mat*16384')
    k('v_lshl_add_u32 v12, v9, 3, v8            ; 8g + r')
    k('v_lshl_add_u32 v10, v12, 7, v10          ; + row*128')
    k('v_and_b32 v12, 1, v7\nv_lshl_add_u32 v10, v12, 3, v10')
    k('s_lshl_b32 s23, s18, 5\nv_xor_b32 v10, s23, v10      ; ^ 32*tl')
    k('v_lshlrev_b32 v11, 5, v9\nv_lshlrev_b32 v12, 4, v9')
    k('s_lshl_b32 s23, s16, 2\ns_add_u32 s23, s23, s18        ; T')
    k('s_mul_i32 s38, s17, 8*96\ns_add_u32 s38, s38, s23\ns_lshl_b32 s38, s38, 10')
    k('v_lshlrev_b32 v13, 4, v1')
    k('s_mov_b32 s39, 0x3f803f80')
    k('v_mov_b32 v14, 0\nv_mov_b32 v15, 0\nv_mov_b32 v98, 0\nv_mov_b32 v99, 0')
    k('s_waitcnt vmcnt(0) lgkmcnt(0)\ns_barrier')
    def wp_reads(ksl):
        b = 16 + 36 * (ksl & 1)
        k(f'ds_read_b64_tr_b16 v[{b}:{b+1}], v10 offset:{ksl*2048}')
        k(f'ds_read_b64_tr_b16 v[{b+2}:{b+3}], v10 offset:{ksl*2048+512}')
        k(f'ds_read_b128 v[{b+4}:{b+7}], v11 offset:{32768 + ksl*64}')
        k(f'ds_read_b128 v[{b+8}:{b+11}], v11 offset:{32768 + ksl*64 + 16}')
        k(f'ds_read_b128 v[{b+12}:{b+15}], v11 offset:{33280 + ksl*64}')
        k(f'ds_read_b128 v[{b+16}:{b+19}], v11 offset:{33280 + ksl*64 + 16}')
    wp_reads(0)
    for ksl in range(8):
        b = 16 + 36 * (ksl & 1)
        if ksl < 7:
            wp_reads(ksl + 1)
            k('s_waitcnt lgkmcnt(6)')
        else:
            k('s_waitcnt lgkmcnt(0)')
        U = b + 20
        for j in range(4):
            k(f'v_lshlrev_b32 v{U+2*j}, 16, v{b+j}\nv_and_b32 v{U+1+2*j}, 0xffff0000, v{b+j}')
        for j in range(8):
            k(f'v_fma_f32 v{15 if j % 2 == 0 else 98}, v{U+j}, v{b+12+j}, v{15 if j % 2 == 0 else 98}')
        for j in range(8):
            k(f'v_mul_f32 v{U+j}, v{U+j}, v{b+4+j}')
        for j in range(4):
            k(f'v_cvt_pk_bf16_f32 v{b+28+j}, v{U+2*j}, v{U+1+2*j}')
        for j in range(8):
            k(f'v_add_f32 v{14 if j % 2 == 0 else 99}, v{14 if j % 2 == 0 else 99}, v{U+j}')
        k(f'buffer_store_dwordx4 v[{b+28}:{b+31}], v13, s[28:31], s38 offen{WT}')
        k(f's_add_u32 s38, s38, {96*1024}')
    k('v_add_f32 v14, v14, v99\nv_add_f32 v15, v15, v98')
    k('v_mov_b32 v16, v14\nv_mov_b32 v17, v15')
    k('v_permlane32_swap_b32 v14, v16\nv_permlane32_swap_b32 v15, v17')
    k('v_add_f32 v14, v14, v16\nv_add_f32 v15, v15, v17')
    k('s_mul_i32 s38, s17, 96\ns_add_u32 s38, s38, s23\ns_lshl_b32 s38, s38, 8       ; (dq*96+T)*256')
    k('v_lshlrev_b32 v13, 3, v1')
    k('v_cmp_gt_u32 vcc, 32, v1')
    k('s_and_saveexec_b64 s[36:37], vcc')
    k(f'buffer_store_dwordx2 v[14:15], v13, s[32:35], s38 offen{WT}')
    k('s_mov_b64 exec, s[36:37]')
    if STAMPS: k('s_waitcnt vmcnt(0)')
    stamp_end(k, 1)
    k('s_endpgm')
```
